```python
import torch

def _softmax(x, axis=-1):
    return torch.softmax(x, dim=axis)
def _gelu(x):
    return torch.nn.functional.gelu(x, approximate="tanh")
def _silu(x):
    return torch.nn.functional.silu(x)
def _sigmoid(x):
    return torch.sigmoid(x)
def _layernorm(x, axis=-1, eps=1e-5):
    m = x.mean(dim=axis, keepdim=True)
    v = x.var(dim=axis, keepdim=True, unbiased=False)
    return (x - m) / torch.sqrt(v + eps)
def _scatter_add(tgt, idx, src, axis=0):
    return tgt.clone().index_add_(axis, idx, src)
def _segment_sum(src, seg, n):
    out = torch.zeros((n,) + src.shape[1:], dtype=src.dtype)
    return out.index_add_(0, seg, src)
def _pad(x, pw):
    flat = tuple(v for pair in reversed(pw) for v in pair)
    return torch.nn.functional.pad(x, flat)

kernel_name = 'sequential_preLN__sliding_block_cached__dense_activation_mish__decode'

def setup_inputs():

    _w = (lambda a: (lambda t: t.to(torch.bfloat16) if t.is_floating_point() else t)(torch.as_tensor(a)))
    def _A_setup():
        B, Sq, D = 1, 1, 448
        Hq, Hkv, Sk, Dh = 16, 8, 8192, 256
        assert Hq % Hkv == 0, (Hq, Hkv)
        return {
            "x": _w((lambda *s: torch.randn(*s, dtype=torch.bfloat16) * 0.05)(B, Sq, D)),
            "k_cache": _w((lambda *s: torch.randn(*s, dtype=torch.bfloat16) * 1.6)(B, Hkv, Sk, Dh)),
            "v_cache": _w((lambda *s: torch.randn(*s, dtype=torch.bfloat16) * 0.4)(B, Hkv, Sk, Dh)),
            "wq": _w((lambda *s: torch.randn(*s, dtype=torch.bfloat16) * 1.6)(D, Hq * Dh) * (D ** -0.5)),
            "wo": _w((lambda *s: torch.randn(*s, dtype=torch.bfloat16) * 0.4)(Hq * Dh, D) * ((Hq * Dh) ** -0.5)),
        }
    _A_in = _A_setup()

    def _B_setup():
        B, S, D, F = 1, 1, 448, 1792
        return {
            "x": _w((lambda *s: torch.randn(*s, dtype=torch.bfloat16) * 0.05)(B, S, D)),
            "w1": _w((lambda *s: torch.randn(*s, dtype=torch.bfloat16) * 0.8)(D, F) * (D ** -0.5)),
            "b1": _w((lambda *s: torch.randn(*s, dtype=torch.bfloat16) * 0.2)(F)),
            "w2": _w((lambda *s: torch.randn(*s, dtype=torch.bfloat16) * 0.1)(F, D) * (F ** -0.5)),
        }
    _B_in = _B_setup()

    return {
        "A_x": _A_in["x"],
        "A_k_cache": _A_in["k_cache"],
        "A_v_cache": _A_in["v_cache"],
        "A_wq": _A_in["wq"],
        "A_wo": _A_in["wo"],
        "B_x": _B_in["x"],
        "B_w1": _B_in["w1"],
        "B_b1": _B_in["b1"],
        "B_w2": _B_in["w2"],
    }

def reference(A_x, A_k_cache, A_v_cache, A_wq, A_wo, B_x, B_w1, B_b1, B_w2):
    def _A_ref(x, k_cache, v_cache, wq, wo):
        B, Sq, D = x.shape
        Hq, Dh = 16, 256
        Hkv, Sk = k_cache.shape[1], k_cache.shape[2]
        W = min(4096, max(256, Sk // 4))
        rep = Hq // Hkv
        q = (lambda x, *d: x.permute(*d))((x @ wq).reshape(B, Sq, Hq, Dh), 0, 2, 1, 3)
        k = (lambda x, n, axis: torch.repeat_interleave(x, n, dim=axis))(k_cache[:, :, Sk - W:, :], rep, axis=1)
        v = (lambda x, n, axis: torch.repeat_interleave(x, n, dim=axis))(v_cache[:, :, Sk - W:, :], rep, axis=1)
        scores = torch.einsum("bhqd,bhkd->bhqk", q, k) * (Dh ** -0.5)
        p = _softmax(scores, axis=-1)
        o = torch.einsum("bhqk,bhkd->bhqd", p, v)
        return (lambda x, *d: x.permute(*d))(o, 0, 2, 1, 3).reshape(B, Sq, Hq * Dh) @ wo

    def _B_ref(x, w1, b1, w2):
        h = torch.einsum("bsd,df->bsf", x, w1) + b1
        sp = torch.log1p(torch.exp(-torch.abs(h))) + torch.where(h > 0, h, torch.zeros_like(h))
        act = h * torch.tanh(sp)
        return torch.einsum("bsf,fd->bsd", act, w2)

    x = A_x
    h = x + _A_ref(_layernorm(x, axis=-1), A_k_cache, A_v_cache, A_wq, A_wo)
    h2 = h + _B_ref(_layernorm(h, axis=-1), B_w1, B_b1, B_w2)
    return h2
```

```python
import re

TRANS = ("v_exp_f32", "v_log_f32", "v_rcp_f32", "v_rsq_f32", "v_sqrt_f32", "v_sin_f32", "v_cos_f32")
_REG = re.compile(r"^(-|\|)?(abs\()?([vsa])(?:(\d+)|\[(\d+):(\d+)\])\)?\|?$")

def regs_of(tok):
    tok = tok.strip()
    if tok == "vcc": return {("s", 106), ("s", 107)}
    if tok == "vcc_lo": return {("s", 106)}
    if tok == "vcc_hi": return {("s", 107)}
    if tok == "exec": return {("s", 126), ("s", 127)}
    if tok == "m0": return {("s", 124)}
    m = _REG.match(tok)
    if not m: return set()
    f = m.group(3)
    if m.group(4) is not None: return {(f, int(m.group(4)))}
    return {(f, i) for i in range(int(m.group(5)), int(m.group(6)) + 1)}

def split_ops(s):
    out, depth, cur = [], 0, ""
    for ch in s:
        if ch in "[(": depth += 1
        if ch in "])": depth -= 1
        if ch == "," and depth == 0:
            out.append(cur.strip()); cur = ""
        else: cur += ch
    if cur.strip(): out.append(cur.strip())
    return out

class Ins:
    def __init__(self, text):
        self.text = text
        t = text.split(";")[0].strip()
        parts = t.split(None, 1)
        self.mn = parts[0]
        rest = parts[1] if len(parts) > 1 else ""
        ops = split_ops(rest)
        self.mods = ""
        if ops:
            last = ops[-1].split(None, 1)
            if len(last) > 1 and not ops[-1].startswith("quad_perm"):
                ops[-1] = last[0]; self.mods = last[1]
        self.ops = ops
        mn = self.mn
        self.valu = mn.startswith("v_")
        self.mfma = mn.startswith("v_mfma")
        self.dot = mn.startswith("v_dot")
        self.trans = any(mn.startswith(x) for x in TRANS)
        self.dpp = "_dpp" in mn or "quad_perm" in text or "row_" in text
        self.permlane = mn.startswith("v_permlane")
        self.rdlane = mn.startswith("v_readlane") or mn.startswith("v_readfirstlane")
        self.vmem = mn.startswith(("global_", "buffer_", "flat_"))
        self.ds = mn.startswith("ds_")
        self.salu = mn.startswith("s_")
        self.store = self.vmem and ("store" in mn or "atomic" in mn)
        w, r = set(), set()
        if self.valu:
            if self.permlane:
                for o in ops[:2]: w |= regs_of(o); r |= regs_of(o)
            elif mn.startswith("v_cmp"):
                w |= regs_of(ops[0])
                for o in ops[1:]: r |= regs_of(o)
            elif mn.startswith(("v_add_co", "v_sub_co", "v_addc_co", "v_subb_co")):
                w |= regs_of(ops[0]) | regs_of(ops[1])
                for o in ops[2:]: r |= regs_of(o)
            else:
                w |= regs_of(ops[0])
                for o in ops[1:]: r |= regs_of(o)
                if mn.startswith(("v_fmac", "v_dot2c", "v_writelane")) or self.dpp: r |= regs_of(ops[0])
                if mn.startswith("v_cndmask") and len(ops) == 3: r |= regs_of("vcc")
        elif self.vmem:
            if "load" in mn and "lds" not in mn:
                w |= regs_of(ops[0])
                for o in ops[1:]: r |= regs_of(o)
            else:
                for o in ops: r |= regs_of(o)
        elif self.ds:
            if mn.startswith(("ds_read", "ds_bpermute", "ds_permute", "ds_swizzle")) or "_rtn" in mn:
                w |= regs_of(ops[0])
                for o in ops[1:]: r |= regs_of(o)
            else:
                for o in ops: r |= regs_of(o)
        elif self.salu:
            if mn.startswith(("s_cmp", "s_bitcmp", "s_cbranch", "s_branch", "s_waitcnt", "s_nop", "s_barrier", "s_endpgm", "s_sleep", "s_setprio")):
                for o in ops: r |= regs_of(o)
            else:
                if ops: w |= regs_of(ops[0])
                for o in ops[1:]: r |= regs_of(o)
                if "saveexec" in mn: w |= regs_of("exec"); r |= regs_of("exec")
        self.w, self.r = w, r
        self.srcc = regs_of(ops[3]) if self.mfma and len(ops) > 3 else set()
        self.srcab = (regs_of(ops[1]) | regs_of(ops[2])) if self.mfma else set()
        if self.dot:
            if mn.startswith("v_dot2c"):
                self.dsrcc = regs_of(ops[0]); self.dsrcab = regs_of(ops[1]) | regs_of(ops[2])
            else:
                self.dsrcc = regs_of(ops[3]); self.dsrcab = regs_of(ops[1]) | regs_of(ops[2])
        self.states = 1
        if mn == "s_nop": self.states = int(ops[0], 0) + 1
        self.wide_store_data = set()
        if self.store and ("x3" in mn or "x4" in mn):
            self.wide_store_data = regs_of(ops[1]) if mn.startswith("global_") else regs_of(ops[0])
        if self.ds and mn in ("ds_write_b128", "ds_write_b96"):
            pass

def mfma_passes(mn):
    if "16x16x32" in mn or "16x16x16" in mn: return 4
    if "32x32x16" in mn or "32x32x8" in mn: return 8
    if "4x4x4" in mn: return 2
    raise ValueError(mn)

def need(p, c):
    n = 0
    pv = {x for x in p.w if x[0] in "va"}
    ps = {x for x in p.w if x[0] == "s"}
    if p.valu and not p.mfma:
        if c.valu and c.dpp and (pv & c.r): n = max(n, 2)
        if c.permlane and (pv & c.r): n = max(n, 2)
        if c.rdlane and (pv & c.r): n = max(n, 1)
        if p.trans and c.valu and not c.trans and (pv & c.r): n = max(n, 1)
        if p.trans and (c.vmem or c.ds) and (pv & c.r): n = max(n, 1)
        if c.mfma and (pv & c.r): n = max(n, 2)
        if ps:
            if c.valu and (ps & c.r): n = max(n, 4 if c.rdlane or c.mn.startswith("v_writelane") else 2)
            if c.vmem and (ps & c.r): n = max(n, 5)
            if c.salu and (ps & c.r): n = max(n, 1)
            if (ps & regs_of("exec")):
                if c.dpp: n = max(n, 5)
                if c.mfma or c.permlane or c.rdlane: n = max(n, 4)
        if p.dot:
            if c.dot and c.mn == p.mn:
                if pv & c.dsrcab: n = max(n, 3)
            else:
                if pv & (c.r | c.w): n = max(n, 3)
    if p.mfma:
        ps_ = mfma_passes(p.mn)
        tab_ab = {2: 5, 4: 8, 8: 12}[ps_]
        tab_ov = {2: 4, 4: 6, 8: 10}[ps_]
        if c.mfma:
            if pv & c.srcab: n = max(n, tab_ab)
            if pv & c.srcc:
                if c.srcc == pv and mfma_passes(c.mn) == ps_: n = max(n, 2 if ps_ == 2 else 0)
                else: n = max(n, tab_ov)
            elif pv & c.w: n = max(n, tab_ab)
        else:
            if pv & (c.r | c.w): n = max(n, tab_ab)
        if c.valu and not c.mfma and (p.srcc & c.w): n = max(n, {2: 1, 4: 3, 8: 7}[ps_])
    if p.wide_store_data and (p.wide_store_data & c.w): n = max(n, 2)
    if p.salu and ("s", 124) in p.w and ((c.vmem and "lds" in c.text) or "addtid" in c.mn): n = max(n, 1)
    return n

class Asm:
    def __init__(self):
        self.lines = []
        self.hist = []
        self.nops = 0
    def raw(self, s):
        self.lines.append(s)
    def label(self, name):
        self.lines.append(name + ":")
    def flush_hist(self):
        self.hist = []
    def __call__(self, text):
        for t in text.strip().split("\n"):
            t = t.strip()
            if not t: continue
            if t.startswith(";"): self.lines.append("    " + t); continue
            if t.endswith(":"): self.label(t[:-1]); continue
            if t.startswith("."): self.lines.append(t); continue
            c = Ins(t)
            dist, req = 0, 0
            for p in reversed(self.hist):
                nd = need(p, c)
                if nd - dist > req: req = nd - dist
                dist += p.states
                if dist > 20: break
            while req > 0:
                k = min(req, 16)
                nop = Ins(f"s_nop {k-1}")
                self.lines.append(f"    s_nop {k-1}")
                self.hist.append(nop); self.nops += 1
                req -= k
            self.lines.append("    " + t)
            self.hist.append(c)
            if len(self.hist) > 40: self.hist = self.hist[-40:]
    def text(self):
        return "\n".join(self.lines) + "\n"
```

```python
import sys, struct, math
sys.path.insert(0, "gen")
from asmlib import Asm

NAME = "sequential_preLN__sliding_block_cached__dense_activation_mish__decode"
opts = dict(x.split("=") for x in sys.argv[2:])
OUTP = sys.argv[1]
DEBUG = int(opts.get("dbg", 0))
NT = " nt" if int(opts.get("nt", 1)) else ""
NTW = " nt" if int(opts.get("ntw", 1)) else ""
KPOLL = int(opts.get("kpoll", 2))
SPIN = 100000

def f32(x): return "0x%08x" % struct.unpack("<I", struct.pack("<f", x))[0]
LOG2E = math.log2(math.e)

QG = 0x10000; LSE = 0x30000; MB = 0x100000; TS = 0x400000
L_S1 = 0x000; L_FL = 0x400; L_Q = 0x500; L_SC = 0x900; L_RED = 0xB00; L_ST = 0x1300; L_H = 0x1400; L_Z = 0x1B00
LDS_BYTES = 0x2000
X, K, V, WQ, WO, W1, B1, W2, OUT, DBG, WS = "s[8:9]", "s[10:11]", "s[12:13]", "s[14:15]", "s[16:17]", "s[20:21]", "s[22:23]", "s[24:25]", "s[26:27]", "s[28:29]", "s[30:31]"
SEL_LO, SEL_HI, MHI = "s40", "s41", "s42"
R = lambda a_, n: list(range(a_, a_ + n))

a = Asm()
uid = [0]
def lab(p):
    uid[0] += 1
    return f"L_{p}_{uid[0]}"

def ts(k):
    if DEBUG: a(f"s_memrealtime s[{64+2*k}:{65+2*k}]")

def end_wave():
    if DEBUG:
        ts(15)
        a("s_branch L_dump")
    else:
        a("s_endpgm")
    a.flush_hist()

DPPM = "row_mask:0xf bank_mask:0xf"
def wave_sum2(x, y, sx, sy, skip_quad=False):
    steps = ("quad_perm:[1,0,3,2]", "quad_perm:[2,3,0,1]", "row_half_mirror", "row_mirror")
    if skip_quad: steps = steps[2:]
    for m in steps:
        a(f"v_add_f32_dpp {x}, {x}, {x} {m} {DPPM}")
        a(f"v_add_f32_dpp {y}, {y}, {y} {m} {DPPM}")
    a(f"v_add_f32_dpp {x}, {x}, {x} row_bcast:15 row_mask:0xa bank_mask:0xf")
    a(f"v_add_f32_dpp {y}, {y}, {y} row_bcast:15 row_mask:0xa bank_mask:0xf")
    a(f"v_add_f32_dpp {x}, {x}, {x} row_bcast:31 row_mask:0xc bank_mask:0xf")
    a(f"v_add_f32_dpp {y}, {y}, {y} row_bcast:31 row_mask:0xc bank_mask:0xf")
    a(f"v_readlane_b32 {sx}, {x}, 63")
    a(f"v_readlane_b32 {sy}, {y}, 63")

def bf16r(x):
    a(f"v_cvt_pk_bf16_f32 {x}, {x}, {x}")
    a(f"v_and_b32 {x}, {MHI}, {x}")

def ln_finish(vsum, vsq, vm, vr, t):
    a(f"v_mov_b32 {t}, {f32(1.0/448)}")
    a(f"v_mul_f32 {vm}, {vsum}, {t}")
    a(f"v_mul_f32 {vr}, {vsq}, {t}")
    a(f"v_fma_f32 {vr}, -{vm}, {vm}, {vr}")
    a(f"v_max_f32 {vr}, 0, {vr}")
    a(f"v_cvt_pk_bf16_f32 {t}, {vm}, {vr}")
    a(f"v_lshlrev_b32 {vm}, 16, {t}")
    a(f"v_and_b32 {vr}, {MHI}, {t}")
    a(f"v_add_f32 {vr}, {f32(1e-5)}, {vr}")
    bf16r(vr)
    a(f"v_sqrt_f32 {vr}, {vr}")
    bf16r(vr)
    a(f"v_rcp_f32 {vr}, {vr}")

def ln_apply(lo, hi, vm, vr, dst):
    a(f"v_sub_f32 {lo}, {lo}, {vm}")
    a(f"v_sub_f32 {hi}, {hi}, {vm}")
    a(f"v_cvt_pk_bf16_f32 {dst}, {lo}, {hi}")
    a(f"v_lshlrev_b32 {lo}, 16, {dst}")
    a(f"v_and_b32 {hi}, {MHI}, {dst}")
    a(f"v_mul_f32 {lo}, {lo}, {vr}")
    a(f"v_mul_f32 {hi}, {hi}, {vr}")
    a(f"v_cvt_pk_bf16_f32 {dst}, {lo}, {hi}")

def perm_pair(A, B, outs):
    for k in range(4):
        a(f"v_perm_b32 v{outs[2*k]}, v{B+k}, v{A+k}, {SEL_LO}")
        a(f"v_perm_b32 v{outs[2*k+1]}, v{B+k}, v{A+k}, {SEL_HI}")

def reduce8_hi(acc, dst, full_row=False):
    for k in range(4):
        a(f"v_permlane32_swap_b32 v{acc[2*k]}, v{acc[2*k+1]}")
    for k in range(4):
        a(f"v_add_f32 v{acc[2*k]}, v{acc[2*k]}, v{acc[2*k+1]}")
    a(f"v_permlane16_swap_b32 v{acc[0]}, v{acc[2]}")
    a(f"v_permlane16_swap_b32 v{acc[4]}, v{acc[6]}")
    a(f"v_add_f32 v{acc[0]}, v{acc[0]}, v{acc[2]}")
    a(f"v_add_f32 v{acc[4]}, v{acc[4]}, v{acc[6]}")
    if full_row:
        for m in ("row_ror:4", "row_ror:8"):
            a(f"v_add_f32_dpp v{acc[0]}, v{acc[0]}, v{acc[0]} {m} {DPPM}")
            a(f"v_add_f32_dpp v{acc[4]}, v{acc[4]}, v{acc[4]} {m} {DPPM}")
    else:
        a(f"v_add_f32_dpp v{dst}, v{acc[0]}, v{acc[0]} row_ror:8 row_mask:0xf bank_mask:0x3")
        a(f"v_add_f32_dpp v{dst}, v{acc[4]}, v{acc[4]} row_ror:8 row_mask:0xf bank_mask:0xc")

def dots16(P0, P1, x0, x1, acc):
    for j in range(8):
        a(f"v_dot2_f32_bf16 v{acc[j]}, v{P0[j]}, {x0}, 0")
    for j in range(8):
        a(f"v_dot2_f32_bf16 v{acc[j]}, v{P1[j]}, {x1}, v{acc[j]}")

def sentinel_check(regs, t):
    r = list(regs)
    a(f"v_max3_u32 {t}, v{r[0]}, v{r[1]}, v{r[2]}")
    r = r[3:]
    while len(r) >= 2:
        a(f"v_max3_u32 {t}, {t}, v{r[0]}, v{r[1]}"); r = r[2:]
    if r: a(f"v_max_u32 {t}, {t}, v{r[0]}")
    a(f"v_cmp_eq_u32 vcc, -1, {t}")
    a(f"s_cmp_eq_u64 vcc, 0")

def spin_head(p):
    lp, dn = lab(p), lab(p + "d")
    a(f"s_mov_b32 s38, {SPIN}")
    a(f"{lp}:")
    return lp, dn

def spin_tail(h):
    lp, dn = h
    a(f"s_cbranch_scc1 {dn}")
    a("s_sub_u32 s38, s38, 1")
    a("s_cmp_eq_u32 s38, 0")
    a(f"s_cbranch_scc0 {lp}")
    a(f"{dn}:")

def xlane(op, x, t, steps):
    for s in steps:
        if s in ("p16", "p32"):
            a(f"v_mov_b32 {t}, {x}")
            a(f"v_permlane{s[1:]}_swap_b32 {x}, {t}")
            a(f"{op} {x}, {x}, {t}")
        else:
            m = {"q3": "quad_perm:[3,2,1,0]", "q1": "quad_perm:[1,0,3,2]", "q2": "quad_perm:[2,3,0,1]", "hm": "row_half_mirror"}[s]
            a(f"{op}_dpp {x}, {x}, {x} {m} {DPPM}")

hdr = open(f"cdna_kernels/{NAME}.s.ref").read().split("; Override launch")[0]
a.raw(hdr.rstrip())
a.raw(f"; @launch grid=(256,1,1) block=(512,1,1) lds={LDS_BYTES}")
a.raw('.amdgcn_target "amdgcn-amd-amdhsa--gfx950"')
a.raw(".text")
a.raw(f".globl {NAME}_kernel\n.p2align 8\n.type {NAME}_kernel,@function\n{NAME}_kernel:")

a("s_cmp_ge_u32 s2, 256")
a("s_cbranch_scc1 L_end")
a("s_load_dwordx16 s[8:23], s[0:1], 0")
a("s_load_dwordx8 s[24:31], s[0:1], 64")
if DEBUG:
    for k in range(16): a(f"s_mov_b64 s[{64+2*k}:{65+2*k}], 0")
ts(0)
a("v_lshrrev_b32 v2, 6, v0")
a("v_and_b32 v1, 63, v0")
a("s_and_b32 s4, s2, 7")
a("s_lshr_b32 s5, s2, 3")
a("v_readfirstlane_b32 s3, v2")
a("v_lshrrev_b32 v3, 3, v1")
a("v_and_b32 v4, 7, v1")
a("v_mov_b32 v5, 0")
a("v_lshlrev_b32 v6, 2, v1")
a(f"ds_write_b32 v6, v5 offset:{L_FL}")
a(f"s_mov_b32 {SEL_LO}, 0x05040100")
a(f"s_mov_b32 {SEL_HI}, 0x07060302")
a(f"s_mov_b32 {MHI}, 0xffff0000")
a("s_lshl_b32 s44, s4, 5")
a("s_add_u32 s44, s44, s5")
a("s_lshl_b32 s44, s44, 12")
a(f"s_add_u32 s44, s44, {MB}")
a("s_lshl_b32 s43, s4, 22")
a("s_lshl_b32 s7, s5, 15")
a("s_add_u32 s43, s43, s7")
a(f"s_add_u32 s43, s43, {6144*512}")
a("s_cmp_ge_u32 s3, 4")
a("s_cbranch_scc1 L_kwave")

a("s_lshr_b32 s45, s5, 3")
a("s_and_b32 s46, s5, 7")
a("v_lshl_add_u32 v5, v0, 4, s44")
a("v_mov_b32 v8, -1\nv_mov_b32 v9, -1\nv_mov_b32 v10, -1\nv_mov_b32 v11, -1")
a("v_min_u32 v6, 55, v1")
a("v_lshlrev_b32 v6, 4, v6")
a("s_mul_i32 s47, s45, 112")
a("s_lshl_b32 s48, s3, 5")
a("s_add_u32 s48, s48, s47")
a("s_add_u32 s49, s48, 16")
a("s_cmp_eq_u32 s3, 3")
a("s_cselect_b32 s49, s48, s49")
a("s_cselect_b32 s50, 0, -1")
a("v_lshlrev_b32 v7, 2, v3")
a("s_lshl_b32 s51, s48, 1")
a("s_lshl_b32 s52, s49, 1")
a("v_add_u32 v12, s51, v7")
a("v_add_u32 v13, s52, v7")
a("v_lshlrev_b32 v14, 14, v3")
a("v_lshl_add_u32 v14, v4, 4, v14")
a("s_lshl_b32 s51, s4, 10")
a("s_lshl_b32 s52, s46, 7")
a("s_add_u32 s51, s51, s52")
a("s_lshl_b32 s52, s48, 13")
a("s_add_u32 s52, s52, s51")
a("s_lshl_b32 s53, s49, 13")
a("s_add_u32 s53, s53, s51")
a("v_add_u32 v32, s52, v14")
a("v_add_u32 v33, 0x2000, v32")
a("v_add_u32 v34, s53, v14")
a("v_add_u32 v35, 0x2000, v34")
a("s_lshl_b32 s7, s4, 8")
a("s_lshl_b32 s51, s5, 2")
a("s_add_u32 s7, s7, s51")
a(f"s_add_u32 s39, s7, {LSE}")
a("v_and_b32 v7, 1, v0")
a("v_lshl_add_u32 v7, v7, 7, s39")
a("s_waitcnt lgkmcnt(0)")
a("s_barrier")
a(f"s_load_dword s6, {WS}, 0")
a(f"global_store_dwordx4 v5, v[8:11], {WS} sc1")
a(f"global_store_dword v7, v8, {WS} sc1")
a(f"global_load_dwordx4 v[36:39], v6, {X}")
a(f"global_load_dword v12, v12, {X}")
a(f"global_load_dword v13, v13, {X}")
a(f"global_load_dwordx4 v[16:19], v32, {WQ}{NTW}")
a(f"global_load_dwordx4 v[20:23], v33, {WQ}{NTW}")
a(f"global_load_dwordx4 v[24:27], v34, {WQ}{NTW}")
a(f"global_load_dwordx4 v[28:31], v35, {WQ}{NTW}")
a("s_branch L_common2")

a.flush_hist()
a("L_kwave:")
a("s_sub_u32 s45, s3, 4")
a("s_getpc_b64 s[36:37]")
a("L_pc:")
a("v_subrev_u32 v5, 256, v0")
a("v_lshlrev_b32 v5, 7, v5")
a("v_cmp_gt_u32 vcc, L_codeend-L_pc, v5")
a("v_cndmask_b32 v5, 0, v5, vcc")
a("global_load_dword v63, v5, s[36:37]")
a("s_lshl_b32 s47, s45, 13")
a("s_add_u32 s46, s43, s47")
a("v_lshlrev_b32 v6, 9, v3")
a("v_lshl_add_u32 v6, v4, 4, v6")
a("v_add_u32 v6, s46, v6")
a("v_add_u32 v7, 0x1000, v6")
a("s_waitcnt lgkmcnt(0)")
a("s_barrier")
a(f"s_load_dword s6, {WS}, 0")
for grp in range(2):
    for j in range(4):
        r = 64 + (grp*4 + j)*4
        a(f"global_load_dwordx4 v[{r}:{r+3}], v{6+grp}, {K} offset:{j*128}{NT}")

a("L_common2:")
ts(1)
a("v_lshlrev_b32 v2, 3, v4")
a("v_bfe_u32 v5, v1, 3, 1")
a("v_lshl_add_u32 v2, v5, 2, v2")
a("v_bfe_u32 v5, v1, 4, 1")
a("v_lshl_add_u32 v2, v5, 1, v2")
a("v_lshrrev_b32 v5, 5, v1")
a("v_add_u32 v2, v2, v5")
a("s_cmp_ge_u32 s3, 4")
a("s_cbranch_scc1 L_kdispatch")

a("s_lshl_b32 s52, s3, 7")
a("s_add_u32 s51, s43, s52")
a("v_bfe_u32 v5, v1, 3, 1")
a("v_lshlrev_b32 v5, 14, v5")
a("v_lshrrev_b32 v6, 4, v1")
a("v_lshl_add_u32 v5, v6, 12, v5")
a("v_lshl_add_u32 v5, v4, 4, v5")
a("v_add_u32 v7, s51, v5")
a("s_waitcnt vmcnt(6)")
for k in range(4):
    a(f"v_lshlrev_b32 v{40+2*k}, 16, v{36+k}")
    a(f"v_and_b32 v{41+2*k}, {MHI}, v{36+k}")
a("v_add_f32 v48, v40, v41")
a("v_mul_f32 v49, v40, v40")
a("v_fmac_f32 v49, v41, v41")
for k in range(2, 8):
    a(f"v_add_f32 v48, v48, v{40+k}")
    a(f"v_fmac_f32 v49, v{40+k}, v{40+k}")
a("v_cmp_gt_u32 vcc, 56, v1")
a("v_cndmask_b32 v48, 0, v48, vcc")
a("v_cndmask_b32 v49, 0, v49, vcc")
wave_sum2("v48", "v49", "s54", "s55")
ln_finish("s54", "s55", "v50", "v51", "v52")
a("s_waitcnt vmcnt(4)")
for r in (12, 13):
    a(f"v_lshlrev_b32 v40, 16, v{r}")
    a(f"v_and_b32 v41, {MHI}, v{r}")
    ln_apply("v40", "v41", "v50", "v51", f"v{r}")
a("v_and_b32 v13, s50, v13")
a("s_waitcnt vmcnt(2)")
ts(2)
perm_pair(16, 20, R(40, 8))
a("s_waitcnt vmcnt(0)")
perm_pair(24, 28, R(48, 8))
dots16(R(40, 8), R(48, 8), "v12", "v13", R(56, 8))
reduce8_hi(R(56, 8), 40)
a("s_waitcnt lgkmcnt(0)")
a("s_add_u32 s6, s6, 1")
a("s_cmp_eq_u32 s3, 0")
a("s_cbranch_scc1 L_s1_w0")
a("v_lshlrev_b32 v5, 2, v0")
a(f"ds_write_b32 v5, v40 offset:{L_S1}")
a("s_lshl_b32 s7, s3, 2")
a("v_mov_b32 v5, s7")
a("v_mov_b32 v6, 1")
a(f"ds_write_b32 v5, v6 offset:{L_FL}")
a("s_branch L_s1_done")
a.flush_hist()
a("L_s1_w0:")
a("v_lshlrev_b32 v5, 2, v1")
a("v_mov_b32 v6, 0")
a("s_lshl_b32 s7, s4, 14")
a("s_lshr_b32 s51, s46, 1")
a("s_lshl_b32 s51, s51, 12")
a("s_add_u32 s7, s7, s51")
a("s_lshl_b32 s51, s45, 10")
a("s_add_u32 s7, s7, s51")
a("s_and_b32 s51, s46, 1")
a("s_lshl_b32 s51, s51, 9")
a("s_add_u32 s7, s7, s51")
a(f"s_add_u32 s7, s7, {QG}")
a("v_lshl_add_u32 v8, v2, 3, s7")
h = spin_head("s1")
a(f"ds_read_b128 v[44:47], v6 offset:{L_FL}")
a(f"ds_read_b32 v41, v5 offset:{L_S1+256}")
a(f"ds_read_b32 v42, v5 offset:{L_S1+512}")
a(f"ds_read_b32 v43, v5 offset:{L_S1+768}")
a("s_waitcnt lgkmcnt(0)")
a("v_add3_u32 v44, v45, v46, v47")
a("v_cmp_ne_u32 vcc, 3, v44")
a("s_cmp_eq_u64 vcc, 0")
spin_tail(h)
a("v_add_f32 v40, v40, v41")
a("v_add_f32 v42, v42, v43")
a("v_add_f32 v40, v40, v42")
a("v_mov_b32 v41, s6")
a(f"global_store_dwordx2 v8, v[40:41], {WS} sc1")
a("L_s1_done:")
ts(3)
for i in range(8):
    a(f"global_load_dwordx4 v[{64+4*i}:{67+4*i}], v7, {V} offset:{i*512}{NT}")
a("s_cmp_lt_u32 s5, 14")
a("s_cbranch_scc1 L_v_wo")
a("s_cmp_lt_u32 s5, 21")
a("s_cbranch_scc1 L_v_ffn")
a("s_branch L_v_none")
a.flush_hist()
a("L_kdispatch:")
a("s_cmp_lt_u32 s5, 14")
a("s_cbranch_scc1 L_k_wo")
a("s_cmp_lt_u32 s5, 21")
a("s_cbranch_scc1 L_k_ffn")
a("s_branch L_k_none")
a.flush_hist()

NROLE = {"none": 0, "wo": 4, "ffn": 10}

def role_loads(role):
    if role == "wo":
        a("s_cmp_ge_u32 s5, 7")
        a("s_cselect_b32 s59, 1, 0")
        a("s_mul_i32 s7, s59, 7")
        a("s_sub_u32 s58, s5, s7")
        a("s_lshl_b32 s57, s4, 1")
        a("s_add_u32 s57, s57, s59")
        a("s_lshl_b32 s7, s57, 8")
        a("s_lshl_b32 s51, s3, 5")
        a("s_add_u32 s7, s7, s51")
        a("s_mul_i32 s7, s7, 896")
        a("s_lshl_b32 s51, s58, 7")
        a("s_add_u32 s7, s7, s51")
        a(f"v_mul_u32_u24 v5, {4*896}, v3")
        a("v_lshl_add_u32 v5, v4, 4, v5")
        a("v_add_u32 v5, s7, v5")
        for i in range(4):
            a(f"global_load_dwordx4 v[{8+4*i}:{11+4*i}], v5, {WO} offset:{i*896}{NTW}")
    elif role == "ffn":
        a("s_mul_i32 s57, s4, 7")
        a("s_add_u32 s57, s57, s5")
        a("s_sub_u32 s57, s57, 14")
        a("s_min_u32 s58, s3, 6")
        a(f"s_mul_i32 s7, s58, {64*3584}")
        a("s_lshl_b32 s51, s57, 6")
        a("s_add_u32 s7, s7, s51")
        a("v_lshrrev_b32 v43, 2, v1")
        a("v_and_b32 v44, 3, v1")
        a(f"v_mul_u32_u24 v5, {4*3584}, v43")
        a("v_lshl_add_u32 v5, v44, 4, v5")
        a("v_add_u32 v5, s7, v5")
        a("v_add_u32 v6, 7168, v5")
        a(f"global_load_dwordx4 v[8:11], v5, {W1}{NTW}")
        a(f"global_load_dwordx4 v[12:15], v5, {W1} offset:3584{NTW}")
        a(f"global_load_dwordx4 v[16:19], v6, {W1}{NTW}")
        a(f"global_load_dwordx4 v[20:23], v6, {W1} offset:3584{NTW}")
        a(f"s_mul_i32 s7, s57, {32*896}")
        a("s_lshl_b32 s51, s58, 7")
        a("s_add_u32 s7, s7, s51")
        a(f"v_mul_u32_u24 v5, {4*896}, v3")
        a("v_lshl_add_u32 v5, v4, 4, v5")
        a("v_add_u32 v5, s7, v5")
        for i in range(4):
            a(f"global_load_dwordx4 v[{24+4*i}:{27+4*i}], v5, {W2} offset:{i*896}{NTW}")
        a("v_lshl_add_u32 v5, v43, 3, s51")
        a(f"global_load_dwordx2 v[40:41], v5, {X}")
        a("v_lshl_add_u32 v45, v3, 2, v44")
        a("s_lshl_b32 s51, s57, 6")
        a("v_lshl_add_u32 v5, v45, 1, s51")
        a(f"global_load_ushort v42, v5, {B1}")

def v_tail(role):
    n = NROLE[role]
    a(f"L_v_{role}:")
    role_loads(role)
    a("v_lshrrev_b32 v5, 1, v1")
    a("v_xor_b32 v5, v5, v1")
    a("v_and_b32 v5, 1, v5")
    a("v_lshlrev_b32 v5, 8, v5")
    a("v_and_b32 v6, 1, v1")
    a("v_lshl_add_u32 v5, v6, 7, v5")
    a("v_lshrrev_b32 v6, 4, v1")
    a("v_lshl_add_u32 v5, v6, 5, v5")
    a("v_mov_b32 v6, 0")
    a("v_bfe_u32 v7, v1, 3, 1")
    a("v_lshlrev_b32 v7, 10, v7")
    a("v_lshl_add_u32 v7, v4, 5, v7")
    a("s_lshl_b32 s7, s3, 8")
    a("s_add_u32 s7, s7, s44")
    a("v_add_u32 v7, s7, v7")
    for t in range(3):
        a(f"s_waitcnt vmcnt({6-2*t+n})")
        if t == 0: ts(4)
        perm_pair(64+8*t, 68+8*t, [96+4*j+t for j in range(8)])
    ts(5)
    h = spin_head("sc")
    a(f"ds_read_b128 v[60:63], v6 offset:{L_FL+0x20}")
    a(f"ds_read_b128 v[48:51], v5 offset:{L_SC}")
    a(f"ds_read_b128 v[52:55], v5 offset:{L_SC+16}")
    a("s_waitcnt lgkmcnt(0)")
    a("v_add3_u32 v60, v60, v61, v62")
    a("v_add_u32 v60, v60, v63")
    a("v_cmp_ne_u32 vcc, 4, v60")
    a("s_cmp_eq_u64 vcc, 0")
    spin_tail(h)
    ts(6)
    a("v_max3_f32 v56, v48, v49, v50")
    a("v_max3_f32 v56, v56, v51, v52")
    a("v_max3_f32 v56, v56, v53, v54")
    a("v_max_f32 v56, v56, v55")
    xlane("v_max_f32", "v56", "v57", ["q3", "p16", "p32"])
    for e in range(8): a(f"v_sub_f32 v{48+e}, v{48+e}, v56")
    for e in range(8): a(f"v_exp_f32 v{48+e}, v{48+e}")
    a("v_add_f32 v58, v48, v49")
    a("v_add_f32 v59, v50, v51")
    a("v_add_f32 v60, v52, v53")
    a("v_add_f32 v61, v54, v55")
    a("v_add_f32 v58, v58, v59")
    a("v_add_f32 v60, v60, v61")
    a("v_add_f32 v58, v58, v60")
    xlane("v_add_f32", "v58", "v57", ["q3", "p16", "p32"])
    a("v_rcp_f32 v59, v58")
    a("v_log_f32 v58, v58")
    for e in range(8): a(f"v_mul_f32 v{48+e}, v{48+e}, v59")
    a("v_add_f32 v56, v56, v58")
    for t in range(4): a(f"v_cvt_pk_bf16_f32 v{60+t}, v{48+2*t}, v{49+2*t}")
    a(f"s_waitcnt vmcnt({n})")
    ts(7)
    perm_pair(88, 92, [96+4*j+3 for j in range(8)])
    for j in range(8):
        a(f"v_mfma_f32_16x16x32_bf16 v[{64+4*j}:{67+4*j}], v[60:63], v[{96+4*j}:{99+4*j}], 0")
    for j in range(8):
        d = 64 + 4*j
        a(f"v_add_f32_dpp v{48+j}, v{d+3}, v{d} row_ror:8 row_mask:0xf bank_mask:0x3")
        a(f"v_add_f32_dpp v{48+j}, v{d+2}, v{d+1} row_ror:8 row_mask:0xf bank_mask:0xc")
    a("s_mov_b64 exec, 0xffff")
    a(f"global_store_dwordx4 v7, v[48:51], {WS} sc1")
    a(f"global_store_dwordx4 v7, v[52:55], {WS} offset:16 sc1")
    sk = lab("nolse")
    a("s_cmp_lg_u32 s3, 0")
    a(f"s_cbranch_scc1 {sk}")
    a("s_mov_b64 exec, 3")
    a("v_lshl_add_u32 v5, v1, 7, s39")
    a(f"global_store_dword v5, v56, {WS} sc1")
    a(f"{sk}:")
    a("s_mov_b64 exec, -1")
    ts(8)
    if role == "none": end_wave()
    else:
        a(f"s_branch L_stage_{role}")
        a.flush_hist()

def k_tail(role):
    n = NROLE[role]
    a(f"L_k_{role}:")
    a("s_lshl_b32 s7, s4, 14")
    a("s_lshl_b32 s51, s45, 12")
    a("s_add_u32 s7, s7, s51")
    a(f"s_add_u32 s7, s7, {QG}")
    a("v_lshl_add_u32 v7, v1, 4, s7")
    a(f"s_waitcnt vmcnt({KPOLL}) lgkmcnt(0)")
    a("s_add_u32 s6, s6, 1")
    ts(2)
    for ks in range(4):
        a(f"global_load_dwordx4 v[{48+4*ks}:{51+4*ks}], v7, {WS} offset:{ks*1024} sc1")
    role_loads(role)
    a(f"s_waitcnt vmcnt({n})")
    ts(3)
    chk = lab("qchk")
    a(f"s_mov_b32 s38, {SPIN}")
    a(f"s_branch {chk}")
    lp, dn = lab("qp"), lab("qpd")
    a(f"{lp}:")
    for ks in range(4):
        a(f"global_load_dwordx4 v[{48+4*ks}:{51+4*ks}], v7, {WS} offset:{ks*1024} sc1")
    a("s_waitcnt vmcnt(0)")
    a(f"{chk}:")
    a("v_max3_u32 v5, v49, v51, v53")
    a("v_min3_u32 v6, v49, v51, v53")
    a("v_max3_u32 v5, v5, v55, v57")
    a("v_min3_u32 v6, v6, v55, v57")
    a("v_max3_u32 v5, v5, v59, v61")
    a("v_min3_u32 v6, v6, v59, v61")
    a("v_max_u32 v5, v5, v63")
    a("v_min_u32 v6, v6, v63")
    a("v_cmp_ne_u32 vcc, s6, v5")
    a("v_cmp_ne_u32 s[34:35], s6, v6")
    a("s_or_b64 vcc, vcc, s[34:35]")
    a("s_cmp_eq_u64 vcc, 0")
    spin_tail((lp, dn))
    ts(4)
    a("v_add_f32 v48, v48, v52")
    a("v_add_f32 v50, v50, v54")
    a("v_add_f32 v56, v56, v60")
    a("v_add_f32 v58, v58, v62")
    a("v_add_f32 v48, v48, v56")
    a("v_add_f32 v50, v50, v58")
    a("v_cvt_pk_bf16_f32 v48, v48, v50")
    a("v_subrev_u32 v5, 256, v0")
    a("v_lshlrev_b32 v5, 2, v5")
    a(f"ds_write_b32 v5, v48 offset:{L_Q}")
    a("s_lshl_b32 s7, s45, 2")
    a("v_mov_b32 v7, s7")
    a("v_mov_b32 v6, 1")
    a(f"ds_write_b32 v7, v6 offset:{L_FL+0x10}")
    a("v_lshlrev_b32 v5, 4, v4")
    a("v_mov_b32 v48, 0")
    h = spin_head("qx")
    a(f"ds_read_b128 v[60:63], v48 offset:{L_FL+0x10}")
    for hh in range(2):
        for j in range(4):
            r = 96 + (hh*4 + j)*4
            a(f"ds_read_b128 v[{r}:{r+3}], v5 offset:{L_Q + hh*512 + j*128}")
    a("s_waitcnt lgkmcnt(0)")
    a("v_add3_u32 v60, v60, v61, v62")
    a("v_add_u32 v60, v60, v63")
    a("v_cmp_ne_u32 vcc, 4, v60")
    a("s_cmp_eq_u64 vcc, 0")
    spin_tail(h)
    ts(5)
    for i in range(4): a(f"v_mov_b32 v{52+i}, 0")
    for j in range(4):
        for k in range(4):
            for grp in range(2):
                for hh in range(2):
                    a(f"v_dot2c_f32_bf16 v{52+grp*2+hh}, v{64+(grp*4+j)*4+k}, v{96+(hh*4+j)*4+k}")
    for m in ("quad_perm:[1,0,3,2]", "quad_perm:[2,3,0,1]", "row_half_mirror"):
        for i in range(4):
            a(f"v_add_f32_dpp v{52+i}, v{52+i}, v{52+i} {m} {DPPM}")
    a("v_cvt_pk_bf16_f32 v56, v52, v53")
    a("v_cvt_pk_bf16_f32 v57, v54, v55")
    a(f"s_mov_b32 s7, {f32(0.0625*LOG2E)}")
    a("v_lshlrev_b32 v52, 16, v56")
    a(f"v_and_b32 v53, {MHI}, v56")
    a("v_lshlrev_b32 v54, 16, v57")
    a(f"v_and_b32 v55, {MHI}, v57")
    for i in range(4): a(f"v_mul_f32 v{52+i}, s7, v{52+i}")
    a("s_lshl_b32 s7, s45, 6")
    a(f"s_add_u32 s7, s7, {L_SC}")
    a("v_lshl_add_u32 v5, v3, 2, s7")
    a("ds_write2_b32 v5, v52, v54 offset0:0 offset1:8")
    a("ds_write2_b32 v5, v53, v55 offset0:64 offset1:72")
    a(f"ds_write_b32 v7, v6 offset:{L_FL+0x20}")
    ts(6)
    if role == "none": end_wave()
    else:
        a(f"s_branch L_stage_{role}")
        a.flush_hist()

for role in ("none", "wo", "ffn"):
    v_tail(role)
    k_tail(role)

a("L_stage_wo:")
a("s_lshl_b32 s7, s4, 17")
a("s_lshl_b32 s51, s59, 10")
a("s_add_u32 s7, s7, s51")
a("s_lshl_b32 s51, s3, 7")
a("s_add_u32 s7, s7, s51")
a(f"s_add_u32 s7, s7, {MB + 4096}")
a("v_lshlrev_b32 v5, 14, v4")
a("v_lshl_add_u32 v5, v3, 4, v5")
a("v_add_u32 v5, s7, v5")
a("v_add_u32 v6, 0x2000, v5")
a("s_lshl_b32 s7, s57, 7")
a(f"s_add_u32 s7, s7, {LSE}")
a("v_lshl_add_u32 v7, v4, 4, s7")
a("s_waitcnt vmcnt(0)")
ts(9)
perm_pair(8, 12, R(64, 8))
perm_pair(16, 20, R(72, 8))
h = spin_head("wo")
a(f"global_load_dwordx4 v[96:99], v7, {WS} sc1")
a(f"global_load_dwordx4 v[80:83], v5, {WS} offset:-4096 sc1")
a(f"global_load_dwordx4 v[84:87], v5, {WS} sc1")
a(f"global_load_dwordx4 v[88:91], v6, {WS} offset:-4096 sc1")
a(f"global_load_dwordx4 v[92:95], v6, {WS} sc1")
a("s_waitcnt vmcnt(0)")
sentinel_check(R(80, 20), "v48")
spin_tail(h)
ts(10)
a("v_max3_f32 v48, v96, v97, v98")
a("v_max_f32 v48, v48, v99")
xlane("v_max_f32", "v48", None, ["q1", "q2", "hm"])
for i in range(4): a(f"v_sub_f32 v{96+i}, v{96+i}, v48")
for i in range(4): a(f"v_exp_f32 v{96+i}, v{96+i}")
for d in range(4): a(f"v_mul_f32 v{52+d}, v96, v{80+d}")
a("v_add_f32 v56, v96, v97")
for i in range(1, 4):
    for d in range(4): a(f"v_fmac_f32 v{52+d}, v{96+i}, v{80+4*i+d}")
a("v_add_f32 v57, v98, v99")
a("v_add_f32 v56, v56, v57")
for m in ("quad_perm:[1,0,3,2]", "quad_perm:[2,3,0,1]", "row_half_mirror"):
    for d in (4, 0, 1, 2, 3):
        a(f"v_add_f32_dpp v{52+d}, v{52+d}, v{52+d} {m} {DPPM}")
a("v_rcp_f32 v56, v56")
for d in range(4): a(f"v_mul_f32 v{52+d}, v{52+d}, v56")
a("v_cvt_pk_bf16_f32 v48, v52, v53")
a("v_cvt_pk_bf16_f32 v49, v54, v55")
dots16(R(64, 8), R(72, 8), "v48", "v49", R(100, 8))
reduce8_hi(R(100, 8), 50)
a("s_lshl_b32 s7, s3, 8")
a("v_lshl_add_u32 v5, v2, 2, s7")
a(f"ds_write_b32 v5, v50 offset:{L_RED}")
a("s_waitcnt lgkmcnt(0)")
a("s_barrier")
ts(11)
a("s_cmp_lg_u32 s3, 0")
a("s_cbranch_scc1 L_wo_end")
a("v_lshlrev_b32 v5, 2, v1")
for w in range(8): a(f"ds_read_b32 v{52+w}, v5 offset:{L_RED + 256*w}")
a("s_add_u32 s7, s44, 2048")
a("v_add_u32 v6, s7, v5")
a("s_waitcnt lgkmcnt(0)")
a("v_add_f32 v52, v52, v53")
a("v_add_f32 v54, v54, v55")
a("v_add_f32 v56, v56, v57")
a("v_add_f32 v58, v58, v59")
a("v_add_f32 v52, v52, v54")
a("v_add_f32 v56, v56, v58")
a("v_add_f32 v52, v52, v56")
a(f"global_store_dword v6, v52, {WS} sc1")
ts(12)
a("L_wo_end:")
end_wave()

a("L_stage_ffn:")
a("s_cmp_eq_u32 s3, 7")
a("s_cbranch_scc1 L_final")
a("v_and_b32 v5, 1, v1")
a("v_mul_u32_u24 v5, 7, v5")
a("v_add_u32 v5, s3, v5")
a("v_bfe_u32 v6, v1, 1, 3")
a("v_lshlrev_b32 v6, 14, v6")
a("v_bfe_u32 v7, v5, 1, 2")
a("v_lshl_add_u32 v6, v7, 12, v6")
a("v_lshrrev_b32 v7, 3, v5")
a("v_lshl_add_u32 v6, v7, 10, v6")
a("v_and_b32 v7, 1, v5")
a("v_lshl_add_u32 v6, v7, 9, v6")
a(f"v_add_u32 v6, {QG+4}, v6")
a("s_lshl_b32 s7, s3, 12")
a(f"s_add_u32 s7, s7, {MB + 2048}")
a("v_lshlrev_b32 v46, 18, v44")
a("v_lshl_add_u32 v46, v43, 4, v46")
a("v_add_u32 v46, s7, v46")
a(f"v_add_u32 v47, {7*4096}, v46")
a(f"v_add_u32 v48, {32*4096}, v46")
a(f"v_add_u32 v49, {39*4096}, v46")
a("s_waitcnt vmcnt(0)")
ts(9)
perm_pair(8, 12, R(64, 8))
perm_pair(16, 20, R(72, 8))
perm_pair(24, 28, R(80, 8))
perm_pair(32, 36, R(88, 8))
h = spin_head("tg")
a(f"global_load_dword v5, v6, {WS} sc1")
a("s_waitcnt vmcnt(0)")
a("v_cmp_ne_u32 vcc, s6, v5")
a("s_cmp_eq_u64 vcc, 0")
spin_tail(h)
a("v_lshlrev_b32 v56, 16, v40")
a(f"v_and_b32 v57, {MHI}, v40")
a("v_lshlrev_b32 v58, 16, v41")
a(f"v_and_b32 v59, {MHI}, v41")
a("v_lshlrev_b32 v42, 16, v42")
a("s_lshl_b32 s7, s3, 8")
a("v_lshl_add_u32 v7, v43, 4, s7")
h = spin_head("yp")
for i in range(4):
    a(f"global_load_dwordx4 v[{96+4*i}:{99+4*i}], v{46+i}, {WS} sc1")
a("s_waitcnt vmcnt(0)")
sentinel_check(R(96, 16), "v5")
spin_tail(h)
ts(10)
for d in range(4):
    a(f"v_add_f32 v{96+d}, v{96+d}, v{100+d}")
    a(f"v_add_f32 v{104+d}, v{104+d}, v{108+d}")
for d in range(4): a(f"v_add_f32 v{96+d}, v{96+d}, v{104+d}")
for m in ("quad_perm:[1,0,3,2]", "quad_perm:[2,3,0,1]"):
    for d in range(4): a(f"v_add_f32_dpp v{96+d}, v{96+d}, v{96+d} {m} {DPPM}")
a("v_cvt_pk_bf16_f32 v50, v96, v97")
a("v_cvt_pk_bf16_f32 v51, v98, v99")
a("v_lshlrev_b32 v96, 16, v50")
a(f"v_and_b32 v97, {MHI}, v50")
a("v_lshlrev_b32 v98, 16, v51")
a(f"v_and_b32 v99, {MHI}, v51")
for d in range(4): a(f"v_add_f32 v{96+d}, v{96+d}, v{56+d}")
a("v_cvt_pk_bf16_f32 v50, v96, v97")
a("v_cvt_pk_bf16_f32 v51, v98, v99")
a("v_lshlrev_b32 v96, 16, v50")
a(f"v_and_b32 v97, {MHI}, v50")
a("v_lshlrev_b32 v98, 16, v51")
a(f"v_and_b32 v99, {MHI}, v51")
a(f"ds_write_b128 v7, v[96:99] offset:{L_H}")
a("v_add_f32 v52, v96, v97")
a("v_mul_f32 v53, v96, v96")
a("v_fmac_f32 v53, v97, v97")
a("v_add_f32 v52, v52, v98")
a("v_fmac_f32 v53, v98, v98")
a("v_add_f32 v52, v52, v99")
a("v_fmac_f32 v53, v99, v99")
wave_sum2("v52", "v53", "s54", "s55", skip_quad=True)
a("s_lshl_b32 s7, s3, 3")
a("v_mov_b32 v5, s7")
a("v_mov_b32 v52, s54")
a("v_mov_b32 v53, s55")
a(f"ds_write_b64 v5, v[52:53] offset:{L_ST}")
a("v_mov_b32 v5, 0")
a("s_waitcnt lgkmcnt(0)")
a("s_barrier")
a(f"ds_read_b128 v[100:103], v5 offset:{L_ST}")
a(f"ds_read_b128 v[104:107], v5 offset:{L_ST+16}")
a(f"ds_read_b128 v[108:111], v5 offset:{L_ST+32}")
a(f"ds_read_b64 v[112:113], v5 offset:{L_ST+48}")
a("v_bfe_u32 v6, v1, 4, 1")
a("v_lshlrev_b32 v6, 1, v6")
a("v_lshrrev_b32 v7, 5, v1")
a("v_add_u32 v6, v6, v7")
a("v_lshl_add_u32 v6, v44, 3, v6")
a("s_lshl_b32 s7, s3, 2")
a(f"s_add_u32 s7, s7, {L_Z}")
a("v_lshl_add_u32 v6, v6, 5, s7")
a("v_lshlrev_b32 v7, 5, v45")
a("s_waitcnt lgkmcnt(0)")
a("v_add_f32 v100, v100, v102")
a("v_add_f32 v101, v101, v103")
a("v_add_f32 v104, v104, v106")
a("v_add_f32 v105, v105, v107")
a("v_add_f32 v108, v108, v110")
a("v_add_f32 v109, v109, v111")
a("v_add_f32 v100, v100, v104")
a("v_add_f32 v101, v101, v105")
a("v_add_f32 v108, v108, v112")
a("v_add_f32 v109, v109, v113")
a("v_add_f32 v100, v100, v108")
a("v_add_f32 v101, v101, v109")
ln_finish("v100", "v101", "v52", "v53", "v54")
ln_apply("v96", "v97", "v52", "v53", "v50")
ln_apply("v98", "v99", "v52", "v53", "v51")
dots16(R(64, 8), R(72, 8), "v50", "v51", R(100, 8))
reduce8_hi(R(100, 8), None, full_row=True)
a("ds_write2_b32 v6, v100, v104 offset0:0 offset1:32")
a("s_waitcnt lgkmcnt(0)")
a("s_barrier")
ts(11)
a(f"ds_read_b128 v[100:103], v7 offset:{L_Z}")
a(f"ds_read_b128 v[104:107], v7 offset:{L_Z+16}")
a("s_lshl_b32 s7, s3, 8")
a("s_add_u32 s7, s7, s44")
a("s_add_u32 s7, s7, 2048")
a("v_lshl_add_u32 v6, v2, 2, s7")
a("s_waitcnt lgkmcnt(0)")
a("v_add_f32 v100, v100, v101")
a("v_add_f32 v102, v102, v103")
a("v_add_f32 v104, v104, v105")
a("v_add_f32 v100, v100, v102")
a("v_add_f32 v104, v104, v106")
a("v_add_f32 v100, v100, v104")
bf16r("v100")
a("v_add_f32 v100, v100, v42")
bf16r("v100")
a(f"s_mov_b32 s7, {f32(-LOG2E)}")
a("v_mul_f32 v101, s7, abs(v100)")
a("v_exp_f32 v101, v101")
bf16r("v101")
a("v_add_f32 v102, 1.0, v101")
a("v_log_f32 v102, v102")
a(f"v_mov_b32 v104, {f32(1.0/3)}")
a("v_fma_f32 v103, v101, v104, -0.5")
a("v_fma_f32 v103, v101, v103, 1.0")
a("v_mul_f32 v103, v101, v103")
a(f"v_mul_f32 v102, {f32(math.log(2))}, v102")
a(f"v_cmp_gt_f32 vcc, {f32(2.0**-6)}, v101")
a("v_cndmask_b32 v102, v102, v103, vcc")
bf16r("v102")
a("v_max_f32 v103, 0, v100")
a("v_add_f32 v102, v102, v103")
bf16r("v102")
a(f"v_mul_f32 v103, {f32(-2*LOG2E)}, v102")
a("v_exp_f32 v103, v103")
a("v_mul_f32 v105, v102, v102")
a("v_add_f32 v106, 1.0, v103")
a("v_sub_f32 v103, 1.0, v103")
a("v_rcp_f32 v106, v106")
a("v_mul_f32 v105, v105, v104")
a("v_fma_f32 v105, -v105, v102, v102")
a("v_mul_f32 v103, v103, v106")
a(f"v_cmp_gt_f32 vcc, {f32(2.0**-5)}, v102")
a("v_cndmask_b32 v103, v103, v105, vcc")
bf16r("v103")
a("v_mul_f32 v100, v100, v103")
a(f"v_mov_b32_dpp v101, v100 quad_perm:[0,0,2,2] {DPPM}")
a(f"v_mov_b32_dpp v102, v100 quad_perm:[1,1,3,3] {DPPM}")
a("v_cvt_pk_bf16_f32 v101, v101, v102")
a(f"v_mov_b32_dpp v50, v101 quad_perm:[0,0,0,0] {DPPM}")
a(f"v_mov_b32_dpp v51, v101 quad_perm:[2,2,2,2] {DPPM}")
dots16(R(80, 8), R(88, 8), "v50", "v51", R(100, 8))
reduce8_hi(R(100, 8), 52)
a(f"global_store_dword v6, v52, {WS} sc1")
ts(12)
end_wave()

a("L_final:")
a("v_min_u32 v5, 55, v1")
a("v_mul_u32_u24 v6, 37, v5")
a("v_lshrrev_b32 v6, 8, v6")
a("v_mul_u32_u24 v7, 25, v6")
a("v_add_u32 v5, v5, v7")
a("s_lshl_b32 s7, s57, 5")
a(f"s_add_u32 s7, s7, {MB + 14*4096 + 2048}")
a("v_lshl_add_u32 v5, v5, 12, s7")
a("v_and_b32 v6, 7, v2")
a("s_lshl_b32 s7, s57, 3")
a("v_add_u32 v6, s7, v6")
a("v_lshlrev_b32 v7, 2, v6")
a("v_lshlrev_b32 v6, 1, v6")
a("s_waitcnt vmcnt(0)")
a("s_barrier")
a(f"ds_read_b32 v50, v7 offset:{L_H}")
a("s_barrier")
ts(11)
h = spin_head("fin")
a(f"global_load_dwordx4 v[100:103], v5, {WS} sc1")
a(f"global_load_dwordx4 v[104:107], v5, {WS} offset:16 sc1")
a("s_waitcnt vmcnt(0)")
sentinel_check(R(100, 8), "v51")
spin_tail(h)
ts(12)
a("v_cmp_gt_u32 vcc, 56, v1")
for d in range(8): a(f"v_cndmask_b32 v{100+d}, 0, v{100+d}, vcc")
reduce8_hi(R(100, 8), 52)
xlane("v_add_f32", "v52", None, ["q1", "q2", "hm"])
bf16r("v52")
a("s_waitcnt lgkmcnt(0)")
a("v_add_f32 v52, v52, v50")
a("v_cvt_pk_bf16_f32 v52, v52, v52")
a("s_mov_b32 s34, 0x01010101")
a("s_mov_b32 s35, 0x01010101")
a("s_mov_b64 exec, s[34:35]")
a(f"global_store_short v6, v52, {OUT}")
a("s_cmp_lg_u32 s57, 0")
a("s_cbranch_scc1 L_fin_end")
a("s_mov_b64 exec, 1")
a("v_mov_b32 v5, 0")
a("v_mov_b32 v6, s6")
a(f"global_store_dword v5, v6, {WS} sc1")
a("L_fin_end:")
a("s_mov_b64 exec, -1")
ts(13)
end_wave()

if DEBUG:
    a("L_dump:")
    a("s_waitcnt lgkmcnt(0)")
    a("s_mov_b64 exec, 1")
    a("s_lshl_b32 s7, s2, 3")
    a("s_add_u32 s7, s7, s3")
    a("s_lshl_b32 s7, s7, 6")
    a(f"s_add_u32 s7, s7, {TS}")
    a("v_mov_b32 v5, s7")
    for k in range(16):
        a(f"v_mov_b32 v6, s{64+2*k}")
        a(f"global_store_dword v5, v6, {WS} offset:{4*k}")
a("L_end:")
a("s_endpgm")
a("L_codeend:")
a.raw(f'''.section .rodata,"a"
.p2align 6
.amdhsa_kernel {NAME}_kernel
  .amdhsa_next_free_vgpr 128
  .amdhsa_next_free_sgpr 96
  .amdhsa_accum_offset 128
  .amdhsa_group_segment_fixed_size 0
  .amdhsa_kernarg_size 96
  .amdhsa_user_sgpr_count 2
  .amdhsa_user_sgpr_kernarg_segment_ptr 1
  .amdhsa_system_sgpr_workgroup_id_x 1
  .amdhsa_float_denorm_mode_32 3
.end_amdhsa_kernel''')
open(OUTP, "w").write(a.text())
print("nops inserted:", a.nops, "lines:", len(a.lines))
```

```python
import sys, struct, math
sys.path.insert(0, "gen")
from asmlib import Asm

NAME = "sequential_preLN__sliding_block_cached__dense_activation_mish__decode"
opts = dict(x.split("=") for x in sys.argv[2:])
OUTP = sys.argv[1]
DEBUG = int(opts.get("dbg", 0))
HDBG = int(opts.get("hdbg", 0))
if HDBG: DEBUG = 1
NT = " nt" if int(opts.get("nt", 1)) else ""
NTW = " nt" if int(opts.get("ntw", 1)) else ""
KPOLL = int(opts.get("kpoll", 2))
SPIN = 100000

def f32(x): return "0x%08x" % struct.unpack("<I", struct.pack("<f", x))[0]
LOG2E = math.log2(math.e)

QG = 0x10000; LSE = 0x30000; MB = 0x100000; TS = 0x400000
L_S1 = 0x000; L_FL = 0x400; L_Q = 0x500; L_SC = 0x900; L_RED = 0xB00; L_ST = 0x1300; L_H = 0x1400; L_Z = 0x1B00
LDS_BYTES = 0x2000
X, K, V, WQ, WO, W1, B1, W2, OUT, DBG, WS = "s[8:9]", "s[10:11]", "s[12:13]", "s[14:15]", "s[16:17]", "s[20:21]", "s[22:23]", "s[24:25]", "s[26:27]", "s[28:29]", "s[30:31]"
SEL_LO, SEL_HI, MHI = "s40", "s41", "s42"
R = lambda a_, n: list(range(a_, a_ + n))

a = Asm()
uid = [0]
def lab(p):
    uid[0] += 1
    return f"L_{p}_{uid[0]}"

def ts(k):
    if DEBUG: a(f"s_memrealtime s[{64+2*k}:{65+2*k}]")

def end_wave():
    if DEBUG:
        ts(15)
        a("s_branch L_dump")
    else:
        a("s_endpgm")
    a.flush_hist()

DPPM = "row_mask:0xf bank_mask:0xf"
def wave_sum2(x, y, sx, sy, skip_quad=False):
    steps = ("quad_perm:[1,0,3,2]", "quad_perm:[2,3,0,1]", "row_half_mirror", "row_mirror")
    if skip_quad: steps = steps[2:]
    for m in steps:
        a(f"v_add_f32_dpp {x}, {x}, {x} {m} {DPPM}")
        a(f"v_add_f32_dpp {y}, {y}, {y} {m} {DPPM}")
    a(f"v_add_f32_dpp {x}, {x}, {x} row_bcast:15 row_mask:0xa bank_mask:0xf")
    a(f"v_add_f32_dpp {y}, {y}, {y} row_bcast:15 row_mask:0xa bank_mask:0xf")
    a(f"v_add_f32_dpp {x}, {x}, {x} row_bcast:31 row_mask:0xc bank_mask:0xf")
    a(f"v_add_f32_dpp {y}, {y}, {y} row_bcast:31 row_mask:0xc bank_mask:0xf")
    a(f"v_readlane_b32 {sx}, {x}, 63")
    a(f"v_readlane_b32 {sy}, {y}, 63")

def bf16r(x):
    a(f"v_cvt_pk_bf16_f32 {x}, {x}, {x}")
    a(f"v_and_b32 {x}, {MHI}, {x}")

def ln_finish(vsum, vsq, vm, vr, t):
    a(f"v_mov_b32 {t}, {f32(1.0/448)}")
    a(f"v_mul_f32 {vm}, {vsum}, {t}")
    a(f"v_mul_f32 {vr}, {vsq}, {t}")
    a(f"v_fma_f32 {vr}, -{vm}, {vm}, {vr}")
    a(f"v_max_f32 {vr}, 0, {vr}")
    a(f"v_cvt_pk_bf16_f32 {t}, {vm}, {vr}")
    a(f"v_lshlrev_b32 {vm}, 16, {t}")
    a(f"v_and_b32 {vr}, {MHI}, {t}")
    a(f"v_add_f32 {vr}, {f32(1e-5)}, {vr}")
    bf16r(vr)
    a(f"v_sqrt_f32 {vr}, {vr}")
    bf16r(vr)
    a(f"v_rcp_f32 {vr}, {vr}")

def ln_apply(lo, hi, vm, vr, dst):
    a(f"v_sub_f32 {lo}, {lo}, {vm}")
    a(f"v_sub_f32 {hi}, {hi}, {vm}")
    a(f"v_cvt_pk_bf16_f32 {dst}, {lo}, {hi}")
    a(f"v_lshlrev_b32 {lo}, 16, {dst}")
    a(f"v_and_b32 {hi}, {MHI}, {dst}")
    a(f"v_mul_f32 {lo}, {lo}, {vr}")
    a(f"v_mul_f32 {hi}, {hi}, {vr}")
    a(f"v_cvt_pk_bf16_f32 {dst}, {lo}, {hi}")

def perm_pair(A, B, outs):
    for k in range(4):
        a(f"v_perm_b32 v{outs[2*k]}, v{B+k}, v{A+k}, {SEL_LO}")
        a(f"v_perm_b32 v{outs[2*k+1]}, v{B+k}, v{A+k}, {SEL_HI}")

def reduce8_hi(acc, dst, full_row=False):
    for k in range(4):
        a(f"v_permlane32_swap_b32 v{acc[2*k]}, v{acc[2*k+1]}")
    for k in range(4):
        a(f"v_add_f32 v{acc[2*k]}, v{acc[2*k]}, v{acc[2*k+1]}")
    a(f"v_permlane16_swap_b32 v{acc[0]}, v{acc[2]}")
    a(f"v_permlane16_swap_b32 v{acc[4]}, v{acc[6]}")
    a(f"v_add_f32 v{acc[0]}, v{acc[0]}, v{acc[2]}")
    a(f"v_add_f32 v{acc[4]}, v{acc[4]}, v{acc[6]}")
    if full_row:
        for m in ("row_ror:4", "row_ror:8"):
            a(f"v_add_f32_dpp v{acc[0]}, v{acc[0]}, v{acc[0]} {m} {DPPM}")
            a(f"v_add_f32_dpp v{acc[4]}, v{acc[4]}, v{acc[4]} {m} {DPPM}")
    else:
        a(f"v_add_f32_dpp v{dst}, v{acc[0]}, v{acc[0]} row_ror:8 row_mask:0xf bank_mask:0x3")
        a(f"v_add_f32_dpp v{dst}, v{acc[4]}, v{acc[4]} row_ror:8 row_mask:0xf bank_mask:0xc")

def dots16(P0, P1, x0, x1, acc):
    for j in range(8):
        a(f"v_dot2_f32_bf16 v{acc[j]}, v{P0[j]}, {x0}, 0")
    for j in range(8):
        a(f"v_dot2_f32_bf16 v{acc[j]}, v{P1[j]}, {x1}, v{acc[j]}")

def sentinel_check(regs, t):
    r = list(regs)
    a(f"v_max3_u32 {t}, v{r[0]}, v{r[1]}, v{r[2]}")
    r = r[3:]
    while len(r) >= 2:
        a(f"v_max3_u32 {t}, {t}, v{r[0]}, v{r[1]}"); r = r[2:]
    if r: a(f"v_max_u32 {t}, {t}, v{r[0]}")
    a(f"v_cmp_eq_u32 vcc, -1, {t}")
    a(f"s_cmp_eq_u64 vcc, 0")

def spin_head(p):
    lp, dn = lab(p), lab(p + "d")
    a(f"s_mov_b32 s38, {SPIN}")
    a(f"{lp}:")
    return lp, dn

def spin_tail(h):
    lp, dn = h
    a(f"s_cbranch_scc1 {dn}")
    a("s_sub_u32 s38, s38, 1")
    a("s_cmp_eq_u32 s38, 0")
    a(f"s_cbranch_scc0 {lp}")
    a(f"{dn}:")

def xlane(op, x, t, steps):
    for s in steps:
        if s in ("p16", "p32"):
            a(f"v_mov_b32 {t}, {x}")
            a(f"v_permlane{s[1:]}_swap_b32 {x}, {t}")
            a(f"{op} {x}, {x}, {t}")
        else:
            m = {"q3": "quad_perm:[3,2,1,0]", "q1": "quad_perm:[1,0,3,2]", "q2": "quad_perm:[2,3,0,1]", "hm": "row_half_mirror"}[s]
            a(f"{op}_dpp {x}, {x}, {x} {m} {DPPM}")

hdr = open(f"cdna_kernels/{NAME}.s.ref").read().split("; Override launch")[0]
a.raw(hdr.rstrip())
a.raw(f"; @launch grid=(256,1,1) block=(512,1,1) lds={LDS_BYTES}")
a.raw('.amdgcn_target "amdgcn-amd-amdhsa--gfx950"')
a.raw(".text")
a.raw(f".globl {NAME}_kernel\n.p2align 8\n.type {NAME}_kernel,@function\n{NAME}_kernel:")

a("s_cmp_ge_u32 s2, 256")
a("s_cbranch_scc1 L_end")
a("s_load_dwordx16 s[8:23], s[0:1], 0")
a("s_load_dwordx8 s[24:31], s[0:1], 64")
if DEBUG:
    for k in range(16): a(f"s_mov_b64 s[{64+2*k}:{65+2*k}], 0")
ts(0)
a("v_lshrrev_b32 v2, 6, v0")
a("v_and_b32 v1, 63, v0")
a("s_and_b32 s4, s2, 7")
a("s_lshr_b32 s5, s2, 3")
a("v_readfirstlane_b32 s3, v2")
a("v_lshrrev_b32 v3, 3, v1")
a("v_and_b32 v4, 7, v1")
a("v_mov_b32 v5, 0")
a("v_lshlrev_b32 v6, 2, v1")
a(f"ds_write_b32 v6, v5 offset:{L_FL}")
a(f"s_mov_b32 {SEL_LO}, 0x05040100")
a(f"s_mov_b32 {SEL_HI}, 0x07060302")
a(f"s_mov_b32 {MHI}, 0xffff0000")
a("s_lshl_b32 s44, s4, 5")
a("s_add_u32 s44, s44, s5")
a("s_lshl_b32 s44, s44, 12")
a(f"s_add_u32 s44, s44, {MB}")
a("s_lshl_b32 s43, s4, 22")
a("s_lshl_b32 s7, s5, 15")
a("s_add_u32 s43, s43, s7")
a(f"s_add_u32 s43, s43, {6144*512}")
a("s_cmp_ge_u32 s3, 4")
a("s_cbranch_scc1 L_kwave")

a("s_lshr_b32 s45, s5, 3")
a("s_and_b32 s46, s5, 7")
a("v_lshl_add_u32 v5, v0, 4, s44")
a("v_mov_b32 v8, -1\nv_mov_b32 v9, -1\nv_mov_b32 v10, -1\nv_mov_b32 v11, -1")
a("v_min_u32 v6, 55, v1")
a("v_lshlrev_b32 v6, 4, v6")
a("s_mul_i32 s47, s45, 112")
a("s_lshl_b32 s48, s3, 5")
a("s_add_u32 s48, s48, s47")
a("s_add_u32 s49, s48, 16")
a("s_cmp_eq_u32 s3, 3")
a("s_cselect_b32 s49, s48, s49")
a("s_cselect_b32 s50, 0, -1")
a("v_lshlrev_b32 v7, 2, v3")
a("s_lshl_b32 s51, s48, 1")
a("s_lshl_b32 s52, s49, 1")
a("v_add_u32 v12, s51, v7")
a("v_add_u32 v13, s52, v7")
a("v_lshlrev_b32 v14, 14, v3")
a("v_lshl_add_u32 v14, v4, 4, v14")
a("s_lshl_b32 s51, s4, 10")
a("s_lshl_b32 s52, s46, 7")
a("s_add_u32 s51, s51, s52")
a("s_lshl_b32 s52, s48, 13")
a("s_add_u32 s52, s52, s51")
a("s_lshl_b32 s53, s49, 13")
a("s_add_u32 s53, s53, s51")
a("v_add_u32 v32, s52, v14")
a("v_add_u32 v33, 0x2000, v32")
a("v_add_u32 v34, s53, v14")
a("v_add_u32 v35, 0x2000, v34")
a("s_lshl_b32 s7, s4, 8")
a("s_lshl_b32 s51, s5, 2")
a("s_add_u32 s7, s7, s51")
a(f"s_add_u32 s39, s7, {LSE}")
a("v_and_b32 v7, 1, v0")
a("v_lshl_add_u32 v7, v7, 7, s39")
a("s_waitcnt lgkmcnt(0)")
a("s_barrier")
a(f"s_load_dword s6, {WS}, 0")
a(f"global_store_dwordx4 v5, v[8:11], {WS} sc1")
a(f"global_store_dword v7, v8, {WS} sc1")
a(f"global_load_dwordx4 v[36:39], v6, {X}")
a(f"global_load_dword v12, v12, {X}")
a(f"global_load_dword v13, v13, {X}")
a(f"global_load_dwordx4 v[16:19], v32, {WQ}{NTW}")
a(f"global_load_dwordx4 v[20:23], v33, {WQ}{NTW}")
a(f"global_load_dwordx4 v[24:27], v34, {WQ}{NTW}")
a(f"global_load_dwordx4 v[28:31], v35, {WQ}{NTW}")
a("s_branch L_common2")

a.flush_hist()
a("L_kwave:")
a("s_sub_u32 s45, s3, 4")
a("s_getpc_b64 s[36:37]")
a("L_pc:")
a("v_subrev_u32 v5, 256, v0")
a("v_lshlrev_b32 v5, 7, v5")
a("v_cmp_gt_u32 vcc, L_codeend-L_pc, v5")
a("v_cndmask_b32 v5, 0, v5, vcc")
a("global_load_dword v63, v5, s[36:37]")
a("s_lshl_b32 s47, s45, 13")
a("s_add_u32 s46, s43, s47")
a("v_lshlrev_b32 v6, 9, v3")
a("v_lshl_add_u32 v6, v4, 4, v6")
a("v_add_u32 v6, s46, v6")
a("v_add_u32 v7, 0x1000, v6")
a("s_waitcnt lgkmcnt(0)")
a("s_barrier")
a(f"s_load_dword s6, {WS}, 0")
for grp in range(2):
    for j in range(4):
        r = 64 + (grp*4 + j)*4
        a(f"global_load_dwordx4 v[{r}:{r+3}], v{6+grp}, {K} offset:{j*128}{NT}")

a("L_common2:")
ts(1)
a("v_lshlrev_b32 v2, 3, v4")
a("v_bfe_u32 v5, v1, 3, 1")
a("v_lshl_add_u32 v2, v5, 2, v2")
a("v_bfe_u32 v5, v1, 4, 1")
a("v_lshl_add_u32 v2, v5, 1, v2")
a("v_lshrrev_b32 v5, 5, v1")
a("v_add_u32 v2, v2, v5")
a("s_cmp_ge_u32 s3, 4")
a("s_cbranch_scc1 L_kdispatch")

a("s_lshl_b32 s52, s3, 7")
a("s_add_u32 s51, s43, s52")
a("v_bfe_u32 v5, v1, 3, 1")
a("v_lshlrev_b32 v5, 14, v5")
a("v_lshrrev_b32 v6, 4, v1")
a("v_lshl_add_u32 v5, v6, 12, v5")
a("v_lshl_add_u32 v5, v4, 4, v5")
a("v_add_u32 v7, s51, v5")
a("s_waitcnt vmcnt(6)")
for k in range(4):
    a(f"v_lshlrev_b32 v{40+2*k}, 16, v{36+k}")
    a(f"v_and_b32 v{41+2*k}, {MHI}, v{36+k}")
a("v_add_f32 v48, v40, v41")
a("v_mul_f32 v49, v40, v40")
a("v_fmac_f32 v49, v41, v41")
for k in range(2, 8):
    a(f"v_add_f32 v48, v48, v{40+k}")
    a(f"v_fmac_f32 v49, v{40+k}, v{40+k}")
a("v_cmp_gt_u32 vcc, 56, v1")
a("v_cndmask_b32 v48, 0, v48, vcc")
a("v_cndmask_b32 v49, 0, v49, vcc")
wave_sum2("v48", "v49", "s54", "s55")
ln_finish("s54", "s55", "v50", "v51", "v52")
a("s_waitcnt vmcnt(4)")
for r in (12, 13):
    a(f"v_lshlrev_b32 v40, 16, v{r}")
    a(f"v_and_b32 v41, {MHI}, v{r}")
    ln_apply("v40", "v41", "v50", "v51", f"v{r}")
a("v_and_b32 v13, s50, v13")
a("s_waitcnt vmcnt(2)")
ts(2)
perm_pair(16, 20, R(40, 8))
a("s_waitcnt vmcnt(0)")
perm_pair(24, 28, R(48, 8))
dots16(R(40, 8), R(48, 8), "v12", "v13", R(56, 8))
reduce8_hi(R(56, 8), 40)
a("s_waitcnt lgkmcnt(0)")
a("s_add_u32 s6, s6, 1")
a("s_cmp_eq_u32 s3, 0")
a("s_cbranch_scc1 L_s1_w0")
a("v_lshlrev_b32 v5, 2, v0")
a(f"ds_write_b32 v5, v40 offset:{L_S1}")
a("s_lshl_b32 s7, s3, 2")
a("v_mov_b32 v5, s7")
a("v_mov_b32 v6, 1")
a(f"ds_write_b32 v5, v6 offset:{L_FL}")
a("s_branch L_s1_done")
a.flush_hist()
a("L_s1_w0:")
a("v_lshlrev_b32 v5, 2, v1")
a("v_mov_b32 v6, 0")
a("s_lshl_b32 s7, s4, 14")
a("s_lshr_b32 s51, s46, 1")
a("s_lshl_b32 s51, s51, 12")
a("s_add_u32 s7, s7, s51")
a("s_lshl_b32 s51, s45, 10")
a("s_add_u32 s7, s7, s51")
a("s_and_b32 s51, s46, 1")
a("s_lshl_b32 s51, s51, 9")
a("s_add_u32 s7, s7, s51")
a(f"s_add_u32 s7, s7, {QG}")
a("v_lshl_add_u32 v8, v2, 3, s7")
h = spin_head("s1")
a(f"ds_read_b128 v[44:47], v6 offset:{L_FL}")
a(f"ds_read_b32 v41, v5 offset:{L_S1+256}")
a(f"ds_read_b32 v42, v5 offset:{L_S1+512}")
a(f"ds_read_b32 v43, v5 offset:{L_S1+768}")
a("s_waitcnt lgkmcnt(0)")
a("v_add3_u32 v44, v45, v46, v47")
a("v_cmp_ne_u32 vcc, 3, v44")
a("s_cmp_eq_u64 vcc, 0")
spin_tail(h)
a("v_add_f32 v40, v40, v41")
a("v_add_f32 v42, v42, v43")
a("v_add_f32 v40, v40, v42")
a("v_mov_b32 v41, s6")
a(f"global_store_dwordx2 v8, v[40:41], {WS} sc1")
a("L_s1_done:")
ts(3)
for i in range(8):
    a(f"global_load_dwordx4 v[{64+4*i}:{67+4*i}], v7, {V} offset:{i*512}{NT}")
a("s_cmp_lt_u32 s5, 14")
a("s_cbranch_scc1 L_v_wo")
a("s_cmp_lt_u32 s5, 21")
a("s_cbranch_scc1 L_v_ffn")
a("s_branch L_v_none")
a.flush_hist()
a("L_kdispatch:")
a("s_cmp_lt_u32 s5, 14")
a("s_cbranch_scc1 L_k_wo")
a("s_cmp_lt_u32 s5, 21")
a("s_cbranch_scc1 L_k_ffn")
a("s_branch L_k_none")
a.flush_hist()

NROLE = {"none": 0, "wo": 4, "ffn": 10}

def role_loads(role):
    if role == "wo":
        a("s_cmp_ge_u32 s5, 7")
        a("s_cselect_b32 s59, 1, 0")
        a("s_mul_i32 s7, s59, 7")
        a("s_sub_u32 s58, s5, s7")
        a("s_lshl_b32 s57, s4, 1")
        a("s_add_u32 s57, s57, s59")
        a("s_lshl_b32 s7, s57, 8")
        a("s_lshl_b32 s51, s3, 5")
        a("s_add_u32 s7, s7, s51")
        a("s_mul_i32 s7, s7, 896")
        a("s_lshl_b32 s51, s58, 7")
        a("s_add_u32 s7, s7, s51")
        a(f"v_mul_u32_u24 v5, {4*896}, v3")
        a("v_lshl_add_u32 v5, v4, 4, v5")
        a("v_add_u32 v5, s7, v5")
        for i in range(4):
            a(f"global_load_dwordx4 v[{8+4*i}:{11+4*i}], v5, {WO} offset:{i*896}{NTW}")
    elif role == "ffn":
        a("s_mul_i32 s57, s4, 7")
        a("s_add_u32 s57, s57, s5")
        a("s_sub_u32 s57, s57, 14")
        a("s_min_u32 s58, s3, 6")
        a(f"s_mul_i32 s7, s58, {64*3584}")
        a("s_lshl_b32 s51, s57, 6")
        a("s_add_u32 s7, s7, s51")
        a("v_lshrrev_b32 v43, 2, v1")
        a("v_and_b32 v44, 3, v1")
        a(f"v_mul_u32_u24 v5, {4*3584}, v43")
        a("v_lshl_add_u32 v5, v44, 4, v5")
        a("v_add_u32 v5, s7, v5")
        a("v_add_u32 v6, 7168, v5")
        a(f"global_load_dwordx4 v[8:11], v5, {W1}{NTW}")
        a(f"global_load_dwordx4 v[12:15], v5, {W1} offset:3584{NTW}")
        a(f"global_load_dwordx4 v[16:19], v6, {W1}{NTW}")
        a(f"global_load_dwordx4 v[20:23], v6, {W1} offset:3584{NTW}")
        a(f"s_mul_i32 s7, s57, {32*896}")
        a("s_lshl_b32 s51, s58, 7")
        a("s_add_u32 s7, s7, s51")
        a(f"v_mul_u32_u24 v5, {4*896}, v3")
        a("v_lshl_add_u32 v5, v4, 4, v5")
        a("v_add_u32 v5, s7, v5")
        for i in range(4):
            a(f"global_load_dwordx4 v[{24+4*i}:{27+4*i}], v5, {W2} offset:{i*896}{NTW}")
        a("v_lshl_add_u32 v5, v43, 3, s51")
        a(f"global_load_dwordx2 v[40:41], v5, {X}")
        a("v_lshl_add_u32 v45, v3, 2, v44")
        a("s_lshl_b32 s51, s57, 6")
        a("v_lshl_add_u32 v5, v45, 1, s51")
        a(f"global_load_ushort v42, v5, {B1}")

def v_tail(role):
    n = NROLE[role]
    a(f"L_v_{role}:")
    role_loads(role)
    a("v_lshrrev_b32 v5, 1, v1")
    a("v_xor_b32 v5, v5, v1")
    a("v_and_b32 v5, 1, v5")
    a("v_lshlrev_b32 v5, 8, v5")
    a("v_and_b32 v6, 1, v1")
    a("v_lshl_add_u32 v5, v6, 7, v5")
    a("v_lshrrev_b32 v6, 4, v1")
    a("v_lshl_add_u32 v5, v6, 5, v5")
    a("v_mov_b32 v6, 0")
    a("v_bfe_u32 v7, v1, 3, 1")
    a("v_lshlrev_b32 v7, 10, v7")
    a("v_lshl_add_u32 v7, v4, 5, v7")
    a("s_lshl_b32 s7, s3, 8")
    a("s_add_u32 s7, s7, s44")
    a("v_add_u32 v7, s7, v7")
    for t in range(3):
        a(f"s_waitcnt vmcnt({6-2*t+n})")
        if t == 0: ts(4)
        perm_pair(64+8*t, 68+8*t, [96+4*j+t for j in range(8)])
    ts(5)
    h = spin_head("sc")
    a(f"ds_read_b128 v[60:63], v6 offset:{L_FL+0x20}")
    a(f"ds_read_b128 v[48:51], v5 offset:{L_SC}")
    a(f"ds_read_b128 v[52:55], v5 offset:{L_SC+16}")
    a("s_waitcnt lgkmcnt(0)")
    a("v_add3_u32 v60, v60, v61, v62")
    a("v_add_u32 v60, v60, v63")
    a("v_cmp_ne_u32 vcc, 4, v60")
    a("s_cmp_eq_u64 vcc, 0")
    spin_tail(h)
    ts(6)
    a("v_max3_f32 v56, v48, v49, v50")
    a("v_max3_f32 v56, v56, v51, v52")
    a("v_max3_f32 v56, v56, v53, v54")
    a("v_max_f32 v56, v56, v55")
    xlane("v_max_f32", "v56", "v57", ["q3", "p16", "p32"])
    for e in range(8): a(f"v_sub_f32 v{48+e}, v{48+e}, v56")
    for e in range(8): a(f"v_exp_f32 v{48+e}, v{48+e}")
    a("v_add_f32 v58, v48, v49")
    a("v_add_f32 v59, v50, v51")
    a("v_add_f32 v60, v52, v53")
    a("v_add_f32 v61, v54, v55")
    a("v_add_f32 v58, v58, v59")
    a("v_add_f32 v60, v60, v61")
    a("v_add_f32 v58, v58, v60")
    xlane("v_add_f32", "v58", "v57", ["q3", "p16", "p32"])
    a("v_rcp_f32 v59, v58")
    a("v_log_f32 v58, v58")
    for e in range(8): a(f"v_mul_f32 v{48+e}, v{48+e}, v59")
    a("v_add_f32 v56, v56, v58")
    for t in range(4): a(f"v_cvt_pk_bf16_f32 v{60+t}, v{48+2*t}, v{49+2*t}")
    a(f"s_waitcnt vmcnt({n})")
    ts(7)
    perm_pair(88, 92, [96+4*j+3 for j in range(8)])
    for j in range(8):
        a(f"v_mfma_f32_16x16x32_bf16 v[{64+4*j}:{67+4*j}], v[60:63], v[{96+4*j}:{99+4*j}], 0")
    for j in range(8):
        d = 64 + 4*j
        a(f"v_add_f32_dpp v{48+j}, v{d+3}, v{d} row_ror:8 row_mask:0xf bank_mask:0x3")
        a(f"v_add_f32_dpp v{48+j}, v{d+2}, v{d+1} row_ror:8 row_mask:0xf bank_mask:0xc")
    a("s_mov_b64 exec, 0xffff")
    a(f"global_store_dwordx4 v7, v[48:51], {WS} sc1")
    a(f"global_store_dwordx4 v7, v[52:55], {WS} offset:16 sc1")
    sk = lab("nolse")
    a("s_cmp_lg_u32 s3, 0")
    a(f"s_cbranch_scc1 {sk}")
    a("s_mov_b64 exec, 3")
    a("v_lshl_add_u32 v5, v1, 7, s39")
    a(f"global_store_dword v5, v56, {WS} sc1")
    a(f"{sk}:")
    a("s_mov_b64 exec, -1")
    ts(8)
    if role == "none": end_wave()
    else:
        a(f"s_branch L_stage_{role}")
        a.flush_hist()

def k_tail(role):
    n = NROLE[role]
    a(f"L_k_{role}:")
    a("s_lshl_b32 s7, s4, 14")
    a("s_lshl_b32 s51, s45, 12")
    a("s_add_u32 s7, s7, s51")
    a(f"s_add_u32 s7, s7, {QG}")
    a("v_lshl_add_u32 v7, v1, 4, s7")
    a(f"s_waitcnt vmcnt({KPOLL}) lgkmcnt(0)")
    a("s_add_u32 s6, s6, 1")
    ts(2)
    for ks in range(4):
        a(f"global_load_dwordx4 v[{48+4*ks}:{51+4*ks}], v7, {WS} offset:{ks*1024} sc1")
    role_loads(role)
    a(f"s_waitcnt vmcnt({n})")
    ts(3)
    chk = lab("qchk")
    a(f"s_mov_b32 s38, {SPIN}")
    a(f"s_branch {chk}")
    lp, dn = lab("qp"), lab("qpd")
    a(f"{lp}:")
    for ks in range(4):
        a(f"global_load_dwordx4 v[{48+4*ks}:{51+4*ks}], v7, {WS} offset:{ks*1024} sc1")
    a("s_waitcnt vmcnt(0)")
    a(f"{chk}:")
    a("v_max3_u32 v5, v49, v51, v53")
    a("v_min3_u32 v6, v49, v51, v53")
    a("v_max3_u32 v5, v5, v55, v57")
    a("v_min3_u32 v6, v6, v55, v57")
    a("v_max3_u32 v5, v5, v59, v61")
    a("v_min3_u32 v6, v6, v59, v61")
    a("v_max_u32 v5, v5, v63")
    a("v_min_u32 v6, v6, v63")
    a("v_cmp_ne_u32 vcc, s6, v5")
    a("v_cmp_ne_u32 s[34:35], s6, v6")
    a("s_or_b64 vcc, vcc, s[34:35]")
    a("s_cmp_eq_u64 vcc, 0")
    spin_tail((lp, dn))
    ts(4)
    a("v_add_f32 v48, v48, v52")
    a("v_add_f32 v50, v50, v54")
    a("v_add_f32 v56, v56, v60")
    a("v_add_f32 v58, v58, v62")
    a("v_add_f32 v48, v48, v56")
    a("v_add_f32 v50, v50, v58")
    a("v_cvt_pk_bf16_f32 v48, v48, v50")
    a("v_subrev_u32 v5, 256, v0")
    a("v_lshlrev_b32 v5, 2, v5")
    a(f"ds_write_b32 v5, v48 offset:{L_Q}")
    a("s_lshl_b32 s7, s45, 2")
    a("v_mov_b32 v7, s7")
    a("v_mov_b32 v6, 1")
    a(f"ds_write_b32 v7, v6 offset:{L_FL+0x10}")
    a("v_lshlrev_b32 v5, 4, v4")
    a("v_mov_b32 v48, 0")
    h = spin_head("qx")
    a(f"ds_read_b128 v[60:63], v48 offset:{L_FL+0x10}")
    for hh in range(2):
        for j in range(4):
            r = 96 + (hh*4 + j)*4
            a(f"ds_read_b128 v[{r}:{r+3}], v5 offset:{L_Q + hh*512 + j*128}")
    a("s_waitcnt lgkmcnt(0)")
    a("v_add3_u32 v60, v60, v61, v62")
    a("v_add_u32 v60, v60, v63")
    a("v_cmp_ne_u32 vcc, 4, v60")
    a("s_cmp_eq_u64 vcc, 0")
    spin_tail(h)
    ts(5)
    for i in range(4): a(f"v_mov_b32 v{52+i}, 0")
    for j in range(4):
        for k in range(4):
            for grp in range(2):
                for hh in range(2):
                    a(f"v_dot2c_f32_bf16 v{52+grp*2+hh}, v{64+(grp*4+j)*4+k}, v{96+(hh*4+j)*4+k}")
    for m in ("quad_perm:[1,0,3,2]", "quad_perm:[2,3,0,1]", "row_half_mirror"):
        for i in range(4):
            a(f"v_add_f32_dpp v{52+i}, v{52+i}, v{52+i} {m} {DPPM}")
    a("v_cvt_pk_bf16_f32 v56, v52, v53")
    a("v_cvt_pk_bf16_f32 v57, v54, v55")
    a(f"s_mov_b32 s7, {f32(0.0625*LOG2E)}")
    a("v_lshlrev_b32 v52, 16, v56")
    a(f"v_and_b32 v53, {MHI}, v56")
    a("v_lshlrev_b32 v54, 16, v57")
    a(f"v_and_b32 v55, {MHI}, v57")
    for i in range(4): a(f"v_mul_f32 v{52+i}, s7, v{52+i}")
    a("s_lshl_b32 s7, s45, 6")
    a(f"s_add_u32 s7, s7, {L_SC}")
    a("v_lshl_add_u32 v5, v3, 2, s7")
    a("ds_write2_b32 v5, v52, v54 offset0:0 offset1:8")
    a("ds_write2_b32 v5, v53, v55 offset0:64 offset1:72")
    a(f"ds_write_b32 v7, v6 offset:{L_FL+0x20}")
    ts(6)
    if role == "none": end_wave()
    else:
        a(f"s_branch L_stage_{role}")
        a.flush_hist()

for role in ("none", "wo", "ffn"):
    v_tail(role)
    k_tail(role)

a("L_stage_wo:")
a("s_lshl_b32 s7, s4, 17")
a("s_lshl_b32 s51, s59, 10")
a("s_add_u32 s7, s7, s51")
a("s_lshl_b32 s51, s3, 7")
a("s_add_u32 s7, s7, s51")
a(f"s_add_u32 s7, s7, {MB + 4096}")
a("v_lshlrev_b32 v5, 14, v4")
a("v_lshl_add_u32 v5, v3, 4, v5")
a("v_add_u32 v5, s7, v5")
a("v_add_u32 v6, 0x2000, v5")
a("s_lshl_b32 s7, s57, 7")
a(f"s_add_u32 s7, s7, {LSE}")
a("v_lshl_add_u32 v7, v4, 4, s7")
a("s_waitcnt vmcnt(0)")
ts(9)
perm_pair(8, 12, R(64, 8))
perm_pair(16, 20, R(72, 8))
h = spin_head("wo")
a(f"global_load_dwordx4 v[96:99], v7, {WS} sc1")
a(f"global_load_dwordx4 v[80:83], v5, {WS} offset:-4096 sc1")
a(f"global_load_dwordx4 v[84:87], v5, {WS} sc1")
a(f"global_load_dwordx4 v[88:91], v6, {WS} offset:-4096 sc1")
a(f"global_load_dwordx4 v[92:95], v6, {WS} sc1")
a("s_waitcnt vmcnt(0)")
sentinel_check(R(80, 20), "v48")
spin_tail(h)
ts(10)
a("v_max3_f32 v48, v96, v97, v98")
a("v_max_f32 v48, v48, v99")
xlane("v_max_f32", "v48", None, ["q1", "q2", "hm"])
for i in range(4): a(f"v_sub_f32 v{96+i}, v{96+i}, v48")
for i in range(4): a(f"v_exp_f32 v{96+i}, v{96+i}")
for d in range(4): a(f"v_mul_f32 v{52+d}, v96, v{80+d}")
a("v_add_f32 v56, v96, v97")
for i in range(1, 4):
    for d in range(4): a(f"v_fmac_f32 v{52+d}, v{96+i}, v{80+4*i+d}")
a("v_add_f32 v57, v98, v99")
a("v_add_f32 v56, v56, v57")
for m in ("quad_perm:[1,0,3,2]", "quad_perm:[2,3,0,1]", "row_half_mirror"):
    for d in (4, 0, 1, 2, 3):
        a(f"v_add_f32_dpp v{52+d}, v{52+d}, v{52+d} {m} {DPPM}")
a("v_rcp_f32 v56, v56")
for d in range(4): a(f"v_mul_f32 v{52+d}, v{52+d}, v56")
a("v_cvt_pk_bf16_f32 v48, v52, v53")
a("v_cvt_pk_bf16_f32 v49, v54, v55")
dots16(R(64, 8), R(72, 8), "v48", "v49", R(100, 8))
reduce8_hi(R(100, 8), 50)
a("s_lshl_b32 s7, s3, 8")
a("v_lshl_add_u32 v5, v2, 2, s7")
a(f"ds_write_b32 v5, v50 offset:{L_RED}")
a("s_waitcnt lgkmcnt(0)")
a("s_barrier")
ts(11)
a("s_cmp_lg_u32 s3, 0")
a("s_cbranch_scc1 L_wo_end")
a("v_lshlrev_b32 v5, 2, v1")
for w in range(8): a(f"ds_read_b32 v{52+w}, v5 offset:{L_RED + 256*w}")
a("s_add_u32 s7, s44, 2048")
a("v_add_u32 v6, s7, v5")
a("s_waitcnt lgkmcnt(0)")
a("v_add_f32 v52, v52, v53")
a("v_add_f32 v54, v54, v55")
a("v_add_f32 v56, v56, v57")
a("v_add_f32 v58, v58, v59")
a("v_add_f32 v52, v52, v54")
a("v_add_f32 v56, v56, v58")
a("v_add_f32 v52, v52, v56")
a(f"global_store_dword v6, v52, {WS} sc1")
ts(12)
a("L_wo_end:")
end_wave()

a("L_stage_ffn:")
a("s_cmp_eq_u32 s3, 7")
a("s_cbranch_scc1 L_final")
a("v_and_b32 v5, 1, v1")
a("v_mul_u32_u24 v5, 7, v5")
a("v_add_u32 v5, s3, v5")
a("v_bfe_u32 v6, v1, 1, 3")
a("v_lshlrev_b32 v6, 14, v6")
a("v_bfe_u32 v7, v5, 1, 2")
a("v_lshl_add_u32 v6, v7, 12, v6")
a("v_lshrrev_b32 v7, 3, v5")
a("v_lshl_add_u32 v6, v7, 10, v6")
a("v_and_b32 v7, 1, v5")
a("v_lshl_add_u32 v6, v7, 9, v6")
a(f"v_add_u32 v6, {QG+4}, v6")
a("s_lshl_b32 s7, s3, 12")
a(f"s_add_u32 s7, s7, {MB + 2048}")
a("v_lshlrev_b32 v46, 18, v44")
a("v_lshl_add_u32 v46, v43, 4, v46")
a("v_add_u32 v46, s7, v46")
a(f"v_add_u32 v47, {7*4096}, v46")
a(f"v_add_u32 v48, {32*4096}, v46")
a(f"v_add_u32 v49, {39*4096}, v46")
a("s_waitcnt vmcnt(0)")
ts(9)
perm_pair(8, 12, R(64, 8))
perm_pair(16, 20, R(72, 8))
perm_pair(24, 28, R(80, 8))
perm_pair(32, 36, R(88, 8))
h = spin_head("tg")
a(f"global_load_dword v5, v6, {WS} sc1")
a("s_waitcnt vmcnt(0)")
a("v_cmp_ne_u32 vcc, s6, v5")
a("s_cmp_eq_u64 vcc, 0")
spin_tail(h)
a("v_lshlrev_b32 v56, 16, v40")
a(f"v_and_b32 v57, {MHI}, v40")
a("v_lshlrev_b32 v58, 16, v41")
a(f"v_and_b32 v59, {MHI}, v41")
a("v_lshlrev_b32 v42, 16, v42")
a("s_lshl_b32 s7, s3, 8")
a("v_lshl_add_u32 v7, v43, 4, s7")
h = spin_head("yp")
for i in range(4):
    a(f"global_load_dwordx4 v[{96+4*i}:{99+4*i}], v{46+i}, {WS} sc1")
a("s_waitcnt vmcnt(0)")
sentinel_check(R(96, 16), "v5")
spin_tail(h)
ts(10)
for d in range(4):
    a(f"v_add_f32 v{96+d}, v{96+d}, v{100+d}")
    a(f"v_add_f32 v{104+d}, v{104+d}, v{108+d}")
for d in range(4): a(f"v_add_f32 v{96+d}, v{96+d}, v{104+d}")
for m in ("quad_perm:[1,0,3,2]", "quad_perm:[2,3,0,1]"):
    for d in range(4): a(f"v_add_f32_dpp v{96+d}, v{96+d}, v{96+d} {m} {DPPM}")
a("v_cvt_pk_bf16_f32 v50, v96, v97")
a("v_cvt_pk_bf16_f32 v51, v98, v99")
a("v_lshlrev_b32 v96, 16, v50")
a(f"v_and_b32 v97, {MHI}, v50")
a("v_lshlrev_b32 v98, 16, v51")
a(f"v_and_b32 v99, {MHI}, v51")
for d in range(4): a(f"v_add_f32 v{96+d}, v{96+d}, v{56+d}")
a("v_cvt_pk_bf16_f32 v50, v96, v97")
a("v_cvt_pk_bf16_f32 v51, v98, v99")
a("v_lshlrev_b32 v96, 16, v50")
a(f"v_and_b32 v97, {MHI}, v50")
a("v_lshlrev_b32 v98, 16, v51")
a(f"v_and_b32 v99, {MHI}, v51")
a(f"ds_write_b128 v7, v[96:99] offset:{L_H}")
a("v_add_f32 v52, v96, v97")
a("v_mul_f32 v53, v96, v96")
a("v_fmac_f32 v53, v97, v97")
a("v_add_f32 v52, v52, v98")
a("v_fmac_f32 v53, v98, v98")
a("v_add_f32 v52, v52, v99")
a("v_fmac_f32 v53, v99, v99")
wave_sum2("v52", "v53", "s54", "s55", skip_quad=True)
a("s_lshl_b32 s7, s3, 3")
a("v_mov_b32 v5, s7")
a("v_mov_b32 v52, s54")
a("v_mov_b32 v53, s55")
a(f"ds_write_b64 v5, v[52:53] offset:{L_ST}")
a("v_mov_b32 v5, 0")
a("s_waitcnt lgkmcnt(0)")
a("s_barrier")
a(f"ds_read_b128 v[100:103], v5 offset:{L_ST}")
a(f"ds_read_b128 v[104:107], v5 offset:{L_ST+16}")
a(f"ds_read_b128 v[108:111], v5 offset:{L_ST+32}")
a(f"ds_read_b64 v[112:113], v5 offset:{L_ST+48}")
a("v_bfe_u32 v6, v1, 4, 1")
a("v_lshlrev_b32 v6, 1, v6")
a("v_lshrrev_b32 v7, 5, v1")
a("v_add_u32 v6, v6, v7")
a("v_lshl_add_u32 v6, v44, 3, v6")
a("s_lshl_b32 s7, s3, 2")
a(f"s_add_u32 s7, s7, {L_Z}")
a("v_lshl_add_u32 v6, v6, 5, s7")
a("v_lshlrev_b32 v7, 5, v45")
a("s_waitcnt lgkmcnt(0)")
a("v_add_f32 v100, v100, v102")
a("v_add_f32 v101, v101, v103")
a("v_add_f32 v104, v104, v106")
a("v_add_f32 v105, v105, v107")
a("v_add_f32 v108, v108, v110")
a("v_add_f32 v109, v109, v111")
a("v_add_f32 v100, v100, v104")
a("v_add_f32 v101, v101, v105")
a("v_add_f32 v108, v108, v112")
a("v_add_f32 v109, v109, v113")
a("v_add_f32 v100, v100, v108")
a("v_add_f32 v101, v101, v109")
ln_finish("v100", "v101", "v52", "v53", "v54")
ln_apply("v96", "v97", "v52", "v53", "v50")
ln_apply("v98", "v99", "v52", "v53", "v51")
dots16(R(64, 8), R(72, 8), "v50", "v51", R(100, 8))
reduce8_hi(R(100, 8), None, full_row=True)
a("ds_write2_b32 v6, v100, v104 offset0:0 offset1:32")
a("s_waitcnt lgkmcnt(0)")
a("s_barrier")
ts(11)
a(f"ds_read_b128 v[100:103], v7 offset:{L_Z}")
a(f"ds_read_b128 v[104:107], v7 offset:{L_Z+16}")
a("s_lshl_b32 s7, s3, 8")
a("s_add_u32 s7, s7, s44")
a("s_add_u32 s7, s7, 2048")
a("v_lshl_add_u32 v6, v2, 2, s7")
a("s_waitcnt lgkmcnt(0)")
a("v_add_f32 v100, v100, v101")
a("v_add_f32 v102, v102, v103")
a("v_add_f32 v104, v104, v105")
a("v_add_f32 v100, v100, v102")
a("v_add_f32 v104, v104, v106")
a("v_add_f32 v100, v100, v104")
bf16r("v100")
a("v_add_f32 v100, v100, v42")
bf16r("v100")
a(f"s_mov_b32 s7, {f32(-LOG2E)}")
a("v_mul_f32 v101, s7, abs(v100)")
a("v_exp_f32 v101, v101")
bf16r("v101")
a("v_add_f32 v102, 1.0, v101")
a("v_log_f32 v102, v102")
a(f"v_mov_b32 v104, {f32(1.0/3)}")
a("v_fma_f32 v103, v101, v104, -0.5")
a("v_fma_f32 v103, v101, v103, 1.0")
a("v_mul_f32 v103, v101, v103")
a(f"v_mul_f32 v102, {f32(math.log(2))}, v102")
a(f"v_cmp_gt_f32 vcc, {f32(2.0**-6)}, v101")
a("v_cndmask_b32 v102, v102, v103, vcc")
bf16r("v102")
a("v_max_f32 v103, 0, v100")
a("v_add_f32 v102, v102, v103")
bf16r("v102")
a(f"v_mul_f32 v103, {f32(-2*LOG2E)}, v102")
a("v_exp_f32 v103, v103")
a("v_mul_f32 v105, v102, v102")
a("v_add_f32 v106, 1.0, v103")
a("v_sub_f32 v103, 1.0, v103")
a("v_rcp_f32 v106, v106")
a("v_mul_f32 v105, v105, v104")
a("v_fma_f32 v105, -v105, v102, v102")
a("v_mul_f32 v103, v103, v106")
a(f"v_cmp_gt_f32 vcc, {f32(2.0**-5)}, v102")
a("v_cndmask_b32 v103, v103, v105, vcc")
bf16r("v103")
a("v_mul_f32 v100, v100, v103")
a(f"v_mov_b32_dpp v101, v100 quad_perm:[0,0,2,2] {DPPM}")
a(f"v_mov_b32_dpp v102, v100 quad_perm:[1,1,3,3] {DPPM}")
a("v_cvt_pk_bf16_f32 v101, v101, v102")
a(f"v_mov_b32_dpp v50, v101 quad_perm:[0,0,0,0] {DPPM}")
a(f"v_mov_b32_dpp v51, v101 quad_perm:[2,2,2,2] {DPPM}")
dots16(R(80, 8), R(88, 8), "v50", "v51", R(100, 8))
reduce8_hi(R(100, 8), 52)
a(f"global_store_dword v6, v52, {WS} sc1")
ts(12)
end_wave()

a("L_final:")
a("v_min_u32 v5, 55, v1")
a("v_mul_u32_u24 v6, 37, v5")
a("v_lshrrev_b32 v6, 8, v6")
a("v_mul_u32_u24 v7, 25, v6")
a("v_add_u32 v5, v5, v7")
a("s_lshl_b32 s7, s57, 5")
a(f"s_add_u32 s7, s7, {MB + 14*4096 + 2048}")
a("v_lshl_add_u32 v5, v5, 12, s7")
a("v_and_b32 v6, 7, v2")
a("s_lshl_b32 s7, s57, 3")
a("v_add_u32 v6, s7, v6")
a("v_lshlrev_b32 v7, 2, v6")
a("v_lshlrev_b32 v6, 1, v6")
a("s_waitcnt vmcnt(0)")
a("s_barrier")
a(f"ds_read_b32 v50, v7 offset:{L_H}")
a("s_barrier")
ts(11)
h = spin_head("fin")
a(f"global_load_dwordx4 v[100:103], v5, {WS} sc1")
a(f"global_load_dwordx4 v[104:107], v5, {WS} offset:16 sc1")
a("s_waitcnt vmcnt(0)")
sentinel_check(R(100, 8), "v51")
spin_tail(h)
ts(12)
a("v_cmp_gt_u32 vcc, 56, v1")
for d in range(8): a(f"v_cndmask_b32 v{100+d}, 0, v{100+d}, vcc")
reduce8_hi(R(100, 8), 52)
xlane("v_add_f32", "v52", None, ["q1", "q2", "hm"])
bf16r("v52")
a("s_waitcnt lgkmcnt(0)")
a("v_add_f32 v52, v52, v50")
a("v_cvt_pk_bf16_f32 v52, v52, v52")
a("s_mov_b32 s34, 0x01010101")
a("s_mov_b32 s35, 0x01010101")
a("s_mov_b64 exec, s[34:35]")
a(f"global_store_short v6, v52, {OUT}")
a("s_cmp_lg_u32 s57, 0")
a("s_cbranch_scc1 L_fin_end")
a("s_mov_b64 exec, 1")
a("v_mov_b32 v5, 0")
a("v_mov_b32 v6, s6")
a(f"global_store_dword v5, v6, {WS} sc1")
a("L_fin_end:")
a("s_mov_b64 exec, -1")
ts(13)
end_wave()

if DEBUG:
    a("L_dump:")
    a("s_waitcnt lgkmcnt(0)")
    a("s_mov_b64 exec, 1")
    a("s_lshl_b32 s7, s2, 3")
    a("s_add_u32 s7, s7, s3")
    a("s_lshl_b32 s7, s7, 6")
    a(f"s_add_u32 s7, s7, {TS}")
    a("v_mov_b32 v5, s7")
    if HDBG:
        a("v_mov_b32 v5, 0")
        a("s_not_b32 s7, s64")
        a("v_mov_b32 v6, s7")
        a(f"global_atomic_umax v5, v6, {DBG}")
        a("v_mov_b32 v6, s64")
        a(f"global_atomic_umax v5, v6, {DBG} offset:4")
        a("s_cmp_ge_u32 s3, 4")
        a("s_cbranch_scc1 L_dump_k")
        for i, k in enumerate((2, 3, 7, 8)):
            a(f"v_mov_b32 v6, s{64+2*k}")
            a(f"global_atomic_umax v5, v6, {DBG} offset:{8+4*i}")
        a("s_branch L_dump_c")
        a("L_dump_k:")
        for i, k in enumerate((3, 4, 6)):
            a(f"v_mov_b32 v6, s{64+2*k}")
            a(f"global_atomic_umax v5, v6, {DBG} offset:{24+4*i}")
        a("L_dump_c:")
        a("s_cmp_lt_u32 s5, 14")
        a("s_cbranch_scc0 L_dump_f")
        for i, k in enumerate((10, 12)):
            a(f"v_mov_b32 v6, s{64+2*k}")
            a(f"global_atomic_umax v5, v6, {DBG} offset:{36+4*i}")
        a("s_endpgm")
        a("L_dump_f:")
        for i, k in enumerate((10, 11, 12, 13, 15)):
            a(f"v_mov_b32 v6, s{64+2*k}")
            a(f"global_atomic_umax v5, v6, {DBG} offset:{44+4*i}")
    else:
      for k in range(16):
        a(f"v_mov_b32 v6, s{64+2*k}")
        a(f"global_store_dword v5, v6, {WS} offset:{4*k}")
a("L_end:")
a("s_endpgm")
a("L_codeend:")
a.raw(f'''.section .rodata,"a"
.p2align 6
.amdhsa_kernel {NAME}_kernel
  .amdhsa_next_free_vgpr 128
  .amdhsa_next_free_sgpr 96
  .amdhsa_accum_offset 128
  .amdhsa_group_segment_fixed_size 0
  .amdhsa_kernarg_size 96
  .amdhsa_user_sgpr_count 2
  .amdhsa_user_sgpr_kernarg_segment_ptr 1
  .amdhsa_system_sgpr_workgroup_id_x 1
  .amdhsa_float_denorm_mode_32 3
.end_amdhsa_kernel''')
open(OUTP, "w").write(a.text())
print("nops inserted:", a.nops, "lines:", len(a.lines))
```

```python
import sys, struct, math
sys.path.insert(0, "gen")
from asmlib import Asm

NAME = "sequential_preLN__sliding_block_cached__dense_activation_mish__decode"
opts = dict(x.split("=") for x in sys.argv[2:])
OUTP = sys.argv[1]
DEBUG = int(opts.get("dbg", 0))
HDBG = int(opts.get("hdbg", 0))
if HDBG: DEBUG = 1
NT = " nt" if int(opts.get("nt", 1)) else ""
NTW = " nt" if int(opts.get("ntw", 1)) else ""
KPOLL = int(opts.get("kpoll", 2))
SPIN = 100000

def f32(x): return "0x%08x" % struct.unpack("<I", struct.pack("<f", x))[0]
LOG2E = math.log2(math.e)

QG = 0x10000; LSE = 0x30000; MB = 0x100000; TS = 0x400000
L_S1 = 0x000; L_FL = 0x400; L_Q = 0x500; L_SC = 0x900; L_RED = 0xB00; L_ST = 0x1300; L_H = 0x1400; L_Z = 0x1B00
LDS_BYTES = 0x2000
X, K, V, WQ, WO, W1, B1, W2, OUT, DBG, WS = "s[8:9]", "s[10:11]", "s[12:13]", "s[14:15]", "s[16:17]", "s[20:21]", "s[22:23]", "s[24:25]", "s[26:27]", "s[28:29]", "s[30:31]"
SEL_LO, SEL_HI, MHI = "s40", "s41", "s42"
R = lambda a_, n: list(range(a_, a_ + n))

a = Asm()
uid = [0]
def lab(p):
    uid[0] += 1
    return f"L_{p}_{uid[0]}"

def ts(k):
    if HDBG and k not in (0, 15): return
    if DEBUG: a(f"s_memrealtime s[{64+2*k}:{65+2*k}]")

def end_wave():
    if DEBUG:
        ts(15)
        a("s_branch L_dump")
    else:
        a("s_endpgm")
    a.flush_hist()

DPPM = "row_mask:0xf bank_mask:0xf"
def wave_sum2(x, y, sx, sy, skip_quad=False):
    steps = ("quad_perm:[1,0,3,2]", "quad_perm:[2,3,0,1]", "row_half_mirror", "row_mirror")
    if skip_quad: steps = steps[2:]
    for m in steps:
        a(f"v_add_f32_dpp {x}, {x}, {x} {m} {DPPM}")
        a(f"v_add_f32_dpp {y}, {y}, {y} {m} {DPPM}")
    a(f"v_add_f32_dpp {x}, {x}, {x} row_bcast:15 row_mask:0xa bank_mask:0xf")
    a(f"v_add_f32_dpp {y}, {y}, {y} row_bcast:15 row_mask:0xa bank_mask:0xf")
    a(f"v_add_f32_dpp {x}, {x}, {x} row_bcast:31 row_mask:0xc bank_mask:0xf")
    a(f"v_add_f32_dpp {y}, {y}, {y} row_bcast:31 row_mask:0xc bank_mask:0xf")
    a(f"v_readlane_b32 {sx}, {x}, 63")
    a(f"v_readlane_b32 {sy}, {y}, 63")

def bf16r(x):
    a(f"v_cvt_pk_bf16_f32 {x}, {x}, {x}")
    a(f"v_and_b32 {x}, {MHI}, {x}")

def ln_finish(vsum, vsq, vm, vr, t):
    a(f"v_mov_b32 {t}, {f32(1.0/448)}")
    a(f"v_mul_f32 {vm}, {vsum}, {t}")
    a(f"v_mul_f32 {vr}, {vsq}, {t}")
    a(f"v_fma_f32 {vr}, -{vm}, {vm}, {vr}")
    a(f"v_max_f32 {vr}, 0, {vr}")
    a(f"v_cvt_pk_bf16_f32 {t}, {vm}, {vr}")
    a(f"v_lshlrev_b32 {vm}, 16, {t}")
    a(f"v_and_b32 {vr}, {MHI}, {t}")
    a(f"v_add_f32 {vr}, {f32(1e-5)}, {vr}")
    bf16r(vr)
    a(f"v_sqrt_f32 {vr}, {vr}")
    bf16r(vr)
    a(f"v_rcp_f32 {vr}, {vr}")

def ln_apply(lo, hi, vm, vr, dst):
    a(f"v_sub_f32 {lo}, {lo}, {vm}")
    a(f"v_sub_f32 {hi}, {hi}, {vm}")
    a(f"v_cvt_pk_bf16_f32 {dst}, {lo}, {hi}")
    a(f"v_lshlrev_b32 {lo}, 16, {dst}")
    a(f"v_and_b32 {hi}, {MHI}, {dst}")
    a(f"v_mul_f32 {lo}, {lo}, {vr}")
    a(f"v_mul_f32 {hi}, {hi}, {vr}")
    a(f"v_cvt_pk_bf16_f32 {dst}, {lo}, {hi}")

def perm_pair(A, B, outs):
    for k in range(4):
        a(f"v_perm_b32 v{outs[2*k]}, v{B+k}, v{A+k}, {SEL_LO}")
        a(f"v_perm_b32 v{outs[2*k+1]}, v{B+k}, v{A+k}, {SEL_HI}")

def reduce8_hi(acc, dst, full_row=False):
    for k in range(4):
        a(f"v_permlane32_swap_b32 v{acc[2*k]}, v{acc[2*k+1]}")
    for k in range(4):
        a(f"v_add_f32 v{acc[2*k]}, v{acc[2*k]}, v{acc[2*k+1]}")
    a(f"v_permlane16_swap_b32 v{acc[0]}, v{acc[2]}")
    a(f"v_permlane16_swap_b32 v{acc[4]}, v{acc[6]}")
    a(f"v_add_f32 v{acc[0]}, v{acc[0]}, v{acc[2]}")
    a(f"v_add_f32 v{acc[4]}, v{acc[4]}, v{acc[6]}")
    if full_row:
        for m in ("row_ror:4", "row_ror:8"):
            a(f"v_add_f32_dpp v{acc[0]}, v{acc[0]}, v{acc[0]} {m} {DPPM}")
            a(f"v_add_f32_dpp v{acc[4]}, v{acc[4]}, v{acc[4]} {m} {DPPM}")
    else:
        a(f"v_add_f32_dpp v{dst}, v{acc[0]}, v{acc[0]} row_ror:8 row_mask:0xf bank_mask:0x3")
        a(f"v_add_f32_dpp v{dst}, v{acc[4]}, v{acc[4]} row_ror:8 row_mask:0xf bank_mask:0xc")

def dots16(P0, P1, x0, x1, acc):
    for j in range(8):
        a(f"v_dot2_f32_bf16 v{acc[j]}, v{P0[j]}, {x0}, 0")
    for j in range(8):
        a(f"v_dot2_f32_bf16 v{acc[j]}, v{P1[j]}, {x1}, v{acc[j]}")

def sentinel_check(regs, t):
    r = list(regs)
    a(f"v_max3_u32 {t}, v{r[0]}, v{r[1]}, v{r[2]}")
    r = r[3:]
    while len(r) >= 2:
        a(f"v_max3_u32 {t}, {t}, v{r[0]}, v{r[1]}"); r = r[2:]
    if r: a(f"v_max_u32 {t}, {t}, v{r[0]}")
    a(f"v_cmp_eq_u32 vcc, -1, {t}")
    a(f"s_cmp_eq_u64 vcc, 0")

def spin_head(p):
    lp, dn = lab(p), lab(p + "d")
    a(f"s_mov_b32 s38, {SPIN}")
    a(f"{lp}:")
    return lp, dn

def spin_tail(h):
    lp, dn = h
    a(f"s_cbranch_scc1 {dn}")
    a("s_sub_u32 s38, s38, 1")
    a("s_cmp_eq_u32 s38, 0")
    a(f"s_cbranch_scc0 {lp}")
    a(f"{dn}:")

def xlane(op, x, t, steps):
    for s in steps:
        if s in ("p16", "p32"):
            a(f"v_mov_b32 {t}, {x}")
            a(f"v_permlane{s[1:]}_swap_b32 {x}, {t}")
            a(f"{op} {x}, {x}, {t}")
        else:
            m = {"q3": "quad_perm:[3,2,1,0]", "q1": "quad_perm:[1,0,3,2]", "q2": "quad_perm:[2,3,0,1]", "hm": "row_half_mirror"}[s]
            a(f"{op}_dpp {x}, {x}, {x} {m} {DPPM}")

hdr = open(f"cdna_kernels/{NAME}.s.ref").read().split("; Override launch")[0]
a.raw(hdr.rstrip())
a.raw(f"; @launch grid=(256,1,1) block=(512,1,1) lds={LDS_BYTES}")
a.raw('.amdgcn_target "amdgcn-amd-amdhsa--gfx950"')
a.raw(".text")
a.raw(f".globl {NAME}_kernel\n.p2align 8\n.type {NAME}_kernel,@function\n{NAME}_kernel:")

a("s_cmp_ge_u32 s2, 256")
a("s_cbranch_scc1 L_end")
a("s_load_dwordx16 s[8:23], s[0:1], 0")
a("s_load_dwordx8 s[24:31], s[0:1], 64")
if DEBUG:
    for k in range(16): a(f"s_mov_b64 s[{64+2*k}:{65+2*k}], 0")
ts(0)
a("v_lshrrev_b32 v2, 6, v0")
a("v_and_b32 v1, 63, v0")
a("s_and_b32 s4, s2, 7")
a("s_lshr_b32 s5, s2, 3")
a("v_readfirstlane_b32 s3, v2")
a("v_lshrrev_b32 v3, 3, v1")
a("v_and_b32 v4, 7, v1")
a("v_mov_b32 v5, 0")
a("v_lshlrev_b32 v6, 2, v1")
a(f"ds_write_b32 v6, v5 offset:{L_FL}")
a(f"s_mov_b32 {SEL_LO}, 0x05040100")
a(f"s_mov_b32 {SEL_HI}, 0x07060302")
a(f"s_mov_b32 {MHI}, 0xffff0000")
a("s_lshl_b32 s44, s4, 5")
a("s_add_u32 s44, s44, s5")
a("s_lshl_b32 s44, s44, 12")
a(f"s_add_u32 s44, s44, {MB}")
a("s_lshl_b32 s43, s4, 22")
a("s_lshl_b32 s7, s5, 15")
a("s_add_u32 s43, s43, s7")
a(f"s_add_u32 s43, s43, {6144*512}")
a("s_cmp_ge_u32 s3, 4")
a("s_cbranch_scc1 L_kwave")

a("s_lshr_b32 s45, s5, 3")
a("s_and_b32 s46, s5, 7")
a("v_lshl_add_u32 v5, v0, 4, s44")
a("v_mov_b32 v8, -1\nv_mov_b32 v9, -1\nv_mov_b32 v10, -1\nv_mov_b32 v11, -1")
a("v_min_u32 v6, 55, v1")
a("v_lshlrev_b32 v6, 4, v6")
a("s_mul_i32 s47, s45, 112")
a("s_lshl_b32 s48, s3, 5")
a("s_add_u32 s48, s48, s47")
a("s_add_u32 s49, s48, 16")
a("s_cmp_eq_u32 s3, 3")
a("s_cselect_b32 s49, s48, s49")
a("s_cselect_b32 s50, 0, -1")
a("v_lshlrev_b32 v7, 2, v3")
a("s_lshl_b32 s51, s48, 1")
a("s_lshl_b32 s52, s49, 1")
a("v_add_u32 v12, s51, v7")
a("v_add_u32 v13, s52, v7")
a("v_lshlrev_b32 v14, 14, v3")
a("v_lshl_add_u32 v14, v4, 4, v14")
a("s_lshl_b32 s51, s4, 10")
a("s_lshl_b32 s52, s46, 7")
a("s_add_u32 s51, s51, s52")
a("s_lshl_b32 s52, s48, 13")
a("s_add_u32 s52, s52, s51")
a("s_lshl_b32 s53, s49, 13")
a("s_add_u32 s53, s53, s51")
a("v_add_u32 v32, s52, v14")
a("v_add_u32 v33, 0x2000, v32")
a("v_add_u32 v34, s53, v14")
a("v_add_u32 v35, 0x2000, v34")
a("s_lshl_b32 s7, s4, 8")
a("s_lshl_b32 s51, s5, 2")
a("s_add_u32 s7, s7, s51")
a(f"s_add_u32 s39, s7, {LSE}")
a("v_and_b32 v7, 1, v0")
a("v_lshl_add_u32 v7, v7, 7, s39")
a("s_waitcnt lgkmcnt(0)")
a("s_barrier")
a(f"s_load_dword s6, {WS}, 0")
a(f"global_store_dwordx4 v5, v[8:11], {WS} sc1")
a(f"global_store_dword v7, v8, {WS} sc1")
a(f"global_load_dwordx4 v[36:39], v6, {X}")
a(f"global_load_dword v12, v12, {X}")
a(f"global_load_dword v13, v13, {X}")
a(f"global_load_dwordx4 v[16:19], v32, {WQ}{NTW}")
a(f"global_load_dwordx4 v[20:23], v33, {WQ}{NTW}")
a(f"global_load_dwordx4 v[24:27], v34, {WQ}{NTW}")
a(f"global_load_dwordx4 v[28:31], v35, {WQ}{NTW}")
a("s_branch L_common2")

a.flush_hist()
a("L_kwave:")
a("s_sub_u32 s45, s3, 4")
a("s_getpc_b64 s[36:37]")
a("L_pc:")
a("v_subrev_u32 v5, 256, v0")
a("v_lshlrev_b32 v5, 7, v5")
a("v_cmp_gt_u32 vcc, L_codeend-L_pc, v5")
a("v_cndmask_b32 v5, 0, v5, vcc")
a("global_load_dword v63, v5, s[36:37]")
a("s_lshl_b32 s47, s45, 13")
a("s_add_u32 s46, s43, s47")
a("v_lshlrev_b32 v6, 9, v3")
a("v_lshl_add_u32 v6, v4, 4, v6")
a("v_add_u32 v6, s46, v6")
a("v_add_u32 v7, 0x1000, v6")
a("s_waitcnt lgkmcnt(0)")
a("s_barrier")
a(f"s_load_dword s6, {WS}, 0")
for grp in range(2):
    for j in range(4):
        r = 64 + (grp*4 + j)*4
        a(f"global_load_dwordx4 v[{r}:{r+3}], v{6+grp}, {K} offset:{j*128}{NT}")

a("L_common2:")
ts(1)
a("v_lshlrev_b32 v2, 3, v4")
a("v_bfe_u32 v5, v1, 3, 1")
a("v_lshl_add_u32 v2, v5, 2, v2")
a("v_bfe_u32 v5, v1, 4, 1")
a("v_lshl_add_u32 v2, v5, 1, v2")
a("v_lshrrev_b32 v5, 5, v1")
a("v_add_u32 v2, v2, v5")
a("s_cmp_ge_u32 s3, 4")
a("s_cbranch_scc1 L_kdispatch")

a("s_lshl_b32 s52, s3, 7")
a("s_add_u32 s51, s43, s52")
a("v_bfe_u32 v5, v1, 3, 1")
a("v_lshlrev_b32 v5, 14, v5")
a("v_lshrrev_b32 v6, 4, v1")
a("v_lshl_add_u32 v5, v6, 12, v5")
a("v_lshl_add_u32 v5, v4, 4, v5")
a("v_add_u32 v7, s51, v5")
a("s_waitcnt vmcnt(6)")
for k in range(4):
    a(f"v_lshlrev_b32 v{40+2*k}, 16, v{36+k}")
    a(f"v_and_b32 v{41+2*k}, {MHI}, v{36+k}")
a("v_add_f32 v48, v40, v41")
a("v_mul_f32 v49, v40, v40")
a("v_fmac_f32 v49, v41, v41")
for k in range(2, 8):
    a(f"v_add_f32 v48, v48, v{40+k}")
    a(f"v_fmac_f32 v49, v{40+k}, v{40+k}")
a("v_cmp_gt_u32 vcc, 56, v1")
a("v_cndmask_b32 v48, 0, v48, vcc")
a("v_cndmask_b32 v49, 0, v49, vcc")
wave_sum2("v48", "v49", "s54", "s55")
ln_finish("s54", "s55", "v50", "v51", "v52")
a("s_waitcnt vmcnt(4)")
for r in (12, 13):
    a(f"v_lshlrev_b32 v40, 16, v{r}")
    a(f"v_and_b32 v41, {MHI}, v{r}")
    ln_apply("v40", "v41", "v50", "v51", f"v{r}")
a("v_and_b32 v13, s50, v13")
a("s_waitcnt vmcnt(2)")
ts(2)
perm_pair(16, 20, R(40, 8))
a("s_waitcnt vmcnt(0)")
perm_pair(24, 28, R(48, 8))
dots16(R(40, 8), R(48, 8), "v12", "v13", R(56, 8))
reduce8_hi(R(56, 8), 40)
a("s_waitcnt lgkmcnt(0)")
a("s_add_u32 s6, s6, 1")
a("s_cmp_eq_u32 s3, 0")
a("s_cbranch_scc1 L_s1_w0")
a("v_lshlrev_b32 v5, 2, v0")
a(f"ds_write_b32 v5, v40 offset:{L_S1}")
a("s_lshl_b32 s7, s3, 2")
a("v_mov_b32 v5, s7")
a("v_mov_b32 v6, 1")
a(f"ds_write_b32 v5, v6 offset:{L_FL}")
a("s_branch L_s1_done")
a.flush_hist()
a("L_s1_w0:")
a("v_lshlrev_b32 v5, 2, v1")
a("v_mov_b32 v6, 0")
a("s_lshl_b32 s7, s4, 14")
a("s_lshr_b32 s51, s46, 1")
a("s_lshl_b32 s51, s51, 12")
a("s_add_u32 s7, s7, s51")
a("s_lshl_b32 s51, s45, 10")
a("s_add_u32 s7, s7, s51")
a("s_and_b32 s51, s46, 1")
a("s_lshl_b32 s51, s51, 9")
a("s_add_u32 s7, s7, s51")
a(f"s_add_u32 s7, s7, {QG}")
a("v_lshl_add_u32 v8, v2, 3, s7")
h = spin_head("s1")
a(f"ds_read_b128 v[44:47], v6 offset:{L_FL}")
a(f"ds_read_b32 v41, v5 offset:{L_S1+256}")
a(f"ds_read_b32 v42, v5 offset:{L_S1+512}")
a(f"ds_read_b32 v43, v5 offset:{L_S1+768}")
a("s_waitcnt lgkmcnt(0)")
a("v_add3_u32 v44, v45, v46, v47")
a("v_cmp_ne_u32 vcc, 3, v44")
a("s_cmp_eq_u64 vcc, 0")
spin_tail(h)
a("v_add_f32 v40, v40, v41")
a("v_add_f32 v42, v42, v43")
a("v_add_f32 v40, v40, v42")
a("v_mov_b32 v41, s6")
a(f"global_store_dwordx2 v8, v[40:41], {WS} sc1")
a("L_s1_done:")
ts(3)
for i in range(8):
    a(f"global_load_dwordx4 v[{64+4*i}:{67+4*i}], v7, {V} offset:{i*512}{NT}")
a("s_cmp_lt_u32 s5, 14")
a("s_cbranch_scc1 L_v_wo")
a("s_cmp_lt_u32 s5, 21")
a("s_cbranch_scc1 L_v_ffn")
a("s_branch L_v_none")
a.flush_hist()
a("L_kdispatch:")
a("s_cmp_lt_u32 s5, 14")
a("s_cbranch_scc1 L_k_wo")
a("s_cmp_lt_u32 s5, 21")
a("s_cbranch_scc1 L_k_ffn")
a("s_branch L_k_none")
a.flush_hist()

NROLE = {"none": 0, "wo": 4, "ffn": 10}

def role_loads(role):
    if role == "wo":
        a("s_cmp_ge_u32 s5, 7")
        a("s_cselect_b32 s59, 1, 0")
        a("s_mul_i32 s7, s59, 7")
        a("s_sub_u32 s58, s5, s7")
        a("s_lshl_b32 s57, s4, 1")
        a("s_add_u32 s57, s57, s59")
        a("s_lshl_b32 s7, s57, 8")
        a("s_lshl_b32 s51, s3, 5")
        a("s_add_u32 s7, s7, s51")
        a("s_mul_i32 s7, s7, 896")
        a("s_lshl_b32 s51, s58, 7")
        a("s_add_u32 s7, s7, s51")
        a(f"v_mul_u32_u24 v5, {4*896}, v3")
        a("v_lshl_add_u32 v5, v4, 4, v5")
        a("v_add_u32 v5, s7, v5")
        for i in range(4):
            a(f"global_load_dwordx4 v[{8+4*i}:{11+4*i}], v5, {WO} offset:{i*896}{NTW}")
    elif role == "ffn":
        a("s_mul_i32 s57, s4, 7")
        a("s_add_u32 s57, s57, s5")
        a("s_sub_u32 s57, s57, 14")
        a("s_min_u32 s58, s3, 6")
        a(f"s_mul_i32 s7, s58, {64*3584}")
        a("s_lshl_b32 s51, s57, 6")
        a("s_add_u32 s7, s7, s51")
        a("v_lshrrev_b32 v43, 2, v1")
        a("v_and_b32 v44, 3, v1")
        a(f"v_mul_u32_u24 v5, {4*3584}, v43")
        a("v_lshl_add_u32 v5, v44, 4, v5")
        a("v_add_u32 v5, s7, v5")
        a("v_add_u32 v6, 7168, v5")
        a(f"global_load_dwordx4 v[8:11], v5, {W1}{NTW}")
        a(f"global_load_dwordx4 v[12:15], v5, {W1} offset:3584{NTW}")
        a(f"global_load_dwordx4 v[16:19], v6, {W1}{NTW}")
        a(f"global_load_dwordx4 v[20:23], v6, {W1} offset:3584{NTW}")
        a(f"s_mul_i32 s7, s57, {32*896}")
        a("s_lshl_b32 s51, s58, 7")
        a("s_add_u32 s7, s7, s51")
        a(f"v_mul_u32_u24 v5, {4*896}, v3")
        a("v_lshl_add_u32 v5, v4, 4, v5")
        a("v_add_u32 v5, s7, v5")
        for i in range(4):
            a(f"global_load_dwordx4 v[{24+4*i}:{27+4*i}], v5, {W2} offset:{i*896}{NTW}")
        a("v_lshl_add_u32 v5, v43, 3, s51")
        a(f"global_load_dwordx2 v[40:41], v5, {X}")
        a("v_lshl_add_u32 v45, v3, 2, v44")
        a("s_lshl_b32 s51, s57, 6")
        a("v_lshl_add_u32 v5, v45, 1, s51")
        a(f"global_load_ushort v42, v5, {B1}")

def v_tail(role):
    n = NROLE[role]
    a(f"L_v_{role}:")
    role_loads(role)
    a("v_lshrrev_b32 v5, 1, v1")
    a("v_xor_b32 v5, v5, v1")
    a("v_and_b32 v5, 1, v5")
    a("v_lshlrev_b32 v5, 8, v5")
    a("v_and_b32 v6, 1, v1")
    a("v_lshl_add_u32 v5, v6, 7, v5")
    a("v_lshrrev_b32 v6, 4, v1")
    a("v_lshl_add_u32 v5, v6, 5, v5")
    a("v_mov_b32 v6, 0")
    a("v_bfe_u32 v7, v1, 3, 1")
    a("v_lshlrev_b32 v7, 10, v7")
    a("v_lshl_add_u32 v7, v4, 5, v7")
    a("s_lshl_b32 s7, s3, 8")
    a("s_add_u32 s7, s7, s44")
    a("v_add_u32 v7, s7, v7")
    for t in range(3):
        a(f"s_waitcnt vmcnt({6-2*t+n})")
        if t == 0: ts(4)
        perm_pair(64+8*t, 68+8*t, [96+4*j+t for j in range(8)])
    ts(5)
    h = spin_head("sc")
    a(f"ds_read_b128 v[60:63], v6 offset:{L_FL+0x20}")
    a(f"ds_read_b128 v[48:51], v5 offset:{L_SC}")
    a(f"ds_read_b128 v[52:55], v5 offset:{L_SC+16}")
    a("s_waitcnt lgkmcnt(0)")
    a("v_add3_u32 v60, v60, v61, v62")
    a("v_add_u32 v60, v60, v63")
    a("v_cmp_ne_u32 vcc, 4, v60")
    a("s_cmp_eq_u64 vcc, 0")
    spin_tail(h)
    ts(6)
    a("v_max3_f32 v56, v48, v49, v50")
    a("v_max3_f32 v56, v56, v51, v52")
    a("v_max3_f32 v56, v56, v53, v54")
    a("v_max_f32 v56, v56, v55")
    xlane("v_max_f32", "v56", "v57", ["q3", "p16", "p32"])
    for e in range(8): a(f"v_sub_f32 v{48+e}, v{48+e}, v56")
    for e in range(8): a(f"v_exp_f32 v{48+e}, v{48+e}")
    a("v_add_f32 v58, v48, v49")
    a("v_add_f32 v59, v50, v51")
    a("v_add_f32 v60, v52, v53")
    a("v_add_f32 v61, v54, v55")
    a("v_add_f32 v58, v58, v59")
    a("v_add_f32 v60, v60, v61")
    a("v_add_f32 v58, v58, v60")
    xlane("v_add_f32", "v58", "v57", ["q3", "p16", "p32"])
    a("v_rcp_f32 v59, v58")
    a("v_log_f32 v58, v58")
    for e in range(8): a(f"v_mul_f32 v{48+e}, v{48+e}, v59")
    a("v_add_f32 v56, v56, v58")
    for t in range(4): a(f"v_cvt_pk_bf16_f32 v{60+t}, v{48+2*t}, v{49+2*t}")
    a(f"s_waitcnt vmcnt({n})")
    ts(7)
    perm_pair(88, 92, [96+4*j+3 for j in range(8)])
    for j in range(8):
        a(f"v_mfma_f32_16x16x32_bf16 v[{64+4*j}:{67+4*j}], v[60:63], v[{96+4*j}:{99+4*j}], 0")
    for j in range(8):
        d = 64 + 4*j
        a(f"v_add_f32_dpp v{48+j}, v{d+3}, v{d} row_ror:8 row_mask:0xf bank_mask:0x3")
        a(f"v_add_f32_dpp v{48+j}, v{d+2}, v{d+1} row_ror:8 row_mask:0xf bank_mask:0xc")
    a("s_mov_b64 exec, 0xffff")
    a(f"global_store_dwordx4 v7, v[48:51], {WS} sc1")
    a(f"global_store_dwordx4 v7, v[52:55], {WS} offset:16 sc1")
    sk = lab("nolse")
    a("s_cmp_lg_u32 s3, 0")
    a(f"s_cbranch_scc1 {sk}")
    a("s_mov_b64 exec, 3")
    a("v_lshl_add_u32 v5, v1, 7, s39")
    a(f"global_store_dword v5, v56, {WS} sc1")
    a(f"{sk}:")
    a("s_mov_b64 exec, -1")
    ts(8)
    if role == "none": end_wave()
    else:
        a(f"s_branch L_stage_{role}")
        a.flush_hist()

def k_tail(role):
    n = NROLE[role]
    a(f"L_k_{role}:")
    a("s_lshl_b32 s7, s4, 14")
    a("s_lshl_b32 s51, s45, 12")
    a("s_add_u32 s7, s7, s51")
    a(f"s_add_u32 s7, s7, {QG}")
    a("v_lshl_add_u32 v7, v1, 4, s7")
    a(f"s_waitcnt vmcnt({KPOLL}) lgkmcnt(0)")
    a("s_add_u32 s6, s6, 1")
    ts(2)
    for ks in range(4):
        a(f"global_load_dwordx4 v[{48+4*ks}:{51+4*ks}], v7, {WS} offset:{ks*1024} sc1")
    role_loads(role)
    a(f"s_waitcnt vmcnt({n})")
    ts(3)
    chk = lab("qchk")
    a(f"s_mov_b32 s38, {SPIN}")
    a(f"s_branch {chk}")
    lp, dn = lab("qp"), lab("qpd")
    a(f"{lp}:")
    for ks in range(4):
        a(f"global_load_dwordx4 v[{48+4*ks}:{51+4*ks}], v7, {WS} offset:{ks*1024} sc1")
    a("s_waitcnt vmcnt(0)")
    a(f"{chk}:")
    a("v_max3_u32 v5, v49, v51, v53")
    a("v_min3_u32 v6, v49, v51, v53")
    a("v_max3_u32 v5, v5, v55, v57")
    a("v_min3_u32 v6, v6, v55, v57")
    a("v_max3_u32 v5, v5, v59, v61")
    a("v_min3_u32 v6, v6, v59, v61")
    a("v_max_u32 v5, v5, v63")
    a("v_min_u32 v6, v6, v63")
    a("v_cmp_ne_u32 vcc, s6, v5")
    a("v_cmp_ne_u32 s[34:35], s6, v6")
    a("s_or_b64 vcc, vcc, s[34:35]")
    a("s_cmp_eq_u64 vcc, 0")
    spin_tail((lp, dn))
    ts(4)
    a("v_add_f32 v48, v48, v52")
    a("v_add_f32 v50, v50, v54")
    a("v_add_f32 v56, v56, v60")
    a("v_add_f32 v58, v58, v62")
    a("v_add_f32 v48, v48, v56")
    a("v_add_f32 v50, v50, v58")
    a("v_cvt_pk_bf16_f32 v48, v48, v50")
    a("v_subrev_u32 v5, 256, v0")
    a("v_lshlrev_b32 v5, 2, v5")
    a(f"ds_write_b32 v5, v48 offset:{L_Q}")
    a("s_lshl_b32 s7, s45, 2")
    a("v_mov_b32 v7, s7")
    a("v_mov_b32 v6, 1")
    a(f"ds_write_b32 v7, v6 offset:{L_FL+0x10}")
    a("v_lshlrev_b32 v5, 4, v4")
    a("v_mov_b32 v48, 0")
    h = spin_head("qx")
    a(f"ds_read_b128 v[60:63], v48 offset:{L_FL+0x10}")
    for hh in range(2):
        for j in range(4):
            r = 96 + (hh*4 + j)*4
            a(f"ds_read_b128 v[{r}:{r+3}], v5 offset:{L_Q + hh*512 + j*128}")
    a("s_waitcnt lgkmcnt(0)")
    a("v_add3_u32 v60, v60, v61, v62")
    a("v_add_u32 v60, v60, v63")
    a("v_cmp_ne_u32 vcc, 4, v60")
    a("s_cmp_eq_u64 vcc, 0")
    spin_tail(h)
    ts(5)
    for i in range(4): a(f"v_mov_b32 v{52+i}, 0")
    for j in range(4):
        for k in range(4):
            for grp in range(2):
                for hh in range(2):
                    a(f"v_dot2c_f32_bf16 v{52+grp*2+hh}, v{64+(grp*4+j)*4+k}, v{96+(hh*4+j)*4+k}")
    for m in ("quad_perm:[1,0,3,2]", "quad_perm:[2,3,0,1]", "row_half_mirror"):
        for i in range(4):
            a(f"v_add_f32_dpp v{52+i}, v{52+i}, v{52+i} {m} {DPPM}")
    a("v_cvt_pk_bf16_f32 v56, v52, v53")
    a("v_cvt_pk_bf16_f32 v57, v54, v55")
    a(f"s_mov_b32 s7, {f32(0.0625*LOG2E)}")
    a("v_lshlrev_b32 v52, 16, v56")
    a(f"v_and_b32 v53, {MHI}, v56")
    a("v_lshlrev_b32 v54, 16, v57")
    a(f"v_and_b32 v55, {MHI}, v57")
    for i in range(4): a(f"v_mul_f32 v{52+i}, s7, v{52+i}")
    a("s_lshl_b32 s7, s45, 6")
    a(f"s_add_u32 s7, s7, {L_SC}")
    a("v_lshl_add_u32 v5, v3, 2, s7")
    a("ds_write2_b32 v5, v52, v54 offset0:0 offset1:8")
    a("ds_write2_b32 v5, v53, v55 offset0:64 offset1:72")
    a(f"ds_write_b32 v7, v6 offset:{L_FL+0x20}")
    ts(6)
    if role == "none": end_wave()
    else:
        a(f"s_branch L_stage_{role}")
        a.flush_hist()

for role in ("none", "wo", "ffn"):
    v_tail(role)
    k_tail(role)

a("L_stage_wo:")
a("s_lshl_b32 s7, s4, 17")
a("s_lshl_b32 s51, s59, 10")
a("s_add_u32 s7, s7, s51")
a("s_lshl_b32 s51, s3, 7")
a("s_add_u32 s7, s7, s51")
a(f"s_add_u32 s7, s7, {MB + 4096}")
a("v_lshlrev_b32 v5, 14, v4")
a("v_lshl_add_u32 v5, v3, 4, v5")
a("v_add_u32 v5, s7, v5")
a("v_add_u32 v6, 0x2000, v5")
a("s_lshl_b32 s7, s57, 7")
a(f"s_add_u32 s7, s7, {LSE}")
a("v_lshl_add_u32 v7, v4, 4, s7")
a("s_waitcnt vmcnt(0)")
ts(9)
perm_pair(8, 12, R(64, 8))
perm_pair(16, 20, R(72, 8))
h = spin_head("wo")
a(f"global_load_dwordx4 v[96:99], v7, {WS} sc1")
a(f"global_load_dwordx4 v[80:83], v5, {WS} offset:-4096 sc1")
a(f"global_load_dwordx4 v[84:87], v5, {WS} sc1")
a(f"global_load_dwordx4 v[88:91], v6, {WS} offset:-4096 sc1")
a(f"global_load_dwordx4 v[92:95], v6, {WS} sc1")
a("s_waitcnt vmcnt(0)")
sentinel_check(R(80, 20), "v48")
spin_tail(h)
ts(10)
a("v_max3_f32 v48, v96, v97, v98")
a("v_max_f32 v48, v48, v99")
xlane("v_max_f32", "v48", None, ["q1", "q2", "hm"])
for i in range(4): a(f"v_sub_f32 v{96+i}, v{96+i}, v48")
for i in range(4): a(f"v_exp_f32 v{96+i}, v{96+i}")
for d in range(4): a(f"v_mul_f32 v{52+d}, v96, v{80+d}")
a("v_add_f32 v56, v96, v97")
for i in range(1, 4):
    for d in range(4): a(f"v_fmac_f32 v{52+d}, v{96+i}, v{80+4*i+d}")
a("v_add_f32 v57, v98, v99")
a("v_add_f32 v56, v56, v57")
for m in ("quad_perm:[1,0,3,2]", "quad_perm:[2,3,0,1]", "row_half_mirror"):
    for d in (4, 0, 1, 2, 3):
        a(f"v_add_f32_dpp v{52+d}, v{52+d}, v{52+d} {m} {DPPM}")
a("v_rcp_f32 v56, v56")
for d in range(4): a(f"v_mul_f32 v{52+d}, v{52+d}, v56")
a("v_cvt_pk_bf16_f32 v48, v52, v53")
a("v_cvt_pk_bf16_f32 v49, v54, v55")
dots16(R(64, 8), R(72, 8), "v48", "v49", R(100, 8))
reduce8_hi(R(100, 8), 50)
a("s_lshl_b32 s7, s3, 8")
a("v_lshl_add_u32 v5, v2, 2, s7")
a(f"ds_write_b32 v5, v50 offset:{L_RED}")
a("s_waitcnt lgkmcnt(0)")
a("s_barrier")
ts(11)
a("s_cmp_lg_u32 s3, 0")
a("s_cbranch_scc1 L_wo_end")
a("v_lshlrev_b32 v5, 2, v1")
for w in range(8): a(f"ds_read_b32 v{52+w}, v5 offset:{L_RED + 256*w}")
a("s_add_u32 s7, s44, 2048")
a("v_add_u32 v6, s7, v5")
a("s_waitcnt lgkmcnt(0)")
a("v_add_f32 v52, v52, v53")
a("v_add_f32 v54, v54, v55")
a("v_add_f32 v56, v56, v57")
a("v_add_f32 v58, v58, v59")
a("v_add_f32 v52, v52, v54")
a("v_add_f32 v56, v56, v58")
a("v_add_f32 v52, v52, v56")
a(f"global_store_dword v6, v52, {WS} sc1")
ts(12)
a("L_wo_end:")
end_wave()

a("L_stage_ffn:")
a("s_cmp_eq_u32 s3, 7")
a("s_cbranch_scc1 L_final")
a("v_and_b32 v5, 1, v1")
a("v_mul_u32_u24 v5, 7, v5")
a("v_add_u32 v5, s3, v5")
a("v_bfe_u32 v6, v1, 1, 3")
a("v_lshlrev_b32 v6, 14, v6")
a("v_bfe_u32 v7, v5, 1, 2")
a("v_lshl_add_u32 v6, v7, 12, v6")
a("v_lshrrev_b32 v7, 3, v5")
a("v_lshl_add_u32 v6, v7, 10, v6")
a("v_and_b32 v7, 1, v5")
a("v_lshl_add_u32 v6, v7, 9, v6")
a(f"v_add_u32 v6, {QG+4}, v6")
a("s_lshl_b32 s7, s3, 12")
a(f"s_add_u32 s7, s7, {MB + 2048}")
a("v_lshlrev_b32 v46, 18, v44")
a("v_lshl_add_u32 v46, v43, 4, v46")
a("v_add_u32 v46, s7, v46")
a(f"v_add_u32 v47, {7*4096}, v46")
a(f"v_add_u32 v48, {32*4096}, v46")
a(f"v_add_u32 v49, {39*4096}, v46")
a("s_waitcnt vmcnt(0)")
ts(9)
perm_pair(8, 12, R(64, 8))
perm_pair(16, 20, R(72, 8))
perm_pair(24, 28, R(80, 8))
perm_pair(32, 36, R(88, 8))
h = spin_head("tg")
a(f"global_load_dword v5, v6, {WS} sc1")
a("s_waitcnt vmcnt(0)")
a("v_cmp_ne_u32 vcc, s6, v5")
a("s_cmp_eq_u64 vcc, 0")
spin_tail(h)
a("v_lshlrev_b32 v56, 16, v40")
a(f"v_and_b32 v57, {MHI}, v40")
a("v_lshlrev_b32 v58, 16, v41")
a(f"v_and_b32 v59, {MHI}, v41")
a("v_lshlrev_b32 v42, 16, v42")
a("s_lshl_b32 s7, s3, 8")
a("v_lshl_add_u32 v7, v43, 4, s7")
h = spin_head("yp")
for i in range(4):
    a(f"global_load_dwordx4 v[{96+4*i}:{99+4*i}], v{46+i}, {WS} sc1")
a("s_waitcnt vmcnt(0)")
sentinel_check(R(96, 16), "v5")
spin_tail(h)
ts(10)
for d in range(4):
    a(f"v_add_f32 v{96+d}, v{96+d}, v{100+d}")
    a(f"v_add_f32 v{104+d}, v{104+d}, v{108+d}")
for d in range(4): a(f"v_add_f32 v{96+d}, v{96+d}, v{104+d}")
for m in ("quad_perm:[1,0,3,2]", "quad_perm:[2,3,0,1]"):
    for d in range(4): a(f"v_add_f32_dpp v{96+d}, v{96+d}, v{96+d} {m} {DPPM}")
a("v_cvt_pk_bf16_f32 v50, v96, v97")
a("v_cvt_pk_bf16_f32 v51, v98, v99")
a("v_lshlrev_b32 v96, 16, v50")
a(f"v_and_b32 v97, {MHI}, v50")
a("v_lshlrev_b32 v98, 16, v51")
a(f"v_and_b32 v99, {MHI}, v51")
for d in range(4): a(f"v_add_f32 v{96+d}, v{96+d}, v{56+d}")
a("v_cvt_pk_bf16_f32 v50, v96, v97")
a("v_cvt_pk_bf16_f32 v51, v98, v99")
a("v_lshlrev_b32 v96, 16, v50")
a(f"v_and_b32 v97, {MHI}, v50")
a("v_lshlrev_b32 v98, 16, v51")
a(f"v_and_b32 v99, {MHI}, v51")
a(f"ds_write_b128 v7, v[96:99] offset:{L_H}")
a("v_add_f32 v52, v96, v97")
a("v_mul_f32 v53, v96, v96")
a("v_fmac_f32 v53, v97, v97")
a("v_add_f32 v52, v52, v98")
a("v_fmac_f32 v53, v98, v98")
a("v_add_f32 v52, v52, v99")
a("v_fmac_f32 v53, v99, v99")
wave_sum2("v52", "v53", "s54", "s55", skip_quad=True)
a("s_lshl_b32 s7, s3, 3")
a("v_mov_b32 v5, s7")
a("v_mov_b32 v52, s54")
a("v_mov_b32 v53, s55")
a(f"ds_write_b64 v5, v[52:53] offset:{L_ST}")
a("v_mov_b32 v5, 0")
a("s_waitcnt lgkmcnt(0)")
a("s_barrier")
a(f"ds_read_b128 v[100:103], v5 offset:{L_ST}")
a(f"ds_read_b128 v[104:107], v5 offset:{L_ST+16}")
a(f"ds_read_b128 v[108:111], v5 offset:{L_ST+32}")
a(f"ds_read_b64 v[112:113], v5 offset:{L_ST+48}")
a("v_bfe_u32 v6, v1, 4, 1")
a("v_lshlrev_b32 v6, 1, v6")
a("v_lshrrev_b32 v7, 5, v1")
a("v_add_u32 v6, v6, v7")
a("v_lshl_add_u32 v6, v44, 3, v6")
a("s_lshl_b32 s7, s3, 2")
a(f"s_add_u32 s7, s7, {L_Z}")
a("v_lshl_add_u32 v6, v6, 5, s7")
a("v_lshlrev_b32 v7, 5, v45")
a("s_waitcnt lgkmcnt(0)")
a("v_add_f32 v100, v100, v102")
a("v_add_f32 v101, v101, v103")
a("v_add_f32 v104, v104, v106")
a("v_add_f32 v105, v105, v107")
a("v_add_f32 v108, v108, v110")
a("v_add_f32 v109, v109, v111")
a("v_add_f32 v100, v100, v104")
a("v_add_f32 v101, v101, v105")
a("v_add_f32 v108, v108, v112")
a("v_add_f32 v109, v109, v113")
a("v_add_f32 v100, v100, v108")
a("v_add_f32 v101, v101, v109")
ln_finish("v100", "v101", "v52", "v53", "v54")
ln_apply("v96", "v97", "v52", "v53", "v50")
ln_apply("v98", "v99", "v52", "v53", "v51")
dots16(R(64, 8), R(72, 8), "v50", "v51", R(100, 8))
reduce8_hi(R(100, 8), None, full_row=True)
a("ds_write2_b32 v6, v100, v104 offset0:0 offset1:32")
a("s_waitcnt lgkmcnt(0)")
a("s_barrier")
ts(11)
a(f"ds_read_b128 v[100:103], v7 offset:{L_Z}")
a(f"ds_read_b128 v[104:107], v7 offset:{L_Z+16}")
a("s_lshl_b32 s7, s3, 8")
a("s_add_u32 s7, s7, s44")
a("s_add_u32 s7, s7, 2048")
a("v_lshl_add_u32 v6, v2, 2, s7")
a("s_waitcnt lgkmcnt(0)")
a("v_add_f32 v100, v100, v101")
a("v_add_f32 v102, v102, v103")
a("v_add_f32 v104, v104, v105")
a("v_add_f32 v100, v100, v102")
a("v_add_f32 v104, v104, v106")
a("v_add_f32 v100, v100, v104")
bf16r("v100")
a("v_add_f32 v100, v100, v42")
bf16r("v100")
a(f"s_mov_b32 s7, {f32(-LOG2E)}")
a("v_mul_f32 v101, s7, abs(v100)")
a("v_exp_f32 v101, v101")
bf16r("v101")
a("v_add_f32 v102, 1.0, v101")
a("v_log_f32 v102, v102")
a(f"v_mov_b32 v104, {f32(1.0/3)}")
a("v_fma_f32 v103, v101, v104, -0.5")
a("v_fma_f32 v103, v101, v103, 1.0")
a("v_mul_f32 v103, v101, v103")
a(f"v_mul_f32 v102, {f32(math.log(2))}, v102")
a(f"v_cmp_gt_f32 vcc, {f32(2.0**-6)}, v101")
a("v_cndmask_b32 v102, v102, v103, vcc")
bf16r("v102")
a("v_max_f32 v103, 0, v100")
a("v_add_f32 v102, v102, v103")
bf16r("v102")
a(f"v_mul_f32 v103, {f32(-2*LOG2E)}, v102")
a("v_exp_f32 v103, v103")
a("v_mul_f32 v105, v102, v102")
a("v_add_f32 v106, 1.0, v103")
a("v_sub_f32 v103, 1.0, v103")
a("v_rcp_f32 v106, v106")
a("v_mul_f32 v105, v105, v104")
a("v_fma_f32 v105, -v105, v102, v102")
a("v_mul_f32 v103, v103, v106")
a(f"v_cmp_gt_f32 vcc, {f32(2.0**-5)}, v102")
a("v_cndmask_b32 v103, v103, v105, vcc")
bf16r("v103")
a("v_mul_f32 v100, v100, v103")
a(f"v_mov_b32_dpp v101, v100 quad_perm:[0,0,2,2] {DPPM}")
a(f"v_mov_b32_dpp v102, v100 quad_perm:[1,1,3,3] {DPPM}")
a("v_cvt_pk_bf16_f32 v101, v101, v102")
a(f"v_mov_b32_dpp v50, v101 quad_perm:[0,0,0,0] {DPPM}")
a(f"v_mov_b32_dpp v51, v101 quad_perm:[2,2,2,2] {DPPM}")
dots16(R(80, 8), R(88, 8), "v50", "v51", R(100, 8))
reduce8_hi(R(100, 8), 52)
a(f"global_store_dword v6, v52, {WS} sc1")
ts(12)
end_wave()

a("L_final:")
a("v_min_u32 v5, 55, v1")
a("v_mul_u32_u24 v6, 37, v5")
a("v_lshrrev_b32 v6, 8, v6")
a("v_mul_u32_u24 v7, 25, v6")
a("v_add_u32 v5, v5, v7")
a("s_lshl_b32 s7, s57, 5")
a(f"s_add_u32 s7, s7, {MB + 14*4096 + 2048}")
a("v_lshl_add_u32 v5, v5, 12, s7")
a("v_and_b32 v6, 7, v2")
a("s_lshl_b32 s7, s57, 3")
a("v_add_u32 v6, s7, v6")
a("v_lshlrev_b32 v7, 2, v6")
a("v_lshlrev_b32 v6, 1, v6")
a("s_waitcnt vmcnt(0)")
a("s_barrier")
a(f"ds_read_b32 v50, v7 offset:{L_H}")
a("s_barrier")
ts(11)
h = spin_head("fin")
a(f"global_load_dwordx4 v[100:103], v5, {WS} sc1")
a(f"global_load_dwordx4 v[104:107], v5, {WS} offset:16 sc1")
a("s_waitcnt vmcnt(0)")
sentinel_check(R(100, 8), "v51")
spin_tail(h)
ts(12)
a("v_cmp_gt_u32 vcc, 56, v1")
for d in range(8): a(f"v_cndmask_b32 v{100+d}, 0, v{100+d}, vcc")
reduce8_hi(R(100, 8), 52)
xlane("v_add_f32", "v52", None, ["q1", "q2", "hm"])
bf16r("v52")
a("s_waitcnt lgkmcnt(0)")
a("v_add_f32 v52, v52, v50")
a("v_cvt_pk_bf16_f32 v52, v52, v52")
a("s_mov_b32 s34, 0x01010101")
a("s_mov_b32 s35, 0x01010101")
a("s_mov_b64 exec, s[34:35]")
a(f"global_store_short v6, v52, {OUT}")
a("s_cmp_lg_u32 s57, 0")
a("s_cbranch_scc1 L_fin_end")
a("s_mov_b64 exec, 1")
a("v_mov_b32 v5, 0")
a("v_mov_b32 v6, s6")
a(f"global_store_dword v5, v6, {WS} sc1")
a("L_fin_end:")
a("s_mov_b64 exec, -1")
ts(13)
end_wave()

if DEBUG:
    a("L_dump:")
    a("s_waitcnt lgkmcnt(0)")
    a("s_mov_b64 exec, 1")
    a("s_lshl_b32 s7, s2, 3")
    a("s_add_u32 s7, s7, s3")
    a("s_lshl_b32 s7, s7, 6")
    a(f"s_add_u32 s7, s7, {TS}")
    a("v_mov_b32 v5, s7")
    if HDBG:
        a("s_cmp_lt_u32 s2, 8")
        a("s_cselect_b32 s7, 0, 1")
        a("s_or_b32 s7, s7, s3")
        a("s_cmp_eq_u32 s7, 0")
        a("s_cbranch_scc0 L_dump_k")
        a("s_lshl_b32 s7, s2, 2")
        a("v_mov_b32 v5, s7")
        a("v_mov_b32 v6, s64")
        a(f"global_store_dword v5, v6, {DBG}")
        a("s_endpgm")
        a("L_dump_k:")
        a("s_cmp_eq_u32 s5, 14")
        a("s_cbranch_scc0 L_end")
        a("s_cmp_eq_u32 s3, 7")
        a("s_cbranch_scc0 L_end")
        a("s_lshl_b32 s7, s4, 2")
        a("v_mov_b32 v5, s7")
        a(f"v_mov_b32 v6, s{64+30}")
        a(f"global_store_dword v5, v6, {DBG} offset:32")
    else:
      for k in range(16):
        a(f"v_mov_b32 v6, s{64+2*k}")
        a(f"global_store_dword v5, v6, {WS} offset:{4*k}")
a("L_end:")
a("s_endpgm")
a("L_codeend:")
a.raw(f'''.section .rodata,"a"
.p2align 6
.amdhsa_kernel {NAME}_kernel
  .amdhsa_next_free_vgpr 128
  .amdhsa_next_free_sgpr 96
  .amdhsa_accum_offset 128
  .amdhsa_group_segment_fixed_size 0
  .amdhsa_kernarg_size 96
  .amdhsa_user_sgpr_count 2
  .amdhsa_user_sgpr_kernarg_segment_ptr 1
  .amdhsa_system_sgpr_workgroup_id_x 1
  .amdhsa_float_denorm_mode_32 3
.end_amdhsa_kernel''')
open(OUTP, "w").write(a.text())
print("nops inserted:", a.nops, "lines:", len(a.lines))
```

```python
import sys, struct, math
sys.path.insert(0, "gen")
from asmlib import Asm

NAME = "sequential_preLN__sliding_block_cached__dense_activation_mish__decode"
opts = dict(x.split("=") for x in sys.argv[2:])
OUTP = sys.argv[1]
DEBUG = int(opts.get("dbg", 0))
HDBG = int(opts.get("hdbg", 0))
if HDBG: DEBUG = 1
NT = " nt" if int(opts.get("nt", 0)) else ""
NTW = " nt" if int(opts.get("ntw", 0)) else ""
KD = int(opts.get("kd", 4))
NTHR = int(opts.get("nthr", 12))
SLEEP = int(opts.get("sleep", 0))
KD0 = int(opts.get("kd0", 2))
RGATE = int(opts.get("rgate", 1))
QWAIT = int(opts.get("qwait", 1))
SPIN = 100000

def f32(x): return "0x%08x" % struct.unpack("<I", struct.pack("<f", x))[0]
LOG2E = math.log2(math.e)

QG = 0x10000; LSE = 0x40000; OP = 0x80000; YP = 0xC0000; ZP = 0xD0000; TS = 0x400000
L_S1 = 0x000; L_FL = 0x800; L_Q = 0x900; L_SC = 0xD00; L_RED = 0x1100; L_ST = 0x1900; L_H = 0x1A00; L_Z = 0x2100; L_O = 0x2500
LDS_BYTES = 0x2D00
IL = int(opts.get("il", 1))
FGATE = int(opts.get("fgate", 0))
X, K, V, WQ, WO, W1, B1, W2, OUT, DBG, WS = "s[8:9]", "s[10:11]", "s[12:13]", "s[14:15]", "s[16:17]", "s[20:21]", "s[22:23]", "s[24:25]", "s[26:27]", "s[28:29]", "s[30:31]"
SEL_LO, SEL_HI, MHI = "s40", "s41", "s42"
R = lambda a_, n: list(range(a_, a_ + n))

a = Asm()
uid = [0]
def lab(p):
    uid[0] += 1
    return f"L_{p}_{uid[0]}"

DIAG = [int(x) for x in opts["diag"].split(",")] if "diag" in opts else None
if DIAG: DEBUG = 1
def ts(k):
    if DIAG and k not in (0, DIAG[2]): return
    if HDBG and k not in (0, 15): return
    if DEBUG: a(f"s_memrealtime s[{64+2*k}:{65+2*k}]")

def end_wave():
    if DEBUG:
        ts(15)
        a("s_branch L_dump")
    else:
        a("s_endpgm")
    a.flush_hist()

def sleep():
    if SLEEP: a(f"s_sleep {SLEEP}")

DPPM = "row_mask:0xf bank_mask:0xf"
def wave_sum2(x, y, sx, sy):
    for m in ("quad_perm:[1,0,3,2]", "quad_perm:[2,3,0,1]", "row_half_mirror", "row_mirror"):
        a(f"v_add_f32_dpp {x}, {x}, {x} {m} {DPPM}")
        a(f"v_add_f32_dpp {y}, {y}, {y} {m} {DPPM}")
    a(f"v_add_f32_dpp {x}, {x}, {x} row_bcast:15 row_mask:0xa bank_mask:0xf")
    a(f"v_add_f32_dpp {y}, {y}, {y} row_bcast:15 row_mask:0xa bank_mask:0xf")
    a(f"v_add_f32_dpp {x}, {x}, {x} row_bcast:31 row_mask:0xc bank_mask:0xf")
    a(f"v_add_f32_dpp {y}, {y}, {y} row_bcast:31 row_mask:0xc bank_mask:0xf")
    if sx:
        a(f"v_readlane_b32 {sx}, {x}, 63")
        a(f"v_readlane_b32 {sy}, {y}, 63")

def bf16r(x):
    a(f"v_cvt_pk_bf16_f32 {x}, {x}, {x}")
    a(f"v_and_b32 {x}, {MHI}, {x}")

def ln_finish(vsum, vsq, vm, vr, t):
    a(f"v_mov_b32 {t}, {f32(1.0/448)}")
    a(f"v_mul_f32 {vm}, {vsum}, {t}")
    a(f"v_mul_f32 {vr}, {vsq}, {t}")
    a(f"v_fma_f32 {vr}, -{vm}, {vm}, {vr}")
    a(f"v_max_f32 {vr}, 0, {vr}")
    a(f"v_cvt_pk_bf16_f32 {t}, {vm}, {vr}")
    a(f"v_lshlrev_b32 {vm}, 16, {t}")
    a(f"v_and_b32 {vr}, {MHI}, {t}")
    a(f"v_add_f32 {vr}, {f32(1e-5)}, {vr}")
    bf16r(vr)
    a(f"v_sqrt_f32 {vr}, {vr}")
    bf16r(vr)
    a(f"v_rcp_f32 {vr}, {vr}")

def ln_apply(lo, hi, vm, vr, dst):
    a(f"v_sub_f32 {lo}, {lo}, {vm}")
    a(f"v_sub_f32 {hi}, {hi}, {vm}")
    a(f"v_cvt_pk_bf16_f32 {dst}, {lo}, {hi}")
    a(f"v_lshlrev_b32 {lo}, 16, {dst}")
    a(f"v_and_b32 {hi}, {MHI}, {dst}")
    a(f"v_mul_f32 {lo}, {lo}, {vr}")
    a(f"v_mul_f32 {hi}, {hi}, {vr}")
    a(f"v_cvt_pk_bf16_f32 {dst}, {lo}, {hi}")

def perm_pair(A, B, outs):
    for k in range(4):
        a(f"v_perm_b32 v{outs[2*k]}, v{B+k}, v{A+k}, {SEL_LO}")
        a(f"v_perm_b32 v{outs[2*k+1]}, v{B+k}, v{A+k}, {SEL_HI}")

def reduce8_hi(acc, dst, full_row=False):
    for k in range(4):
        a(f"v_permlane32_swap_b32 v{acc[2*k]}, v{acc[2*k+1]}")
    for k in range(4):
        a(f"v_add_f32 v{acc[2*k]}, v{acc[2*k]}, v{acc[2*k+1]}")
    a(f"v_permlane16_swap_b32 v{acc[0]}, v{acc[2]}")
    a(f"v_permlane16_swap_b32 v{acc[4]}, v{acc[6]}")
    a(f"v_add_f32 v{acc[0]}, v{acc[0]}, v{acc[2]}")
    a(f"v_add_f32 v{acc[4]}, v{acc[4]}, v{acc[6]}")
    if full_row:
        for m in ("row_ror:4", "row_ror:8"):
            a(f"v_add_f32_dpp v{acc[0]}, v{acc[0]}, v{acc[0]} {m} {DPPM}")
            a(f"v_add_f32_dpp v{acc[4]}, v{acc[4]}, v{acc[4]} {m} {DPPM}")
    else:
        a(f"v_add_f32_dpp v{dst}, v{acc[0]}, v{acc[0]} row_ror:8 row_mask:0xf bank_mask:0x3")
        a(f"v_add_f32_dpp v{dst}, v{acc[4]}, v{acc[4]} row_ror:8 row_mask:0xf bank_mask:0xc")

def dots16(P0, P1, x0, x1, acc):
    for j in range(8):
        a(f"v_dot2_f32_bf16 v{acc[j]}, v{P0[j]}, {x0}, 0")
    for j in range(8):
        a(f"v_dot2_f32_bf16 v{acc[j]}, v{P1[j]}, {x1}, v{acc[j]}")

def spin_head(p):
    lp, dn = lab(p), lab(p + "d")
    a(f"s_mov_b32 s38, {SPIN}")
    a(f"{lp}:")
    return lp, dn

def spin_tail(h, slp=False):
    lp, dn = h
    a(f"s_cbranch_scc1 {dn}")
    if slp: sleep()
    a("s_sub_u32 s38, s38, 1")
    a("s_cmp_eq_u32 s38, 0")
    a(f"s_cbranch_scc0 {lp}")
    a(f"{dn}:")

def xlane(op, x, t, steps):
    for s in steps:
        if s in ("p16", "p32"):
            a(f"v_mov_b32 {t}, {x}")
            a(f"v_permlane{s[1:]}_swap_b32 {x}, {t}")
            a(f"{op} {x}, {x}, {t}")
        else:
            m = {"q3": "quad_perm:[3,2,1,0]", "q1": "quad_perm:[1,0,3,2]", "q2": "quad_perm:[2,3,0,1]", "hm": "row_half_mirror",
                 "r4": "row_ror:4", "r8": "row_ror:8"}[s]
            a(f"{op}_dpp {x}, {x}, {x} {m} {DPPM}")

def poll(name, loads, checks):
    n = len(loads)
    P = [f"s[{46+2*i}:{47+2*i}]" for i in range(n)]
    for p in P: a(f"s_mov_b64 {p}, -1")
    h = spin_head(name)
    for i in range(n):
        sk = lab(name + "s")
        a(f"s_mov_b64 exec, {P[i]}")
        a(f"s_cbranch_execz {sk}")
        a(loads[i])
        a(f"{sk}:")
    a("s_mov_b64 exec, -1")
    a("s_waitcnt vmcnt(0)")
    for i in range(n): checks[i](P[i])
    if n == 1: a(f"s_cmp_eq_u64 {P[0]}, 0")
    else:
        a(f"s_or_b64 s[34:35], {P[0]}, {P[1]}")
        for p in P[2:]: a(f"s_or_b64 s[34:35], s[34:35], {p}")
        a("s_cmp_eq_u64 s[34:35], 0")
    spin_tail(h, True)

def chk_sent4(r, t):
    def f(sp):
        a(f"v_max3_u32 {t}, v{r}, v{r+1}, v{r+2}")
        a(f"v_max_u32 {t}, {t}, v{r+3}")
        a(f"v_cmp_eq_u32 {sp}, -1, {t}")
    return f
def chk_tag(regs, t):
    def f(sp):
        if len(regs) == 1: a(f"v_cmp_ne_u32 {sp}, s6, v{regs[0]}")
        else:
            a(f"v_xor_b32 {t}, v{regs[0]}, v{regs[1]}")
            a(f"v_cmp_ne_u32 {sp}, s6, v{regs[0]}")
            a(f"v_cmp_ne_u32 vcc, 0, {t}")
            a(f"s_or_b64 {sp}, {sp}, vcc")
    return f

def lds_flag_wait(name, off, nwords, extra_reads, expect, zero, tmpbase):
    h = spin_head(name)
    for q in range(nwords // 4):
        a(f"ds_read_b128 v[{tmpbase+4*q}:{tmpbase+4*q+3}], {zero} offset:{L_FL+off+16*q}")
    for x in extra_reads: a(x)
    a("s_waitcnt lgkmcnt(0)")
    t = tmpbase
    a(f"v_add3_u32 v{t}, v{t}, v{t+1}, v{t+2}")
    if nwords == 4: a(f"v_add_u32 v{t}, v{t}, v{t+3}")
    else:
        a(f"v_add3_u32 v{t+4}, v{t+4}, v{t+5}, v{t+6}")
        a(f"v_add3_u32 v{t}, v{t}, v{t+3}, v{t+7}")
        a(f"v_add_u32 v{t}, v{t}, v{t+4}")
    a(f"v_cmp_ne_u32 vcc, {expect}, v{t}")
    a("s_cmp_eq_u64 vcc, 0")
    spin_tail(h)

hdr = open(f"cdna_kernels/{NAME}.s.ref").read().split("; Override launch")[0]
a.raw(hdr.rstrip())
a.raw(f"; @launch grid=(256,1,1) block=(768,1,1) lds={LDS_BYTES}")
a.raw('.amdgcn_target "amdgcn-amd-amdhsa--gfx950"')
a.raw(".text")
a.raw(f".globl {NAME}_kernel\n.p2align 8\n.type {NAME}_kernel,@function\n{NAME}_kernel:")


a("s_cmp_ge_u32 s2, 256")
a("s_cbranch_scc1 L_end")
a("s_load_dwordx16 s[8:23], s[0:1], 0")
a("s_load_dwordx8 s[24:31], s[0:1], 64")
if DEBUG:
    for k in range(16): a(f"s_mov_b64 s[{64+2*k}:{65+2*k}], 0")
ts(0)
a("v_lshrrev_b32 v2, 6, v0")
a("v_and_b32 v1, 63, v0")
a("s_and_b32 s4, s2, 7")
a("s_lshr_b32 s5, s2, 3")
a("v_readfirstlane_b32 s3, v2")
a("v_lshrrev_b32 v3, 3, v1")
a("v_and_b32 v4, 7, v1")
a("v_mov_b32 v5, 0")
a("v_lshlrev_b32 v6, 2, v1")
a(f"ds_write_b32 v6, v5 offset:{L_FL}")
a(f"s_mov_b32 {SEL_LO}, 0x05040100")
a(f"s_mov_b32 {SEL_HI}, 0x07060302")
a(f"s_mov_b32 {MHI}, 0xffff0000")
if IL:
    a("s_lshr_b32 s39, s5, 1")
    a("s_bitcmp1_b32 s5, 0")
else:
    a("s_and_b32 s39, s5, 15")
    a("s_bitcmp1_b32 s5, 4")
a("s_cbranch_scc0 L_A")

a("s_lshr_b32 s44, s39, 3")
a("s_and_b32 s45, s39, 7")
a("s_cmp_ge_u32 s3, 7")
a("s_cbranch_scc1 L_B_hi")
a("v_min_u32 v6, 55, v1")
a("v_lshlrev_b32 v6, 4, v6")
a("s_mul_i32 s47, s44, 224")
a("s_lshl_b32 s48, s3, 5")
a("s_add_u32 s48, s48, s47")
a("s_lshl_b32 s51, s48, 1")
a("v_lshl_add_u32 v12, v3, 3, s51")
a("v_lshlrev_b32 v14, 15, v3")
a("v_lshl_add_u32 v14, v4, 4, v14")
a("s_lshl_b32 s51, s4, 10")
a("s_lshl_b32 s52, s45, 7")
a("s_add_u32 s51, s51, s52")
a("s_lshl_b32 s52, s48, 13")
a("s_add_u32 s52, s52, s51")
a("v_add_u32 v32, s52, v14")
a("v_add_u32 v33, 0x2000, v32")
a("v_add_u32 v34, 0x4000, v32")
a("v_add_u32 v35, 0x6000, v32")
a("s_waitcnt lgkmcnt(0)")
XNT = " nt" if int(opts.get("xnt", 0)) else ""
a(f"global_load_dwordx4 v[36:39], v6, {X}{XNT}")
a(f"global_load_dwordx2 v[12:13], v12, {X}{XNT}")
for i in range(4):
    a(f"global_load_dwordx4 v[{16+4*i}:{19+4*i}], v{32+i}, {WQ}{NTW}")
a("s_barrier")
a("s_branch L_B2")
a.flush_hist()
a("L_B_hi:")
a("s_cmp_eq_u32 s3, 7")
a("s_cbranch_scc1 L_w7")
a("s_getpc_b64 s[36:37]")
a("L_pc:")
a("v_subrev_u32 v5, 512, v0")
a("v_lshlrev_b32 v5, 7, v5")
a("v_cmp_gt_u32 vcc, L_codeend-L_pc, v5")
a("v_cndmask_b32 v5, 0, v5, vcc")
a("global_load_dword v59, v5, s[36:37]")
a("s_waitcnt lgkmcnt(0)")
a("s_barrier")
end_wave()

a("L_A:")
a("s_lshl_b32 s43, s4, 22")
a("s_lshl_b32 s7, s39, 16")
a("s_add_u32 s43, s43, s7")
a(f"s_add_u32 s43, s43, {6144*512}")
a("s_and_b32 s44, s3, 3")
a("s_cmp_lt_u32 s3, 4")
a("s_cbranch_scc1 L_A_help")
a("s_cmp_lt_u32 s3, 8")
a("s_cbranch_scc0 L_A_v")
AD = int(opts.get("ad", 4)); AN = int(opts.get("an", 8)); VGATE = int(opts.get("vgate", 1))
a("s_lshl_b32 s47, s44, 11")
a("s_add_u32 s46, s43, s47")
a("v_lshlrev_b32 v6, 13, v3")
a("v_lshl_add_u32 v6, v4, 4, v6")
a("v_add_u32 v6, s46, v6")
a("s_lshl_b32 s7, s44, 2")
a("v_mov_b32 v45, s7")
a("v_mov_b32 v46, 1")
a("s_waitcnt lgkmcnt(0)")
for i in range(16):
    if i == min(AD, 4): a("s_barrier")
    if AD <= i < AN: a(f"s_waitcnt vmcnt({AD-1})")
    if i == AN and VGATE == 1: a(f"ds_write_b32 v45, v46 offset:{L_FL+0x70}")
    if i == int(opts.get("hwi", 99)): a(f"ds_write_b32 v45, v46 offset:{L_FL+0x60}")
    a(f"global_load_dwordx4 v[{64+4*i}:{67+4*i}], v6, {K} offset:{i*128}{NT}")
if AN >= 16 and VGATE == 1:
    if int(opts.get("kvw", 0)): a(f"s_waitcnt vmcnt({opts['kvw']})")
    a(f"ds_write_b32 v45, v46 offset:{L_FL+0x70}")
a("s_branch L_A_k2")
a.flush_hist()
a("L_A_v:")
a("s_lshl_b32 s52, s44, 7")
a("s_add_u32 s51, s43, s52")
a("v_bfe_u32 v5, v1, 3, 1")
a("v_lshlrev_b32 v6, 14, v5")
a("v_lshrrev_b32 v10, 4, v1")
a("v_lshl_add_u32 v6, v10, 12, v6")
a("v_lshl_add_u32 v6, v4, 4, v6")
a("v_add_u32 v6, s51, v6")
a("v_add_u32 v7, 0x8000, v6")
a("v_mov_b32 v11, 0")
a("s_waitcnt lgkmcnt(0)")
a("s_barrier")
if VGATE: lds_flag_wait("vg", 0x70 if VGATE == 1 else 0x20, 4, [], 4, "v11", 32)
VD = int(opts.get("vd", 16)); VN = int(opts.get("vn", 0))
for i in range(16):
    sg, e = divmod(i, 8)
    if VD <= i < VN: a(f"s_waitcnt vmcnt({VD-1})")
    a(f"global_load_dwordx4 v[{40+4*i}:{43+4*i}], v{6+sg}, {V} offset:{e*512}{NT}")
    if i == 0: a(f"s_load_dword s6, {WS}, 0")
a("s_branch L_A_v2")
a.flush_hist()

a("L_A_help:")
a("s_lshl_b32 s7, s4, 14")
a("s_lshl_b32 s51, s39, 9")
a("s_add_u32 s7, s7, s51")
a(f"s_add_u32 s7, s7, {OP}")
a("v_lshrrev_b32 v5, 5, v1")
a("v_lshlrev_b32 v5, 13, v5")
a("v_and_b32 v6, 31, v1")
a("v_lshl_add_u32 v5, v6, 4, v5")
a("v_add_u32 v5, s7, v5")
a("v_mov_b32 v12, -1\nv_mov_b32 v13, -1\nv_mov_b32 v14, -1\nv_mov_b32 v15, -1")
a("s_lshl_b32 s7, s4, 13")
a("s_lshl_b32 s51, s3, 11")
a("s_add_u32 s7, s7, s51")
a(f"s_add_u32 s7, s7, {QG}")
a("v_lshl_add_u32 v9, v1, 4, s7")
a("s_lshl_b32 s7, s3, 2")
a("v_mov_b32 v10, s7")
a("v_mov_b32 v11, 1")
a("s_lshl_b32 s7, s3, 8")
a("v_lshl_add_u32 v8, v1, 2, s7")
a("s_waitcnt lgkmcnt(0)")
a("s_barrier")
a(f"s_load_dword s6, {WS}, 0")
a("s_setprio 3")
a("s_cmp_lg_u32 s3, 0")
a("s_cbranch_scc1 L_A_h2")
a(f"global_store_dwordx4 v5, v[12:15], {WS} sc1")
a("L_A_h2:")
ts(1)
a("v_mov_b32 v6, 0")
if int(opts.get("hwait", 1)):
    lds_flag_wait("hw", 0x60, 4, [], 4, "v6", 56)
a("s_waitcnt lgkmcnt(0)")
a("s_add_u32 s6, s6, 1")
ts(3)
poll("qp", [f"global_load_dwordx4 v[{48+4*i}:{51+4*i}], v9, {WS} offset:{i*1024} sc1" for i in range(2)],
     [chk_tag([49+4*i, 51+4*i], "v5") for i in range(2)])
ts(4)
a("v_permlane32_swap_b32 v48, v52")
a("v_permlane32_swap_b32 v50, v54")
a("v_add_f32 v48, v48, v52")
a("v_add_f32 v50, v50, v54")
a("v_cvt_pk_bf16_f32 v48, v48, v50")
a(f"ds_write_b32 v8, v48 offset:{L_Q}")
a(f"ds_write_b32 v10, v11 offset:{L_FL+0x20}")
ts(5)
end_wave()

a("L_A_k2:")
ts(1)
a("s_lshl_b32 s7, s44, 4")
a(f"s_add_u32 s7, s7, {L_SC}")
a("v_lshl_add_u32 v44, v3, 6, s7")
a("v_mov_b32 v47, 0")
a("v_lshlrev_b32 v5, 4, v4")
for i in range(8): a(f"v_mov_b32 v{48+i}, 0")
HW = int(opts.get("hwn", 12))
if int(opts.get("hwi", 99)) == 99:
    a(f"s_waitcnt vmcnt({HW})")
    a(f"ds_write_b32 v45, v46 offset:{L_FL+0x60}")
ts(2)
lds_flag_wait("qx", 0x20, 4,
    [f"ds_read_b128 v[{128+(hh*4+j)*4}:{131+(hh*4+j)*4}], v5 offset:{L_Q + hh*512 + j*128}" for hh in range(2) for j in range(4)],
    4, "v47", 56)
a("s_setprio 2")
ts(4)
for gp in range(2):
    a(f"s_waitcnt vmcnt({8-8*gp})")
    if gp == 1: ts(5)
    for j in range(4):
        for k in range(4):
            for grp in (2*gp, 2*gp+1):
                for hh in range(2):
                    a(f"v_dot2c_f32_bf16 v{48+hh*4+grp}, v{64+(grp*4+j)*4+k}, v{128+(hh*4+j)*4+k}")
for m in ("quad_perm:[1,0,3,2]", "quad_perm:[2,3,0,1]", "row_half_mirror"):
    for i in range(8):
        a(f"v_add_f32_dpp v{48+i}, v{48+i}, v{48+i} {m} {DPPM}")
a(f"s_mov_b32 s7, {f32(0.0625*LOG2E)}")
for grp in range(4): a(f"v_cvt_pk_bf16_f32 v{56+grp}, v{48+2*grp}, v{49+2*grp}")
for grp in range(4):
    a(f"v_lshlrev_b32 v{48+2*grp}, 16, v{56+grp}")
    a(f"v_and_b32 v{49+2*grp}, {MHI}, v{56+grp}")
for i in range(8): a(f"v_mul_f32 v{48+i}, s7, v{48+i}")
a("ds_write_b128 v44, v[48:51]")
a("ds_write_b128 v44, v[52:55] offset:512")
a(f"ds_write_b32 v45, v46 offset:{L_FL+0x40}")
ts(6)
end_wave()

a("L_A_v2:")
ts(1)
a("s_lshl_b32 s7, s4, 14")
a("s_lshl_b32 s51, s39, 9")
a("s_add_u32 s7, s7, s51")
a("s_add_u32 s7, s7, s52")
a(f"s_add_u32 s7, s7, {OP}")
a("v_lshlrev_b32 v8, 13, v5")
a("v_lshl_add_u32 v8, v4, 4, v8")
a("v_add_u32 v8, s7, v8")
a("v_lshrrev_b32 v5, 1, v1")
a("v_xor_b32 v5, v5, v1")
a("v_and_b32 v5, 1, v5")
a("v_lshlrev_b32 v9, 9, v5")
a("v_and_b32 v5, 1, v1")
a("v_lshl_add_u32 v9, v5, 7, v9")
a("v_lshl_add_u32 v9, v10, 5, v9")
a("v_mov_b32 v11, 0")
a("s_lshl_b32 s7, s4, 11")
a("s_lshl_b32 s51, s39, 7")
a("s_add_u32 s7, s7, s51")
a(f"s_add_u32 s7, s7, {LSE}")
a("v_lshl_add_u32 v12, v1, 3, s7")
for t in range(4):
    a(f"s_waitcnt vmcnt({14-2*t})")
    if t == 0: ts(2)
    perm_pair(40+8*t, 44+8*t, [104+4*j+t for j in range(8)])
ts(3)
lds_flag_wait("sc", 0x40, 4, [f"ds_read_b128 v[{16+4*q}:{19+4*q}], v9 offset:{L_SC + (q>>1)*256 + (q&1)*16}" for q in range(4)], 4, "v11", 32)
a("s_add_u32 s6, s6, 1")
a("s_setprio 3")
ts(6)
a("v_max3_f32 v32, v16, v17, v18")
a("v_max3_f32 v33, v19, v20, v21")
a("v_max3_f32 v34, v22, v23, v24")
a("v_max3_f32 v35, v25, v26, v27")
a("v_max3_f32 v32, v32, v28, v29")
a("v_max3_f32 v33, v33, v30, v31")
a("v_max3_f32 v32, v32, v33, v34")
a("v_max_f32 v32, v32, v35")
xlane("v_max_f32", "v32", "v33", ["q3", "p16", "p32"])
for e in range(16): a(f"v_sub_f32 v{16+e}, v{16+e}, v32")
for e in range(16): a(f"v_exp_f32 v{16+e}, v{16+e}")
for q in range(4): a(f"v_add_f32 v{34+q}, v{16+4*q}, v{17+4*q}")
for q in range(4): a(f"v_add_f32 v{34+q}, v{34+q}, v{18+4*q}")
for q in range(4): a(f"v_add_f32 v{34+q}, v{34+q}, v{19+4*q}")
a("v_add_f32 v34, v34, v35")
a("v_add_f32 v36, v36, v37")
a("v_add_f32 v34, v34, v36")
xlane("v_add_f32", "v34", "v33", ["q3", "p16", "p32"])
a("v_rcp_f32 v35, v34")
a("v_log_f32 v34, v34")
a("v_mov_b32 v33, s6")
a("v_add_f32 v32, v32, v34")
a("s_cmp_lg_u32 s44, 0")
a("s_cbranch_scc1 L_v_nolse")
def v_tail(n):
    for e in range(16): a(f"v_mul_f32 v{16+e}, v{16+e}, v35")
    for t in range(8): a(f"v_cvt_pk_bf16_f32 v{16+t}, v{16+2*t}, v{17+2*t}")
    for j in range(8):
        a(f"v_mfma_f32_16x16x32_bf16 v[{136+4*j}:{139+4*j}], v[16:19], v[{104+4*j}:{107+4*j}], 0")
    for t in range(4):
        a(f"s_waitcnt vmcnt({6-2*t+n})")
        if t == 3: ts(7)
        perm_pair(72+8*t, 76+8*t, [40+4*j+t for j in range(8)])
    for j in range(8):
        a(f"v_mfma_f32_16x16x32_bf16 v[{136+4*j}:{139+4*j}], v[20:23], v[{40+4*j}:{43+4*j}], v[{136+4*j}:{139+4*j}]")
    for j in range(8):
        d = 136 + 4*j
        a(f"v_add_f32_dpp v{24+j}, v{d+3}, v{d} row_ror:8 row_mask:0xf bank_mask:0x3")
        a(f"v_add_f32_dpp v{24+j}, v{d+2}, v{d+1} row_ror:8 row_mask:0xf bank_mask:0xc")
    for t in range(4): a(f"v_cvt_pk_bf16_f32 v{36+t}, v{24+2*t}, v{25+2*t}")
    for t in range(4): a(f"v_min_u32 v{36+t}, -2, v{36+t}")
    a("s_mov_b64 exec, 0xffff")
    a(f"global_store_dwordx4 v8, v[36:39], {WS} sc1")
    a("s_mov_b64 exec, -1")
    ts(8)
    end_wave()
a("s_mov_b64 exec, 3")
a(f"global_store_dwordx2 v12, v[32:33], {WS} sc1")
a("s_mov_b64 exec, -1")
v_tail(1)
a("L_v_nolse:")
v_tail(0)

a("L_w7:")
a("v_mov_b32 v12, -1\nv_mov_b32 v13, -1\nv_mov_b32 v14, -1\nv_mov_b32 v15, -1")
a("s_waitcnt lgkmcnt(0)")
a("s_barrier")
a(f"s_load_dword s6, {WS}, 0")
a("s_cmp_lt_u32 s39, 7")
a("s_cbranch_scc0 L_w7_a")
a("s_lshl_b32 s7, s39, 3")
a("s_add_u32 s7, s7, s4")
a("s_lshl_b32 s7, s7, 7")
a(f"s_add_u32 s7, s7, {YP}")
a("v_lshl_add_u32 v5, v4, 4, s7")
a("s_mov_b64 exec, 0xff")
a(f"global_store_dwordx4 v5, v[12:15], {WS} sc1")
a("s_mov_b64 exec, -1")
a("s_branch L_B2")
a("L_w7_a:")
a("s_cmp_lt_u32 s39, 14")
a("s_cbranch_scc0 L_B2")
a("s_mul_i32 s57, s4, 7")
a("s_add_u32 s57, s57, s39")
a("s_sub_u32 s57, s57, 7")
a("s_mul_i32 s7, s57, 1792")
a(f"s_add_u32 s7, s7, {ZP}")
a("v_min_u32 v6, 55, v1")
a("v_lshl_add_u32 v5, v6, 4, s7")
a(f"global_store_dwordx4 v5, v[12:15], {WS} sc1")
a(f"global_store_dwordx4 v5, v[12:15], {WS} offset:896 sc1")

a("L_B2:")
ts(1)
a("v_lshlrev_b32 v2, 3, v4")
a("v_bfe_u32 v5, v1, 3, 1")
a("v_lshl_add_u32 v2, v5, 2, v2")
a("v_bfe_u32 v5, v1, 4, 1")
a("v_lshl_add_u32 v2, v5, 1, v2")
a("v_lshrrev_b32 v5, 5, v1")
a("v_add_u32 v2, v2, v5")
a("s_lshl_b32 s7, s3, 2")
a("v_mov_b32 v10, s7")
a("v_mov_b32 v11, 1")
a("s_cmp_eq_u32 s3, 7")
a("s_cbranch_scc1 L_w7_2")
a("s_waitcnt vmcnt(5)")
for k in range(4):
    a(f"v_lshlrev_b32 v{40+2*k}, 16, v{36+k}")
    a(f"v_and_b32 v{41+2*k}, {MHI}, v{36+k}")
a("v_add_f32 v48, v40, v41")
a("v_mul_f32 v49, v40, v40")
a("v_fmac_f32 v49, v41, v41")
for k in range(2, 8):
    a(f"v_add_f32 v48, v48, v{40+k}")
    a(f"v_fmac_f32 v49, v{40+k}, v{40+k}")
a("v_cmp_gt_u32 vcc, 56, v1")
a("v_cndmask_b32 v48, 0, v48, vcc")
a("v_cndmask_b32 v49, 0, v49, vcc")
wave_sum2("v48", "v49", "s54", "s55")
ln_finish("s54", "s55", "v50", "v51", "v52")
a("s_waitcnt vmcnt(4)")
for r in (12, 13):
    a(f"v_lshlrev_b32 v40, 16, v{r}")
    a(f"v_and_b32 v41, {MHI}, v{r}")
    ln_apply("v40", "v41", "v50", "v51", f"v{r}")
a("v_lshlrev_b32 v5, 2, v0")
a("s_waitcnt vmcnt(2)")
perm_pair(16, 20, R(40, 8))
a("s_waitcnt vmcnt(0)")
ts(2)
perm_pair(24, 28, R(48, 8))
dots16(R(40, 8), R(48, 8), "v12", "v13", R(56, 8))
reduce8_hi(R(56, 8), 40)
a(f"ds_write_b32 v5, v40 offset:{L_S1}")
a(f"ds_write_b32 v10, v11 offset:{L_FL}")
a(f"s_load_dword s6, {WS}, 0")
a("v_mov_b32 v6, 0")
lds_flag_wait("pub", 0x60, 4, [], 1, "v6", 56)
a("s_add_u32 s6, s6, 1")
a("s_branch L_s1_done")
a.flush_hist()
a("L_w7_2:")
a("v_lshlrev_b32 v5, 2, v1")
a("v_mov_b32 v6, 0")
a("s_lshl_b32 s7, s4, 13")
a("s_lshl_b32 s51, s45, 10")
a("s_add_u32 s7, s7, s51")
a("s_lshl_b32 s51, s44, 9")
a("s_add_u32 s7, s7, s51")
a(f"s_add_u32 s7, s7, {QG}")
a("v_lshl_add_u32 v8, v2, 3, s7")
lds_flag_wait("s1", 0, 8, [f"ds_read_b32 v{40+w}, v5 offset:{L_S1+256*w}" for w in range(7)], 7, "v6", 56)
a("s_add_u32 s6, s6, 1")
a("v_add_f32 v40, v40, v41")
a("v_add_f32 v42, v42, v43")
a("v_add_f32 v44, v44, v45")
a("v_add_f32 v40, v40, v42")
a("v_add_f32 v44, v44, v46")
a("v_add_f32 v40, v40, v44")
a("v_mov_b32 v41, s6")
ts(2)
a("s_waitcnt vmcnt(0)")
a(f"global_store_dwordx2 v8, v[40:41], {WS} sc1")
a(f"ds_write_b32 v6, v11 offset:{L_FL+0x60}")
a("L_s1_done:")
ts(3)
a("s_cmp_lt_u32 s39, 7")
a("s_cbranch_scc1 L_stage_wo")
a("s_cmp_lt_u32 s39, 14")
a("s_cbranch_scc1 L_stage_ffn")
end_wave()

a("L_stage_wo:")
a("s_lshl_b32 s7, s4, 9")
a("s_lshl_b32 s51, s3, 6")
a("s_add_u32 s7, s7, s51")
a("s_mul_i32 s7, s7, 896")
a("s_lshl_b32 s51, s39, 7")
a("s_add_u32 s7, s7, s51")
a(f"v_mul_u32_u24 v5, {8*896}, v3")
a("v_lshl_add_u32 v5, v4, 4, v5")
a("v_add_u32 v5, s7, v5")
a(f"v_add_u32 v6, {4*896}, v5")
WD = int(opts.get("wd", 8))
for i in range(8):
    if i >= WD: a(f"s_waitcnt vmcnt({WD-1})")
    a(f"global_load_dwordx4 v[{8+4*i}:{11+4*i}], v{5+(i>>2)}, {WO} offset:{(i&3)*896}{NTW}")
a("s_lshr_b32 s59, s3, 2")
a("s_lshl_b32 s7, s4, 11")
a("s_lshl_b32 s51, s59, 3")
a("s_add_u32 s7, s7, s51")
a(f"s_add_u32 s7, s7, {LSE}")
a("v_lshl_add_u32 v42, v3, 7, s7")
a("s_lshl_b32 s7, s4, 14")
a("s_lshl_b32 s51, s59, 13")
a("s_add_u32 s7, s7, s51")
a("s_and_b32 s51, s3, 3")
a("s_lshl_b32 s51, s51, 7")
a("s_add_u32 s7, s7, s51")
a(f"s_add_u32 s7, s7, {OP}")
a("v_lshlrev_b32 v43, 9, v3")
a("v_lshl_add_u32 v43, v4, 4, v43")
a("v_add_u32 v43, s7, v43")
a("v_add_u32 v44, 0x1000, v43")
a("s_lshl_b32 s7, s3, 8")
a("v_lshl_add_u32 v45, v2, 2, s7")
a("v_lshl_add_u32 v46, v3, 5, s7")
a("v_and_b32 v5, 31, v1")
a("v_lshlrev_b32 v47, 3, v5")
a("s_lshl_b32 s7, s39, 3")
a("s_add_u32 s7, s7, s4")
a("s_lshl_b32 s7, s7, 7")
a(f"s_add_u32 s7, s7, {YP}")
a("v_lshl_add_u32 v41, v5, 2, s7")
for t in range(4):
    a(f"s_waitcnt vmcnt({6-2*t})")
    perm_pair(8+8*t, 12+8*t, R(64+8*t, 8))
ts(9)
poll("ls", [f"global_load_dwordx2 v[{96+2*i}:{97+2*i}], v42, {WS} offset:{i*1024} sc1" for i in range(2)],
     [chk_tag([97+2*i], None) for i in range(2)])
a("v_max_f32 v48, v96, v98")
xlane("v_max_f32", "v48", "v49", ["r8", "p16", "p32"])
a("v_sub_f32 v96, v96, v48")
a("v_sub_f32 v98, v98, v48")
a("v_exp_f32 v96, v96")
a("v_exp_f32 v98, v98")
a("v_add_f32 v48, v96, v98")
xlane("v_add_f32", "v48", "v49", ["r8", "p16", "p32"])
a("v_rcp_f32 v48, v48")
a("v_mul_f32 v96, v96, v48")
a("v_mul_f32 v98, v98, v48")
ts(10)
poll("op", [f"global_load_dwordx4 v[100:103], v43, {WS} sc1", f"global_load_dwordx4 v[104:107], v44, {WS} sc1"],
     [chk_sent4(100, "v48"), chk_sent4(104, "v49")])
ts(11)
for k in range(4):
    a(f"v_lshlrev_b32 v{112+2*k}, 16, v{100+k}")
    a(f"v_and_b32 v{113+2*k}, {MHI}, v{100+k}")
    a(f"v_lshlrev_b32 v{120+2*k}, 16, v{104+k}")
    a(f"v_and_b32 v{121+2*k}, {MHI}, v{104+k}")
for d in range(8): a(f"v_mul_f32 v{112+d}, v96, v{112+d}")
for d in range(8): a(f"v_fmac_f32 v{112+d}, v98, v{120+d}")
reduce8_hi(R(112, 8), 50)
a(f"ds_write_b32 v45, v50 offset:{L_O}")
a(f"ds_read_b128 v[52:55], v46 offset:{L_O}")
a(f"ds_read_b128 v[56:59], v46 offset:{L_O+16}")
a("s_waitcnt lgkmcnt(0)")
for t in range(4): a(f"v_cvt_pk_bf16_f32 v{48+t}, v{52+2*t}, v{53+2*t}")
for j in range(8): a(f"v_dot2_f32_bf16 v{112+j}, v{64+j}, v48, 0")
for t in range(1, 4):
    for j in range(8): a(f"v_dot2_f32_bf16 v{112+j}, v{64+8*t+j}, v{48+t}, v{112+j}")
reduce8_hi(R(112, 8), 50)
a(f"ds_write_b32 v45, v50 offset:{L_RED}")
a("s_waitcnt lgkmcnt(0)")
a("s_barrier")
ts(12)
a("s_cmp_lg_u32 s3, 0")
a("s_cbranch_scc1 L_wo_end")
for w in range(8): a(f"ds_read_b64 v[{80+2*w}:{81+2*w}], v47 offset:{L_RED + 256*w}")
a("s_waitcnt lgkmcnt(0)")
for (x, y) in ((80, 82), (84, 86), (88, 90), (92, 94), (80, 84), (88, 92), (80, 88)):
    a(f"v_add_f32 v{x}, v{x}, v{y}")
    a(f"v_add_f32 v{x+1}, v{x+1}, v{y+1}")
a("v_cvt_pk_bf16_f32 v80, v80, v81")
a("v_min_u32 v80, -2, v80")
a("s_mov_b32 s34, -1")
a("s_mov_b32 s35, 0")
a("s_mov_b64 exec, s[34:35]")
a(f"global_store_dword v41, v80, {WS} sc1")
a("s_mov_b64 exec, -1")
ts(13)
a("L_wo_end:")
end_wave()
a("L_stage_ffn:")
a("s_mul_i32 s57, s4, 7")
a("s_add_u32 s57, s57, s39")
a("s_sub_u32 s57, s57, 7")
a("s_cmp_eq_u32 s3, 7")
a("s_cbranch_scc1 L_final")
if FGATE:
    a("s_lshl_b32 s7, s4, 11")
    a(f"s_add_u32 s7, s7, {LSE+4}")
    a("v_and_b32 v5, 15, v1")
    a("v_lshl_add_u32 v6, v5, 7, s7")
    poll("fg", [f"global_load_dword v5, v6, {WS} sc1"], [chk_tag([5], None)])
a(f"s_mul_i32 s7, s3, {64*3584}")
a("s_lshl_b32 s51, s57, 6")
a("s_add_u32 s7, s7, s51")
a("v_lshrrev_b32 v43, 2, v1")
a("v_and_b32 v44, 3, v1")
a(f"v_mul_u32_u24 v5, {4*3584}, v43")
a("v_lshl_add_u32 v5, v44, 4, v5")
a("v_add_u32 v5, s7, v5")
a("v_add_u32 v6, 7168, v5")
a(f"global_load_dwordx4 v[8:11], v5, {W1}{NTW}")
a(f"global_load_dwordx4 v[12:15], v5, {W1} offset:3584{NTW}")
a(f"global_load_dwordx4 v[16:19], v6, {W1}{NTW}")
a(f"global_load_dwordx4 v[20:23], v6, {W1} offset:3584{NTW}")
a(f"s_mul_i32 s7, s57, {32*896}")
a("s_lshl_b32 s51, s3, 7")
a("s_add_u32 s7, s7, s51")
a(f"v_mul_u32_u24 v5, {4*896}, v3")
a("v_lshl_add_u32 v5, v4, 4, v5")
a("v_add_u32 v5, s7, v5")
for i in range(4):
    a(f"global_load_dwordx4 v[{24+4*i}:{27+4*i}], v5, {W2} offset:{i*896}{NTW}")
a("v_lshl_add_u32 v5, v2, 1, s51")
a(f"global_load_ushort v40, v5, {X}")
a("v_lshl_add_u32 v45, v3, 2, v44")
a("s_lshl_b32 s51, s57, 6")
a("v_lshl_add_u32 v5, v45, 1, s51")
a(f"global_load_ushort v42, v5, {B1}")
a("s_lshl_b32 s7, s3, 10")
a(f"s_add_u32 s7, s7, {QG+4}")
a("v_lshl_add_u32 v6, v4, 13, s7")
a("s_lshl_b32 s7, s3, 10")
a(f"s_add_u32 s7, s7, {YP}")
a("v_lshl_add_u32 v46, v1, 4, s7")
a("s_lshl_b32 s7, s3, 8")
a("v_lshl_add_u32 v47, v2, 2, s7")
a("v_lshl_add_u32 v41, v43, 4, s7")
a("v_bfe_u32 v60, v1, 4, 1")
a("v_lshlrev_b32 v60, 1, v60")
a("v_lshrrev_b32 v7, 5, v1")
a("v_add_u32 v60, v60, v7")
a("v_lshl_add_u32 v60, v44, 3, v60")
a("s_lshl_b32 s7, s3, 2")
a(f"s_add_u32 s7, s7, {L_Z}")
a("v_lshl_add_u32 v60, v60, 5, s7")
a("v_lshlrev_b32 v61, 5, v45")
a("s_mul_i32 s7, s57, 1792")
a("s_lshl_b32 s51, s3, 8")
a("s_add_u32 s7, s7, s51")
a(f"s_add_u32 s7, s7, {ZP}")
a("v_lshl_add_u32 v62, v2, 2, s7")
a("s_lshl_b32 s7, s3, 3")
a("v_mov_b32 v63, s7")
a("v_mov_b32 v59, 0")
a("s_waitcnt vmcnt(0)")
ts(9)
perm_pair(8, 12, R(64, 8))
perm_pair(16, 20, R(72, 8))
perm_pair(24, 28, R(80, 8))
perm_pair(32, 36, R(88, 8))
a("v_lshlrev_b32 v40, 16, v40")
a("v_lshlrev_b32 v42, 16, v42")
poll("tg", [f"global_load_dword v5, v6, {WS} sc1"], [chk_tag([5], None)])
ts(10)
poll("yp", [f"global_load_dwordx4 v[96:99], v46, {WS} sc1"], [chk_sent4(96, "v48")])
ts(11)
for k in range(4):
    a(f"v_lshlrev_b32 v{104+2*k}, 16, v{96+k}")
    a(f"v_and_b32 v{105+2*k}, {MHI}, v{96+k}")
reduce8_hi(R(104, 8), 52)
bf16r("v52")
a("v_add_f32 v52, v52, v40")
bf16r("v52")
a(f"ds_write_b32 v47, v52 offset:{L_H}")
a("v_mul_f32 v53, v52, v52")
wave_sum2("v52", "v53", None, None)
a("s_mov_b32 s34, 0")
a("s_mov_b32 s35, 0x80000000")
a("s_mov_b64 exec, s[34:35]")
a(f"ds_write_b64 v63, v[52:53] offset:{L_ST}")
a("s_mov_b64 exec, -1")
a("s_waitcnt lgkmcnt(0)")
a("s_barrier")
a(f"ds_read_b128 v[100:103], v59 offset:{L_ST}")
a(f"ds_read_b128 v[104:107], v59 offset:{L_ST+16}")
a(f"ds_read_b128 v[108:111], v59 offset:{L_ST+32}")
a(f"ds_read_b64 v[112:113], v59 offset:{L_ST+48}")
a(f"ds_read_b128 v[96:99], v41 offset:{L_H}")
a("s_waitcnt lgkmcnt(0)")
for (x, y) in ((100, 102), (104, 106), (108, 110), (100, 104), (108, 112), (100, 108)):
    a(f"v_add_f32 v{x}, v{x}, v{y}")
    a(f"v_add_f32 v{x+1}, v{x+1}, v{y+1}")
ln_finish("v100", "v101", "v52", "v53", "v54")
ln_apply("v96", "v97", "v52", "v53", "v50")
ln_apply("v98", "v99", "v52", "v53", "v51")
dots16(R(64, 8), R(72, 8), "v50", "v51", R(100, 8))
reduce8_hi(R(100, 8), None, full_row=True)
a("ds_write2_b32 v60, v100, v104 offset0:0 offset1:32")
a("s_waitcnt lgkmcnt(0)")
a("s_barrier")
ts(12)
a(f"ds_read_b128 v[100:103], v61 offset:{L_Z}")
a(f"ds_read_b128 v[104:107], v61 offset:{L_Z+16}")
a(f"s_mov_b32 s7, {f32(-LOG2E)}")
a(f"v_mov_b32 v108, {f32(1.0/3)}")
a("s_waitcnt lgkmcnt(0)")
a("v_add_f32 v100, v100, v101")
a("v_add_f32 v102, v102, v103")
a("v_add_f32 v104, v104, v105")
a("v_add_f32 v100, v100, v102")
a("v_add_f32 v104, v104, v106")
a("v_add_f32 v100, v100, v104")
bf16r("v100")
a("v_add_f32 v100, v100, v42")
bf16r("v100")
a("v_mul_f32 v101, s7, abs(v100)")
a("v_exp_f32 v101, v101")
bf16r("v101")
a("v_add_f32 v102, 1.0, v101")
a("v_log_f32 v102, v102")
a("v_fma_f32 v103, v101, v108, -0.5")
a("v_fma_f32 v103, v101, v103, 1.0")
a("v_mul_f32 v103, v101, v103")
a(f"v_mul_f32 v102, {f32(math.log(2))}, v102")
a(f"v_cmp_gt_f32 vcc, {f32(2.0**-6)}, v101")
a("v_cndmask_b32 v102, v102, v103, vcc")
bf16r("v102")
a("v_max_f32 v103, 0, v100")
a("v_add_f32 v102, v102, v103")
bf16r("v102")
a(f"v_mul_f32 v103, {f32(-2*LOG2E)}, v102")
a("v_exp_f32 v103, v103")
a("v_mul_f32 v105, v102, v102")
a("v_add_f32 v106, 1.0, v103")
a("v_sub_f32 v103, 1.0, v103")
a("v_rcp_f32 v106, v106")
a("v_mul_f32 v105, v105, v108")
a("v_fma_f32 v105, -v105, v102, v102")
a("v_mul_f32 v103, v103, v106")
a(f"v_cmp_gt_f32 vcc, {f32(2.0**-5)}, v102")
a("v_cndmask_b32 v103, v103, v105, vcc")
bf16r("v103")
a("v_mul_f32 v100, v100, v103")
a(f"v_mov_b32_dpp v101, v100 quad_perm:[0,0,2,2] {DPPM}")
a(f"v_mov_b32_dpp v102, v100 quad_perm:[1,1,3,3] {DPPM}")
a("v_cvt_pk_bf16_f32 v101, v101, v102")
a(f"v_mov_b32_dpp v50, v101 quad_perm:[0,0,0,0] {DPPM}")
a(f"v_mov_b32_dpp v51, v101 quad_perm:[2,2,2,2] {DPPM}")
dots16(R(80, 8), R(88, 8), "v50", "v51", R(100, 8))
reduce8_hi(R(100, 8), 52)
a(f"global_store_dword v62, v52, {WS} sc1")
ts(13)
end_wave()

a("L_final:")
a("v_min_u32 v5, 55, v1")
a("v_mul_u32_u24 v5, 1792, v5")
a("s_lshl_b32 s7, s57, 5")
a(f"s_add_u32 s7, s7, {ZP}")
a("v_add_u32 v5, s7, v5")
a("v_and_b32 v6, 7, v2")
a("s_lshl_b32 s7, s57, 3")
a("v_add_u32 v6, s7, v6")
a("v_lshlrev_b32 v7, 2, v6")
a("v_lshlrev_b32 v6, 1, v6")
a("s_barrier")
a(f"ds_read_b32 v50, v7 offset:{L_H}")
a("s_barrier")
ts(12)
poll("fin", [f"global_load_dwordx4 v[100:103], v5, {WS} sc1", f"global_load_dwordx4 v[104:107], v5, {WS} offset:16 sc1"],
     [chk_sent4(100, "v48"), chk_sent4(104, "v49")])
ts(13)
a("v_cmp_gt_u32 vcc, 56, v1")
for d in range(8): a(f"v_cndmask_b32 v{100+d}, 0, v{100+d}, vcc")
reduce8_hi(R(100, 8), 52)
xlane("v_add_f32", "v52", None, ["q1", "q2", "hm"])
bf16r("v52")
a("s_waitcnt lgkmcnt(0)")
a("v_add_f32 v52, v52, v50")
a("v_cvt_pk_bf16_f32 v52, v52, v52")
a("s_mov_b32 s34, 0x01010101")
a("s_mov_b32 s35, 0x01010101")
a("s_mov_b64 exec, s[34:35]")
a(f"global_store_short v6, v52, {OUT}")
a("s_cmp_lg_u32 s57, 0")
a("s_cbranch_scc1 L_fin_end")
a("s_mov_b64 exec, 1")
a("v_mov_b32 v5, 0")
a("v_mov_b32 v6, s6")
a(f"global_store_dword v5, v6, {WS} sc1")
a("L_fin_end:")
a("s_mov_b64 exec, -1")
ts(14)
end_wave()

if DEBUG:
    a("L_dump:")
    a("s_waitcnt lgkmcnt(0)")
    a("s_mov_b64 exec, 1")
    if DIAG:
        a(f"s_cmp_eq_u32 s2, {DIAG[0]}")
        a("s_cbranch_scc0 L_end")
        a(f"s_cmp_eq_u32 s3, {DIAG[1]}")
        a("s_cbranch_scc0 L_end")
        a(f"s_sub_u32 s7, s{64+2*DIAG[2]}, s64")
        a(f"s_mul_i32 s7, s7, {DIAG[3]}")
        a("s_min_u32 s7, s7, 20000")
        a("s_add_u32 s7, s7, 3000")
        a("s_mov_b32 s38, 100000")
        a("L_diag:")
        a("s_memrealtime s[60:61]")
        a("s_waitcnt lgkmcnt(0)")
        a("s_sub_u32 s51, s60, s64")
        a("s_cmp_ge_u32 s51, s7")
        a("s_cbranch_scc1 L_end")
        a("s_sub_u32 s38, s38, 1")
        a("s_cmp_eq_u32 s38, 0")
        a("s_cbranch_scc0 L_diag")
    elif HDBG:
        a("s_cmp_lt_u32 s2, 8")
        a("s_cselect_b32 s7, 0, 1")
        a("s_or_b32 s7, s7, s3")
        a("s_cmp_eq_u32 s7, 0")
        a("s_cbranch_scc0 L_dump_k")
        a("s_lshl_b32 s7, s2, 2")
        a("v_mov_b32 v5, s7")
        a("v_mov_b32 v6, s64")
        a(f"global_store_dword v5, v6, {DBG}")
        a("s_endpgm")
        a("L_dump_k:")
        a(f"s_cmp_eq_u32 s5, {15 if IL else 23}")
        a("s_cbranch_scc0 L_end")
        a("s_cmp_eq_u32 s3, 7")
        a("s_cbranch_scc0 L_end")
        a("s_lshl_b32 s7, s4, 2")
        a("v_mov_b32 v5, s7")
        a(f"v_mov_b32 v6, s{64+30}")
        a(f"global_store_dword v5, v6, {DBG} offset:32")
    else:
        a("s_lshl_b32 s7, s2, 4")
        a("s_add_u32 s7, s7, s3")
        a("s_lshl_b32 s7, s7, 6")
        a(f"s_add_u32 s7, s7, {TS}")
        a("v_mov_b32 v5, s7")
        for k in range(16):
            a(f"v_mov_b32 v6, s{64+2*k}")
            a(f"global_store_dword v5, v6, {WS} offset:{4*k}")
a("L_end:")
a("s_endpgm")
a("L_codeend:")
a.raw(f'''.section .rodata,"a"
.p2align 6
.amdhsa_kernel {NAME}_kernel
  .amdhsa_next_free_vgpr 168
  .amdhsa_next_free_sgpr 96
  .amdhsa_accum_offset 168
  .amdhsa_group_segment_fixed_size 0
  .amdhsa_kernarg_size 96
  .amdhsa_user_sgpr_count 2
  .amdhsa_user_sgpr_kernarg_segment_ptr 1
  .amdhsa_system_sgpr_workgroup_id_x 1
  .amdhsa_float_denorm_mode_32 3
.end_amdhsa_kernel''')
open(OUTP, "w").write(a.text())
print("nops inserted:", a.nops, "lines:", len(a.lines))
```

```python
import sys, struct, math
sys.path.insert(0, "gen")
from asmlib import Asm

NAME = "sequential_preLN__sliding_block_cached__dense_activation_mish__decode"
opts = dict(x.split("=") for x in sys.argv[2:])
OUTP = sys.argv[1]
DEBUG = int(opts.get("dbg", 0))
HDBG = int(opts.get("hdbg", 0))
if HDBG: DEBUG = 1
NT = " nt" if int(opts.get("nt", 0)) else ""
NTW = " nt" if int(opts.get("ntw", 0)) else ""
KD = int(opts.get("kd", 4))
NTHR = int(opts.get("nthr", 12))
SLEEP = int(opts.get("sleep", 0))
KD0 = int(opts.get("kd0", 2))
RGATE = int(opts.get("rgate", 1))
QWAIT = int(opts.get("qwait", 1))
SPIN = 100000

def f32(x): return "0x%08x" % struct.unpack("<I", struct.pack("<f", x))[0]
LOG2E = math.log2(math.e)

QG = 0x10000; LSE = 0x40000; OP = 0x80000; YP = 0xC0000; ZP = 0xD0000; TS = 0x400000
L_S1 = 0x000; L_FL = 0x800; L_Q = 0x900; L_SC = 0xD00; L_RED = 0x1100; L_ST = 0x1900; L_H = 0x1A00; L_Z = 0x2100; L_O = 0x2500
LDS_BYTES = 0x2D00
IL = int(opts.get("il", 1))
FGATE = int(opts.get("fgate", 0))
X, K, V, WQ, WO, W1, B1, W2, OUT, DBG, WS = "s[8:9]", "s[10:11]", "s[12:13]", "s[14:15]", "s[16:17]", "s[20:21]", "s[22:23]", "s[24:25]", "s[26:27]", "s[28:29]", "s[30:31]"
SEL_LO, SEL_HI, MHI = "s40", "s41", "s42"
R = lambda a_, n: list(range(a_, a_ + n))

a = Asm()
uid = [0]
def lab(p):
    uid[0] += 1
    return f"L_{p}_{uid[0]}"

DIAG = [int(x) for x in opts["diag"].split(",")] if "diag" in opts else None
if DIAG: DEBUG = 1
GSTAT = [int(x) for x in opts["gstat"].split(",")] if "gstat" in opts else None
if GSTAT: DEBUG = 1
def ts(k):
    if DIAG and k not in (0, DIAG[2]): return
    if GSTAT and k not in (0, GSTAT[0]): return
    if HDBG and k not in (0, 15): return
    if DEBUG: a(f"s_memrealtime s[{64+2*k}:{65+2*k}]")

def end_wave():
    if DEBUG:
        ts(15)
        a("s_branch L_dump")
    else:
        a("s_endpgm")
    a.flush_hist()

def sleep():
    if SLEEP: a(f"s_sleep {SLEEP}")

DPPM = "row_mask:0xf bank_mask:0xf"
def wave_sum2(x, y, sx, sy):
    for m in ("quad_perm:[1,0,3,2]", "quad_perm:[2,3,0,1]", "row_half_mirror", "row_mirror"):
        a(f"v_add_f32_dpp {x}, {x}, {x} {m} {DPPM}")
        a(f"v_add_f32_dpp {y}, {y}, {y} {m} {DPPM}")
    a(f"v_add_f32_dpp {x}, {x}, {x} row_bcast:15 row_mask:0xa bank_mask:0xf")
    a(f"v_add_f32_dpp {y}, {y}, {y} row_bcast:15 row_mask:0xa bank_mask:0xf")
    a(f"v_add_f32_dpp {x}, {x}, {x} row_bcast:31 row_mask:0xc bank_mask:0xf")
    a(f"v_add_f32_dpp {y}, {y}, {y} row_bcast:31 row_mask:0xc bank_mask:0xf")
    if sx:
        a(f"v_readlane_b32 {sx}, {x}, 63")
        a(f"v_readlane_b32 {sy}, {y}, 63")

def bf16r(x):
    a(f"v_cvt_pk_bf16_f32 {x}, {x}, {x}")
    a(f"v_and_b32 {x}, {MHI}, {x}")

def ln_finish(vsum, vsq, vm, vr, t):
    a(f"v_mov_b32 {t}, {f32(1.0/448)}")
    a(f"v_mul_f32 {vm}, {vsum}, {t}")
    a(f"v_mul_f32 {vr}, {vsq}, {t}")
    a(f"v_fma_f32 {vr}, -{vm}, {vm}, {vr}")
    a(f"v_max_f32 {vr}, 0, {vr}")
    a(f"v_cvt_pk_bf16_f32 {t}, {vm}, {vr}")
    a(f"v_lshlrev_b32 {vm}, 16, {t}")
    a(f"v_and_b32 {vr}, {MHI}, {t}")
    a(f"v_add_f32 {vr}, {f32(1e-5)}, {vr}")
    bf16r(vr)
    a(f"v_sqrt_f32 {vr}, {vr}")
    bf16r(vr)
    a(f"v_rcp_f32 {vr}, {vr}")

def ln_apply(lo, hi, vm, vr, dst):
    a(f"v_sub_f32 {lo}, {lo}, {vm}")
    a(f"v_sub_f32 {hi}, {hi}, {vm}")
    a(f"v_cvt_pk_bf16_f32 {dst}, {lo}, {hi}")
    a(f"v_lshlrev_b32 {lo}, 16, {dst}")
    a(f"v_and_b32 {hi}, {MHI}, {dst}")
    a(f"v_mul_f32 {lo}, {lo}, {vr}")
    a(f"v_mul_f32 {hi}, {hi}, {vr}")
    a(f"v_cvt_pk_bf16_f32 {dst}, {lo}, {hi}")

def perm_pair(A, B, outs):
    for k in range(4):
        a(f"v_perm_b32 v{outs[2*k]}, v{B+k}, v{A+k}, {SEL_LO}")
        a(f"v_perm_b32 v{outs[2*k+1]}, v{B+k}, v{A+k}, {SEL_HI}")

def reduce8_hi(acc, dst, full_row=False):
    for k in range(4):
        a(f"v_permlane32_swap_b32 v{acc[2*k]}, v{acc[2*k+1]}")
    for k in range(4):
        a(f"v_add_f32 v{acc[2*k]}, v{acc[2*k]}, v{acc[2*k+1]}")
    a(f"v_permlane16_swap_b32 v{acc[0]}, v{acc[2]}")
    a(f"v_permlane16_swap_b32 v{acc[4]}, v{acc[6]}")
    a(f"v_add_f32 v{acc[0]}, v{acc[0]}, v{acc[2]}")
    a(f"v_add_f32 v{acc[4]}, v{acc[4]}, v{acc[6]}")
    if full_row:
        for m in ("row_ror:4", "row_ror:8"):
            a(f"v_add_f32_dpp v{acc[0]}, v{acc[0]}, v{acc[0]} {m} {DPPM}")
            a(f"v_add_f32_dpp v{acc[4]}, v{acc[4]}, v{acc[4]} {m} {DPPM}")
    else:
        a(f"v_add_f32_dpp v{dst}, v{acc[0]}, v{acc[0]} row_ror:8 row_mask:0xf bank_mask:0x3")
        a(f"v_add_f32_dpp v{dst}, v{acc[4]}, v{acc[4]} row_ror:8 row_mask:0xf bank_mask:0xc")

def dots16(P0, P1, x0, x1, acc):
    for j in range(8):
        a(f"v_dot2_f32_bf16 v{acc[j]}, v{P0[j]}, {x0}, 0")
    for j in range(8):
        a(f"v_dot2_f32_bf16 v{acc[j]}, v{P1[j]}, {x1}, v{acc[j]}")

def spin_head(p):
    lp, dn = lab(p), lab(p + "d")
    a(f"s_mov_b32 s38, {SPIN}")
    a(f"{lp}:")
    return lp, dn

def spin_tail(h, slp=False):
    lp, dn = h
    a(f"s_cbranch_scc1 {dn}")
    if slp: sleep()
    a("s_sub_u32 s38, s38, 1")
    a("s_cmp_eq_u32 s38, 0")
    a(f"s_cbranch_scc0 {lp}")
    a(f"{dn}:")

def xlane(op, x, t, steps):
    for s in steps:
        if s in ("p16", "p32"):
            a(f"v_mov_b32 {t}, {x}")
            a(f"v_permlane{s[1:]}_swap_b32 {x}, {t}")
            a(f"{op} {x}, {x}, {t}")
        else:
            m = {"q3": "quad_perm:[3,2,1,0]", "q1": "quad_perm:[1,0,3,2]", "q2": "quad_perm:[2,3,0,1]", "hm": "row_half_mirror",
                 "r4": "row_ror:4", "r8": "row_ror:8"}[s]
            a(f"{op}_dpp {x}, {x}, {x} {m} {DPPM}")

def poll(name, loads, checks):
    n = len(loads)
    P = [f"s[{46+2*i}:{47+2*i}]" for i in range(n)]
    for p in P: a(f"s_mov_b64 {p}, -1")
    h = spin_head(name)
    for i in range(n):
        sk = lab(name + "s")
        a(f"s_mov_b64 exec, {P[i]}")
        a(f"s_cbranch_execz {sk}")
        a(loads[i])
        a(f"{sk}:")
    a("s_mov_b64 exec, -1")
    a("s_waitcnt vmcnt(0)")
    for i in range(n): checks[i](P[i])
    if n == 1: a(f"s_cmp_eq_u64 {P[0]}, 0")
    else:
        a(f"s_or_b64 s[34:35], {P[0]}, {P[1]}")
        for p in P[2:]: a(f"s_or_b64 s[34:35], s[34:35], {p}")
        a("s_cmp_eq_u64 s[34:35], 0")
    spin_tail(h, True)

def chk_sent4(r, t):
    def f(sp):
        a(f"v_max3_u32 {t}, v{r}, v{r+1}, v{r+2}")
        a(f"v_max_u32 {t}, {t}, v{r+3}")
        a(f"v_cmp_eq_u32 {sp}, -1, {t}")
    return f
def chk_tag(regs, t):
    def f(sp):
        if len(regs) == 1: a(f"v_cmp_ne_u32 {sp}, s6, v{regs[0]}")
        else:
            a(f"v_xor_b32 {t}, v{regs[0]}, v{regs[1]}")
            a(f"v_cmp_ne_u32 {sp}, s6, v{regs[0]}")
            a(f"v_cmp_ne_u32 vcc, 0, {t}")
            a(f"s_or_b64 {sp}, {sp}, vcc")
    return f

def lds_flag_wait(name, off, nwords, extra_reads, expect, zero, tmpbase):
    h = spin_head(name)
    for q in range(nwords // 4):
        a(f"ds_read_b128 v[{tmpbase+4*q}:{tmpbase+4*q+3}], {zero} offset:{L_FL+off+16*q}")
    for x in extra_reads: a(x)
    a("s_waitcnt lgkmcnt(0)")
    t = tmpbase
    a(f"v_add3_u32 v{t}, v{t}, v{t+1}, v{t+2}")
    if nwords == 4: a(f"v_add_u32 v{t}, v{t}, v{t+3}")
    else:
        a(f"v_add3_u32 v{t+4}, v{t+4}, v{t+5}, v{t+6}")
        a(f"v_add3_u32 v{t}, v{t}, v{t+3}, v{t+7}")
        a(f"v_add_u32 v{t}, v{t}, v{t+4}")
    a(f"v_cmp_ne_u32 vcc, {expect}, v{t}")
    a("s_cmp_eq_u64 vcc, 0")
    spin_tail(h)

hdr = open(f"cdna_kernels/{NAME}.s.ref").read().split("; Override launch")[0]
a.raw(hdr.rstrip())
a.raw(f"; @launch grid=(256,1,1) block=(768,1,1) lds={LDS_BYTES}")
a.raw('.amdgcn_target "amdgcn-amd-amdhsa--gfx950"')
a.raw(".text")
a.raw(f".globl {NAME}_kernel\n.p2align 8\n.type {NAME}_kernel,@function\n{NAME}_kernel:")


a("s_cmp_ge_u32 s2, 256")
a("s_cbranch_scc1 L_end")
a("s_load_dwordx16 s[8:23], s[0:1], 0")
a("s_load_dwordx8 s[24:31], s[0:1], 64")
if DEBUG:
    for k in range(16): a(f"s_mov_b64 s[{64+2*k}:{65+2*k}], 0")
ts(0)
a("v_lshrrev_b32 v2, 6, v0")
a("v_and_b32 v1, 63, v0")
a("s_and_b32 s4, s2, 7")
a("s_lshr_b32 s5, s2, 3")
a("v_readfirstlane_b32 s3, v2")
a("v_lshrrev_b32 v3, 3, v1")
a("v_and_b32 v4, 7, v1")
a("v_mov_b32 v5, 0")
a("v_lshlrev_b32 v6, 2, v1")
a(f"ds_write_b32 v6, v5 offset:{L_FL}")
a(f"s_mov_b32 {SEL_LO}, 0x05040100")
a(f"s_mov_b32 {SEL_HI}, 0x07060302")
a(f"s_mov_b32 {MHI}, 0xffff0000")
if IL:
    a("s_lshr_b32 s39, s5, 1")
    a("s_bitcmp1_b32 s5, 0")
else:
    a("s_and_b32 s39, s5, 15")
    a("s_bitcmp1_b32 s5, 4")
a("s_cbranch_scc0 L_A")

a("s_lshr_b32 s44, s39, 3")
a("s_and_b32 s45, s39, 7")
a("s_cmp_ge_u32 s3, 7")
a("s_cbranch_scc1 L_B_hi")
a("v_min_u32 v6, 55, v1")
a("v_lshlrev_b32 v6, 4, v6")
a("s_mul_i32 s47, s44, 224")
a("s_lshl_b32 s48, s3, 5")
a("s_add_u32 s48, s48, s47")
a("s_lshl_b32 s51, s48, 1")
a("v_lshl_add_u32 v12, v3, 3, s51")
a("v_lshlrev_b32 v14, 15, v3")
a("v_lshl_add_u32 v14, v4, 4, v14")
a("s_lshl_b32 s51, s4, 10")
a("s_lshl_b32 s52, s45, 7")
a("s_add_u32 s51, s51, s52")
a("s_lshl_b32 s52, s48, 13")
a("s_add_u32 s52, s52, s51")
a("v_add_u32 v32, s52, v14")
a("v_add_u32 v33, 0x2000, v32")
a("v_add_u32 v34, 0x4000, v32")
a("v_add_u32 v35, 0x6000, v32")
a("s_waitcnt lgkmcnt(0)")
XNT = " nt" if int(opts.get("xnt", 0)) else ""
a(f"global_load_dwordx4 v[36:39], v6, {X}{XNT}")
a(f"global_load_dwordx2 v[12:13], v12, {X}{XNT}")
for i in range(4):
    a(f"global_load_dwordx4 v[{16+4*i}:{19+4*i}], v{32+i}, {WQ}{NTW}")
a("s_barrier")
a("s_branch L_B2")
a.flush_hist()
a("L_B_hi:")
a("s_cmp_eq_u32 s3, 7")
a("s_cbranch_scc1 L_w7")
a("s_getpc_b64 s[36:37]")
a("L_pc:")
a("v_subrev_u32 v5, 512, v0")
a("v_lshlrev_b32 v5, 7, v5")
a("v_cmp_gt_u32 vcc, L_codeend-L_pc, v5")
a("v_cndmask_b32 v5, 0, v5, vcc")
a("global_load_dword v59, v5, s[36:37]")
a("s_waitcnt lgkmcnt(0)")
a("s_barrier")
end_wave()

a("L_A:")
a("s_lshl_b32 s43, s4, 22")
a("s_lshl_b32 s7, s39, 16")
a("s_add_u32 s43, s43, s7")
a(f"s_add_u32 s43, s43, {6144*512}")
a("s_and_b32 s44, s3, 3")
a("s_cmp_lt_u32 s3, 4")
a("s_cbranch_scc1 L_A_help")
a("s_cmp_lt_u32 s3, 8")
a("s_cbranch_scc0 L_A_v")
AD = int(opts.get("ad", 4)); AN = int(opts.get("an", 8)); VGATE = int(opts.get("vgate", 1))
a("s_lshl_b32 s47, s44, 11")
a("s_add_u32 s46, s43, s47")
a("v_lshlrev_b32 v6, 13, v3")
a("v_lshl_add_u32 v6, v4, 4, v6")
a("v_add_u32 v6, s46, v6")
a("s_lshl_b32 s7, s44, 2")
a("v_mov_b32 v45, s7")
a("v_mov_b32 v46, 1")
a("s_waitcnt lgkmcnt(0)")
for i in range(16):
    if i == min(AD, 4): a("s_barrier")
    if AD <= i < AN: a(f"s_waitcnt vmcnt({AD-1})")
    if i == AN and VGATE == 1: a(f"ds_write_b32 v45, v46 offset:{L_FL+0x70}")
    if i == int(opts.get("hwi", 99)): a(f"ds_write_b32 v45, v46 offset:{L_FL+0x60}")
    a(f"global_load_dwordx4 v[{64+4*i}:{67+4*i}], v6, {K} offset:{i*128}{NT}")
if AN >= 16 and VGATE == 1:
    if int(opts.get("kvw", 0)): a(f"s_waitcnt vmcnt({opts['kvw']})")
    a(f"ds_write_b32 v45, v46 offset:{L_FL+0x70}")
a("s_branch L_A_k2")
a.flush_hist()
a("L_A_v:")
a("s_lshl_b32 s52, s44, 7")
a("s_add_u32 s51, s43, s52")
a("v_bfe_u32 v5, v1, 3, 1")
a("v_lshlrev_b32 v6, 14, v5")
a("v_lshrrev_b32 v10, 4, v1")
a("v_lshl_add_u32 v6, v10, 12, v6")
a("v_lshl_add_u32 v6, v4, 4, v6")
a("v_add_u32 v6, s51, v6")
a("v_add_u32 v7, 0x8000, v6")
a("v_mov_b32 v11, 0")
a("s_waitcnt lgkmcnt(0)")
a("s_barrier")
if VGATE: lds_flag_wait("vg", 0x70 if VGATE == 1 else 0x20, 4, [], 4, "v11", 32)
VD = int(opts.get("vd", 16)); VN = int(opts.get("vn", 0))
for i in range(16):
    sg, e = divmod(i, 8)
    if VD <= i < VN: a(f"s_waitcnt vmcnt({VD-1})")
    a(f"global_load_dwordx4 v[{40+4*i}:{43+4*i}], v{6+sg}, {V} offset:{e*512}{NT}")
    if i == 0: a(f"s_load_dword s6, {WS}, 0")
a("s_branch L_A_v2")
a.flush_hist()

a("L_A_help:")
a("s_lshl_b32 s7, s4, 14")
a("s_lshl_b32 s51, s39, 9")
a("s_add_u32 s7, s7, s51")
a(f"s_add_u32 s7, s7, {OP}")
a("v_lshrrev_b32 v5, 5, v1")
a("v_lshlrev_b32 v5, 13, v5")
a("v_and_b32 v6, 31, v1")
a("v_lshl_add_u32 v5, v6, 4, v5")
a("v_add_u32 v5, s7, v5")
a("v_mov_b32 v12, -1\nv_mov_b32 v13, -1\nv_mov_b32 v14, -1\nv_mov_b32 v15, -1")
a("s_lshl_b32 s7, s4, 13")
a("s_lshl_b32 s51, s3, 11")
a("s_add_u32 s7, s7, s51")
a(f"s_add_u32 s7, s7, {QG}")
a("v_lshl_add_u32 v9, v1, 4, s7")
a("s_lshl_b32 s7, s3, 2")
a("v_mov_b32 v10, s7")
a("v_mov_b32 v11, 1")
a("s_lshl_b32 s7, s3, 8")
a("v_lshl_add_u32 v8, v1, 2, s7")
a("s_waitcnt lgkmcnt(0)")
a("s_barrier")
a(f"s_load_dword s6, {WS}, 0")
a("s_setprio 3")
a("s_cmp_lg_u32 s3, 0")
a("s_cbranch_scc1 L_A_h2")
a(f"global_store_dwordx4 v5, v[12:15], {WS} sc1")
a("L_A_h2:")
ts(1)
a("v_mov_b32 v6, 0")
if int(opts.get("hwait", 1)):
    lds_flag_wait("hw", 0x60, 4, [], 4, "v6", 56)
a("s_waitcnt lgkmcnt(0)")
a("s_add_u32 s6, s6, 1")
ts(3)
poll("qp", [f"global_load_dwordx4 v[{48+4*i}:{51+4*i}], v9, {WS} offset:{i*1024} sc1" for i in range(2)],
     [chk_tag([49+4*i, 51+4*i], "v5") for i in range(2)])
ts(4)
a("v_permlane32_swap_b32 v48, v52")
a("v_permlane32_swap_b32 v50, v54")
a("v_add_f32 v48, v48, v52")
a("v_add_f32 v50, v50, v54")
a("v_cvt_pk_bf16_f32 v48, v48, v50")
a(f"ds_write_b32 v8, v48 offset:{L_Q}")
a(f"ds_write_b32 v10, v11 offset:{L_FL+0x20}")
ts(5)
end_wave()

a("L_A_k2:")
ts(1)
a("s_lshl_b32 s7, s44, 4")
a(f"s_add_u32 s7, s7, {L_SC}")
a("v_lshl_add_u32 v44, v3, 6, s7")
a("v_mov_b32 v47, 0")
a("v_lshlrev_b32 v5, 4, v4")
for i in range(8): a(f"v_mov_b32 v{48+i}, 0")
HW = int(opts.get("hwn", 12))
if int(opts.get("hwi", 99)) == 99:
    a(f"s_waitcnt vmcnt({HW})")
    a(f"ds_write_b32 v45, v46 offset:{L_FL+0x60}")
ts(2)
lds_flag_wait("qx", 0x20, 4,
    [f"ds_read_b128 v[{128+(hh*4+j)*4}:{131+(hh*4+j)*4}], v5 offset:{L_Q + hh*512 + j*128}" for hh in range(2) for j in range(4)],
    4, "v47", 56)
a("s_setprio 2")
ts(4)
for gp in range(2):
    a(f"s_waitcnt vmcnt({8-8*gp})")
    if gp == 1: ts(5)
    for j in range(4):
        for k in range(4):
            for grp in (2*gp, 2*gp+1):
                for hh in range(2):
                    a(f"v_dot2c_f32_bf16 v{48+hh*4+grp}, v{64+(grp*4+j)*4+k}, v{128+(hh*4+j)*4+k}")
for m in ("quad_perm:[1,0,3,2]", "quad_perm:[2,3,0,1]", "row_half_mirror"):
    for i in range(8):
        a(f"v_add_f32_dpp v{48+i}, v{48+i}, v{48+i} {m} {DPPM}")
a(f"s_mov_b32 s7, {f32(0.0625*LOG2E)}")
for grp in range(4): a(f"v_cvt_pk_bf16_f32 v{56+grp}, v{48+2*grp}, v{49+2*grp}")
for grp in range(4):
    a(f"v_lshlrev_b32 v{48+2*grp}, 16, v{56+grp}")
    a(f"v_and_b32 v{49+2*grp}, {MHI}, v{56+grp}")
for i in range(8): a(f"v_mul_f32 v{48+i}, s7, v{48+i}")
a("ds_write_b128 v44, v[48:51]")
a("ds_write_b128 v44, v[52:55] offset:512")
a(f"ds_write_b32 v45, v46 offset:{L_FL+0x40}")
ts(6)
end_wave()

a("L_A_v2:")
ts(1)
a("s_lshl_b32 s7, s4, 14")
a("s_lshl_b32 s51, s39, 9")
a("s_add_u32 s7, s7, s51")
a("s_add_u32 s7, s7, s52")
a(f"s_add_u32 s7, s7, {OP}")
a("v_lshlrev_b32 v8, 13, v5")
a("v_lshl_add_u32 v8, v4, 4, v8")
a("v_add_u32 v8, s7, v8")
a("v_lshrrev_b32 v5, 1, v1")
a("v_xor_b32 v5, v5, v1")
a("v_and_b32 v5, 1, v5")
a("v_lshlrev_b32 v9, 9, v5")
a("v_and_b32 v5, 1, v1")
a("v_lshl_add_u32 v9, v5, 7, v9")
a("v_lshl_add_u32 v9, v10, 5, v9")
a("v_mov_b32 v11, 0")
a("s_lshl_b32 s7, s4, 11")
a("s_lshl_b32 s51, s39, 7")
a("s_add_u32 s7, s7, s51")
a(f"s_add_u32 s7, s7, {LSE}")
a("v_lshl_add_u32 v12, v1, 3, s7")
for t in range(4):
    a(f"s_waitcnt vmcnt({14-2*t})")
    if t == 0: ts(2)
    perm_pair(40+8*t, 44+8*t, [104+4*j+t for j in range(8)])
ts(3)
lds_flag_wait("sc", 0x40, 4, [f"ds_read_b128 v[{16+4*q}:{19+4*q}], v9 offset:{L_SC + (q>>1)*256 + (q&1)*16}" for q in range(4)], 4, "v11", 32)
a("s_add_u32 s6, s6, 1")
a("s_setprio 3")
ts(6)
a("v_max3_f32 v32, v16, v17, v18")
a("v_max3_f32 v33, v19, v20, v21")
a("v_max3_f32 v34, v22, v23, v24")
a("v_max3_f32 v35, v25, v26, v27")
a("v_max3_f32 v32, v32, v28, v29")
a("v_max3_f32 v33, v33, v30, v31")
a("v_max3_f32 v32, v32, v33, v34")
a("v_max_f32 v32, v32, v35")
xlane("v_max_f32", "v32", "v33", ["q3", "p16", "p32"])
for e in range(16): a(f"v_sub_f32 v{16+e}, v{16+e}, v32")
for e in range(16): a(f"v_exp_f32 v{16+e}, v{16+e}")
for q in range(4): a(f"v_add_f32 v{34+q}, v{16+4*q}, v{17+4*q}")
for q in range(4): a(f"v_add_f32 v{34+q}, v{34+q}, v{18+4*q}")
for q in range(4): a(f"v_add_f32 v{34+q}, v{34+q}, v{19+4*q}")
a("v_add_f32 v34, v34, v35")
a("v_add_f32 v36, v36, v37")
a("v_add_f32 v34, v34, v36")
xlane("v_add_f32", "v34", "v33", ["q3", "p16", "p32"])
a("v_rcp_f32 v35, v34")
a("v_log_f32 v34, v34")
a("v_mov_b32 v33, s6")
a("v_add_f32 v32, v32, v34")
a("s_cmp_lg_u32 s44, 0")
a("s_cbranch_scc1 L_v_nolse")
def v_tail(n):
    for e in range(16): a(f"v_mul_f32 v{16+e}, v{16+e}, v35")
    for t in range(8): a(f"v_cvt_pk_bf16_f32 v{16+t}, v{16+2*t}, v{17+2*t}")
    for j in range(8):
        a(f"v_mfma_f32_16x16x32_bf16 v[{136+4*j}:{139+4*j}], v[16:19], v[{104+4*j}:{107+4*j}], 0")
    for t in range(4):
        a(f"s_waitcnt vmcnt({6-2*t+n})")
        if t == 3: ts(7)
        perm_pair(72+8*t, 76+8*t, [40+4*j+t for j in range(8)])
    for j in range(8):
        a(f"v_mfma_f32_16x16x32_bf16 v[{136+4*j}:{139+4*j}], v[20:23], v[{40+4*j}:{43+4*j}], v[{136+4*j}:{139+4*j}]")
    for j in range(8):
        d = 136 + 4*j
        a(f"v_add_f32_dpp v{24+j}, v{d+3}, v{d} row_ror:8 row_mask:0xf bank_mask:0x3")
        a(f"v_add_f32_dpp v{24+j}, v{d+2}, v{d+1} row_ror:8 row_mask:0xf bank_mask:0xc")
    for t in range(4): a(f"v_cvt_pk_bf16_f32 v{36+t}, v{24+2*t}, v{25+2*t}")
    for t in range(4): a(f"v_min_u32 v{36+t}, -2, v{36+t}")
    a("s_mov_b64 exec, 0xffff")
    a(f"global_store_dwordx4 v8, v[36:39], {WS} sc1")
    a("s_mov_b64 exec, -1")
    ts(8)
    end_wave()
a("s_mov_b64 exec, 3")
a(f"global_store_dwordx2 v12, v[32:33], {WS} sc1")
a("s_mov_b64 exec, -1")
v_tail(1)
a("L_v_nolse:")
v_tail(0)

a("L_w7:")
a("v_mov_b32 v12, -1\nv_mov_b32 v13, -1\nv_mov_b32 v14, -1\nv_mov_b32 v15, -1")
a("s_waitcnt lgkmcnt(0)")
a("s_barrier")
a(f"s_load_dword s6, {WS}, 0")
a("s_cmp_lt_u32 s39, 7")
a("s_cbranch_scc0 L_w7_a")
a("s_lshl_b32 s7, s39, 3")
a("s_add_u32 s7, s7, s4")
a("s_lshl_b32 s7, s7, 7")
a(f"s_add_u32 s7, s7, {YP}")
a("v_lshl_add_u32 v5, v4, 4, s7")
a("s_mov_b64 exec, 0xff")
a(f"global_store_dwordx4 v5, v[12:15], {WS} sc1")
a("s_mov_b64 exec, -1")
a("s_branch L_B2")
a("L_w7_a:")
a("s_cmp_lt_u32 s39, 14")
a("s_cbranch_scc0 L_B2")
a("s_mul_i32 s57, s4, 7")
a("s_add_u32 s57, s57, s39")
a("s_sub_u32 s57, s57, 7")
a("s_mul_i32 s7, s57, 1792")
a(f"s_add_u32 s7, s7, {ZP}")
a("v_min_u32 v6, 55, v1")
a("v_lshl_add_u32 v5, v6, 4, s7")
a(f"global_store_dwordx4 v5, v[12:15], {WS} sc1")
a(f"global_store_dwordx4 v5, v[12:15], {WS} offset:896 sc1")

a("L_B2:")
ts(1)
a("v_lshlrev_b32 v2, 3, v4")
a("v_bfe_u32 v5, v1, 3, 1")
a("v_lshl_add_u32 v2, v5, 2, v2")
a("v_bfe_u32 v5, v1, 4, 1")
a("v_lshl_add_u32 v2, v5, 1, v2")
a("v_lshrrev_b32 v5, 5, v1")
a("v_add_u32 v2, v2, v5")
a("s_lshl_b32 s7, s3, 2")
a("v_mov_b32 v10, s7")
a("v_mov_b32 v11, 1")
a("s_cmp_eq_u32 s3, 7")
a("s_cbranch_scc1 L_w7_2")
a("s_waitcnt vmcnt(5)")
for k in range(4):
    a(f"v_lshlrev_b32 v{40+2*k}, 16, v{36+k}")
    a(f"v_and_b32 v{41+2*k}, {MHI}, v{36+k}")
a("v_add_f32 v48, v40, v41")
a("v_mul_f32 v49, v40, v40")
a("v_fmac_f32 v49, v41, v41")
for k in range(2, 8):
    a(f"v_add_f32 v48, v48, v{40+k}")
    a(f"v_fmac_f32 v49, v{40+k}, v{40+k}")
a("v_cmp_gt_u32 vcc, 56, v1")
a("v_cndmask_b32 v48, 0, v48, vcc")
a("v_cndmask_b32 v49, 0, v49, vcc")
wave_sum2("v48", "v49", "s54", "s55")
ln_finish("s54", "s55", "v50", "v51", "v52")
a("s_waitcnt vmcnt(4)")
for r in (12, 13):
    a(f"v_lshlrev_b32 v40, 16, v{r}")
    a(f"v_and_b32 v41, {MHI}, v{r}")
    ln_apply("v40", "v41", "v50", "v51", f"v{r}")
a("v_lshlrev_b32 v5, 2, v0")
a("s_waitcnt vmcnt(2)")
perm_pair(16, 20, R(40, 8))
a("s_waitcnt vmcnt(0)")
ts(2)
perm_pair(24, 28, R(48, 8))
dots16(R(40, 8), R(48, 8), "v12", "v13", R(56, 8))
reduce8_hi(R(56, 8), 40)
a(f"ds_write_b32 v5, v40 offset:{L_S1}")
a(f"ds_write_b32 v10, v11 offset:{L_FL}")
a(f"s_load_dword s6, {WS}, 0")
a("v_mov_b32 v6, 0")
lds_flag_wait("pub", 0x60, 4, [], 1, "v6", 56)
a("s_add_u32 s6, s6, 1")
a("s_branch L_s1_done")
a.flush_hist()
a("L_w7_2:")
a("v_lshlrev_b32 v5, 2, v1")
a("v_mov_b32 v6, 0")
a("s_lshl_b32 s7, s4, 13")
a("s_lshl_b32 s51, s45, 10")
a("s_add_u32 s7, s7, s51")
a("s_lshl_b32 s51, s44, 9")
a("s_add_u32 s7, s7, s51")
a(f"s_add_u32 s7, s7, {QG}")
a("v_lshl_add_u32 v8, v2, 3, s7")
lds_flag_wait("s1", 0, 8, [f"ds_read_b32 v{40+w}, v5 offset:{L_S1+256*w}" for w in range(7)], 7, "v6", 56)
a("s_add_u32 s6, s6, 1")
a("v_add_f32 v40, v40, v41")
a("v_add_f32 v42, v42, v43")
a("v_add_f32 v44, v44, v45")
a("v_add_f32 v40, v40, v42")
a("v_add_f32 v44, v44, v46")
a("v_add_f32 v40, v40, v44")
a("v_mov_b32 v41, s6")
ts(2)
a("s_waitcnt vmcnt(0)")
a(f"global_store_dwordx2 v8, v[40:41], {WS} sc1")
a(f"ds_write_b32 v6, v11 offset:{L_FL+0x60}")
a("L_s1_done:")
ts(3)
a("s_cmp_lt_u32 s39, 7")
a("s_cbranch_scc1 L_stage_wo")
a("s_cmp_lt_u32 s39, 14")
a("s_cbranch_scc1 L_stage_ffn")
end_wave()

a("L_stage_wo:")
a("s_lshl_b32 s7, s4, 9")
a("s_lshl_b32 s51, s3, 6")
a("s_add_u32 s7, s7, s51")
a("s_mul_i32 s7, s7, 896")
a("s_lshl_b32 s51, s39, 7")
a("s_add_u32 s7, s7, s51")
a(f"v_mul_u32_u24 v5, {8*896}, v3")
a("v_lshl_add_u32 v5, v4, 4, v5")
a("v_add_u32 v5, s7, v5")
a(f"v_add_u32 v6, {4*896}, v5")
WD = int(opts.get("wd", 8))
for i in range(8):
    if i >= WD: a(f"s_waitcnt vmcnt({WD-1})")
    a(f"global_load_dwordx4 v[{8+4*i}:{11+4*i}], v{5+(i>>2)}, {WO} offset:{(i&3)*896}{NTW}")
a("s_lshr_b32 s59, s3, 2")
a("s_lshl_b32 s7, s4, 11")
a("s_lshl_b32 s51, s59, 3")
a("s_add_u32 s7, s7, s51")
a(f"s_add_u32 s7, s7, {LSE}")
a("v_lshl_add_u32 v42, v3, 7, s7")
a("s_lshl_b32 s7, s4, 14")
a("s_lshl_b32 s51, s59, 13")
a("s_add_u32 s7, s7, s51")
a("s_and_b32 s51, s3, 3")
a("s_lshl_b32 s51, s51, 7")
a("s_add_u32 s7, s7, s51")
a(f"s_add_u32 s7, s7, {OP}")
a("v_lshlrev_b32 v43, 9, v3")
a("v_lshl_add_u32 v43, v4, 4, v43")
a("v_add_u32 v43, s7, v43")
a("v_add_u32 v44, 0x1000, v43")
a("s_lshl_b32 s7, s3, 8")
a("v_lshl_add_u32 v45, v2, 2, s7")
a("v_lshl_add_u32 v46, v3, 5, s7")
a("v_and_b32 v5, 31, v1")
a("v_lshlrev_b32 v47, 3, v5")
a("s_lshl_b32 s7, s39, 3")
a("s_add_u32 s7, s7, s4")
a("s_lshl_b32 s7, s7, 7")
a(f"s_add_u32 s7, s7, {YP}")
a("v_lshl_add_u32 v41, v5, 2, s7")
for t in range(4):
    a(f"s_waitcnt vmcnt({6-2*t})")
    perm_pair(8+8*t, 12+8*t, R(64+8*t, 8))
ts(9)
poll("ls", [f"global_load_dwordx2 v[{96+2*i}:{97+2*i}], v42, {WS} offset:{i*1024} sc1" for i in range(2)],
     [chk_tag([97+2*i], None) for i in range(2)])
a("v_max_f32 v48, v96, v98")
xlane("v_max_f32", "v48", "v49", ["r8", "p16", "p32"])
a("v_sub_f32 v96, v96, v48")
a("v_sub_f32 v98, v98, v48")
a("v_exp_f32 v96, v96")
a("v_exp_f32 v98, v98")
a("v_add_f32 v48, v96, v98")
xlane("v_add_f32", "v48", "v49", ["r8", "p16", "p32"])
a("v_rcp_f32 v48, v48")
a("v_mul_f32 v96, v96, v48")
a("v_mul_f32 v98, v98, v48")
ts(10)
poll("op", [f"global_load_dwordx4 v[100:103], v43, {WS} sc1", f"global_load_dwordx4 v[104:107], v44, {WS} sc1"],
     [chk_sent4(100, "v48"), chk_sent4(104, "v49")])
ts(11)
for k in range(4):
    a(f"v_lshlrev_b32 v{112+2*k}, 16, v{100+k}")
    a(f"v_and_b32 v{113+2*k}, {MHI}, v{100+k}")
    a(f"v_lshlrev_b32 v{120+2*k}, 16, v{104+k}")
    a(f"v_and_b32 v{121+2*k}, {MHI}, v{104+k}")
for d in range(8): a(f"v_mul_f32 v{112+d}, v96, v{112+d}")
for d in range(8): a(f"v_fmac_f32 v{112+d}, v98, v{120+d}")
reduce8_hi(R(112, 8), 50)
a(f"ds_write_b32 v45, v50 offset:{L_O}")
a(f"ds_read_b128 v[52:55], v46 offset:{L_O}")
a(f"ds_read_b128 v[56:59], v46 offset:{L_O+16}")
a("s_waitcnt lgkmcnt(0)")
for t in range(4): a(f"v_cvt_pk_bf16_f32 v{48+t}, v{52+2*t}, v{53+2*t}")
for j in range(8): a(f"v_dot2_f32_bf16 v{112+j}, v{64+j}, v48, 0")
for t in range(1, 4):
    for j in range(8): a(f"v_dot2_f32_bf16 v{112+j}, v{64+8*t+j}, v{48+t}, v{112+j}")
reduce8_hi(R(112, 8), 50)
a(f"ds_write_b32 v45, v50 offset:{L_RED}")
a("s_waitcnt lgkmcnt(0)")
a("s_barrier")
ts(12)
a("s_cmp_lg_u32 s3, 0")
a("s_cbranch_scc1 L_wo_end")
for w in range(8): a(f"ds_read_b64 v[{80+2*w}:{81+2*w}], v47 offset:{L_RED + 256*w}")
a("s_waitcnt lgkmcnt(0)")
for (x, y) in ((80, 82), (84, 86), (88, 90), (92, 94), (80, 84), (88, 92), (80, 88)):
    a(f"v_add_f32 v{x}, v{x}, v{y}")
    a(f"v_add_f32 v{x+1}, v{x+1}, v{y+1}")
a("v_cvt_pk_bf16_f32 v80, v80, v81")
a("v_min_u32 v80, -2, v80")
a("s_mov_b32 s34, -1")
a("s_mov_b32 s35, 0")
a("s_mov_b64 exec, s[34:35]")
a(f"global_store_dword v41, v80, {WS} sc1")
a("s_mov_b64 exec, -1")
ts(13)
a("L_wo_end:")
end_wave()
a("L_stage_ffn:")
a("s_mul_i32 s57, s4, 7")
a("s_add_u32 s57, s57, s39")
a("s_sub_u32 s57, s57, 7")
a("s_cmp_eq_u32 s3, 7")
a("s_cbranch_scc1 L_final")
if FGATE:
    a("s_lshl_b32 s7, s4, 11")
    a(f"s_add_u32 s7, s7, {LSE+4}")
    a("v_and_b32 v5, 15, v1")
    a("v_lshl_add_u32 v6, v5, 7, s7")
    poll("fg", [f"global_load_dword v5, v6, {WS} sc1"], [chk_tag([5], None)])
a(f"s_mul_i32 s7, s3, {64*3584}")
a("s_lshl_b32 s51, s57, 6")
a("s_add_u32 s7, s7, s51")
a("v_lshrrev_b32 v43, 2, v1")
a("v_and_b32 v44, 3, v1")
a(f"v_mul_u32_u24 v5, {4*3584}, v43")
a("v_lshl_add_u32 v5, v44, 4, v5")
a("v_add_u32 v5, s7, v5")
a("v_add_u32 v6, 7168, v5")
a(f"global_load_dwordx4 v[8:11], v5, {W1}{NTW}")
a(f"global_load_dwordx4 v[12:15], v5, {W1} offset:3584{NTW}")
a(f"global_load_dwordx4 v[16:19], v6, {W1}{NTW}")
a(f"global_load_dwordx4 v[20:23], v6, {W1} offset:3584{NTW}")
a(f"s_mul_i32 s7, s57, {32*896}")
a("s_lshl_b32 s51, s3, 7")
a("s_add_u32 s7, s7, s51")
a(f"v_mul_u32_u24 v5, {4*896}, v3")
a("v_lshl_add_u32 v5, v4, 4, v5")
a("v_add_u32 v5, s7, v5")
for i in range(4):
    a(f"global_load_dwordx4 v[{24+4*i}:{27+4*i}], v5, {W2} offset:{i*896}{NTW}")
a("v_lshl_add_u32 v5, v2, 1, s51")
a(f"global_load_ushort v40, v5, {X}")
a("v_lshl_add_u32 v45, v3, 2, v44")
a("s_lshl_b32 s51, s57, 6")
a("v_lshl_add_u32 v5, v45, 1, s51")
a(f"global_load_ushort v42, v5, {B1}")
a("s_lshl_b32 s7, s3, 10")
a(f"s_add_u32 s7, s7, {QG+4}")
a("v_lshl_add_u32 v6, v4, 13, s7")
a("s_lshl_b32 s7, s3, 10")
a(f"s_add_u32 s7, s7, {YP}")
a("v_lshl_add_u32 v46, v1, 4, s7")
a("s_lshl_b32 s7, s3, 8")
a("v_lshl_add_u32 v47, v2, 2, s7")
a("v_lshl_add_u32 v41, v43, 4, s7")
a("v_bfe_u32 v60, v1, 4, 1")
a("v_lshlrev_b32 v60, 1, v60")
a("v_lshrrev_b32 v7, 5, v1")
a("v_add_u32 v60, v60, v7")
a("v_lshl_add_u32 v60, v44, 3, v60")
a("s_lshl_b32 s7, s3, 2")
a(f"s_add_u32 s7, s7, {L_Z}")
a("v_lshl_add_u32 v60, v60, 5, s7")
a("v_lshlrev_b32 v61, 5, v45")
a("s_mul_i32 s7, s57, 1792")
a("s_lshl_b32 s51, s3, 8")
a("s_add_u32 s7, s7, s51")
a(f"s_add_u32 s7, s7, {ZP}")
a("v_lshl_add_u32 v62, v2, 2, s7")
a("s_lshl_b32 s7, s3, 3")
a("v_mov_b32 v63, s7")
a("v_mov_b32 v59, 0")
a("s_waitcnt vmcnt(0)")
ts(9)
perm_pair(8, 12, R(64, 8))
perm_pair(16, 20, R(72, 8))
perm_pair(24, 28, R(80, 8))
perm_pair(32, 36, R(88, 8))
a("v_lshlrev_b32 v40, 16, v40")
a("v_lshlrev_b32 v42, 16, v42")
poll("tg", [f"global_load_dword v5, v6, {WS} sc1"], [chk_tag([5], None)])
ts(10)
poll("yp", [f"global_load_dwordx4 v[96:99], v46, {WS} sc1"], [chk_sent4(96, "v48")])
ts(11)
for k in range(4):
    a(f"v_lshlrev_b32 v{104+2*k}, 16, v{96+k}")
    a(f"v_and_b32 v{105+2*k}, {MHI}, v{96+k}")
reduce8_hi(R(104, 8), 52)
bf16r("v52")
a("v_add_f32 v52, v52, v40")
bf16r("v52")
a(f"ds_write_b32 v47, v52 offset:{L_H}")
a("v_mul_f32 v53, v52, v52")
wave_sum2("v52", "v53", None, None)
a("s_mov_b32 s34, 0")
a("s_mov_b32 s35, 0x80000000")
a("s_mov_b64 exec, s[34:35]")
a(f"ds_write_b64 v63, v[52:53] offset:{L_ST}")
a("s_mov_b64 exec, -1")
a("s_waitcnt lgkmcnt(0)")
a("s_barrier")
a(f"ds_read_b128 v[100:103], v59 offset:{L_ST}")
a(f"ds_read_b128 v[104:107], v59 offset:{L_ST+16}")
a(f"ds_read_b128 v[108:111], v59 offset:{L_ST+32}")
a(f"ds_read_b64 v[112:113], v59 offset:{L_ST+48}")
a(f"ds_read_b128 v[96:99], v41 offset:{L_H}")
a("s_waitcnt lgkmcnt(0)")
for (x, y) in ((100, 102), (104, 106), (108, 110), (100, 104), (108, 112), (100, 108)):
    a(f"v_add_f32 v{x}, v{x}, v{y}")
    a(f"v_add_f32 v{x+1}, v{x+1}, v{y+1}")
ln_finish("v100", "v101", "v52", "v53", "v54")
ln_apply("v96", "v97", "v52", "v53", "v50")
ln_apply("v98", "v99", "v52", "v53", "v51")
dots16(R(64, 8), R(72, 8), "v50", "v51", R(100, 8))
reduce8_hi(R(100, 8), None, full_row=True)
a("ds_write2_b32 v60, v100, v104 offset0:0 offset1:32")
a("s_waitcnt lgkmcnt(0)")
a("s_barrier")
ts(12)
a(f"ds_read_b128 v[100:103], v61 offset:{L_Z}")
a(f"ds_read_b128 v[104:107], v61 offset:{L_Z+16}")
a(f"s_mov_b32 s7, {f32(-LOG2E)}")
a(f"v_mov_b32 v108, {f32(1.0/3)}")
a("s_waitcnt lgkmcnt(0)")
a("v_add_f32 v100, v100, v101")
a("v_add_f32 v102, v102, v103")
a("v_add_f32 v104, v104, v105")
a("v_add_f32 v100, v100, v102")
a("v_add_f32 v104, v104, v106")
a("v_add_f32 v100, v100, v104")
bf16r("v100")
a("v_add_f32 v100, v100, v42")
bf16r("v100")
a("v_mul_f32 v101, s7, abs(v100)")
a("v_exp_f32 v101, v101")
bf16r("v101")
a("v_add_f32 v102, 1.0, v101")
a("v_log_f32 v102, v102")
a("v_fma_f32 v103, v101, v108, -0.5")
a("v_fma_f32 v103, v101, v103, 1.0")
a("v_mul_f32 v103, v101, v103")
a(f"v_mul_f32 v102, {f32(math.log(2))}, v102")
a(f"v_cmp_gt_f32 vcc, {f32(2.0**-6)}, v101")
a("v_cndmask_b32 v102, v102, v103, vcc")
bf16r("v102")
a("v_max_f32 v103, 0, v100")
a("v_add_f32 v102, v102, v103")
bf16r("v102")
a(f"v_mul_f32 v103, {f32(-2*LOG2E)}, v102")
a("v_exp_f32 v103, v103")
a("v_mul_f32 v105, v102, v102")
a("v_add_f32 v106, 1.0, v103")
a("v_sub_f32 v103, 1.0, v103")
a("v_rcp_f32 v106, v106")
a("v_mul_f32 v105, v105, v108")
a("v_fma_f32 v105, -v105, v102, v102")
a("v_mul_f32 v103, v103, v106")
a(f"v_cmp_gt_f32 vcc, {f32(2.0**-5)}, v102")
a("v_cndmask_b32 v103, v103, v105, vcc")
bf16r("v103")
a("v_mul_f32 v100, v100, v103")
a(f"v_mov_b32_dpp v101, v100 quad_perm:[0,0,2,2] {DPPM}")
a(f"v_mov_b32_dpp v102, v100 quad_perm:[1,1,3,3] {DPPM}")
a("v_cvt_pk_bf16_f32 v101, v101, v102")
a(f"v_mov_b32_dpp v50, v101 quad_perm:[0,0,0,0] {DPPM}")
a(f"v_mov_b32_dpp v51, v101 quad_perm:[2,2,2,2] {DPPM}")
dots16(R(80, 8), R(88, 8), "v50", "v51", R(100, 8))
reduce8_hi(R(100, 8), 52)
a(f"global_store_dword v62, v52, {WS} sc1")
ts(13)
end_wave()

a("L_final:")
a("v_min_u32 v5, 55, v1")
a("v_mul_u32_u24 v5, 1792, v5")
a("s_lshl_b32 s7, s57, 5")
a(f"s_add_u32 s7, s7, {ZP}")
a("v_add_u32 v5, s7, v5")
a("v_and_b32 v6, 7, v2")
a("s_lshl_b32 s7, s57, 3")
a("v_add_u32 v6, s7, v6")
a("v_lshlrev_b32 v7, 2, v6")
a("v_lshlrev_b32 v6, 1, v6")
a("s_barrier")
a(f"ds_read_b32 v50, v7 offset:{L_H}")
a("s_barrier")
ts(12)
poll("fin", [f"global_load_dwordx4 v[100:103], v5, {WS} sc1", f"global_load_dwordx4 v[104:107], v5, {WS} offset:16 sc1"],
     [chk_sent4(100, "v48"), chk_sent4(104, "v49")])
ts(13)
a("v_cmp_gt_u32 vcc, 56, v1")
for d in range(8): a(f"v_cndmask_b32 v{100+d}, 0, v{100+d}, vcc")
reduce8_hi(R(100, 8), 52)
xlane("v_add_f32", "v52", None, ["q1", "q2", "hm"])
bf16r("v52")
a("s_waitcnt lgkmcnt(0)")
a("v_add_f32 v52, v52, v50")
a("v_cvt_pk_bf16_f32 v52, v52, v52")
a("s_mov_b32 s34, 0x01010101")
a("s_mov_b32 s35, 0x01010101")
a("s_mov_b64 exec, s[34:35]")
a(f"global_store_short v6, v52, {OUT}")
a("s_cmp_lg_u32 s57, 0")
a("s_cbranch_scc1 L_fin_end")
a("s_mov_b64 exec, 1")
a("v_mov_b32 v5, 0")
a("v_mov_b32 v6, s6")
a(f"global_store_dword v5, v6, {WS} sc1")
a("L_fin_end:")
a("s_mov_b64 exec, -1")
ts(14)
end_wave()

if DEBUG:
    a("L_dump:")
    a("s_waitcnt lgkmcnt(0)")
    a("s_mov_b64 exec, 1")
    if DIAG:
        a(f"s_cmp_eq_u32 s2, {DIAG[0]}")
        a("s_cbranch_scc0 L_end")
        a(f"s_cmp_eq_u32 s3, {DIAG[1]}")
        a("s_cbranch_scc0 L_end")
        a(f"s_sub_u32 s7, s{64+2*DIAG[2]}, s64")
        a(f"s_mul_i32 s7, s7, {DIAG[3]}")
        a("s_min_u32 s7, s7, 20000")
        a("s_add_u32 s7, s7, 3000")
        a("s_mov_b32 s38, 100000")
        a("L_diag:")
        a("s_memrealtime s[60:61]")
        a("s_waitcnt lgkmcnt(0)")
        a("s_sub_u32 s51, s60, s64")
        a("s_cmp_ge_u32 s51, s7")
        a("s_cbranch_scc1 L_end")
        a("s_sub_u32 s38, s38, 1")
        a("s_cmp_eq_u32 s38, 0")
        a("s_cbranch_scc0 L_diag")
    elif HDBG:
        a("s_cmp_lt_u32 s2, 8")
        a("s_cselect_b32 s7, 0, 1")
        a("s_or_b32 s7, s7, s3")
        a("s_cmp_eq_u32 s7, 0")
        a("s_cbranch_scc0 L_dump_k")
        a("s_lshl_b32 s7, s2, 2")
        a("v_mov_b32 v5, s7")
        a("v_mov_b32 v6, s64")
        a(f"global_store_dword v5, v6, {DBG}")
        a("s_endpgm")
        a("L_dump_k:")
        a(f"s_cmp_eq_u32 s5, {15 if IL else 23}")
        a("s_cbranch_scc0 L_end")
        a("s_cmp_eq_u32 s3, 7")
        a("s_cbranch_scc0 L_end")
        a("s_lshl_b32 s7, s4, 2")
        a("v_mov_b32 v5, s7")
        a(f"v_mov_b32 v6, s{64+30}")
        a(f"global_store_dword v5, v6, {DBG} offset:32")
    else:
        a("s_lshl_b32 s7, s2, 4")
        a("s_add_u32 s7, s7, s3")
        a("s_lshl_b32 s7, s7, 6")
        a(f"s_add_u32 s7, s7, {TS}")
        a("v_mov_b32 v5, s7")
        for k in ((0, GSTAT[0]) if GSTAT else range(16)):
            a(f"v_mov_b32 v6, s{64+2*k}")
            a(f"global_store_dword v5, v6, {WS} offset:{4*k}{' sc1' if GSTAT else ''}")
        if GSTAT:
            a("s_cmp_eq_u32 s2, 248")
            a("s_cbranch_scc0 L_end")
            a("s_cmp_eq_u32 s3, 5")
            a("s_cbranch_scc0 L_end")
            a("s_mov_b64 exec, -1")
            a("s_mov_b32 s38, 100000")
            a("L_g1:")
            a("s_memrealtime s[60:61]")
            a("s_waitcnt lgkmcnt(0)")
            a("s_sub_u32 s51, s60, s64")
            a("s_cmp_ge_u32 s51, 2000")
            a("s_cbranch_scc1 L_g2")
            a("s_sub_u32 s38, s38, 1")
            a("s_cmp_eq_u32 s38, 0")
            a("s_cbranch_scc0 L_g1")
            a("L_g2:")
            a("v_mov_b32 v20, 0x7fffffff")
            a("v_mov_b32 v21, 0x80000000")
            a("v_and_b32 v22, 15, v1")
            a(f"v_cmp_le_u32 vcc, {GSTAT[1]}, v22")
            a(f"v_cmp_gt_u32 s[46:47], {GSTAT[2]}, v22")
            a("s_and_b64 s[46:47], s[46:47], vcc")
            a("v_cmp_gt_u32 s[48:49], 12, v22")
            a("s_mov_b32 s52, 0")
            a("L_g3:")
            a("s_lshl_b32 s7, s52, 12")
            a(f"s_add_u32 s7, s7, {TS}")
            a("v_lshl_add_u32 v23, v1, 6, s7")
            a(f"global_load_dword v24, v23, {WS} sc1")
            a(f"global_load_dword v25, v23, {WS} offset:{4*GSTAT[0]} sc1")
            a("s_waitcnt vmcnt(0)")
            a("v_subrev_u32 v24, s64, v24")
            a("v_cmp_eq_u32 vcc, 0, v25")
            a("v_subrev_u32 v25, s64, v25")
            a("v_cndmask_b32 v25, v25, v21, vcc")
            a("v_cndmask_b32 v25, v21, v25, s[46:47]")
            a("v_cndmask_b32 v24, v20, v24, s[48:49]")
            if GSTAT[3] != 2:
                a("s_bitcmp1_b32 s52, 1")
                a(f"s_cbranch_scc{1 - GSTAT[3]} L_g4")
            a("v_max_i32 v21, v21, v25")
            a("L_g4:")
            a("v_min_i32 v20, v20, v24")
            a("s_add_u32 s52, s52, 1")
            a("s_cmp_lt_u32 s52, 64")
            a("s_cbranch_scc1 L_g3")
            xlane("v_max_i32", "v21", "v26", ["q1", "q2", "hm", "r8", "p16", "p32"])
            xlane("v_min_i32", "v20", "v26", ["q1", "q2", "hm", "r8", "p16", "p32"])
            a("v_sub_u32 v21, v21, v20")
            a("v_readfirstlane_b32 s7, v21")
            a("v_readfirstlane_b32 s53, v20")
            a("s_mul_i32 s7, s7, 4")
            a("s_min_u32 s7, s7, 20000")
            a("s_add_u32 s7, s7, 6000")
            a("s_add_u32 s7, s7, s53")
            a("s_mov_b32 s38, 100000")
            a("L_g5:")
            a("s_memrealtime s[60:61]")
            a("s_waitcnt lgkmcnt(0)")
            a("s_sub_u32 s51, s60, s64")
            a("s_cmp_ge_u32 s51, s7")
            a("s_cbranch_scc1 L_end")
            a("s_sub_u32 s38, s38, 1")
            a("s_cmp_eq_u32 s38, 0")
            a("s_cbranch_scc0 L_g5")
a("L_end:")
a("s_endpgm")
a("L_codeend:")
a.raw(f'''.section .rodata,"a"
.p2align 6
.amdhsa_kernel {NAME}_kernel
  .amdhsa_next_free_vgpr 168
  .amdhsa_next_free_sgpr 96
  .amdhsa_accum_offset 168
  .amdhsa_group_segment_fixed_size 0
  .amdhsa_kernarg_size 96
  .amdhsa_user_sgpr_count 2
  .amdhsa_user_sgpr_kernarg_segment_ptr 1
  .amdhsa_system_sgpr_workgroup_id_x 1
  .amdhsa_float_denorm_mode_32 3
.end_amdhsa_kernel''')
open(OUTP, "w").write(a.text())
print("nops inserted:", a.nops, "lines:", len(a.lines))
```

```python
import sys, struct, math
sys.path.insert(0, "gen")
from asmlib import Asm

NAME = "sequential_preLN__sliding_block_cached__dense_activation_mish__decode"
opts = dict(x.split("=") for x in sys.argv[2:])
OUTP = sys.argv[1]
DEBUG = int(opts.get("dbg", 0))
HDBG = int(opts.get("hdbg", 0))
if HDBG: DEBUG = 1
NT = " nt" if int(opts.get("nt", 0)) else ""
NTW = " nt" if int(opts.get("ntw", 0)) else ""
KD = int(opts.get("kd", 4))
NTHR = int(opts.get("nthr", 12))
SLEEP = int(opts.get("sleep", 0))
KD0 = int(opts.get("kd0", 2))
RGATE = int(opts.get("rgate", 1))
QWAIT = int(opts.get("qwait", 1))
SPIN = 100000

def f32(x): return "0x%08x" % struct.unpack("<I", struct.pack("<f", x))[0]
LOG2E = math.log2(math.e)

RDY = 0x50000; RDA = 0x58000; QG = 0x10000; LSE = 0x40000; OP = 0x80000; YP = 0xC0000; ZP = 0xD0000; TS = 0x400000; FO = 0x100000
L_S1 = 0x000; L_FL = 0x800; L_Q = 0x900; L_SC = 0xD00; L_RED = 0x1100; L_ST = 0x1900; L_H = 0x1A00; L_Z = 0x2100; L_O = 0x2500
L_P = 0x2D00; L_C = 0x2F00
LDS_BYTES = 0x3300
IL = int(opts.get("il", 1))
FGATE = int(opts.get("fgate", 1))
X, K, V, WQ, WO, W1, B1, W2, OUT, DBG, WS = "s[8:9]", "s[10:11]", "s[12:13]", "s[14:15]", "s[16:17]", "s[20:21]", "s[22:23]", "s[24:25]", "s[26:27]", "s[28:29]", "s[30:31]"
SEL_LO, SEL_HI, MHI = "s40", "s41", "s42"
R = lambda a_, n: list(range(a_, a_ + n))

a = Asm()
uid = [0]
def lab(p):
    uid[0] += 1
    return f"L_{p}_{uid[0]}"

DIAG = [int(x) for x in opts["diag"].split(",")] if "diag" in opts else None
if DIAG: DEBUG = 1
GSTAT = [int(x) for x in opts["gstat"].split(",")] if "gstat" in opts else None
if GSTAT: DEBUG = 1
def ts(k):
    if DIAG and k not in (0, DIAG[2]): return
    if GSTAT and k not in (0, GSTAT[0]): return
    if HDBG and k not in (0, 15): return
    if DEBUG: a(f"s_memrealtime s[{64+2*k}:{65+2*k}]")

def end_wave():
    if DEBUG:
        ts(15)
        a("s_branch L_dump")
    else:
        a("s_endpgm")
    a.flush_hist()

def sleep():
    if SLEEP: a(f"s_sleep {SLEEP}")

DPPM = "row_mask:0xf bank_mask:0xf"
def wave_sum2(x, y, sx, sy):
    for m in ("quad_perm:[1,0,3,2]", "quad_perm:[2,3,0,1]", "row_half_mirror", "row_mirror"):
        a(f"v_add_f32_dpp {x}, {x}, {x} {m} {DPPM}")
        a(f"v_add_f32_dpp {y}, {y}, {y} {m} {DPPM}")
    a(f"v_add_f32_dpp {x}, {x}, {x} row_bcast:15 row_mask:0xa bank_mask:0xf")
    a(f"v_add_f32_dpp {y}, {y}, {y} row_bcast:15 row_mask:0xa bank_mask:0xf")
    a(f"v_add_f32_dpp {x}, {x}, {x} row_bcast:31 row_mask:0xc bank_mask:0xf")
    a(f"v_add_f32_dpp {y}, {y}, {y} row_bcast:31 row_mask:0xc bank_mask:0xf")
    if sx:
        a(f"v_readlane_b32 {sx}, {x}, 63")
        a(f"v_readlane_b32 {sy}, {y}, 63")

def bf16r(x):
    a(f"v_cvt_pk_bf16_f32 {x}, {x}, {x}")
    a(f"v_and_b32 {x}, {MHI}, {x}")

def ln_finish(vsum, vsq, vm, vr, t):
    a(f"v_mov_b32 {t}, {f32(1.0/448)}")
    a(f"v_mul_f32 {vm}, {vsum}, {t}")
    a(f"v_mul_f32 {vr}, {vsq}, {t}")
    a(f"v_fma_f32 {vr}, -{vm}, {vm}, {vr}")
    a(f"v_max_f32 {vr}, 0, {vr}")
    a(f"v_cvt_pk_bf16_f32 {t}, {vm}, {vr}")
    a(f"v_lshlrev_b32 {vm}, 16, {t}")
    a(f"v_and_b32 {vr}, {MHI}, {t}")
    a(f"v_add_f32 {vr}, {f32(1e-5)}, {vr}")
    bf16r(vr)
    a(f"v_sqrt_f32 {vr}, {vr}")
    bf16r(vr)
    a(f"v_rcp_f32 {vr}, {vr}")

def ln_apply(lo, hi, vm, vr, dst):
    a(f"v_sub_f32 {lo}, {lo}, {vm}")
    a(f"v_sub_f32 {hi}, {hi}, {vm}")
    a(f"v_cvt_pk_bf16_f32 {dst}, {lo}, {hi}")
    a(f"v_lshlrev_b32 {lo}, 16, {dst}")
    a(f"v_and_b32 {hi}, {MHI}, {dst}")
    a(f"v_mul_f32 {lo}, {lo}, {vr}")
    a(f"v_mul_f32 {hi}, {hi}, {vr}")
    a(f"v_cvt_pk_bf16_f32 {dst}, {lo}, {hi}")

def perm_pair(A, B, outs):
    for k in range(4):
        a(f"v_perm_b32 v{outs[2*k]}, v{B+k}, v{A+k}, {SEL_LO}")
        a(f"v_perm_b32 v{outs[2*k+1]}, v{B+k}, v{A+k}, {SEL_HI}")

def reduce8_hi(acc, dst, full_row=False):
    for k in range(4):
        a(f"v_permlane32_swap_b32 v{acc[2*k]}, v{acc[2*k+1]}")
    for k in range(4):
        a(f"v_add_f32 v{acc[2*k]}, v{acc[2*k]}, v{acc[2*k+1]}")
    a(f"v_permlane16_swap_b32 v{acc[0]}, v{acc[2]}")
    a(f"v_permlane16_swap_b32 v{acc[4]}, v{acc[6]}")
    a(f"v_add_f32 v{acc[0]}, v{acc[0]}, v{acc[2]}")
    a(f"v_add_f32 v{acc[4]}, v{acc[4]}, v{acc[6]}")
    if full_row:
        for m in ("row_ror:4", "row_ror:8"):
            a(f"v_add_f32_dpp v{acc[0]}, v{acc[0]}, v{acc[0]} {m} {DPPM}")
            a(f"v_add_f32_dpp v{acc[4]}, v{acc[4]}, v{acc[4]} {m} {DPPM}")
    else:
        a(f"v_add_f32_dpp v{dst}, v{acc[0]}, v{acc[0]} row_ror:8 row_mask:0xf bank_mask:0x3")
        a(f"v_add_f32_dpp v{dst}, v{acc[4]}, v{acc[4]} row_ror:8 row_mask:0xf bank_mask:0xc")

def dots16(P0, P1, x0, x1, acc):
    for j in range(8):
        a(f"v_dot2_f32_bf16 v{acc[j]}, v{P0[j]}, {x0}, 0")
    for j in range(8):
        a(f"v_dot2_f32_bf16 v{acc[j]}, v{P1[j]}, {x1}, v{acc[j]}")

def spin_head(p):
    lp, dn = lab(p), lab(p + "d")
    a(f"s_mov_b32 s38, {SPIN}")
    a(f"{lp}:")
    return lp, dn

def spin_tail(h, slp=False):
    lp, dn = h
    a(f"s_cbranch_scc1 {dn}")
    if slp: sleep()
    a("s_sub_u32 s38, s38, 1")
    a("s_cmp_eq_u32 s38, 0")
    a(f"s_cbranch_scc0 {lp}")
    a(f"{dn}:")

def xlane(op, x, t, steps):
    for s in steps:
        if s in ("p16", "p32"):
            a(f"v_mov_b32 {t}, {x}")
            a(f"v_permlane{s[1:]}_swap_b32 {x}, {t}")
            a(f"{op} {x}, {x}, {t}")
        else:
            m = {"q3": "quad_perm:[3,2,1,0]", "q1": "quad_perm:[1,0,3,2]", "q2": "quad_perm:[2,3,0,1]", "hm": "row_half_mirror",
                 "r4": "row_ror:4", "r8": "row_ror:8", "rm": "row_mirror"}[s]
            a(f"{op}_dpp {x}, {x}, {x} {m} {DPPM}")

def poll(name, loads, checks, pre=None):
    n = len(loads)
    P = [f"s[{46+2*i}:{47+2*i}]" for i in range(n)]
    for p in P: a(f"s_mov_b64 {p}, -1")
    h = spin_head(name)
    if pre: a(pre)
    for i in range(n):
        sk = lab(name + "s")
        a(f"s_mov_b64 exec, {P[i]}")
        a(f"s_cbranch_execz {sk}")
        a(loads[i])
        a(f"{sk}:")
    a("s_mov_b64 exec, -1")
    a("s_waitcnt vmcnt(0)")
    for i in range(n): checks[i](P[i])
    if n == 1: a(f"s_cmp_eq_u64 {P[0]}, 0")
    else:
        a(f"s_or_b64 s[34:35], {P[0]}, {P[1]}")
        for p in P[2:]: a(f"s_or_b64 s[34:35], s[34:35], {p}")
        a("s_cmp_eq_u64 s[34:35], 0")
    spin_tail(h, True)

def chk_sent4(r, t):
    def f(sp):
        a(f"v_max3_u32 {t}, v{r}, v{r+1}, v{r+2}")
        a(f"v_max_u32 {t}, {t}, v{r+3}")
        a(f"v_cmp_eq_u32 {sp}, -1, {t}")
    return f
def chk_tag(regs, t):
    def f(sp):
        if len(regs) == 1: a(f"v_cmp_ne_u32 {sp}, s6, v{regs[0]}")
        else:
            a(f"v_xor_b32 {t}, v{regs[0]}, v{regs[1]}")
            a(f"v_cmp_ne_u32 {sp}, s6, v{regs[0]}")
            a(f"v_cmp_ne_u32 vcc, 0, {t}")
            a(f"s_or_b64 {sp}, {sp}, vcc")
    return f

def lds_flag_wait(name, off, nwords, extra_reads, expect, zero, tmpbase):
    h = spin_head(name)
    for q in range(nwords // 4):
        a(f"ds_read_b128 v[{tmpbase+4*q}:{tmpbase+4*q+3}], {zero} offset:{L_FL+off+16*q}")
    for x in extra_reads: a(x)
    a("s_waitcnt lgkmcnt(0)")
    t = tmpbase
    a(f"v_add3_u32 v{t}, v{t}, v{t+1}, v{t+2}")
    if nwords == 4: a(f"v_add_u32 v{t}, v{t}, v{t+3}")
    else:
        a(f"v_add3_u32 v{t+4}, v{t+4}, v{t+5}, v{t+6}")
        a(f"v_add3_u32 v{t}, v{t}, v{t+3}, v{t+7}")
        a(f"v_add_u32 v{t}, v{t}, v{t+4}")
    a(f"v_cmp_ne_u32 vcc, {expect}, v{t}")
    a("s_cmp_eq_u64 vcc, 0")
    spin_tail(h)

hdr = open(f"cdna_kernels/{NAME}.s.ref").read().split("; Override launch")[0]
a.raw(hdr.rstrip())
a.raw(f"; @launch grid=(256,1,1) block=(768,1,1) lds={LDS_BYTES}")
a.raw('.amdgcn_target "amdgcn-amd-amdhsa--gfx950"')
a.raw(".text")
a.raw(f".globl {NAME}_kernel\n.p2align 8\n.type {NAME}_kernel,@function\n{NAME}_kernel:")


WARM = int(opts.get("warm", 0))
FAST = int(opts.get("fast", 1)); FASTQ = int(opts.get("fastq", 1))
pads = []
def pad(name, over=False):
    if not WARM: return
    if over: a(f"s_branch L_padskip_{name}")
    a(f"L_pad_{name}:")
    a("s_setpc_b64 s[62:63]")
    if over: a(f"L_padskip_{name}:")
    pads.append(name)
def touch(*names):
    if not WARM: return
    for n in names: a(f"s_call_b64 s[62:63], L_pad_{n}")

N0 = int(opts.get("n0", 6)); S1G = int(opts.get("s1g", 2)); AD = int(opts.get("ad", 16)); VD = int(opts.get("vd", 16)); VN = int(opts.get("vn", 0)); KVW = int(opts.get("kvw", 4))
a("s_cmp_ge_u32 s2, 256")
a("s_cbranch_scc1 L_end")
a("s_load_dwordx16 s[8:23], s[0:1], 0")
a("s_load_dwordx8 s[24:31], s[0:1], 64")
ts(0)
a("v_lshrrev_b32 v2, 6, v0")
a("v_and_b32 v1, 63, v0")
a("s_and_b32 s4, s2, 7")
a("s_lshr_b32 s5, s2, 3")
a("v_readfirstlane_b32 s3, v2")
a("v_lshrrev_b32 v3, 3, v1")
a("v_and_b32 v4, 7, v1")
a("v_mov_b32 v5, 0")
a("v_lshlrev_b32 v6, 2, v1")
a(f"ds_write_b32 v6, v5 offset:{L_FL}")
a("s_lshr_b32 s39, s5, 1")
a("s_and_b32 s33, s5, 1")
a("s_cmp_ge_u32 s3, 4")
a("s_cbranch_scc1 L_hi")
a("s_lshr_b32 s44, s5, 3")
a("s_and_b32 s45, s5, 7")
a("v_min_u32 v6, 55, v1")
a("v_lshlrev_b32 v6, 4, v6")
a("s_lshl_b32 s48, s3, 5")
a("v_lshl_add_u32 v15, v3, 2, s48")
a("v_min_u32 v14, 108, v15")
a("s_mul_i32 s47, s44, 112")
a("v_add_u32 v14, s47, v14")
a("v_lshlrev_b32 v12, 1, v14")
a("s_lshl_b32 s51, s4, 10")
a("s_lshl_b32 s52, s45, 7")
a("s_add_u32 s51, s51, s52")
a("v_lshl_add_u32 v32, v4, 4, s51")
a("v_lshl_add_u32 v32, v14, 13, v32")
a("v_add_u32 v33, 0x2000, v32")
a("v_add_u32 v34, 0x4000, v32")
a("v_add_u32 v35, 0x6000, v32")
a("s_waitcnt lgkmcnt(0)")
a(f"global_load_dwordx4 v[36:39], v6, {X}")
a(f"global_load_dwordx2 v[12:13], v12, {X}")
for i in range(4):
    a(f"global_load_dwordx4 v[{16+4*i}:{19+4*i}], v{32+i}, {WQ}{NTW}")
a("s_barrier")
a("s_branch L_s1")
a.flush_hist()
a("L_hi:")
N1 = int(opts.get("n1", 8)); HQ = int(opts.get("hq", 8));
a("s_lshl_b32 s43, s4, 22")
a("s_lshl_b32 s7, s39, 16")
a("s_add_u32 s43, s43, s7")
a(f"s_add_u32 s43, s43, {6144*512}")
a("s_and_b32 s44, s3, 3")
a("s_lshr_b32 s7, s3, 3")
a("s_cmp_eq_u32 s7, s33")
a("s_cbranch_scc0 L_B_hi")
a("s_lshl_b32 s47, s44, 11")
a("s_add_u32 s46, s43, s47")
a("v_lshlrev_b32 v6, 13, v3")
a("v_lshl_add_u32 v6, v4, 4, v6")
a("v_add_u32 v6, s46, v6")
KA = int(opts.get("ka", 12))
KB = 16 - KA
a(f"s_mul_i32 s7, s33, {KA*128}")
a("v_add_u32 v7, s7, v6")
a("s_waitcnt lgkmcnt(0)")
for i in range(KA):
    if i == min(N0, KB): a("s_barrier")
    if i == KB:
        a("s_cmp_eq_u32 s33, 1")
        a("s_cbranch_scc1 L_A_k1")
    if i >= N0: a(f"s_waitcnt vmcnt({N0-1})")
    a(f"global_load_dwordx4 v[{64+4*i}:{67+4*i}], v7, {K} offset:{i*128}{NT}")
a("s_branch L_A_k1")
a.flush_hist()
a("L_B_hi:")
if int(opts.get("cpf", 1)):
    a("s_getpc_b64 s[36:37]")
    a("L_pc:")
    a("v_and_b32 v5, 255, v0")
    a("v_lshlrev_b32 v5, 7, v5")
    a("v_cmp_gt_u32 vcc, L_codeend-L_pc, v5")
    a("v_cndmask_b32 v5, 0, v5, vcc")
    a("global_load_dword v167, v5, s[36:37]")
if WARM:
    for u_, n_ in enumerate(("s1b", "s1c", "k1", "v2", "bh2", "h1", "wo1", "ffn1")):
        sk = lab("et")
        a(f"s_cmp_eq_u32 s3, {11-u_}")
        a(f"s_cbranch_scc0 {sk}")
        touch(n_)
        a(f"{sk}:")
a("s_waitcnt lgkmcnt(0)")
a("s_barrier")
if int(opts.get("tw", 1)):
    a("s_mul_i32 s7, s4, 458752")
    a("s_load_dword s46, s[16:17], s7")
    a("s_add_u32 s7, s7, 458748")
    a("s_load_dword s47, s[16:17], s7")
    a("s_load_dword s48, s[20:21], 0")
    a("s_mov_b32 s7, 1605628")
    a("s_load_dword s49, s[20:21], s7")
    a("s_mul_i32 s7, s4, 200704")
    a("s_load_dword s50, s[24:25], s7")
    a("s_add_u32 s7, s7, 200700")
    a("s_load_dword s51, s[24:25], s7")
    a("s_load_dword s52, s[22:23], 0")
    a("s_load_dword s53, s[26:27], 0")
    a("s_load_dword s54, s[12:13], s43")
    a("s_waitcnt lgkmcnt(0)")
a("s_cmp_eq_u32 s33, 1")
a("s_cbranch_scc0 L_A_v")
a("s_branch L_B_hi2")
a.flush_hist()
a("L_s1:")
if DEBUG:
    for k in range(1, 16): a(f"s_mov_b64 s[{64+2*k}:{65+2*k}], 0")
ts(1)
a(f"s_mov_b32 {SEL_LO}, 0x05040100")
a(f"s_mov_b32 {SEL_HI}, 0x07060302")
a(f"s_mov_b32 {MHI}, 0xffff0000")
a("v_lshlrev_b32 v2, 3, v4")
a("v_bfe_u32 v5, v1, 3, 1")
a("v_lshl_add_u32 v2, v5, 2, v2")
a("v_bfe_u32 v5, v1, 4, 1")
a("v_lshl_add_u32 v2, v5, 1, v2")
a("v_lshrrev_b32 v5, 5, v1")
a("v_add_u32 v2, v2, v5")
a("s_lshl_b32 s7, s3, 2")
a("v_mov_b32 v10, s7")
a("v_mov_b32 v11, 1")
a("v_cmp_gt_u32 vcc, 112, v15")
a("s_mov_b64 s[34:35], vcc")
a("s_cmp_lg_u32 s3, 3")
a("s_cbranch_scc1 L_s1_noep")
a(f"s_load_dword s6, {WS}, 0")
a("L_s1_noep:")
a("v_cmp_gt_u32 vcc, 56, v1")
a("s_waitcnt vmcnt(5)")
for k in range(4):
    a(f"v_lshlrev_b32 v{40+2*k}, 16, v{36+k}")
    a(f"v_and_b32 v{41+2*k}, {MHI}, v{36+k}")
a("v_add_f32 v48, v40, v41")
a("v_mul_f32 v49, v40, v40")
a("v_add_f32 v50, v42, v43")
a("v_mul_f32 v51, v42, v42")
a("v_fmac_f32 v49, v41, v41")
a("v_fmac_f32 v51, v43, v43")
a("v_add_f32 v48, v48, v44")
a("v_add_f32 v50, v50, v46")
a("v_fmac_f32 v49, v44, v44")
a("v_fmac_f32 v51, v46, v46")
a("v_add_f32 v48, v48, v45")
a("v_add_f32 v50, v50, v47")
a("v_fmac_f32 v49, v45, v45")
a("v_fmac_f32 v51, v47, v47")
a("v_add_f32 v48, v48, v50")
a("v_add_f32 v49, v49, v51")
a("v_cndmask_b32 v48, 0, v48, vcc")
a("v_cndmask_b32 v49, 0, v49, vcc")
wave_sum2("v48", "v49", "s54", "s55")
ln_finish("s54", "s55", "v50", "v51", "v52")
pad("s1b", over=True)
a("s_waitcnt vmcnt(4)")
a("v_lshlrev_b32 v40, 16, v12")
a(f"v_and_b32 v41, {MHI}, v12")
a("v_lshlrev_b32 v42, 16, v13")
a(f"v_and_b32 v43, {MHI}, v13")
for k in range(4): a(f"v_sub_f32 v{40+k}, v{40+k}, v50")
a("v_cvt_pk_bf16_f32 v12, v40, v41")
a("v_cvt_pk_bf16_f32 v13, v42, v43")
a("v_lshlrev_b32 v40, 16, v12")
a(f"v_and_b32 v41, {MHI}, v12")
a("v_lshlrev_b32 v42, 16, v13")
a(f"v_and_b32 v43, {MHI}, v13")
for k in range(4): a(f"v_mul_f32 v{40+k}, v{40+k}, v51")
a("v_cvt_pk_bf16_f32 v12, v40, v41")
a("v_cvt_pk_bf16_f32 v13, v42, v43")
a("v_cndmask_b32 v12, 0, v12, s[34:35]")
a("v_cndmask_b32 v13, 0, v13, s[34:35]")
a("v_lshlrev_b32 v5, 2, v0")
a("v_mov_b32 v6, 0")
a("s_waitcnt vmcnt(2)")
perm_pair(16, 20, R(40, 8))
for j in range(8): a(f"v_dot2_f32_bf16 v{56+j}, v{40+j}, v12, 0")
a("s_waitcnt vmcnt(0)")
ts(2)
perm_pair(24, 28, R(48, 8))
for j in range(8): a(f"v_dot2_f32_bf16 v{56+j}, v{48+j}, v13, v{56+j}")
reduce8_hi(R(56, 8), 40)
a("s_cmp_eq_u32 s3, 3")
a("s_cbranch_scc1 L_s1_coll")
a(f"ds_write_b32 v5, v40 offset:{L_S1}")
a(f"ds_write_b32 v10, v11 offset:{L_FL}")
a(f"s_load_dword s6, {WS}, 0")
a("s_branch L_s1_done")
a.flush_hist()
pad("s1c")
a("L_s1_coll:")
a("v_lshlrev_b32 v5, 2, v1")
a("s_lshl_b32 s7, s4, 14")
a("s_lshl_b32 s51, s45, 11")
a("s_add_u32 s7, s7, s51")
a("s_lshl_b32 s51, s44, 9")
a("s_add_u32 s7, s7, s51")
a(f"s_add_u32 s7, s7, {QG}")
a("v_lshl_add_u32 v8, v2, 3, s7")
lds_flag_wait("s1", 0, 4, [f"ds_read_b32 v{41+w}, v5 offset:{L_S1+256*w}" for w in range(3)], 3, "v6", 56)
a("s_add_u32 s7, s6, 1")
a("v_add_f32 v40, v40, v41")
a("v_add_f32 v42, v42, v43")
a("v_mov_b32 v41, s7")
a("v_add_f32 v40, v40, v42")
if FASTQ:
    a(f"v_add_u32 v9, {FO}, v8")
    a(f"global_store_dwordx2 v9, v[40:41], {WS}")
a(f"global_store_dwordx2 v8, v[40:41], {WS} sc1")
a(f"ds_write_b32 v6, v11 offset:{L_FL+0x60}")
if opts.get("ack"):
    ts(3)
    a("s_waitcnt vmcnt(1)")
    ts(10)
    a("s_waitcnt vmcnt(0)")
    ts(11)
    a("s_branch L_s1_done2")
a("L_s1_done:")
ts(3)
a("L_s1_done2:")
a("s_cmp_eq_u32 s33, 1")
a("s_cbranch_scc1 L_B_go")

a("s_setprio 3")
a("s_lshl_b32 s7, s4, 14")
a("s_lshl_b32 s51, s3, 12")
a("s_add_u32 s7, s7, s51")
a(f"s_add_u32 s7, s7, {QG}")
a("v_lshl_add_u32 v9, v1, 4, s7")
a("s_lshl_b32 s7, s3, 8")
a("v_lshl_add_u32 v8, v1, 2, s7")
a("s_cmp_lg_u32 s3, 0")
a("s_cbranch_scc1 L_A_h2")
a("s_lshl_b32 s7, s4, 14")
a("s_lshl_b32 s51, s39, 9")
a("s_add_u32 s7, s7, s51")
a(f"s_add_u32 s7, s7, {OP}")
a("v_lshrrev_b32 v5, 5, v1")
a("v_lshlrev_b32 v5, 13, v5")
a("v_and_b32 v7, 31, v1")
a("v_lshl_add_u32 v5, v7, 4, v5")
a("v_add_u32 v5, s7, v5")
a("v_mov_b32 v12, -1\nv_mov_b32 v13, -1\nv_mov_b32 v14, -1\nv_mov_b32 v15, -1")
a(f"global_store_dwordx4 v5, v[12:15], {WS} sc1")
if FAST:
    a(f"v_add_u32 v5, {FO}, v5")
    a(f"global_store_dwordx4 v5, v[12:15], {WS}")
a("s_getreg_b32 s52, hwreg(HW_REG_XCC_ID)")
a("s_lshl_b32 s7, s4, 11")
a("s_lshl_b32 s51, s39, 7")
a("s_add_u32 s7, s7, s51")
a(f"s_add_u32 s7, s7, {RDA}")
a("v_mov_b32 v5, s7")
a("s_waitcnt vmcnt(0) lgkmcnt(0)")
a("s_add_u32 s7, s6, 1")
a("v_mov_b32 v12, s7")
a("v_mov_b32 v13, s52")
a("s_mov_b64 exec, 1")
a(f"global_store_dwordx2 v5, v[12:13], {WS} sc1")
a("s_mov_b64 exec, -1")
a("L_A_h2:")
if int(opts.get("hg", 1)): lds_flag_wait("hg", 0x80, 4, [], 4, "v6", 56)
a("s_waitcnt lgkmcnt(0)")
a("s_add_u32 s6, s6, 1")
ts(8)
poll("qp", [f"global_load_dwordx4 v[{48+4*i}:{51+4*i}], v9, {WS} offset:{i*1024} sc1" for i in range(4)],
     [chk_tag([49+4*i, 51+4*i], "v5") for i in range(4)], pre=(f"v_xor_b32 v9, {FO}, v9" if FASTQ else None))
ts(4)
a("v_add_f32 v48, v48, v52")
a("v_add_f32 v50, v50, v54")
a("v_add_f32 v56, v56, v60")
a("v_add_f32 v58, v58, v62")
a("v_permlane32_swap_b32 v48, v56")
a("v_permlane32_swap_b32 v50, v58")
a("v_add_f32 v48, v48, v56")
a("v_add_f32 v50, v50, v58")
a("v_cvt_pk_bf16_f32 v48, v48, v50")
a(f"ds_write_b32 v8, v48 offset:{L_Q}")
a(f"ds_write_b32 v10, v11 offset:{L_FL+0x20}")
ts(5)
a("s_cmp_eq_u32 s3, 0")
a("s_cbranch_scc1 L_A_soft")
APF = int(opts.get("apf", 0))
if APF:
    lds_flag_wait("aq", 0x20, 4, [], 4, "v6", 56)
    a("s_mul_i32 s7, s4, 458752")
    a("s_mul_i32 s51, s39, 28672")
    a("s_add_u32 s7, s7, s51")
    a("s_sub_u32 s51, s3, 1")
    a("s_mul_i32 s51, s51, 9216")
    a("s_add_u32 s7, s7, s51")
    a("v_lshl_add_u32 v5, v1, 4, s7")
    a("v_add_u32 v7, 0x1000, v5")
    a("v_add_u32 v8, 0x2000, v5")
    for i in range(10):
        r = (5, 7, 8)[i >> 2]
        a(f"global_load_dwordx4 v[{64+4*i}:{67+4*i}], v{r}, {WO} offset:{(i&3)*1024}{NTW}")
    a(f"ds_write_b32 v10, v11 offset:{L_FL+0x90}")
end_wave()
pad("h1")
a("L_A_soft:")
a("v_lshlrev_b32 v5, 4, v1")
a("v_lshlrev_b32 v7, 3, v1")
a("s_lshl_b32 s7, s4, 11")
a("s_lshl_b32 s51, s39, 7")
a("s_add_u32 s7, s7, s51")
a(f"s_add_u32 s7, s7, {LSE}")
a("v_lshrrev_b32 v12, 5, v1")
a("v_lshl_add_u32 v12, v12, 3, s7")
a("v_mov_b32 v33, s6")
a("s_mov_b32 s34, 1")
a("s_mov_b32 s35, 1")
lds_flag_wait("sc", 0x40, 4, [f"ds_read_b128 v[16:19], v5 offset:{L_SC}"], 4, "v6", 56)
ts(6)
a("v_max3_f32 v32, v16, v17, v18")
a("v_max_f32 v32, v32, v19")
xlane("v_max_f32", "v32", "v34", ["q1", "q2", "hm", "rm", "p16"])
for e in range(4): a(f"v_sub_f32 v{16+e}, v{16+e}, v32")
for e in range(4): a(f"v_exp_f32 v{16+e}, v{16+e}")
a("v_add_f32 v35, v16, v17")
a("v_add_f32 v36, v18, v19")
a("v_add_f32 v35, v35, v36")
xlane("v_add_f32", "v35", "v34", ["q1", "q2", "hm", "rm", "p16"])
a("v_rcp_f32 v36, v35")
a("v_log_f32 v35, v35")
for e in range(4): a(f"v_mul_f32 v{16+e}, v{16+e}, v36")
a("v_cvt_pk_bf16_f32 v16, v16, v17")
a("v_cvt_pk_bf16_f32 v17, v18, v19")
a(f"ds_write_b64 v7, v[16:17] offset:{L_P}")
a(f"ds_write_b32 v6, v11 offset:{L_FL+0x50}")
a("v_add_f32 v32, v32, v35")
a("s_mov_b64 exec, s[34:35]")
if FAST:
    a(f"v_add_u32 v13, {FO}, v12")
    a(f"global_store_dwordx2 v13, v[32:33], {WS}")
a(f"global_store_dwordx2 v12, v[32:33], {WS} sc1")
a("s_mov_b64 exec, -1")
ts(7)
if int(opts.get("fpf", 1)):
    a("s_setprio 0")
    a("s_mul_i32 s7, s39, 28*3584")
    a("s_mul_i32 s51, s4, 448")
    a("s_add_u32 s7, s7, s51")
    a("v_min_u32 v16, 6, v4")
    a("v_min_u32 v17, 6, v3")
    a("v_mul_u32_u24 v17, 3584, v17")
    a("v_lshl_add_u32 v17, v16, 6, v17")
    a("v_add_u32 v17, s7, v17")
    a("s_mul_i32 s7, s4, 200704")
    a("s_mul_i32 s51, s39, 12544")
    a("s_add_u32 s7, s7, s51")
    a("v_min_u32 v18, 48, v1")
    a("v_lshl_add_u32 v18, v18, 6, s7")
    lds_flag_wait("fp", 0xA0, 4, [], 4, "v6", 56)
    for u_ in range(4):
        a(f"global_load_dword v{40+u_}, v17, {W1}{NTW}")
        a(f"global_load_dword v{44+u_}, v18, {W2}{NTW}")
        if u_ < 3:
            a(f"v_add_u32 v17, {7*3584}, v17")
            a("v_add_u32 v18, 3136, v18")
end_wave()

pad("k1")
a("L_A_k1:")
a("s_lshl_b32 s7, s44, 2")
a("v_mov_b32 v45, s7")
a("v_mov_b32 v46, 1")
a("v_mov_b32 v47, 0")
if DEBUG:
    for k in range(1, 16): a(f"s_mov_b64 s[{64+2*k}:{65+2*k}], 0")
a("s_cmp_eq_u32 s33, 1")
a("s_cbranch_scc1 L_B_pf")
KG = int(opts.get("kg", 3))
a(f"s_waitcnt vmcnt({KG})")
ts(1)
a(f"ds_write_b32 v45, v46 offset:{L_FL+0x80}")
for i in range(KA, 16):
    a(f"global_load_dwordx4 v[{64+4*i}:{67+4*i}], v6, {K} offset:{i*128}{NT}")
a(f"ds_write_b32 v45, v46 offset:{L_FL+0x70}")
ts(2)
a("L_A_k2:")
a(f"s_mov_b32 {MHI}, 0xffff0000")
a("s_lshl_b32 s7, s44, 4")
a(f"s_add_u32 s7, s7, {L_SC}")
a("v_lshl_add_u32 v44, v3, 6, s7")
a("v_mov_b32 v47, 0")
a("v_lshlrev_b32 v5, 4, v4")
for i in range(8): a(f"v_mov_b32 v{48+i}, 0")
a(f"s_mov_b32 s7, {f32(0.0625*LOG2E)}")
lds_flag_wait("qx", 0x20, 4,
    [f"ds_read_b128 v[{128+(hh*4+j)*4}:{131+(hh*4+j)*4}], v5 offset:{L_Q + hh*512 + j*128}" for hh in range(2) for j in range(4)],
    4, "v47", 56)
a("s_setprio 2")
ts(4)
for gp in range(2):
    a(f"s_waitcnt vmcnt({8-8*gp})")
    if gp == 1: ts(5)
    for j in range(4):
        for k in range(4):
            for grp in (2*gp, 2*gp+1):
                for hh in range(2):
                    a(f"v_dot2c_f32_bf16 v{48+hh*4+grp}, v{64+(grp*4+j)*4+k}, v{128+(hh*4+j)*4+k}")
pad("k3", over=True)
for m in ("quad_perm:[1,0,3,2]", "quad_perm:[2,3,0,1]", "row_half_mirror"):
    for i in range(8):
        a(f"v_add_f32_dpp v{48+i}, v{48+i}, v{48+i} {m} {DPPM}")
for q in range(4): a(f"v_cvt_pk_bf16_f32 v{56+q}, v{48+2*q}, v{49+2*q}")
for q in range(4):
    a(f"v_lshlrev_b32 v{48+2*q}, 16, v{56+q}")
    a(f"v_and_b32 v{49+2*q}, {MHI}, v{56+q}")
for i in range(8): a(f"v_mul_f32 v{48+i}, s7, v{48+i}")
a("ds_write_b128 v44, v[48:51]")
a("ds_write_b128 v44, v[52:55] offset:512")
a(f"ds_write_b32 v45, v46 offset:{L_FL+0x40}")
ts(6)
if int(opts.get("wpf", 0)):
    a("s_setprio 0")
    a("s_mul_i32 s7, s4, 458752")
    a("s_mul_i32 s51, s39, 28672")
    a("s_add_u32 s7, s7, s51")
    a("s_mul_i32 s51, s44, 7168")
    a("s_add_u32 s7, s7, s51")
    a("v_lshl_add_u32 v5, v1, 4, s7")
    a("v_add_u32 v6, 0x1000, v5")
    for i in range(7):
        a(f"global_load_dwordx4 v[{64+4*i}:{67+4*i}], v{5+(i>>2)}, {WO} offset:{(i&3)*1024}{NTW}")
end_wave()

pad("v2")
a("L_A_v:")
if DEBUG:
    for k in range(1, 16): a(f"s_mov_b64 s[{64+2*k}:{65+2*k}], 0")
a(f"s_mov_b32 {SEL_LO}, 0x05040100")
a(f"s_mov_b32 {SEL_HI}, 0x07060302")
a("s_lshl_b32 s52, s44, 7")
a("s_add_u32 s51, s43, s52")
a("v_bfe_u32 v5, v1, 3, 1")
a("v_lshlrev_b32 v6, 14, v5")
a("v_lshrrev_b32 v10, 4, v1")
a("v_lshl_add_u32 v6, v10, 12, v6")
a("v_lshl_add_u32 v6, v4, 4, v6")
a("v_add_u32 v6, s51, v6")
a("v_add_u32 v7, 0x8000, v6")
a("v_mov_b32 v11, 0")
a("s_lshl_b32 s7, s4, 14")
a("s_lshl_b32 s51, s39, 9")
a("s_add_u32 s7, s7, s51")
a("s_add_u32 s7, s7, s52")
a(f"s_add_u32 s7, s7, {OP}")
a("v_lshlrev_b32 v8, 13, v5")
a("v_lshl_add_u32 v8, v4, 4, v8")
a("v_add_u32 v8, s7, v8")
a(f"v_add_u32 v12, {FO}, v8")
a("s_lshl_b32 s7, s44, 2")
a("v_mov_b32 v13, s7")
a("v_mov_b32 v14, 1")
a("v_lshrrev_b32 v5, 1, v1")
a("v_xor_b32 v5, v5, v1")
a("v_and_b32 v5, 1, v5")
a("v_lshlrev_b32 v9, 8, v5")
a("v_and_b32 v5, 1, v1")
a("v_lshl_add_u32 v9, v5, 6, v9")
a("v_lshl_add_u32 v9, v10, 4, v9")
if WARM:
    for u_, names in enumerate((("h1",), ("k3",), ("v3",), ("v4",))):
        sk = lab("vt")
        a(f"s_cmp_eq_u32 s44, {u_}")
        a(f"s_cbranch_scc0 {sk}")
        touch(*names)
        a(f"{sk}:")
lds_flag_wait("vg", int(opts.get("vg", 0x20)), 4, [], 3 if opts.get("vg") == "144" else 4, "v11", 32)
ts(1)
def vperm(t):
    if t < 4: perm_pair(40+8*t, 44+8*t, [104+4*j+t for j in range(8)])
    else: perm_pair(40+8*t, 44+8*t, [40+4*j+(t-4) for j in range(8)])
done_t = 0
for i in range(16):
    sg, e = divmod(i, 8)
    known = -1
    if VD <= i < VN:
        a(f"s_waitcnt vmcnt({VD-1})"); known = i - VD
    a(f"global_load_dwordx4 v[{40+4*i}:{43+4*i}], v{6+sg}, {V} offset:{e*512}{NT}")
    while 2*done_t+1 <= known and done_t < 4:
        vperm(done_t); done_t += 1
    if i == 9: pad("v3", over=True)
ts(2)
while done_t < 4:
    a(f"s_waitcnt vmcnt({14-2*done_t})"); vperm(done_t); done_t += 1
PRE = int(opts.get("vpre", 2))
for t in range(4, 4+PRE):
    a(f"s_waitcnt vmcnt({14-2*t})"); vperm(t)
ts(3)
pad("v4", over=True)
lds_flag_wait("pw", 0x50, 4, [f"ds_read_b128 v[16:19], v9 offset:{L_P}", f"ds_read_b128 v[20:23], v9 offset:{L_P+128}"], 1, "v11", 32)
a("s_setprio 3")
ts(6)
for j in range(8):
    a(f"v_mfma_f32_16x16x32_bf16 v[{136+4*j}:{139+4*j}], v[16:19], v[{104+4*j}:{107+4*j}], 0")
for t in range(4+PRE, 8):
    a(f"s_waitcnt vmcnt({14-2*t})")
    if t == 7: ts(7)
    vperm(t)
for j in range(8):
    a(f"v_mfma_f32_16x16x32_bf16 v[{136+4*j}:{139+4*j}], v[20:23], v[{40+4*j}:{43+4*j}], v[{136+4*j}:{139+4*j}]")
for j in range(8):
    d = 136 + 4*j
    a(f"v_add_f32_dpp v{24+j}, v{d+3}, v{d} row_ror:8 row_mask:0xf bank_mask:0x3")
    a(f"v_add_f32_dpp v{24+j}, v{d+2}, v{d+1} row_ror:8 row_mask:0xf bank_mask:0xc")
for t in range(4): a(f"v_cvt_pk_bf16_f32 v{36+t}, v{24+2*t}, v{25+2*t}")
for t in range(4): a(f"v_min_u32 v{36+t}, -2, v{36+t}")
a("s_mov_b64 exec, 0xffff")
if FAST: a(f"global_store_dwordx4 v12, v[36:39], {WS}")
a(f"global_store_dwordx4 v8, v[36:39], {WS} sc1")
a("s_mov_b64 exec, -1")
ts(8)
if opts.get("ack"):
    a("s_waitcnt vmcnt(1)")
    ts(10)
    a("s_waitcnt vmcnt(0)")
    ts(11)
a(f"ds_write_b32 v13, v14 offset:{L_FL+0xA0}")
end_wave()

a("L_B_pf:")
PD = int(opts.get("pd", 4)); PN = int(opts.get("pn", 4)); PW = int(opts.get("pw", 12)); XS = int(opts.get("xs", 0)); WPF2 = int(opts.get("wpf2", 1))
a("s_lshl_b32 s52, s44, 7")
a("s_add_u32 s51, s43, s52")
a("v_bfe_u32 v5, v1, 3, 1")
a("v_lshlrev_b32 v8, 14, v5")
a("v_lshrrev_b32 v10, 4, v1")
a("v_lshl_add_u32 v8, v10, 12, v8")
a("v_lshl_add_u32 v8, v4, 4, v8")
a("v_add_u32 v8, s51, v8")
a("v_add_u32 v9, 0x8000, v8")
for n, i in enumerate(range(XS, 16)):
    if n < PN: a(f"s_waitcnt vmcnt({PD-1})")
    if n == PN and S1G == 2: lds_flag_wait("pg", 0x60, 4, [], 1, "v47", 56)
    a(f"global_load_dwordx4 v[{100+4*n}:{103+4*n}], v{8+(i>>3)}, {V} offset:{(i&7)*512}{NT}")
ts(1)
if PW < 16: a(f"s_waitcnt vmcnt({PW})")
a(f"ds_write_b32 v45, v46 offset:{L_FL+0x70}")
if WPF2:
    a("s_cmp_lt_u32 s39, 7")
    a("s_cbranch_scc1 L_B_pf2")
    a("s_sub_u32 s7, s39, 7")
    a("s_lshl_b32 s7, s7, 2")
    a("s_add_u32 s7, s7, s44")
    a("s_mul_i32 s7, s7, 6400")
    a("s_min_u32 s7, s7, 222976")
    a("s_mul_i32 s51, s4, 458752")
    a("s_add_u32 s7, s7, s51")
    a("s_add_u32 s7, s7, 229376")
    a("v_min_u32 v5, 49, v1")
    a("v_lshl_add_u32 v5, v5, 7, s7")
    a(f"global_load_dword v40, v5, {WO}{NTW}")
    a(f"global_load_dword v41, v5, {WO} offset:64{NTW}")
a("L_B_pf2:")
ts(2)
end_wave()
pad("bh2")
a("L_B_hi2:")
if DEBUG:
    for k in range(1, 16): a(f"s_mov_b64 s[{64+2*k}:{65+2*k}], 0")
a("s_cmp_lt_u32 s3, 7")
a("s_cbranch_scc1 L_B_join")
a("L_w7:")
a(f"s_load_dword s6, {WS}, 0")
a("v_mov_b32 v12, -1\nv_mov_b32 v13, -1\nv_mov_b32 v14, -1\nv_mov_b32 v15, -1")
a("s_cmp_lt_u32 s39, 14")
a("s_cbranch_scc0 L_B_exit")
a("s_cmp_lt_u32 s39, 7")
a("s_cbranch_scc0 L_w7_a")
a("s_lshl_b32 s7, s39, 3")
a("s_add_u32 s7, s7, s4")
a("s_lshl_b32 s7, s7, 7")
a(f"s_add_u32 s7, s7, {YP}")
a("v_lshl_add_u32 v5, v4, 4, s7")
a("s_mov_b64 exec, 0xff")
a(f"global_store_dwordx4 v5, v[12:15], {WS} sc1")
a("s_mov_b64 exec, -1")
a("s_branch L_w7_b")
a("L_w7_a:")
a("s_mul_i32 s57, s4, 7")
a("s_add_u32 s57, s57, s39")
a("s_sub_u32 s57, s57, 7")
a("s_mul_i32 s7, s57, 1792")
a(f"s_add_u32 s7, s7, {ZP}")
a("v_min_u32 v6, 55, v1")
a("v_lshl_add_u32 v5, v6, 4, s7")
a(f"global_store_dwordx4 v5, v[12:15], {WS} sc1")
a(f"global_store_dwordx4 v5, v[12:15], {WS} offset:896 sc1")
a("v_mov_b32 v6, 0")
a(f"global_load_ushort v16, v6, {OUT}")
a("L_w7_b:")
a("s_lshl_b32 s7, s39, 3")
a("s_add_u32 s7, s7, s4")
a("s_lshl_b32 s7, s7, 7")
a(f"s_add_u32 s7, s7, {RDY}")
a("v_mov_b32 v5, s7")
a("s_waitcnt vmcnt(0) lgkmcnt(0)")
a("s_add_u32 s7, s6, 1")
a("v_mov_b32 v6, s7")
a("s_mov_b64 exec, 1")
a(f"global_store_dword v5, v6, {WS} sc1")
a("s_mov_b64 exec, -1")
a("L_B_join:")
a(f"s_load_dword s6, {WS}, 0")
a(f"s_mov_b32 {SEL_LO}, 0x05040100")
a(f"s_mov_b32 {SEL_HI}, 0x07060302")
a(f"s_mov_b32 {MHI}, 0xffff0000")
a("v_lshlrev_b32 v2, 3, v4")
a("v_bfe_u32 v5, v1, 3, 1")
a("v_lshl_add_u32 v2, v5, 2, v2")
a("v_bfe_u32 v5, v1, 4, 1")
a("v_lshl_add_u32 v2, v5, 1, v2")
a("v_lshrrev_b32 v5, 5, v1")
a("v_add_u32 v2, v2, v5")
a("L_B_go:")
a("s_cmp_lt_u32 s39, 14")
a("s_cbranch_scc0 L_B_exit")
a("v_mov_b32 v6, 0")
WOG = int(opts.get("wog", 0x80))
a("s_cmp_lt_u32 s39, 7")
a("s_cbranch_scc0 L_B_go_f")
lds_flag_wait("pubw", 0x60, 8, [], 5, "v6", 56)
a("s_add_u32 s6, s6, 1")
a("s_branch L_stage_wo")
a("L_B_go_f:")
lds_flag_wait("pub", 0x60, 8, [], 5, "v6", 56)
a("s_add_u32 s6, s6, 1")
a("s_branch L_stage_ffn")
a("L_B_exit:")
end_wave()
pad("wo1")
a("L_stage_wo:")
ts(8)
a("s_lshl_b32 s7, s4, 9")
a("s_lshl_b32 s51, s3, 6")
a("s_add_u32 s7, s7, s51")
a("s_mul_i32 s7, s7, 896")
a("s_lshl_b32 s51, s39, 7")
a("s_add_u32 s7, s7, s51")
a(f"v_mul_u32_u24 v5, {8*896}, v3")
a("v_lshl_add_u32 v5, v4, 4, v5")
a("v_add_u32 v5, s7, v5")
a(f"v_add_u32 v6, {4*896}, v5")
WD = int(opts.get("wd", 8))
for i in range(8):
    if i >= WD: a(f"s_waitcnt vmcnt({WD-1})")
    a(f"global_load_dwordx4 v[{8+4*i}:{11+4*i}], v{5+(i>>2)}, {WO} offset:{(i&3)*896}{NTW}")
a("s_lshl_b32 s7, s4, 11")
a(f"s_add_u32 s7, s7, {RDA}")
a("v_and_b32 v61, 15, v1")
a("v_lshl_add_u32 v61, v61, 7, s7")
a(f"global_load_dwordx2 v[62:63], v61, {WS} sc1")
a("s_lshr_b32 s59, s3, 2")
a("s_lshl_b32 s7, s4, 11")
a("s_lshl_b32 s51, s59, 3")
a("s_add_u32 s7, s7, s51")
a(f"s_add_u32 s7, s7, {LSE}")
a("v_lshl_add_u32 v42, v3, 7, s7")
a("s_lshl_b32 s7, s4, 14")
a("s_lshl_b32 s51, s59, 13")
a("s_add_u32 s7, s7, s51")
a("s_and_b32 s51, s3, 3")
a("s_lshl_b32 s51, s51, 7")
a("s_add_u32 s7, s7, s51")
a(f"s_add_u32 s7, s7, {OP}")
a("v_lshlrev_b32 v43, 9, v3")
a("v_lshl_add_u32 v43, v4, 4, v43")
a("v_add_u32 v43, s7, v43")
a("v_add_u32 v44, 0x1000, v43")
a("s_lshl_b32 s7, s3, 8")
a("v_lshl_add_u32 v45, v2, 2, s7")
a("v_lshl_add_u32 v46, v3, 5, s7")
a("v_and_b32 v5, 31, v1")
a("v_lshlrev_b32 v47, 3, v5")
a("s_lshl_b32 s7, s39, 3")
a("s_add_u32 s7, s7, s4")
a("s_lshl_b32 s7, s7, 7")
a(f"s_add_u32 s7, s7, {YP}")
a("v_lshl_add_u32 v41, v5, 2, s7")
for t in range(4):
    a(f"s_waitcnt vmcnt({7-2*t})")
    perm_pair(8+8*t, 12+8*t, R(64+8*t, 8))
ts(9)
a("s_waitcnt vmcnt(0)")
a("v_cmp_ne_u32 vcc, s6, v62")
a("s_cmp_eq_u64 vcc, 0")
a("s_cbranch_scc1 L_wo_rdy")
poll("ra", [f"global_load_dwordx2 v[62:63], v61, {WS} sc1"], [chk_tag([62], None)])
a("L_wo_rdy:")
if FAST:
    a("s_getreg_b32 s52, hwreg(HW_REG_XCC_ID)")
    a("v_cmp_ne_u32 vcc, s52, v63")
    a("s_cmp_eq_u64 vcc, 0")
    a(f"s_cselect_b32 s7, {FO}, 0")
    if opts.get("ack"):
        a("s_lshr_b32 s92, s7, 16")
        a("s_add_u32 s92, s92, s64")
    a("v_add_u32 v42, s7, v42")
    a("v_add_u32 v43, s7, v43")
    a("v_add_u32 v44, s7, v44")
pad("wo2", over=True)
ts(10)
poll("op", [f"global_load_dwordx2 v[{96+2*i}:{97+2*i}], v42, {WS} offset:{i*1024} sc1" for i in range(2)] +
     [f"global_load_dwordx4 v[100:103], v43, {WS} sc1", f"global_load_dwordx4 v[104:107], v44, {WS} sc1"],
     [chk_tag([97+2*i], None) for i in range(2)] + [chk_sent4(100, "v48"), chk_sent4(104, "v49")])
a("v_max_f32 v48, v96, v98")
xlane("v_max_f32", "v48", "v49", ["r8", "p16", "p32"])
a("v_sub_f32 v96, v96, v48")
a("v_sub_f32 v98, v98, v48")
a("v_exp_f32 v96, v96")
a("v_exp_f32 v98, v98")
a("v_add_f32 v60, v96, v98")
xlane("v_add_f32", "v60", "v49", ["r8", "p16", "p32"])
a("v_rcp_f32 v60, v60")
ts(11)
for k in range(4):
    a(f"v_lshlrev_b32 v{112+2*k}, 16, v{100+k}")
    a(f"v_and_b32 v{113+2*k}, {MHI}, v{100+k}")
    a(f"v_lshlrev_b32 v{120+2*k}, 16, v{104+k}")
    a(f"v_and_b32 v{121+2*k}, {MHI}, v{104+k}")
for d in range(8): a(f"v_mul_f32 v{112+d}, v96, v{112+d}")
for d in range(8): a(f"v_fmac_f32 v{112+d}, v98, v{120+d}")
reduce8_hi(R(112, 8), 50)
a("v_mul_f32 v50, v50, v60")
a(f"ds_write_b32 v45, v50 offset:{L_O}")
a(f"ds_read_b128 v[52:55], v46 offset:{L_O}")
a(f"ds_read_b128 v[56:59], v46 offset:{L_O+16}")
a("s_waitcnt lgkmcnt(0)")
for t in range(4): a(f"v_cvt_pk_bf16_f32 v{48+t}, v{52+2*t}, v{53+2*t}")
for j in range(8): a(f"v_dot2_f32_bf16 v{112+j}, v{64+j}, v48, 0")
for t in range(1, 4):
    for j in range(8): a(f"v_dot2_f32_bf16 v{112+j}, v{64+8*t+j}, v{48+t}, v{112+j}")
reduce8_hi(R(112, 8), 50)
a(f"ds_write_b32 v45, v50 offset:{L_RED}")
a("s_waitcnt lgkmcnt(0)")
a("s_barrier")
ts(12)
a("s_cmp_lg_u32 s3, 0")
a("s_cbranch_scc1 L_wo_end")
for w in range(8): a(f"ds_read_b64 v[{80+2*w}:{81+2*w}], v47 offset:{L_RED + 256*w}")
a("s_waitcnt lgkmcnt(0)")
for (x, y) in ((80, 82), (84, 86), (88, 90), (92, 94), (80, 84), (88, 92), (80, 88)):
    a(f"v_add_f32 v{x}, v{x}, v{y}")
    a(f"v_add_f32 v{x+1}, v{x+1}, v{y+1}")
a("v_cvt_pk_bf16_f32 v80, v80, v81")
a("v_min_u32 v80, -2, v80")
a("s_mov_b32 s34, -1")
a("s_mov_b32 s35, 0")
a("s_mov_b64 exec, s[34:35]")
a(f"global_store_dword v41, v80, {WS} sc1")
a("s_mov_b64 exec, -1")
ts(13)
a("L_wo_end:")
end_wave()

pad("ffn1")
a("L_stage_ffn:")
a("s_mul_i32 s57, s4, 7")
a("s_add_u32 s57, s57, s39")
a("s_sub_u32 s57, s57, 7")
a("s_cmp_eq_u32 s3, 7")
a("s_cbranch_scc1 L_final")
a("s_lshl_b32 s7, s3, 10")
a(f"s_add_u32 s7, s7, {RDY}")
a("v_lshl_add_u32 v6, v4, 7, s7")
poll("tg", [f"global_load_dword v5, v6, {WS} sc1"], [chk_tag([5], None)])
if FGATE:
    a("s_lshl_b32 s7, s4, 11")
    a(f"s_add_u32 s7, s7, {LSE+4}")
    a(f"v_and_b32 v5, {FGATE-1}, v1")
    a("v_lshl_add_u32 v6, v5, 7, s7")
    poll("fg", [f"global_load_dword v5, v6, {WS} sc1"], [chk_tag([5], None)])
a(f"s_mul_i32 s7, s3, {64*3584}")
a("s_lshl_b32 s51, s57, 6")
a("s_add_u32 s7, s7, s51")
a("v_lshrrev_b32 v43, 2, v1")
a("v_and_b32 v44, 3, v1")
a(f"v_mul_u32_u24 v5, {4*3584}, v43")
a("v_lshl_add_u32 v5, v44, 4, v5")
a("v_add_u32 v5, s7, v5")
a("v_add_u32 v6, 7168, v5")
a(f"global_load_dwordx4 v[8:11], v5, {W1}{NTW}")
a(f"global_load_dwordx4 v[12:15], v5, {W1} offset:3584{NTW}")
a(f"global_load_dwordx4 v[16:19], v6, {W1}{NTW}")
a(f"global_load_dwordx4 v[20:23], v6, {W1} offset:3584{NTW}")
a(f"s_mul_i32 s7, s57, {32*896}")
a("s_lshl_b32 s51, s3, 7")
a("s_add_u32 s7, s7, s51")
a(f"v_mul_u32_u24 v5, {4*896}, v3")
a("v_lshl_add_u32 v5, v4, 4, v5")
a("v_add_u32 v5, s7, v5")
for i in range(4):
    a(f"global_load_dwordx4 v[{24+4*i}:{27+4*i}], v5, {W2} offset:{i*896}{NTW}")
a("v_lshl_add_u32 v5, v2, 1, s51")
a(f"global_load_ushort v40, v5, {X}")
a("v_lshl_add_u32 v45, v3, 2, v44")
a("s_lshl_b32 s51, s57, 6")
a("v_lshl_add_u32 v5, v45, 1, s51")
a(f"global_load_ushort v42, v5, {B1}")
a("s_lshl_b32 s7, s3, 10")
a(f"s_add_u32 s7, s7, {YP}")
a("v_lshl_add_u32 v46, v1, 4, s7")
a("s_lshl_b32 s7, s3, 7")
a("v_lshl_add_u32 v47, v2, 1, s7")
a("v_lshl_add_u32 v41, v43, 3, s7")
a("v_bfe_u32 v60, v1, 4, 1")
a("v_lshlrev_b32 v60, 1, v60")
a("v_lshrrev_b32 v7, 5, v1")
a("v_add_u32 v60, v60, v7")
a("v_lshl_add_u32 v60, v44, 3, v60")
a("s_lshl_b32 s7, s3, 2")
a("v_lshl_add_u32 v60, v60, 5, s7")
a("v_lshlrev_b32 v61, 5, v45")
a("s_mul_i32 s7, s57, 1792")
a("s_lshl_b32 s51, s3, 8")
a("s_add_u32 s7, s7, s51")
a(f"s_add_u32 s7, s7, {ZP}")
a("v_lshl_add_u32 v62, v2, 2, s7")
a("s_lshl_b32 s7, s3, 3")
a("v_mov_b32 v63, s7")
a("v_mov_b32 v59, 0")
a("v_mov_b32 v50, 0x3f803f80")
a(f"v_add_u32 v58, {L_C}, v60")
a(f"v_add_u32 v60, {L_Z}, v60")
pad("ffn2", over=True)
a("s_waitcnt vmcnt(6)")
perm_pair(8, 12, R(64, 8))
perm_pair(16, 20, R(72, 8))
dots16(R(64, 8), R(72, 8), "v50", "v50", R(100, 8))
reduce8_hi(R(100, 8), None, full_row=True)
a("ds_write2_b32 v58, v100, v104 offset0:0 offset1:32")
a("s_waitcnt vmcnt(0) lgkmcnt(0)")
a("s_barrier")
ts(9)
a(f"ds_read_b128 v[100:103], v61 offset:{L_C}")
a(f"ds_read_b128 v[104:107], v61 offset:{L_C+16}")
perm_pair(24, 28, R(80, 8))
perm_pair(32, 36, R(88, 8))
a("v_lshlrev_b32 v40, 16, v40")
a("v_lshlrev_b32 v42, 16, v42")
a("s_waitcnt lgkmcnt(0)")
a("v_add_f32 v100, v100, v101")
a("v_add_f32 v102, v102, v103")
a("v_add_f32 v104, v104, v105")
a("v_add_f32 v100, v100, v102")
a("v_add_f32 v104, v104, v106")
a("v_add_f32 v57, v100, v104")
pad("ffn3", over=True)
a("s_mov_b32 s36, 0")
a("s_mov_b32 s37, 0x80000000")
a(f"v_mov_b32 v56, {f32(1.0/3)}")
ts(10)
poll("yp", [f"global_load_dwordx4 v[96:99], v46, {WS} sc1"], [chk_sent4(96, "v48")])
ts(11)
for k in range(4):
    a(f"v_lshlrev_b32 v{104+2*k}, 16, v{96+k}")
    a(f"v_and_b32 v{105+2*k}, {MHI}, v{96+k}")
reduce8_hi(R(104, 8), 52)
bf16r("v52")
a("v_add_f32 v52, v52, v40")
a("v_cvt_pk_bf16_f32 v52, v52, v52")
a(f"ds_write_b16 v47, v52 offset:{L_H}")
a(f"ds_read_b64 v[50:51], v41 offset:{L_H}")
a(f"v_and_b32 v52, {MHI}, v52")
a("v_mul_f32 v53, v52, v52")
wave_sum2("v52", "v53", None, None)
a("s_mov_b64 exec, s[36:37]")
a(f"ds_write_b64 v63, v[52:53] offset:{L_ST}")
a("s_mov_b64 exec, -1")
a("s_waitcnt lgkmcnt(1)")
dots16(R(64, 8), R(72, 8), "v50", "v51", R(100, 8))
reduce8_hi(R(100, 8), None, full_row=True)
a("ds_write2_b32 v60, v100, v104 offset0:0 offset1:32")
a("s_waitcnt lgkmcnt(0)")
a("s_barrier")
ts(12)
a(f"ds_read_b128 v[108:111], v59 offset:{L_ST}")
a(f"ds_read_b128 v[112:115], v59 offset:{L_ST+16}")
a(f"ds_read_b128 v[116:119], v59 offset:{L_ST+32}")
a(f"ds_read_b64 v[120:121], v59 offset:{L_ST+48}")
a(f"ds_read_b128 v[100:103], v61 offset:{L_Z}")
a(f"ds_read_b128 v[104:107], v61 offset:{L_Z+16}")
a(f"s_mov_b32 s7, {f32(-LOG2E)}")
pad("ffn4", over=True)
a("s_waitcnt lgkmcnt(0)" if DEBUG else "s_waitcnt lgkmcnt(2)")
for (x, y) in ((108, 110), (112, 114), (116, 118), (108, 112), (116, 120), (108, 116)):
    a(f"v_add_f32 v{x}, v{x}, v{y}")
    a(f"v_add_f32 v{x+1}, v{x+1}, v{y+1}")
a("s_waitcnt lgkmcnt(0)")
a("v_add_f32 v100, v100, v101")
a("v_add_f32 v102, v102, v103")
a("v_add_f32 v104, v104, v105")
a("v_add_f32 v100, v100, v102")
a("v_add_f32 v104, v104, v106")
a("v_add_f32 v100, v100, v104")
ln_finish("v108", "v109", "v52", "v53", "v54")
a("v_fma_f32 v100, -v52, v57, v100")
a("v_mul_f32 v100, v100, v53")
bf16r("v100")
a("v_add_f32 v100, v100, v42")
bf16r("v100")
a("v_mul_f32 v101, s7, abs(v100)")
a("v_exp_f32 v101, v101")
a("v_max_f32 v107, 0, v100")
bf16r("v101")
a("v_add_f32 v102, 1.0, v101")
a("v_log_f32 v102, v102")
a("v_fma_f32 v103, v101, v56, -0.5")
a("v_fma_f32 v103, v101, v103, 1.0")
a("v_mul_f32 v103, v101, v103")
a(f"v_cmp_gt_f32 vcc, {f32(2.0**-6)}, v101")
a(f"v_mul_f32 v102, {f32(math.log(2))}, v102")
a("v_cndmask_b32 v102, v102, v103, vcc")
bf16r("v102")
a("v_add_f32 v102, v102, v107")
bf16r("v102")
a(f"v_mul_f32 v103, {f32(-2*LOG2E)}, v102")
a("v_exp_f32 v103, v103")
a("v_mul_f32 v105, v102, v102")
a(f"v_cmp_gt_f32 vcc, {f32(2.0**-5)}, v102")
a("v_add_f32 v106, 1.0, v103")
a("v_sub_f32 v103, 1.0, v103")
a("v_rcp_f32 v106, v106")
a("v_mul_f32 v105, v105, v56")
a("v_fma_f32 v105, -v105, v102, v102")
a("v_mul_f32 v103, v103, v106")
a("v_cndmask_b32 v103, v103, v105, vcc")
bf16r("v103")
a("v_mul_f32 v100, v100, v103")
a(f"v_mov_b32_dpp v101, v100 quad_perm:[0,0,2,2] {DPPM}")
a(f"v_mov_b32_dpp v102, v100 quad_perm:[1,1,3,3] {DPPM}")
a("v_cvt_pk_bf16_f32 v101, v101, v102")
a(f"v_mov_b32_dpp v50, v101 quad_perm:[0,0,0,0] {DPPM}")
a(f"v_mov_b32_dpp v51, v101 quad_perm:[2,2,2,2] {DPPM}")
pad("ffn5", over=True)
dots16(R(80, 8), R(88, 8), "v50", "v51", R(100, 8))
reduce8_hi(R(100, 8), 52)
a(f"global_store_dword v62, v52, {WS} sc1")
ts(13)
end_wave()

pad("fin")
a("L_final:")
a("v_min_u32 v5, 55, v1")
a("v_mul_u32_u24 v5, 1792, v5")
a("s_lshl_b32 s7, s57, 5")
a(f"s_add_u32 s7, s7, {ZP}")
a("v_add_u32 v5, s7, v5")
a("v_and_b32 v6, 7, v2")
a("s_lshl_b32 s7, s57, 3")
a("v_add_u32 v6, s7, v6")
a("v_lshlrev_b32 v6, 1, v6")
a("s_mov_b32 s36, 0x01010101")
a("s_mov_b32 s37, 0x01010101")
a("v_min_u32 v7, 55, v1")
a("v_lshlrev_b32 v7, 7, v7")
a(f"v_add_u32 v7, {RDY + 7*1024}, v7")
poll("rd", [f"global_load_dword v8, v7, {WS} sc1"], [chk_tag([8], None)])
a("s_barrier")
a("s_barrier")
a(f"ds_read_u16 v50, v6 offset:{L_H}")
ts(12)
poll("fin", [f"global_load_dwordx4 v[100:103], v5, {WS} sc1", f"global_load_dwordx4 v[104:107], v5, {WS} offset:16 sc1"],
     [chk_sent4(100, "v48"), chk_sent4(104, "v49")])
ts(13)
a("v_cmp_gt_u32 vcc, 56, v1")
a("s_waitcnt lgkmcnt(0)")
a("v_lshlrev_b32 v50, 16, v50")
for d in range(8): a(f"v_cndmask_b32 v{100+d}, 0, v{100+d}, vcc")
reduce8_hi(R(100, 8), 52)
xlane("v_add_f32", "v52", None, ["q1", "q2", "hm"])
bf16r("v52")
a("v_add_f32 v52, v52, v50")
a("v_cvt_pk_bf16_f32 v52, v52, v52")
a("s_mov_b64 exec, s[36:37]")
a(f"global_store_short v6, v52, {OUT}")
a("s_cmp_lg_u32 s57, 0")
a("s_cbranch_scc1 L_fin_end")
a("s_mov_b64 exec, 1")
a("v_mov_b32 v5, 0")
a("v_mov_b32 v6, s6")
a(f"global_store_dword v5, v6, {WS} sc1")
a("L_fin_end:")
a("s_mov_b64 exec, -1")
ts(14)
end_wave()

if DEBUG:
    a("L_dump:")
    a("s_waitcnt lgkmcnt(0)")
    a("s_mov_b64 exec, 1")
    if DIAG:
        a(f"s_cmp_eq_u32 s2, {DIAG[0]}")
        a("s_cbranch_scc0 L_end")
        a(f"s_cmp_eq_u32 s3, {DIAG[1]}")
        a("s_cbranch_scc0 L_end")
        a(f"s_sub_u32 s7, s{64+2*DIAG[2]}, s64")
        a(f"s_mul_i32 s7, s7, {DIAG[3]}")
        a("s_min_u32 s7, s7, 20000")
        a("s_add_u32 s7, s7, 3000")
        a("s_mov_b32 s38, 100000")
        a("L_diag:")
        a("s_memrealtime s[60:61]")
        a("s_waitcnt lgkmcnt(0)")
        a("s_sub_u32 s51, s60, s64")
        a("s_cmp_ge_u32 s51, s7")
        a("s_cbranch_scc1 L_end")
        a("s_sub_u32 s38, s38, 1")
        a("s_cmp_eq_u32 s38, 0")
        a("s_cbranch_scc0 L_diag")
    elif HDBG:
        a("s_cmp_lt_u32 s2, 8")
        a("s_cselect_b32 s7, 0, 1")
        a("s_or_b32 s7, s7, s3")
        a("s_cmp_eq_u32 s7, 0")
        a("s_cbranch_scc0 L_dump_k")
        a("s_lshl_b32 s7, s2, 2")
        a("v_mov_b32 v5, s7")
        a("v_mov_b32 v6, s64")
        a(f"global_store_dword v5, v6, {DBG}")
        a("s_endpgm")
        a("L_dump_k:")
        a(f"s_cmp_eq_u32 s5, {15 if IL else 23}")
        a("s_cbranch_scc0 L_end")
        a("s_cmp_eq_u32 s3, 7")
        a("s_cbranch_scc0 L_end")
        a("s_lshl_b32 s7, s4, 2")
        a("v_mov_b32 v5, s7")
        a(f"v_mov_b32 v6, s{64+30}")
        a(f"global_store_dword v5, v6, {DBG} offset:32")
    else:
        a("s_lshl_b32 s7, s2, 4")
        a("s_add_u32 s7, s7, s3")
        a("s_lshl_b32 s7, s7, 6")
        a(f"s_add_u32 s7, s7, {TS}")
        a("v_mov_b32 v5, s7")
        for k in ((0, GSTAT[0]) if GSTAT else range(16)):
            a(f"v_mov_b32 v6, s{64+2*k}")
            a(f"global_store_dword v5, v6, {WS} offset:{4*k}{' sc1' if GSTAT else ''}")
        if GSTAT:
            a("s_cmp_eq_u32 s2, 248")
            a("s_cbranch_scc0 L_end")
            a("s_cmp_eq_u32 s3, 5")
            a("s_cbranch_scc0 L_end")
            a("s_mov_b64 exec, -1")
            a("s_mov_b32 s38, 100000")
            a("L_g1:")
            a("s_memrealtime s[60:61]")
            a("s_waitcnt lgkmcnt(0)")
            a("s_sub_u32 s51, s60, s64")
            a("s_cmp_ge_u32 s51, 2000")
            a("s_cbranch_scc1 L_g2")
            a("s_sub_u32 s38, s38, 1")
            a("s_cmp_eq_u32 s38, 0")
            a("s_cbranch_scc0 L_g1")
            a("L_g2:")
            a("v_mov_b32 v20, 0x7fffffff")
            a("v_mov_b32 v21, 0x80000000")
            a("v_and_b32 v22, 15, v1")
            a(f"v_cmp_le_u32 vcc, {GSTAT[1]}, v22")
            a(f"v_cmp_gt_u32 s[46:47], {GSTAT[2]}, v22")
            a("s_and_b64 s[46:47], s[46:47], vcc")
            a("v_cmp_gt_u32 s[48:49], 12, v22")
            a("s_mov_b32 s52, 0")
            a("L_g3:")
            a("s_lshl_b32 s7, s52, 12")
            a(f"s_add_u32 s7, s7, {TS}")
            a("v_lshl_add_u32 v23, v1, 6, s7")
            a(f"global_load_dword v24, v23, {WS} sc1")
            a(f"global_load_dword v25, v23, {WS} offset:{4*GSTAT[0]} sc1")
            a("s_waitcnt vmcnt(0)")
            a("v_subrev_u32 v24, s64, v24")
            a("v_cmp_eq_u32 vcc, 0, v25")
            a("v_subrev_u32 v25, s64, v25")
            a("v_cndmask_b32 v25, v25, v21, vcc")
            a("v_cndmask_b32 v25, v21, v25, s[46:47]")
            a("v_cndmask_b32 v24, v20, v24, s[48:49]")
            if GSTAT[3] != 2:
                a("s_bitcmp1_b32 s52, 1")
                a(f"s_cbranch_scc{1 - GSTAT[3]} L_g4")
            a("v_max_i32 v21, v21, v25")
            a("L_g4:")
            a("v_min_i32 v20, v20, v24")
            a("s_add_u32 s52, s52, 1")
            a("s_cmp_lt_u32 s52, 64")
            a("s_cbranch_scc1 L_g3")
            xlane("v_max_i32", "v21", "v26", ["q1", "q2", "hm", "r8", "p16", "p32"])
            xlane("v_min_i32", "v20", "v26", ["q1", "q2", "hm", "r8", "p16", "p32"])
            a("v_sub_u32 v21, v21, v20")
            a("v_readfirstlane_b32 s7, v21")
            a("v_readfirstlane_b32 s53, v20")
            a("s_mul_i32 s7, s7, 4")
            a("s_min_u32 s7, s7, 20000")
            a("s_add_u32 s7, s7, 6000")
            a("s_add_u32 s7, s7, s53")
            a("s_mov_b32 s38, 100000")
            a("L_g5:")
            a("s_memrealtime s[60:61]")
            a("s_waitcnt lgkmcnt(0)")
            a("s_sub_u32 s51, s60, s64")
            a("s_cmp_ge_u32 s51, s7")
            a("s_cbranch_scc1 L_end")
            a("s_sub_u32 s38, s38, 1")
            a("s_cmp_eq_u32 s38, 0")
            a("s_cbranch_scc0 L_g5")
a("L_end:")
a("s_endpgm")
a("L_codeend:")
a.raw(f'''.section .rodata,"a"
.p2align 6
.amdhsa_kernel {NAME}_kernel
  .amdhsa_next_free_vgpr 168
  .amdhsa_next_free_sgpr 96
  .amdhsa_accum_offset 168
  .amdhsa_group_segment_fixed_size 0
  .amdhsa_kernarg_size 96
  .amdhsa_user_sgpr_count 2
  .amdhsa_user_sgpr_kernarg_segment_ptr 1
  .amdhsa_system_sgpr_workgroup_id_x 1
  .amdhsa_float_denorm_mode_32 3
.end_amdhsa_kernel''')
open(OUTP, "w").write(a.text())
print("nops inserted:", a.nops, "lines:", len(a.lines))
```

```python
import sys, struct, math
sys.path.insert(0, "gen")
from asmlib import Asm

NAME = "sequential_preLN__sliding_block_cached__dense_activation_mish__decode"
opts = dict(x.split("=") for x in sys.argv[2:])
OUTP = sys.argv[1]
DEBUG = int(opts.get("dbg", 0))
HDBG = int(opts.get("hdbg", 0))
if HDBG: DEBUG = 1
NT = " nt" if int(opts.get("nt", 0)) else ""
NTW = " nt" if int(opts.get("ntw", 0)) else ""
KD = int(opts.get("kd", 4))
NTHR = int(opts.get("nthr", 12))
SLEEP = int(opts.get("sleep", 0))
KD0 = int(opts.get("kd0", 2))
RGATE = int(opts.get("rgate", 1))
QWAIT = int(opts.get("qwait", 1))
SPIN = 100000

def f32(x): return "0x%08x" % struct.unpack("<I", struct.pack("<f", x))[0]
LOG2E = math.log2(math.e)

RDY = 0x50000; RDA = 0x58000; QG = 0x10000; LSE = 0x40000; OP = 0x80000; YP = 0xC0000; ZP = 0xD0000; TS = 0x400000; FO = 0x100000
L_S1 = 0x000; L_FL = 0x800; L_Q = 0x900; L_SC = 0xD00; L_RED = 0x1100; L_ST = 0x1900; L_H = 0x1A00; L_Z = 0x2100; L_O = 0x2500
L_P = 0x2D00; L_C = 0x2F00
L_W = 0x4000; L_W2 = 0xB000
LDS_BYTES = 0x14000
IL = int(opts.get("il", 1))
FGATE = int(opts.get("fgate", 100))
X, K, V, WQ, WO, W1, B1, W2, OUT, DBG, WS = "s[8:9]", "s[10:11]", "s[12:13]", "s[14:15]", "s[16:17]", "s[20:21]", "s[22:23]", "s[24:25]", "s[26:27]", "s[28:29]", "s[30:31]"
SEL_LO, SEL_HI, MHI = "s40", "s41", "s42"
R = lambda a_, n: list(range(a_, a_ + n))

a = Asm()
uid = [0]
def lab(p):
    uid[0] += 1
    return f"L_{p}_{uid[0]}"

DIAG = [int(x) for x in opts["diag"].split(",")] if "diag" in opts else None
if DIAG: DEBUG = 1
GSTAT = [int(x) for x in opts["gstat"].split(",")] if "gstat" in opts else None
if GSTAT: DEBUG = 1
def ts(k):
    if DIAG and k not in (0, DIAG[2]): return
    if GSTAT and k not in (0, GSTAT[0]): return
    if HDBG and k not in (0, 15): return
    if DEBUG: a(f"s_memrealtime s[{64+2*k}:{65+2*k}]")

def end_wave():
    if DEBUG:
        ts(15)
        a("s_branch L_dump")
    else:
        a("s_endpgm")
    a.flush_hist()

def sleep():
    if SLEEP: a(f"s_sleep {SLEEP}")

DPPM = "row_mask:0xf bank_mask:0xf"
def wave_sum2(x, y, sx, sy):
    for m in ("quad_perm:[1,0,3,2]", "quad_perm:[2,3,0,1]", "row_half_mirror", "row_mirror"):
        a(f"v_add_f32_dpp {x}, {x}, {x} {m} {DPPM}")
        a(f"v_add_f32_dpp {y}, {y}, {y} {m} {DPPM}")
    a(f"v_add_f32_dpp {x}, {x}, {x} row_bcast:15 row_mask:0xa bank_mask:0xf")
    a(f"v_add_f32_dpp {y}, {y}, {y} row_bcast:15 row_mask:0xa bank_mask:0xf")
    a(f"v_add_f32_dpp {x}, {x}, {x} row_bcast:31 row_mask:0xc bank_mask:0xf")
    a(f"v_add_f32_dpp {y}, {y}, {y} row_bcast:31 row_mask:0xc bank_mask:0xf")
    if sx:
        a(f"v_readlane_b32 {sx}, {x}, 63")
        a(f"v_readlane_b32 {sy}, {y}, 63")

def bf16r(x):
    a(f"v_cvt_pk_bf16_f32 {x}, {x}, {x}")
    a(f"v_and_b32 {x}, {MHI}, {x}")

def ln_finish(vsum, vsq, vm, vr, t):
    a(f"v_mov_b32 {t}, {f32(1.0/448)}")
    a(f"v_mul_f32 {vm}, {vsum}, {t}")
    a(f"v_mul_f32 {vr}, {vsq}, {t}")
    a(f"v_fma_f32 {vr}, -{vm}, {vm}, {vr}")
    a(f"v_max_f32 {vr}, 0, {vr}")
    a(f"v_cvt_pk_bf16_f32 {t}, {vm}, {vr}")
    a(f"v_lshlrev_b32 {vm}, 16, {t}")
    a(f"v_and_b32 {vr}, {MHI}, {t}")
    a(f"v_add_f32 {vr}, {f32(1e-5)}, {vr}")
    bf16r(vr)
    a(f"v_sqrt_f32 {vr}, {vr}")
    bf16r(vr)
    a(f"v_rcp_f32 {vr}, {vr}")

def ln_apply(lo, hi, vm, vr, dst):
    a(f"v_sub_f32 {lo}, {lo}, {vm}")
    a(f"v_sub_f32 {hi}, {hi}, {vm}")
    a(f"v_cvt_pk_bf16_f32 {dst}, {lo}, {hi}")
    a(f"v_lshlrev_b32 {lo}, 16, {dst}")
    a(f"v_and_b32 {hi}, {MHI}, {dst}")
    a(f"v_mul_f32 {lo}, {lo}, {vr}")
    a(f"v_mul_f32 {hi}, {hi}, {vr}")
    a(f"v_cvt_pk_bf16_f32 {dst}, {lo}, {hi}")

def perm_pair(A, B, outs):
    for k in range(4):
        a(f"v_perm_b32 v{outs[2*k]}, v{B+k}, v{A+k}, {SEL_LO}")
        a(f"v_perm_b32 v{outs[2*k+1]}, v{B+k}, v{A+k}, {SEL_HI}")

def reduce8_hi(acc, dst, full_row=False):
    for k in range(4):
        a(f"v_permlane32_swap_b32 v{acc[2*k]}, v{acc[2*k+1]}")
    for k in range(4):
        a(f"v_add_f32 v{acc[2*k]}, v{acc[2*k]}, v{acc[2*k+1]}")
    a(f"v_permlane16_swap_b32 v{acc[0]}, v{acc[2]}")
    a(f"v_permlane16_swap_b32 v{acc[4]}, v{acc[6]}")
    a(f"v_add_f32 v{acc[0]}, v{acc[0]}, v{acc[2]}")
    a(f"v_add_f32 v{acc[4]}, v{acc[4]}, v{acc[6]}")
    if full_row:
        for m in ("row_ror:4", "row_ror:8"):
            a(f"v_add_f32_dpp v{acc[0]}, v{acc[0]}, v{acc[0]} {m} {DPPM}")
            a(f"v_add_f32_dpp v{acc[4]}, v{acc[4]}, v{acc[4]} {m} {DPPM}")
    else:
        a(f"v_add_f32_dpp v{dst}, v{acc[0]}, v{acc[0]} row_ror:8 row_mask:0xf bank_mask:0x3")
        a(f"v_add_f32_dpp v{dst}, v{acc[4]}, v{acc[4]} row_ror:8 row_mask:0xf bank_mask:0xc")

def dots16(P0, P1, x0, x1, acc):
    for j in range(8):
        a(f"v_dot2_f32_bf16 v{acc[j]}, v{P0[j]}, {x0}, 0")
    for j in range(8):
        a(f"v_dot2_f32_bf16 v{acc[j]}, v{P1[j]}, {x1}, v{acc[j]}")

def spin_head(p):
    lp, dn = lab(p), lab(p + "d")
    a(f"s_mov_b32 s38, {SPIN}")
    a(f"{lp}:")
    return lp, dn

def spin_tail(h, slp=False):
    lp, dn = h
    a(f"s_cbranch_scc1 {dn}")
    if slp: sleep()
    a("s_sub_u32 s38, s38, 1")
    a("s_cmp_eq_u32 s38, 0")
    a(f"s_cbranch_scc0 {lp}")
    a(f"{dn}:")

def xlane(op, x, t, steps):
    for s in steps:
        if s in ("p16", "p32"):
            a(f"v_mov_b32 {t}, {x}")
            a(f"v_permlane{s[1:]}_swap_b32 {x}, {t}")
            a(f"{op} {x}, {x}, {t}")
        else:
            m = {"q3": "quad_perm:[3,2,1,0]", "q1": "quad_perm:[1,0,3,2]", "q2": "quad_perm:[2,3,0,1]", "hm": "row_half_mirror",
                 "r4": "row_ror:4", "r8": "row_ror:8", "rm": "row_mirror"}[s]
            a(f"{op}_dpp {x}, {x}, {x} {m} {DPPM}")

def poll(name, loads, checks, pre=None):
    n = len(loads)
    P = [f"s[{46+2*i}:{47+2*i}]" for i in range(n)]
    for p in P: a(f"s_mov_b64 {p}, -1")
    h = spin_head(name)
    if pre: a(pre)
    for i in range(n):
        sk = lab(name + "s")
        a(f"s_mov_b64 exec, {P[i]}")
        a(f"s_cbranch_execz {sk}")
        a(loads[i])
        a(f"{sk}:")
    a("s_mov_b64 exec, -1")
    a("s_waitcnt vmcnt(0)")
    for i in range(n): checks[i](P[i])
    if n == 1: a(f"s_cmp_eq_u64 {P[0]}, 0")
    else:
        a(f"s_or_b64 s[34:35], {P[0]}, {P[1]}")
        for p in P[2:]: a(f"s_or_b64 s[34:35], s[34:35], {p}")
        a("s_cmp_eq_u64 s[34:35], 0")
    spin_tail(h, True)

def poll2(name, loads, checks, nhook, hook):
    n = len(loads)
    P = [f"s[{76+2*i}:{77+2*i}]" if not DEBUG else f"s[{46+2*i}:{47+2*i}]" for i in range(n)]
    P = [f"s[{46+2*i}:{47+2*i}]" for i in range(n)]
    lp, dn, chk, nh = lab(name), lab(name + "d"), lab(name + "c"), lab(name + "h")
    a(f"s_mov_b32 s38, {SPIN}")
    a("s_mov_b32 s60, 0")
    a(f"s_branch {chk}")
    a(f"{lp}:")
    for i in range(n):
        sk = lab(name + "s")
        a(f"s_mov_b64 exec, {P[i]}")
        a(f"s_cbranch_execz {sk}")
        a(loads[i])
        a(f"{sk}:")
    a("s_mov_b64 exec, -1")
    a(f"{chk}:")
    a("s_waitcnt vmcnt(0)")
    for i in range(nhook, n): checks[i](P[i])
    a("s_cmp_eq_u32 s60, 1")
    a(f"s_cbranch_scc1 {nh}")
    for i in range(nhook): checks[i](P[i])
    a(f"s_or_b64 s[34:35], {P[0]}, {P[1]}")
    for p in P[2:nhook]: a(f"s_or_b64 s[34:35], s[34:35], {p}")
    a("s_cmp_eq_u64 s[34:35], 0")
    a(f"s_cbranch_scc0 L_{name}_again")
    hook()
    a("s_mov_b32 s60, 1")
    a(f"{nh}:")
    a(f"s_or_b64 s[34:35], {P[nhook]}, {P[nhook+1]}")
    a("s_cmp_eq_u64 s[34:35], 0")
    a(f"s_cbranch_scc1 {dn}")
    a(f"L_{name}_again:")
    a("s_sub_u32 s38, s38, 1")
    a("s_cmp_eq_u32 s38, 0")
    a(f"s_cbranch_scc0 {lp}")
    a(f"{dn}:")

def chk_sent4(r, t):
    def f(sp):
        a(f"v_max3_u32 {t}, v{r}, v{r+1}, v{r+2}")
        a(f"v_max_u32 {t}, {t}, v{r+3}")
        a(f"v_cmp_eq_u32 {sp}, -1, {t}")
    return f
def chk_tag(regs, t):
    def f(sp):
        if len(regs) == 1: a(f"v_cmp_ne_u32 {sp}, s6, v{regs[0]}")
        else:
            a(f"v_xor_b32 {t}, v{regs[0]}, v{regs[1]}")
            a(f"v_cmp_ne_u32 {sp}, s6, v{regs[0]}")
            a(f"v_cmp_ne_u32 vcc, 0, {t}")
            a(f"s_or_b64 {sp}, {sp}, vcc")
    return f

def lds_flag_wait(name, off, nwords, extra_reads, expect, zero, tmpbase, ge=False):
    h = spin_head(name)
    for q in range(nwords // 4):
        a(f"ds_read_b128 v[{tmpbase+4*q}:{tmpbase+4*q+3}], {zero} offset:{L_FL+off+16*q}")
    for x in extra_reads: a(x)
    a("s_waitcnt lgkmcnt(0)")
    t = tmpbase
    a(f"v_add3_u32 v{t}, v{t}, v{t+1}, v{t+2}")
    if nwords == 4: a(f"v_add_u32 v{t}, v{t}, v{t+3}")
    else:
        a(f"v_add3_u32 v{t+4}, v{t+4}, v{t+5}, v{t+6}")
        a(f"v_add3_u32 v{t}, v{t}, v{t+3}, v{t+7}")
        a(f"v_add_u32 v{t}, v{t}, v{t+4}")
    a(f"v_cmp_{'gt' if ge else 'ne'}_u32 vcc, {expect}, v{t}")
    a("s_cmp_eq_u64 vcc, 0")
    spin_tail(h)

hdr = open(f"cdna_kernels/{NAME}.s.ref").read().split("; Override launch")[0]
a.raw(hdr.rstrip())
a.raw(f"; @launch grid=(256,1,1) block=(768,1,1) lds={LDS_BYTES}")
a.raw('.amdgcn_target "amdgcn-amd-amdhsa--gfx950"')
a.raw(".text")
a.raw(f".globl {NAME}_kernel\n.p2align 8\n.type {NAME}_kernel,@function\n{NAME}_kernel:")


WARM = int(opts.get("warm", 0))
FAST = int(opts.get("fast", 1)); FASTQ = int(opts.get("fastq", 1))
pads = []
def pad(name, over=False):
    if not WARM: return
    if over: a(f"s_branch L_padskip_{name}")
    a(f"L_pad_{name}:")
    a("s_setpc_b64 s[62:63]")
    if over: a(f"L_padskip_{name}:")
    pads.append(name)
def touch(*names):
    if not WARM: return
    for n in names: a(f"s_call_b64 s[62:63], L_pad_{n}")

N0 = int(opts.get("n0", 6)); S1G = int(opts.get("s1g", 2)); AD = int(opts.get("ad", 16)); VD = int(opts.get("vd", 16)); VN = int(opts.get("vn", 0)); KVW = int(opts.get("kvw", 4))
a("s_cmp_ge_u32 s2, 256")
a("s_cbranch_scc1 L_end")
a("s_load_dwordx16 s[8:23], s[0:1], 0")
a("s_load_dwordx8 s[24:31], s[0:1], 64")
ts(0)
a("v_lshrrev_b32 v2, 6, v0")
a("v_and_b32 v1, 63, v0")
a("s_and_b32 s4, s2, 7")
a("s_lshr_b32 s5, s2, 3")
a("v_readfirstlane_b32 s3, v2")
a("v_lshrrev_b32 v3, 3, v1")
a("v_and_b32 v4, 7, v1")
a("v_mov_b32 v5, 0")
a("v_lshlrev_b32 v6, 2, v1")
a(f"ds_write_b32 v6, v5 offset:{L_FL}")
a("s_lshr_b32 s39, s5, 1")
a("s_and_b32 s33, s5, 1")
a("s_cmp_ge_u32 s3, 4")
a("s_cbranch_scc1 L_hi")
a("s_lshr_b32 s44, s5, 3")
a("s_and_b32 s45, s5, 7")
a("v_min_u32 v6, 55, v1")
a("v_lshlrev_b32 v6, 4, v6")
a("s_lshl_b32 s48, s3, 5")
a("v_lshl_add_u32 v15, v3, 2, s48")
a("v_min_u32 v14, 108, v15")
a("s_mul_i32 s47, s44, 112")
a("v_add_u32 v14, s47, v14")
a("v_lshlrev_b32 v12, 1, v14")
a("s_lshl_b32 s51, s4, 10")
a("s_lshl_b32 s52, s45, 7")
a("s_add_u32 s51, s51, s52")
a("v_lshl_add_u32 v32, v4, 4, s51")
a("v_lshl_add_u32 v32, v14, 13, v32")
a("v_add_u32 v33, 0x2000, v32")
a("v_add_u32 v34, 0x4000, v32")
a("v_add_u32 v35, 0x6000, v32")
a("s_waitcnt lgkmcnt(0)")
a(f"global_load_dwordx4 v[36:39], v6, {X}")
a(f"global_load_dwordx2 v[12:13], v12, {X}")
for i in range(4):
    a(f"global_load_dwordx4 v[{16+4*i}:{19+4*i}], v{32+i}, {WQ}{NTW}")
a("s_barrier")
a("s_branch L_s1")
a.flush_hist()
a("L_hi:")
N1 = int(opts.get("n1", 8)); HQ = int(opts.get("hq", 8));
a("s_lshl_b32 s43, s4, 22")
a("s_lshl_b32 s7, s39, 16")
a("s_add_u32 s43, s43, s7")
a(f"s_add_u32 s43, s43, {6144*512}")
a("s_and_b32 s44, s3, 3")
a("s_lshr_b32 s7, s3, 3")
a("s_cmp_eq_u32 s7, s33")
a("s_cbranch_scc0 L_B_hi")
a("s_lshl_b32 s47, s44, 11")
a("s_add_u32 s46, s43, s47")
a("v_lshlrev_b32 v6, 13, v3")
a("v_lshl_add_u32 v6, v4, 4, v6")
a("v_add_u32 v6, s46, v6")
KA = int(opts.get("ka", 12))
KB = 16 - KA
a(f"s_mul_i32 s7, s33, {KA*128}")
a("v_add_u32 v7, s7, v6")
a("s_waitcnt lgkmcnt(0)")
for i in range(KA):
    if i == min(N0, KB): a("s_barrier")
    if i == KB:
        a("s_cmp_eq_u32 s33, 1")
        a("s_cbranch_scc1 L_A_k1")
    if i >= N0: a(f"s_waitcnt vmcnt({N0-1})")
    a(f"global_load_dwordx4 v[{64+4*i}:{67+4*i}], v7, {K} offset:{i*128}{NT}")
a("s_branch L_A_k1")
a.flush_hist()
a("L_B_hi:")
if int(opts.get("cpf", 1)):
    a("s_getpc_b64 s[36:37]")
    a("L_pc:")
    a("v_and_b32 v5, 255, v0")
    a("v_lshlrev_b32 v5, 7, v5")
    a("v_cmp_gt_u32 vcc, L_codeend-L_pc, v5")
    a("v_cndmask_b32 v5, 0, v5, vcc")
    a("global_load_dword v167, v5, s[36:37]")
if WARM:
    for u_, n_ in enumerate(("s1b", "s1c", "k1", "v2", "bh2", "h1", "wo1", "ffn1")):
        sk = lab("et")
        a(f"s_cmp_eq_u32 s3, {11-u_}")
        a(f"s_cbranch_scc0 {sk}")
        touch(n_)
        a(f"{sk}:")
a("s_waitcnt lgkmcnt(0)")
a("s_barrier")
if int(opts.get("tw", 1)):
    a("s_mul_i32 s7, s4, 458752")
    a("s_load_dword s46, s[16:17], s7")
    a("s_add_u32 s7, s7, 458748")
    a("s_load_dword s47, s[16:17], s7")
    a("s_load_dword s48, s[20:21], 0")
    a("s_mov_b32 s7, 1605628")
    a("s_load_dword s49, s[20:21], s7")
    a("s_mul_i32 s7, s4, 200704")
    a("s_load_dword s50, s[24:25], s7")
    a("s_add_u32 s7, s7, 200700")
    a("s_load_dword s51, s[24:25], s7")
    a("s_load_dword s52, s[22:23], 0")
    a("s_load_dword s53, s[26:27], 0")
    a("s_load_dword s54, s[12:13], s43")
    a("s_waitcnt lgkmcnt(0)")
a("s_cmp_eq_u32 s33, 1")
a("s_cbranch_scc0 L_A_v")
a("s_branch L_B_hi2")
a.flush_hist()
a("L_s1:")
if DEBUG:
    for k in range(1, 16): a(f"s_mov_b64 s[{64+2*k}:{65+2*k}], 0")
ts(1)
a(f"s_mov_b32 {SEL_LO}, 0x05040100")
a(f"s_mov_b32 {SEL_HI}, 0x07060302")
a(f"s_mov_b32 {MHI}, 0xffff0000")
a("v_lshlrev_b32 v2, 3, v4")
a("v_bfe_u32 v5, v1, 3, 1")
a("v_lshl_add_u32 v2, v5, 2, v2")
a("v_bfe_u32 v5, v1, 4, 1")
a("v_lshl_add_u32 v2, v5, 1, v2")
a("v_lshrrev_b32 v5, 5, v1")
a("v_add_u32 v2, v2, v5")
a("s_lshl_b32 s7, s3, 2")
a("v_mov_b32 v10, s7")
a("v_mov_b32 v11, 1")
a("v_cmp_gt_u32 vcc, 112, v15")
a("s_mov_b64 s[34:35], vcc")
a("s_cmp_lg_u32 s3, 3")
a("s_cbranch_scc1 L_s1_noep")
a(f"s_load_dword s6, {WS}, 0")
a("L_s1_noep:")
a("v_cmp_gt_u32 vcc, 56, v1")
a("s_waitcnt vmcnt(5)")
for k in range(4):
    a(f"v_lshlrev_b32 v{40+2*k}, 16, v{36+k}")
    a(f"v_and_b32 v{41+2*k}, {MHI}, v{36+k}")
a("v_add_f32 v48, v40, v41")
a("v_mul_f32 v49, v40, v40")
a("v_add_f32 v50, v42, v43")
a("v_mul_f32 v51, v42, v42")
a("v_fmac_f32 v49, v41, v41")
a("v_fmac_f32 v51, v43, v43")
a("v_add_f32 v48, v48, v44")
a("v_add_f32 v50, v50, v46")
a("v_fmac_f32 v49, v44, v44")
a("v_fmac_f32 v51, v46, v46")
a("v_add_f32 v48, v48, v45")
a("v_add_f32 v50, v50, v47")
a("v_fmac_f32 v49, v45, v45")
a("v_fmac_f32 v51, v47, v47")
a("v_add_f32 v48, v48, v50")
a("v_add_f32 v49, v49, v51")
a("v_cndmask_b32 v48, 0, v48, vcc")
a("v_cndmask_b32 v49, 0, v49, vcc")
wave_sum2("v48", "v49", "s54", "s55")
ln_finish("s54", "s55", "v50", "v51", "v52")
pad("s1b", over=True)
a("s_waitcnt vmcnt(4)")
a("v_lshlrev_b32 v40, 16, v12")
a(f"v_and_b32 v41, {MHI}, v12")
a("v_lshlrev_b32 v42, 16, v13")
a(f"v_and_b32 v43, {MHI}, v13")
for k in range(4): a(f"v_sub_f32 v{40+k}, v{40+k}, v50")
a("v_cvt_pk_bf16_f32 v12, v40, v41")
a("v_cvt_pk_bf16_f32 v13, v42, v43")
a("v_lshlrev_b32 v40, 16, v12")
a(f"v_and_b32 v41, {MHI}, v12")
a("v_lshlrev_b32 v42, 16, v13")
a(f"v_and_b32 v43, {MHI}, v13")
for k in range(4): a(f"v_mul_f32 v{40+k}, v{40+k}, v51")
a("v_cvt_pk_bf16_f32 v12, v40, v41")
a("v_cvt_pk_bf16_f32 v13, v42, v43")
a("v_cndmask_b32 v12, 0, v12, s[34:35]")
a("v_cndmask_b32 v13, 0, v13, s[34:35]")
a("v_lshlrev_b32 v5, 2, v0")
a("v_mov_b32 v6, 0")
a("s_waitcnt vmcnt(2)")
perm_pair(16, 20, R(40, 8))
for j in range(8): a(f"v_dot2_f32_bf16 v{56+j}, v{40+j}, v12, 0")
a("s_waitcnt vmcnt(0)")
ts(2)
perm_pair(24, 28, R(48, 8))
for j in range(8): a(f"v_dot2_f32_bf16 v{56+j}, v{48+j}, v13, v{56+j}")
reduce8_hi(R(56, 8), 40)
a("s_cmp_eq_u32 s3, 3")
a("s_cbranch_scc1 L_s1_coll")
a(f"ds_write_b32 v5, v40 offset:{L_S1}")
a(f"ds_write_b32 v10, v11 offset:{L_FL}")
a(f"s_load_dword s6, {WS}, 0")
a("s_branch L_s1_done")
a.flush_hist()
pad("s1c")
a("L_s1_coll:")
a("v_lshlrev_b32 v5, 2, v1")
a("s_lshl_b32 s7, s4, 14")
a("s_lshl_b32 s51, s45, 11")
a("s_add_u32 s7, s7, s51")
a("s_lshl_b32 s51, s44, 9")
a("s_add_u32 s7, s7, s51")
a(f"s_add_u32 s7, s7, {QG}")
a("v_lshl_add_u32 v8, v2, 3, s7")
lds_flag_wait("s1", 0, 4, [f"ds_read_b32 v{41+w}, v5 offset:{L_S1+256*w}" for w in range(3)], 3, "v6", 56)
a("s_add_u32 s7, s6, 1")
a("v_add_f32 v40, v40, v41")
a("v_add_f32 v42, v42, v43")
a("v_mov_b32 v41, s7")
a("v_add_f32 v40, v40, v42")
if FASTQ:
    a(f"v_add_u32 v9, {FO}, v8")
    a(f"global_store_dwordx2 v9, v[40:41], {WS}")
a(f"global_store_dwordx2 v8, v[40:41], {WS} sc1")
a(f"ds_write_b32 v6, v11 offset:{L_FL+0x60}")
if opts.get("ack"):
    ts(3)
    a("s_waitcnt vmcnt(1)")
    ts(10)
    a("s_waitcnt vmcnt(0)")
    ts(11)
    a("s_branch L_s1_done2")
a("L_s1_done:")
ts(3)
a("L_s1_done2:")
a("s_cmp_eq_u32 s33, 1")
a("s_cbranch_scc1 L_B_go")

a("s_setprio 3")
a("s_lshl_b32 s7, s4, 14")
a("s_lshl_b32 s51, s3, 12")
a("s_add_u32 s7, s7, s51")
a(f"s_add_u32 s7, s7, {QG}")
a("v_lshl_add_u32 v9, v1, 4, s7")
a("s_lshl_b32 s7, s3, 8")
a("v_lshl_add_u32 v8, v1, 2, s7")
a("s_cmp_lg_u32 s3, 0")
a("s_cbranch_scc1 L_A_h2")
a("s_lshl_b32 s7, s4, 14")
a("s_lshl_b32 s51, s39, 9")
a("s_add_u32 s7, s7, s51")
a(f"s_add_u32 s7, s7, {OP}")
a("v_lshrrev_b32 v5, 5, v1")
a("v_lshlrev_b32 v5, 13, v5")
a("v_and_b32 v7, 31, v1")
a("v_lshl_add_u32 v5, v7, 4, v5")
a("v_add_u32 v5, s7, v5")
a("v_mov_b32 v12, -1\nv_mov_b32 v13, -1\nv_mov_b32 v14, -1\nv_mov_b32 v15, -1")
a(f"global_store_dwordx4 v5, v[12:15], {WS} sc1")
if FAST:
    a("s_lshl_b32 s7, s4, 14")
    a("s_lshl_b32 s51, s39, 4")
    a("s_add_u32 s7, s7, s51")
    a(f"s_add_u32 s7, s7, {FO+OP}")
    a("v_lshl_add_u32 v5, v1, 8, s7")
    a(f"global_store_dwordx4 v5, v[12:15], {WS}")
a("s_getreg_b32 s52, hwreg(HW_REG_XCC_ID)")
a("s_lshl_b32 s7, s4, 11")
a("s_lshl_b32 s51, s39, 7")
a("s_add_u32 s7, s7, s51")
a(f"s_add_u32 s7, s7, {RDA}")
a("v_mov_b32 v5, s7")
a("s_waitcnt vmcnt(0) lgkmcnt(0)")
a("s_add_u32 s7, s6, 1")
a("v_mov_b32 v12, s7")
a("v_mov_b32 v13, s52")
a("s_mov_b64 exec, 1")
a(f"global_store_dwordx2 v5, v[12:13], {WS} sc1")
a("s_mov_b64 exec, -1")
a("L_A_h2:")
if int(opts.get("hg", 1)): lds_flag_wait("hg", 0x80, 4, [], 4, "v6", 56)
a("s_waitcnt lgkmcnt(0)")
a("s_add_u32 s6, s6, 1")
ts(8)
poll("qp", [f"global_load_dwordx4 v[{48+4*i}:{51+4*i}], v9, {WS} offset:{i*1024} sc1" for i in range(4)],
     [chk_tag([49+4*i, 51+4*i], "v5") for i in range(4)], pre=(f"v_xor_b32 v9, {FO}, v9" if FASTQ else None))
ts(4)
a("v_add_f32 v48, v48, v52")
a("v_add_f32 v50, v50, v54")
a("v_add_f32 v56, v56, v60")
a("v_add_f32 v58, v58, v62")
a("v_permlane32_swap_b32 v48, v56")
a("v_permlane32_swap_b32 v50, v58")
a("v_add_f32 v48, v48, v56")
a("v_add_f32 v50, v50, v58")
a("v_cvt_pk_bf16_f32 v48, v48, v50")
a(f"ds_write_b32 v8, v48 offset:{L_Q}")
a(f"ds_write_b32 v10, v11 offset:{L_FL+0x20}")
ts(5)
a("s_cmp_eq_u32 s3, 0")
a("s_cbranch_scc1 L_A_soft")
APF = int(opts.get("apf", 0))
if APF:
    lds_flag_wait("aq", 0x20, 4, [], 4, "v6", 56)
    a("s_mul_i32 s7, s4, 458752")
    a("s_mul_i32 s51, s39, 28672")
    a("s_add_u32 s7, s7, s51")
    a("s_sub_u32 s51, s3, 1")
    a("s_mul_i32 s51, s51, 9216")
    a("s_add_u32 s7, s7, s51")
    a("v_lshl_add_u32 v5, v1, 4, s7")
    a("v_add_u32 v7, 0x1000, v5")
    a("v_add_u32 v8, 0x2000, v5")
    for i in range(10):
        r = (5, 7, 8)[i >> 2]
        a(f"global_load_dwordx4 v[{64+4*i}:{67+4*i}], v{r}, {WO} offset:{(i&3)*1024}{NTW}")
    a(f"ds_write_b32 v10, v11 offset:{L_FL+0x90}")
end_wave()
pad("h1")
a("L_A_soft:")
a("v_lshlrev_b32 v5, 4, v1")
a("v_lshlrev_b32 v7, 3, v1")
a("s_lshl_b32 s7, s4, 11")
a("s_lshl_b32 s51, s39, 7")
a("s_add_u32 s7, s7, s51")
a(f"s_add_u32 s7, s7, {LSE}")
a("v_lshrrev_b32 v12, 5, v1")
a("s_lshl_b32 s51, s4, 8")
a("s_lshl_b32 s52, s39, 3")
a("s_add_u32 s51, s51, s52")
a(f"s_add_u32 s51, s51, {FO+LSE}")
a("v_lshl_add_u32 v13, v12, 7, s51")
a("v_lshl_add_u32 v12, v12, 3, s7")
a("v_mov_b32 v33, s6")
a("s_mov_b32 s34, 1")
a("s_mov_b32 s35, 1")
lds_flag_wait("sc", 0x40, 4, [f"ds_read_b128 v[16:19], v5 offset:{L_SC}"], 4, "v6", 56)
ts(6)
a("v_max3_f32 v32, v16, v17, v18")
a("v_max_f32 v32, v32, v19")
xlane("v_max_f32", "v32", "v34", ["q1", "q2", "hm", "rm", "p16"])
for e in range(4): a(f"v_sub_f32 v{16+e}, v{16+e}, v32")
for e in range(4): a(f"v_exp_f32 v{16+e}, v{16+e}")
a("v_add_f32 v35, v16, v17")
a("v_add_f32 v36, v18, v19")
a("v_add_f32 v35, v35, v36")
xlane("v_add_f32", "v35", "v34", ["q1", "q2", "hm", "rm", "p16"])
a("v_rcp_f32 v36, v35")
a("v_log_f32 v35, v35")
for e in range(4): a(f"v_mul_f32 v{16+e}, v{16+e}, v36")
a("v_cvt_pk_bf16_f32 v16, v16, v17")
a("v_cvt_pk_bf16_f32 v17, v18, v19")
a(f"ds_write_b64 v7, v[16:17] offset:{L_P}")
a(f"ds_write_b32 v6, v11 offset:{L_FL+0x50}")
a("v_add_f32 v32, v32, v35")
a("s_mov_b64 exec, s[34:35]")
if FAST:
    a(f"global_store_dwordx2 v13, v[32:33], {WS}")
a(f"global_store_dwordx2 v12, v[32:33], {WS} sc1")
a("s_mov_b64 exec, -1")
ts(7)
if int(opts.get("fpf", 1)):
    a("s_setprio 0")
    a("s_mul_i32 s7, s39, 28*3584")
    a("s_mul_i32 s51, s4, 448")
    a("s_add_u32 s7, s7, s51")
    a("v_min_u32 v16, 6, v4")
    a("v_min_u32 v17, 6, v3")
    a("v_mul_u32_u24 v17, 3584, v17")
    a("v_lshl_add_u32 v17, v16, 6, v17")
    a("v_add_u32 v17, s7, v17")
    a("s_mul_i32 s7, s4, 200704")
    a("s_mul_i32 s51, s39, 12544")
    a("s_add_u32 s7, s7, s51")
    a("v_min_u32 v18, 48, v1")
    a("v_lshl_add_u32 v18, v18, 6, s7")
    lds_flag_wait("fp", 0xA0, 4, [], 4, "v6", 56)
    for u_ in range(4):
        a(f"global_load_dword v{40+u_}, v17, {W1}{NTW}")
        a(f"global_load_dword v{44+u_}, v18, {W2}{NTW}")
        if u_ < 3:
            a(f"v_add_u32 v17, {7*3584}, v17")
            a("v_add_u32 v18, 3136, v18")
end_wave()

pad("k1")
a("L_A_k1:")
a("s_lshl_b32 s7, s44, 2")
a("v_mov_b32 v45, s7")
a("v_mov_b32 v46, 1")
a("v_mov_b32 v47, 0")
if DEBUG:
    for k in range(1, 16): a(f"s_mov_b64 s[{64+2*k}:{65+2*k}], 0")
a("s_cmp_eq_u32 s33, 1")
a("s_cbranch_scc1 L_B_pf")
KG = int(opts.get("kg", 3))
a(f"s_waitcnt vmcnt({KG})")
ts(1)
a(f"ds_write_b32 v45, v46 offset:{L_FL+0x80}")
for i in range(KA, 16):
    a(f"global_load_dwordx4 v[{64+4*i}:{67+4*i}], v6, {K} offset:{i*128}{NT}")
a(f"ds_write_b32 v45, v46 offset:{L_FL+0x70}")
ts(2)
a("L_A_k2:")
a(f"s_mov_b32 {MHI}, 0xffff0000")
a("s_lshl_b32 s7, s44, 4")
a(f"s_add_u32 s7, s7, {L_SC}")
a("v_lshl_add_u32 v44, v3, 6, s7")
a("v_mov_b32 v47, 0")
a("v_lshlrev_b32 v5, 4, v4")
for i in range(8): a(f"v_mov_b32 v{48+i}, 0")
a(f"s_mov_b32 s7, {f32(0.0625*LOG2E)}")
lds_flag_wait("qx", 0x20, 4,
    [f"ds_read_b128 v[{128+(hh*4+j)*4}:{131+(hh*4+j)*4}], v5 offset:{L_Q + hh*512 + j*128}" for hh in range(2) for j in range(4)],
    4, "v47", 56)
a("s_setprio 2")
ts(4)
for gp in range(2):
    a(f"s_waitcnt vmcnt({8-8*gp})")
    if gp == 1: ts(5)
    for j in range(4):
        for k in range(4):
            for grp in (2*gp, 2*gp+1):
                for hh in range(2):
                    a(f"v_dot2c_f32_bf16 v{48+hh*4+grp}, v{64+(grp*4+j)*4+k}, v{128+(hh*4+j)*4+k}")
pad("k3", over=True)
for m in ("quad_perm:[1,0,3,2]", "quad_perm:[2,3,0,1]", "row_half_mirror"):
    for i in range(8):
        a(f"v_add_f32_dpp v{48+i}, v{48+i}, v{48+i} {m} {DPPM}")
for q in range(4): a(f"v_cvt_pk_bf16_f32 v{56+q}, v{48+2*q}, v{49+2*q}")
for q in range(4):
    a(f"v_lshlrev_b32 v{48+2*q}, 16, v{56+q}")
    a(f"v_and_b32 v{49+2*q}, {MHI}, v{56+q}")
for i in range(8): a(f"v_mul_f32 v{48+i}, s7, v{48+i}")
a("ds_write_b128 v44, v[48:51]")
a("ds_write_b128 v44, v[52:55] offset:512")
a(f"ds_write_b32 v45, v46 offset:{L_FL+0x40}")
ts(6)
if int(opts.get("wpf", 0)):
    a("s_setprio 0")
    a("s_mul_i32 s7, s4, 458752")
    a("s_mul_i32 s51, s39, 28672")
    a("s_add_u32 s7, s7, s51")
    a("s_mul_i32 s51, s44, 7168")
    a("s_add_u32 s7, s7, s51")
    a("v_lshl_add_u32 v5, v1, 4, s7")
    a("v_add_u32 v6, 0x1000, v5")
    for i in range(7):
        a(f"global_load_dwordx4 v[{64+4*i}:{67+4*i}], v{5+(i>>2)}, {WO} offset:{(i&3)*1024}{NTW}")
end_wave()

pad("v2")
a("L_A_v:")
if DEBUG:
    for k in range(1, 16): a(f"s_mov_b64 s[{64+2*k}:{65+2*k}], 0")
a(f"s_mov_b32 {SEL_LO}, 0x05040100")
a(f"s_mov_b32 {SEL_HI}, 0x07060302")
a("s_lshl_b32 s52, s44, 7")
a("s_add_u32 s51, s43, s52")
a("v_bfe_u32 v5, v1, 3, 1")
a("v_lshlrev_b32 v6, 14, v5")
a("v_lshrrev_b32 v10, 4, v1")
a("v_lshl_add_u32 v6, v10, 12, v6")
a("v_lshl_add_u32 v6, v4, 4, v6")
a("v_add_u32 v6, s51, v6")
a("v_add_u32 v7, 0x8000, v6")
a("v_mov_b32 v11, 0")
a("s_lshl_b32 s7, s4, 14")
a("s_lshl_b32 s51, s39, 9")
a("s_add_u32 s7, s7, s51")
a("s_add_u32 s7, s7, s52")
a(f"s_add_u32 s7, s7, {OP}")
a("v_lshlrev_b32 v8, 13, v5")
a("v_lshl_add_u32 v8, v4, 4, v8")
a("v_add_u32 v8, s7, v8")
a("s_lshl_b32 s7, s4, 14")
a("s_lshl_b32 s51, s44, 11")
a("s_add_u32 s7, s7, s51")
a("s_lshl_b32 s51, s39, 4")
a("s_add_u32 s7, s7, s51")
a(f"s_add_u32 s7, s7, {FO+OP}")
a("v_lshlrev_b32 v12, 13, v5")
a("v_lshl_add_u32 v12, v4, 8, v12")
a("v_add_u32 v12, s7, v12")
a("s_lshl_b32 s7, s44, 2")
a("v_mov_b32 v13, s7")
a("v_mov_b32 v14, 1")
a("v_lshrrev_b32 v5, 1, v1")
a("v_xor_b32 v5, v5, v1")
a("v_and_b32 v5, 1, v5")
a("v_lshlrev_b32 v9, 8, v5")
a("v_and_b32 v5, 1, v1")
a("v_lshl_add_u32 v9, v5, 6, v9")
a("v_lshl_add_u32 v9, v10, 4, v9")
if WARM:
    for u_, names in enumerate((("h1",), ("k3",), ("v3",), ("v4",))):
        sk = lab("vt")
        a(f"s_cmp_eq_u32 s44, {u_}")
        a(f"s_cbranch_scc0 {sk}")
        touch(*names)
        a(f"{sk}:")
lds_flag_wait("vg", int(opts.get("vg", 0x20)), 4, [], 3 if opts.get("vg") == "144" else 4, "v11", 32)
ts(1)
def vperm(t):
    if t < 4: perm_pair(40+8*t, 44+8*t, [104+4*j+t for j in range(8)])
    else: perm_pair(40+8*t, 44+8*t, [40+4*j+(t-4) for j in range(8)])
done_t = 0
for i in range(16):
    sg, e = divmod(i, 8)
    known = -1
    if VD <= i < VN:
        a(f"s_waitcnt vmcnt({VD-1})"); known = i - VD
    a(f"global_load_dwordx4 v[{40+4*i}:{43+4*i}], v{6+sg}, {V} offset:{e*512}{NT}")
    while 2*done_t+1 <= known and done_t < 4:
        vperm(done_t); done_t += 1
    if i == 9: pad("v3", over=True)
ts(2)
while done_t < 4:
    a(f"s_waitcnt vmcnt({14-2*done_t})"); vperm(done_t); done_t += 1
PRE = int(opts.get("vpre", 2))
for t in range(4, 4+PRE):
    a(f"s_waitcnt vmcnt({14-2*t})"); vperm(t)
ts(3)
pad("v4", over=True)
lds_flag_wait("pw", 0x50, 4, [f"ds_read_b128 v[16:19], v9 offset:{L_P}", f"ds_read_b128 v[20:23], v9 offset:{L_P+128}"], 1, "v11", 32)
a("s_setprio 3")
ts(6)
for j in range(8):
    a(f"v_mfma_f32_16x16x32_bf16 v[{136+4*j}:{139+4*j}], v[16:19], v[{104+4*j}:{107+4*j}], 0")
for t in range(4+PRE, 8):
    a(f"s_waitcnt vmcnt({14-2*t})")
    if t == 7: ts(7)
    vperm(t)
for j in range(8):
    a(f"v_mfma_f32_16x16x32_bf16 v[{136+4*j}:{139+4*j}], v[20:23], v[{40+4*j}:{43+4*j}], v[{136+4*j}:{139+4*j}]")
for j in range(8):
    d = 136 + 4*j
    a(f"v_add_f32_dpp v{24+j}, v{d+3}, v{d} row_ror:8 row_mask:0xf bank_mask:0x3")
    a(f"v_add_f32_dpp v{24+j}, v{d+2}, v{d+1} row_ror:8 row_mask:0xf bank_mask:0xc")
for t in range(4): a(f"v_cvt_pk_bf16_f32 v{36+t}, v{24+2*t}, v{25+2*t}")
for t in range(4): a(f"v_min_u32 v{36+t}, -2, v{36+t}")
a("s_mov_b64 exec, 0xffff")
if FAST: a(f"global_store_dwordx4 v12, v[36:39], {WS}")
a(f"global_store_dwordx4 v8, v[36:39], {WS} sc1")
a("s_mov_b64 exec, -1")
ts(8)
if opts.get("ack"):
    a("s_waitcnt vmcnt(1)")
    ts(10)
    a("s_waitcnt vmcnt(0)")
    ts(11)
a(f"ds_write_b32 v13, v14 offset:{L_FL+0xA0}")
end_wave()

a("L_B_pf:")
PD = int(opts.get("pd", 4)); PN = int(opts.get("pn", 4)); PW = int(opts.get("pw", 12)); XS = int(opts.get("xs", 0)); WPF2 = int(opts.get("wpf2", 1))
a("s_lshl_b32 s52, s44, 7")
a("s_add_u32 s51, s43, s52")
a("v_bfe_u32 v5, v1, 3, 1")
a("v_lshlrev_b32 v8, 14, v5")
a("v_lshrrev_b32 v10, 4, v1")
a("v_lshl_add_u32 v8, v10, 12, v8")
a("v_lshl_add_u32 v8, v4, 4, v8")
a("v_add_u32 v8, s51, v8")
a("v_add_u32 v9, 0x8000, v8")
for n, i in enumerate(range(XS, 16)):
    if n < PN: a(f"s_waitcnt vmcnt({PD-1})")
    if n == PN and S1G == 2: lds_flag_wait("pg", 0x60, 4, [], 1, "v47", 56)
    a(f"global_load_dwordx4 v[{100+4*n}:{103+4*n}], v{8+(i>>3)}, {V} offset:{(i&7)*512}{NT}")
ts(1)
if PW < 16: a(f"s_waitcnt vmcnt({PW})")
a(f"ds_write_b32 v45, v46 offset:{L_FL+0x70}")
if WPF2:
    a("s_cmp_lt_u32 s39, 7")
    a("s_cbranch_scc1 L_B_pf2")
    a("s_sub_u32 s7, s39, 7")
    a("s_lshl_b32 s7, s7, 2")
    a("s_add_u32 s7, s7, s44")
    a("s_mul_i32 s7, s7, 6400")
    a("s_min_u32 s7, s7, 222976")
    a("s_mul_i32 s51, s4, 458752")
    a("s_add_u32 s7, s7, s51")
    a("s_add_u32 s7, s7, 229376")
    a("v_min_u32 v5, 49, v1")
    a("v_lshl_add_u32 v5, v5, 7, s7")
    a(f"global_load_dword v40, v5, {WO}{NTW}")
    a(f"global_load_dword v41, v5, {WO} offset:64{NTW}")
a(f"s_waitcnt vmcnt({int(opts.get('fw', 0))})")
a(f"ds_write_b32 v45, v46 offset:{L_FL+0xC0}")
a("s_branch L_B_pf3")
a("L_B_pf2:")
a("s_cmp_eq_u32 s3, 8")
a("s_cbranch_scc0 L_B_pf3")
a(f"s_load_dword s6, {WS}, 0")
a("s_lshl_b32 s7, s4, 11")
a(f"s_add_u32 s7, s7, {RDA}")
a("v_and_b32 v60, 15, v1")
a("v_lshl_add_u32 v61, v60, 7, s7")
a("s_getreg_b32 s54, hwreg(HW_REG_XCC_ID)")
a("s_setprio 3")
a("s_waitcnt lgkmcnt(0)")
a("s_add_u32 s6, s6, 1")
poll("ra", [f"global_load_dwordx2 v[62:63], v61, {WS} sc1"], [chk_tag([62], None)])
a("v_cmp_ne_u32 vcc, s54, v63")
a("s_cmp_eq_u64 vcc, 0")
a(f"s_cselect_b32 s7, {2 if FAST else 1}, 1")
a("v_mov_b32 v5, s7")
a(f"ds_write_b32 v47, v5 offset:{L_FL+0xB0}")
a("L_B_pf3:")
ts(2)
end_wave()
pad("bh2")
a("L_B_hi2:")
if DEBUG:
    for k in range(1, 16): a(f"s_mov_b64 s[{64+2*k}:{65+2*k}], 0")
a("s_cmp_lt_u32 s3, 7")
a("s_cbranch_scc1 L_B_join")
a("L_w7:")
a(f"s_load_dword s6, {WS}, 0")
a("v_mov_b32 v12, -1\nv_mov_b32 v13, -1\nv_mov_b32 v14, -1\nv_mov_b32 v15, -1")
a("s_cmp_lt_u32 s39, 14")
a("s_cbranch_scc0 L_B_exit")
a("s_cmp_lt_u32 s39, 7")
a("s_cbranch_scc0 L_w7_a")
a("s_lshl_b32 s7, s39, 3")
a("s_add_u32 s7, s7, s4")
a("s_lshl_b32 s7, s7, 7")
a(f"s_add_u32 s7, s7, {YP}")
a("v_lshl_add_u32 v5, v4, 4, s7")
a("s_mov_b64 exec, 0xff")
a(f"global_store_dwordx4 v5, v[12:15], {WS} sc1")
a("s_mov_b64 exec, -1")
a("s_branch L_w7_b")
a("L_w7_a:")
a("s_mul_i32 s57, s4, 7")
a("s_add_u32 s57, s57, s39")
a("s_sub_u32 s57, s57, 7")
a("s_mul_i32 s7, s57, 896")
a(f"s_add_u32 s7, s7, {ZP}")
a("v_min_u32 v6, 55, v1")
a("v_lshl_add_u32 v5, v6, 4, s7")
a(f"global_store_dwordx4 v5, v[12:15], {WS} sc1")
a("v_mov_b32 v6, 0")
a(f"global_load_ushort v16, v6, {OUT}")
a("L_w7_b:")
a("s_lshl_b32 s7, s39, 3")
a("s_add_u32 s7, s7, s4")
a("s_lshl_b32 s7, s7, 7")
a(f"s_add_u32 s7, s7, {RDY}")
a("v_mov_b32 v5, s7")
a("s_waitcnt vmcnt(0) lgkmcnt(0)")
a("s_add_u32 s7, s6, 1")
a("v_mov_b32 v6, s7")
a("s_mov_b64 exec, 1")
a(f"global_store_dword v5, v6, {WS} sc1")
a("s_mov_b64 exec, -1")
a("L_B_join:")
a(f"s_load_dword s6, {WS}, 0")
a(f"s_mov_b32 {SEL_LO}, 0x05040100")
a(f"s_mov_b32 {SEL_HI}, 0x07060302")
a(f"s_mov_b32 {MHI}, 0xffff0000")
a("v_lshlrev_b32 v2, 3, v4")
a("v_bfe_u32 v5, v1, 3, 1")
a("v_lshl_add_u32 v2, v5, 2, v2")
a("v_bfe_u32 v5, v1, 4, 1")
a("v_lshl_add_u32 v2, v5, 1, v2")
a("v_lshrrev_b32 v5, 5, v1")
a("v_add_u32 v2, v2, v5")
a("L_B_go:")
a("s_cmp_lt_u32 s39, 14")
a("s_cbranch_scc0 L_B_exit")
a("v_mov_b32 v6, 0")
WOG = int(opts.get("wog", 0x80))
a("s_cmp_lt_u32 s39, 7")
a("s_cbranch_scc0 L_B_go_f")
lds_flag_wait("pubw", 0x60, 8, [], 5, "v6", 56)
a("s_add_u32 s6, s6, 1")
a("s_branch L_stage_wo")
a("L_B_go_f:")
lds_flag_wait("pub", 0x60, 8, [], 5, "v6", 56)
a("s_add_u32 s6, s6, 1")
a("s_branch L_stage_ffn")
a("L_B_exit:")
end_wave()
pad("wo1")

a("L_stage_wo:")
ts(8)
a("s_lshl_b32 s7, s4, 9")
a("s_lshl_b32 s51, s3, 6")
a("s_add_u32 s7, s7, s51")
a("s_mul_i32 s7, s7, 896")
a("s_lshl_b32 s51, s39, 7")
a("s_add_u32 s7, s7, s51")
a("v_mul_u32_u24 v5, 896, v3")
a("v_lshl_add_u32 v5, v4, 4, v5")
a("v_add_u32 v5, s7, v5")
WD = int(opts.get("wd", 8))
for i in range(8):
    if i >= WD: a(f"s_waitcnt vmcnt({WD-1})")
    a(f"global_load_dwordx4 v[{8+4*i}:{11+4*i}], v5, {WO}{NTW}")
    if i < 7: a(f"v_add_u32 v5, {8*896}, v5")
a("v_and_b32 v60, 15, v1")
a("s_lshr_b32 s59, s3, 2")
a("s_and_b32 s58, s3, 3")
a("v_lshrrev_b32 v59, 4, v1")
a("s_lshl_b32 s7, s3, 13")
a(f"s_add_u32 s7, s7, {L_W}")
a("v_lshl_add_u32 v40, v1, 4, s7")
a("v_bfe_u32 v5, v1, 2, 2")
a("v_lshl_add_u32 v5, v59, 3, v5")
a("v_lshlrev_b32 v41, 7, v5")
a("v_and_b32 v5, 3, v1")
a("v_lshl_add_u32 v41, v5, 3, v41")
a("v_add_u32 v41, s7, v41")
a("v_bfe_u32 v5, v1, 4, 1")
a("v_lshlrev_b32 v45, 1, v5")
a("v_lshrrev_b32 v5, 5, v1")
a("v_add_u32 v45, v45, v5")
a("v_lshl_add_u32 v45, v45, 4, v60")
a("s_lshl_b32 s7, s3, 8")
a("v_lshl_add_u32 v45, v45, 2, s7")
a("v_and_b32 v5, 31, v1")
a("v_lshlrev_b32 v47, 3, v5")
a("s_lshl_b32 s7, s39, 3")
a("s_add_u32 s7, s7, s4")
a("s_lshl_b32 s7, s7, 7")
a(f"s_add_u32 s7, s7, {YP}")
a("v_lshl_add_u32 v46, v5, 2, s7")
a("s_lshl_b32 s55, s4, 1")
a("s_add_u32 s55, s55, s59")
a("v_mov_b32 v6, 0")
h = spin_head("dec")
a(f"ds_read_b32 v5, v6 offset:{L_FL+0xB0}")
a("s_waitcnt lgkmcnt(0)")
a("v_readfirstlane_b32 s52, v5")
a("s_cmp_lg_u32 s52, 0")
spin_tail(h)
a("s_cmp_eq_u32 s52, 2")
a("s_cbranch_scc1 L_wo_fast")
a("s_lshl_b32 s7, s4, 11")
a("s_lshl_b32 s51, s59, 3")
a("s_add_u32 s7, s7, s51")
a(f"s_add_u32 s7, s7, {LSE}")
a("v_lshl_add_u32 v48, v59, 9, s7")
a("s_movk_i32 s61, 128")
a("s_lshl_b32 s7, s55, 13")
a("s_lshl_b32 s51, s58, 7")
a("s_add_u32 s7, s7, s51")
a(f"s_add_u32 s7, s7, {OP}")
a("v_lshlrev_b32 v43, 9, v60")
a("v_lshl_add_u32 v43, v59, 4, v43")
a("v_add_u32 v43, s7, v43")
a("v_add_u32 v44, 64, v43")
a("s_branch L_wo_go")
a("L_wo_fast:")
a("s_lshl_b32 s7, s55, 7")
a(f"s_add_u32 s7, s7, {FO+LSE}")
a("v_lshl_add_u32 v48, v59, 5, s7")
a("s_movk_i32 s61, 8")
a("s_lshl_b32 s7, s55, 13")
a("s_lshl_b32 s51, s58, 11")
a("s_add_u32 s7, s7, s51")
a(f"s_add_u32 s7, s7, {FO+OP}")
a("v_lshl_add_u32 v43, v1, 4, s7")
a("v_add_u32 v44, 0x400, v43")
a("L_wo_go:")
a("v_add_u32 v49, s61, v48")
a("v_add_u32 v50, s61, v49")
a("v_add_u32 v51, s61, v50")
WL = [f"global_load_dwordx2 v[{96+2*i}:{97+2*i}], v{48+i}, {WS} sc1" for i in range(4)] + \
     [f"global_load_dwordx4 v[104:107], v43, {WS} sc1", f"global_load_dwordx4 v[108:111], v44, {WS} sc1"]
PQ = int(opts.get("pq", 6))
for i in range(8):
    if i == PQ:
        for x in WL: a(x)
    a(f"s_waitcnt vmcnt({7-i + (6 if i >= PQ else 0)})")
    a(f"ds_write_b128 v40, v[{8+4*i}:{11+4*i}] offset:{i*1024}")
if PQ >= 8:
    for x in WL: a(x)
for sg in range(2):
    for t in range(4):
        r = 64 + (sg*4 + t)*4
        a(f"ds_read_b64_tr_b16 v[{r}:{r+1}], v41 offset:{sg*4096 + t*32}")
        a(f"ds_read_b64_tr_b16 v[{r+2}:{r+3}], v41 offset:{sg*4096 + t*32 + 512}")
ts(9)
def alpha():
    a("v_max3_f32 v54, v96, v98, v100")
    a("v_max_f32 v54, v54, v102")
    xlane("v_max_f32", "v54", "v55", ["p16", "p32"])
    for i in range(4): a(f"v_sub_f32 v{96+2*i}, v{96+2*i}, v54")
    for i in range(4): a(f"v_exp_f32 v{96+2*i}, v{96+2*i}")
    a("v_add_f32 v54, v96, v98")
    a("v_add_f32 v56, v100, v102")
    a("v_add_f32 v54, v54, v56")
    xlane("v_add_f32", "v54", "v55", ["p16", "p32"])
    a("v_rcp_f32 v54, v54")
    for i in range(4): a(f"v_mul_f32 v{96+2*i}, v{96+2*i}, v54")
    ts(10)
poll2("op", WL, [chk_tag([97+2*i], None) for i in range(4)] + [chk_sent4(104, "v52"), chk_sent4(108, "v53")], 4, alpha)
a("s_waitcnt lgkmcnt(0)")
ts(11)
for t in range(4):
    a(f"v_mfma_f32_16x16x32_bf16 v[{112+4*t}:{115+4*t}], v[104:107], v[{64+4*t}:{67+4*t}], 0")
for t in range(4):
    a(f"v_mfma_f32_16x16x32_bf16 v[{112+4*t}:{115+4*t}], v[108:111], v[{80+4*t}:{83+4*t}], v[{112+4*t}:{115+4*t}]")
for t in range(4):
    a(f"v_mul_f32 v{52+t}, v96, v{112+4*t}")
    for r in range(1, 4): a(f"v_fmac_f32 v{52+t}, v{96+2*r}, v{112+4*t+r}")
a("v_permlane32_swap_b32 v52, v53")
a("v_permlane32_swap_b32 v54, v55")
a("v_add_f32 v52, v52, v53")
a("v_add_f32 v54, v54, v55")
a("v_permlane16_swap_b32 v52, v54")
a("v_add_f32 v52, v52, v54")
a(f"ds_write_b32 v45, v52 offset:{L_RED}")
a("s_waitcnt lgkmcnt(0)")
a("s_barrier")
ts(12)
a("s_cmp_lg_u32 s3, 0")
a("s_cbranch_scc1 L_wo_end")
for w in range(8): a(f"ds_read_b64 v[{80+2*w}:{81+2*w}], v47 offset:{L_RED + 256*w}")
a("s_mov_b32 s34, -1")
a("s_mov_b32 s35, 0")
a("s_waitcnt lgkmcnt(0)")
for (x, y) in ((80, 82), (84, 86), (88, 90), (92, 94), (80, 84), (88, 92), (80, 88)):
    a(f"v_add_f32 v{x}, v{x}, v{y}")
    a(f"v_add_f32 v{x+1}, v{x+1}, v{y+1}")
a("v_cvt_pk_bf16_f32 v80, v80, v81")
a("v_min_u32 v80, -2, v80")
a("s_mov_b64 exec, s[34:35]")
a(f"global_store_dword v46, v80, {WS} sc1")
a("s_mov_b64 exec, -1")
ts(13)
a("L_wo_end:")
end_wave()

a("L_stage_ffn:")
a("s_mul_i32 s57, s4, 7")
a("s_add_u32 s57, s57, s39")
a("s_sub_u32 s57, s57, 7")
a("s_cmp_eq_u32 s3, 7")
a("s_cbranch_scc1 L_final")
a("s_lshl_b32 s7, s3, 10")
a(f"s_add_u32 s7, s7, {RDY}")
a("v_lshl_add_u32 v6, v4, 7, s7")
poll("tg", [f"global_load_dword v5, v6, {WS} sc1"], [chk_tag([5], None)])
if FGATE == 100:
    a("v_mov_b32 v6, 0")
    lds_flag_wait("fg", 0xC0, 4, [], 4, "v6", 56)
elif FGATE:
    a("s_lshl_b32 s7, s4, 11")
    a(f"s_add_u32 s7, s7, {LSE+4}")
    a(f"v_and_b32 v5, {FGATE-1}, v1")
    a("v_lshl_add_u32 v6, v5, 7, s7")
    poll("fg", [f"global_load_dword v5, v6, {WS} sc1"], [chk_tag([5], None)])
a(f"s_mul_i32 s7, s3, {64*3584}")
a("s_lshl_b32 s51, s57, 6")
a("s_add_u32 s7, s7, s51")
a("v_lshrrev_b32 v43, 2, v1")
a("v_and_b32 v44, 3, v1")
a("v_mul_u32_u24 v5, 3584, v43")
a("v_lshl_add_u32 v5, v44, 4, v5")
a("v_add_u32 v5, s7, v5")
for i in range(4):
    a(f"global_load_dwordx4 v[{8+4*i}:{11+4*i}], v5, {W1}{NTW}")
    if i < 3: a(f"v_add_u32 v5, {16*3584}, v5")
a(f"s_mul_i32 s7, s57, {32*896}")
a("s_lshl_b32 s51, s3, 7")
a("s_add_u32 s7, s7, s51")
a("v_mul_u32_u24 v6, 896, v3")
a("v_lshl_add_u32 v6, v4, 4, v6")
a("v_add_u32 v5, s7, v6")
for i in range(4):
    a(f"global_load_dwordx4 v[{24+4*i}:{27+4*i}], v5, {W2}{NTW}")
    if i < 3: a(f"v_add_u32 v5, {8*896}, v5")
a("v_lshl_add_u32 v5, v2, 1, s51")
a(f"global_load_ushort v40, v5, {X}")
a("v_lshrrev_b32 v59, 4, v1")
a("v_and_b32 v60, 15, v1")
a("v_lshl_add_u32 v45, v59, 3, v4")
a("s_lshl_b32 s52, s57, 6")
a("v_lshl_add_u32 v5, v45, 1, s52")
a(f"global_load_ushort v42, v5, {B1}")
a(f"s_add_u32 s51, s51, {L_W2}")
a("v_add_u32 v41, s51, v6")
a("s_lshl_b32 s7, s3, 12")
a(f"s_add_u32 s7, s7, {L_W}")
a("v_lshl_add_u32 v47, v1, 4, s7")
a("v_bfe_u32 v5, v1, 2, 2")
a("v_lshl_add_u32 v5, v59, 3, v5")
a("v_lshlrev_b32 v48, 6, v5")
a("v_lshl_add_u32 v48, v44, 3, v48")
a("v_add_u32 v48, s7, v48")
a("v_mul_u32_u24 v49, 896, v5")
a("v_lshl_add_u32 v49, v44, 3, v49")
a("s_lshl_b32 s7, s3, 8")
a(f"s_add_u32 s7, s7, {L_W2}")
a("v_add_u32 v49, s7, v49")
a("s_lshl_b32 s7, s3, 10")
a(f"s_add_u32 s7, s7, {YP}")
a("v_lshl_add_u32 v46, v1, 4, s7")
a("s_lshl_b32 s7, s3, 7")
a("v_lshl_add_u32 v50, v2, 1, s7")
a("v_lshl_add_u32 v51, v59, 4, s7")
a("s_lshl_b32 s7, s3, 2")
a("v_lshl_add_u32 v54, v60, 5, s7")
a("v_lshlrev_b32 v55, 5, v45")
a("s_mul_i32 s7, s57, 896")
a("s_lshl_b32 s51, s3, 8")
a("s_add_u32 s7, s7, s51")
a(f"s_add_u32 s7, s7, {ZP}")
a("v_lshl_add_u32 v62, v1, 1, s7")
a("s_mov_b32 s58, 0x55555555")
a("s_mov_b32 s59, 0x55555555")
a("s_lshl_b32 s7, s3, 3")
a("v_mov_b32 v63, s7")
a("v_mov_b32 v61, 0")
for r in range(4): a(f"v_mov_b32 v{96+r}, 0x3f803f80")
for i in range(4):
    a(f"s_waitcnt vmcnt({9-i})")
    a(f"ds_write_b128 v47, v[{8+4*i}:{11+4*i}] offset:{i*1024}")
for sg in range(2):
    for t in range(2):
        r = 64 + (sg*2 + t)*4
        a(f"ds_read_b64_tr_b16 v[{r}:{r+1}], v48 offset:{sg*2048 + t*32}")
        a(f"ds_read_b64_tr_b16 v[{r+2}:{r+3}], v48 offset:{sg*2048 + t*32 + 256}")
a("s_waitcnt lgkmcnt(0)")
for t in range(2): a(f"v_mfma_f32_16x16x32_bf16 v[{100+4*t}:{103+4*t}], v[96:99], v[{64+4*t}:{67+4*t}], 0")
for t in range(2): a(f"v_mfma_f32_16x16x32_bf16 v[{100+4*t}:{103+4*t}], v[96:99], v[{72+4*t}:{75+4*t}], v[{100+4*t}:{103+4*t}]")
for i in range(4):
    a(f"s_waitcnt vmcnt({5-i})")
    a(f"ds_write_b128 v41, v[{24+4*i}:{27+4*i}] offset:{i*8*896}")
a(f"ds_write_b32 v54, v100 offset:{L_C}")
a(f"ds_write_b32 v54, v104 offset:{L_C+512}")
a("s_waitcnt vmcnt(0) lgkmcnt(0)")
a("s_barrier")
ts(9)
a(f"ds_read_b128 v[100:103], v55 offset:{L_C}")
a(f"ds_read_b128 v[104:107], v55 offset:{L_C+16}")
a("s_cmp_gt_u32 s3, 3")
a("s_cbranch_scc1 L_ffn_now2")
for T in range(8):
    if T == 4:
        a("s_cmp_eq_u32 s3, 3")
        a("s_cbranch_scc1 L_ffn_now2")
    r = 128 + 4*T
    a(f"ds_read_b64_tr_b16 v[{r}:{r+1}], v49 offset:{T*32}")
    a(f"ds_read_b64_tr_b16 v[{r+2}:{r+3}], v49 offset:{T*32 + 4*896}")
a("L_ffn_now2:")
a("v_lshlrev_b32 v40, 16, v40")
a("v_lshlrev_b32 v42, 16, v42")
a("s_mov_b32 s36, 0")
a("s_mov_b32 s37, 0x80000000")
a(f"v_mov_b32 v56, {f32(1.0/3)}")
a("s_waitcnt lgkmcnt(0)")
a("v_add_f32 v100, v100, v101")
a("v_add_f32 v102, v102, v103")
a("v_add_f32 v104, v104, v105")
a("v_add_f32 v100, v100, v102")
a("v_add_f32 v104, v104, v106")
a("v_add_f32 v57, v100, v104")
ts(10)
poll("yp", [f"global_load_dwordx4 v[96:99], v46, {WS} sc1"], [chk_sent4(96, "v52")])
ts(11)
for k in range(4):
    a(f"v_lshlrev_b32 v{104+2*k}, 16, v{96+k}")
    a(f"v_and_b32 v{105+2*k}, {MHI}, v{96+k}")
reduce8_hi(R(104, 8), 52)
bf16r("v52")
a("v_add_f32 v52, v52, v40")
a("v_cvt_pk_bf16_f32 v52, v52, v52")
a(f"ds_write_b16 v50, v52 offset:{L_H}")
a(f"ds_read_b128 v[96:99], v51 offset:{L_H}")
a(f"ds_read_b128 v[112:115], v51 offset:{L_H+64}")
a(f"v_and_b32 v52, {MHI}, v52")
a("v_mul_f32 v53, v52, v52")
wave_sum2("v52", "v53", None, None)
a("s_waitcnt lgkmcnt(0)")
for t in range(2): a(f"v_mfma_f32_16x16x32_bf16 v[{100+4*t}:{103+4*t}], v[96:99], v[{64+4*t}:{67+4*t}], 0")
for t in range(2): a(f"v_mfma_f32_16x16x32_bf16 v[{100+4*t}:{103+4*t}], v[112:115], v[{72+4*t}:{75+4*t}], v[{100+4*t}:{103+4*t}]")
a("s_mov_b64 exec, s[36:37]")
a(f"ds_write_b64 v63, v[52:53] offset:{L_ST}")
a("s_mov_b64 exec, -1")
a(f"ds_write_b32 v54, v100 offset:{L_Z}")
a(f"ds_write_b32 v54, v104 offset:{L_Z+512}")
a("s_waitcnt lgkmcnt(0)")
a("s_barrier")
ts(12)
a("s_cmp_gt_u32 s3, 3")
a("s_cbranch_scc1 L_wo_end")
a(f"ds_read_b128 v[108:111], v61 offset:{L_ST}")
a(f"ds_read_b128 v[112:115], v61 offset:{L_ST+16}")
a(f"ds_read_b128 v[116:119], v61 offset:{L_ST+32}")
a(f"ds_read_b64 v[120:121], v61 offset:{L_ST+48}")
a(f"ds_read_b128 v[100:103], v55 offset:{L_Z}")
a(f"ds_read_b128 v[104:107], v55 offset:{L_Z+16}")
a(f"s_mov_b32 s7, {f32(-LOG2E)}")
a("s_waitcnt lgkmcnt(0)" if DEBUG else "s_waitcnt lgkmcnt(2)")
for (x, y) in ((108, 110), (112, 114), (116, 118), (108, 112), (116, 120), (108, 116)):
    a(f"v_add_f32 v{x}, v{x}, v{y}")
    a(f"v_add_f32 v{x+1}, v{x+1}, v{y+1}")
ln_finish("v108", "v109", "v52", "v53", "v58")
a("s_waitcnt lgkmcnt(0)")
a("v_add_f32 v100, v100, v101")
a("v_add_f32 v102, v102, v103")
a("v_add_f32 v104, v104, v105")
a("v_add_f32 v100, v100, v102")
a("v_add_f32 v104, v104, v106")
a("v_add_f32 v100, v100, v104")
a("v_fma_f32 v100, -v52, v57, v100")
a("v_mul_f32 v100, v100, v53")
bf16r("v100")
a("v_add_f32 v100, v100, v42")
bf16r("v100")
a("v_mul_f32 v101, s7, abs(v100)")
a("v_exp_f32 v101, v101")
a("v_max_f32 v107, 0, v100")
bf16r("v101")
a("v_add_f32 v102, 1.0, v101")
a("v_log_f32 v102, v102")
a("v_fma_f32 v103, v101, v56, -0.5")
a("v_fma_f32 v103, v101, v103, 1.0")
a("v_mul_f32 v103, v101, v103")
a(f"v_cmp_gt_f32 vcc, {f32(2.0**-6)}, v101")
a(f"v_mul_f32 v102, {f32(math.log(2))}, v102")
a("v_cndmask_b32 v102, v102, v103, vcc")
bf16r("v102")
a("v_add_f32 v102, v102, v107")
bf16r("v102")
a(f"v_mul_f32 v103, {f32(-2*LOG2E)}, v102")
a("v_exp_f32 v103, v103")
a("v_mul_f32 v105, v102, v102")
a(f"v_cmp_gt_f32 vcc, {f32(2.0**-5)}, v102")
a("v_add_f32 v106, 1.0, v103")
a("v_sub_f32 v103, 1.0, v103")
a("v_rcp_f32 v106, v106")
a("v_mul_f32 v105, v105, v56")
a("v_fma_f32 v105, -v105, v102, v102")
a("v_mul_f32 v103, v103, v106")
a("v_cndmask_b32 v103, v103, v105, vcc")
bf16r("v103")
a("v_mul_f32 v100, v100, v103")
a(f"v_mov_b32_dpp v101, v100 quad_perm:[0,0,2,2] {DPPM}")
a(f"v_mov_b32_dpp v102, v100 quad_perm:[1,1,3,3] {DPPM}")
a("v_cvt_pk_bf16_f32 v101, v101, v102")
a(f"v_mov_b32_dpp v102, v101 row_half_mirror {DPPM}")
a("v_mov_b32_dpp v96, v101 quad_perm:[0,0,0,0] row_mask:0xf bank_mask:0x5")
a("v_mov_b32_dpp v97, v101 quad_perm:[2,2,2,2] row_mask:0xf bank_mask:0x5")
a("v_mov_b32_dpp v98, v101 quad_perm:[0,0,0,0] row_mask:0xf bank_mask:0xa")
a("v_mov_b32_dpp v99, v101 quad_perm:[2,2,2,2] row_mask:0xf bank_mask:0xa")
a("v_mov_b32_dpp v98, v102 quad_perm:[2,2,2,2] row_mask:0xf bank_mask:0x5")
a("v_mov_b32_dpp v99, v102 quad_perm:[0,0,0,0] row_mask:0xf bank_mask:0x5")
a("v_mov_b32_dpp v96, v102 quad_perm:[2,2,2,2] row_mask:0xf bank_mask:0xa")
a("v_mov_b32_dpp v97, v102 quad_perm:[0,0,0,0] row_mask:0xf bank_mask:0xa")
def ffn2(q):
    for T in range(4*q, 4*q+4):
        a(f"v_mfma_f32_16x16x32_bf16 v[{64+4*T}:{67+4*T}], v[96:99], v[{128+4*T}:{131+4*T}], 0")
def ffn2_out(q):
    for rho in range(4):
        a(f"v_mov_b32_dpp v{104+q}, v{64+4*(4*q+rho)} quad_perm:[0,1,2,3] row_mask:{hex(1<<rho)} bank_mask:0xf")
    a(f"v_mov_b32_dpp v{106+q}, v{104+q} quad_perm:[1,1,3,3] {DPPM}")
    a(f"v_cvt_pk_bf16_f32 v{104+q}, v{104+q}, v{106+q}")
    a(f"v_min_u32 v{104+q}, -2, v{104+q}")
    a("s_mov_b64 exec, s[58:59]")
    a(f"global_store_dword v62, v{104+q}, {WS} offset:{128*q} sc1")
    a("s_mov_b64 exec, -1")
ffn2(0)
a("s_cmp_eq_u32 s3, 3")
a("s_cbranch_scc1 L_ffn_last")
ffn2(1)
ffn2_out(0)
ffn2_out(1)
ts(13)
if int(opts.get("fdl", 4)):
    a("s_waitcnt vmcnt(0)")
    a("v_mov_b32 v5, 1")
    a(f"ds_write_b32 v63, v5 offset:{L_FL+0xD0}")
end_wave()
a("L_ffn_last:")
a("s_nop 7")
ffn2_out(0)
ts(13)
if int(opts.get("fdl", 4)):
    a("s_waitcnt vmcnt(0)")
    a("v_mov_b32 v5, 1")
    a(f"ds_write_b32 v63, v5 offset:{L_FL+0xD0}")
end_wave()

pad("fin")
a("L_final:")
a("v_min_u32 v5, 55, v1")
a("v_mul_u32_u24 v5, 896, v5")
a("s_lshl_b32 s7, s57, 4")
a(f"s_add_u32 s7, s7, {ZP}")
a("v_add_u32 v5, s7, v5")
a("v_and_b32 v6, 7, v2")
a("s_lshl_b32 s7, s57, 3")
a("v_add_u32 v6, s7, v6")
a("v_lshlrev_b32 v6, 1, v6")
a("s_mov_b32 s36, 0x01010101")
a("s_mov_b32 s37, 0x01010101")
a("v_min_u32 v7, 55, v1")
a("v_lshlrev_b32 v7, 7, v7")
a(f"v_add_u32 v7, {RDY + 7*1024}, v7")
poll("rd", [f"global_load_dword v8, v7, {WS} sc1"], [chk_tag([8], None)])
a("s_barrier")
a("s_barrier")
a(f"ds_read_u16 v50, v6 offset:{L_H}")
ts(12)
if int(opts.get("fdl", 4)):
    a("v_mov_b32 v9, 0")
    lds_flag_wait("fd", 0xD0, 8, [], int(opts.get("fdl", 4)), "v9", 56, ge=True)
poll("fin", [f"global_load_dwordx4 v[96:99], v5, {WS} sc1"], [chk_sent4(96, "v48")])
ts(13)
a("v_cmp_gt_u32 vcc, 56, v1")
a("s_waitcnt lgkmcnt(0)")
a("v_lshlrev_b32 v50, 16, v50")
for k in range(4): a(f"v_cndmask_b32 v{96+k}, 0, v{96+k}, vcc")
for k in range(4):
    a(f"v_lshlrev_b32 v{100+2*k}, 16, v{96+k}")
    a(f"v_and_b32 v{101+2*k}, {MHI}, v{96+k}")
reduce8_hi(R(100, 8), 52)
xlane("v_add_f32", "v52", None, ["q1", "q2", "hm"])
bf16r("v52")
a("v_add_f32 v52, v52, v50")
a("v_cvt_pk_bf16_f32 v52, v52, v52")
a("s_mov_b64 exec, s[36:37]")
a(f"global_store_short v6, v52, {OUT}")
a("s_cmp_lg_u32 s57, 0")
a("s_cbranch_scc1 L_fin_end")
a("s_mov_b64 exec, 1")
a("v_mov_b32 v5, 0")
a("v_mov_b32 v6, s6")
a(f"global_store_dword v5, v6, {WS} sc1")
a("L_fin_end:")
a("s_mov_b64 exec, -1")
ts(14)
end_wave()

if DEBUG:
    a("L_dump:")
    a("s_waitcnt lgkmcnt(0)")
    a("s_mov_b64 exec, 1")
    if DIAG:
        a(f"s_cmp_eq_u32 s2, {DIAG[0]}")
        a("s_cbranch_scc0 L_end")
        a(f"s_cmp_eq_u32 s3, {DIAG[1]}")
        a("s_cbranch_scc0 L_end")
        a(f"s_sub_u32 s7, s{64+2*DIAG[2]}, s64")
        a(f"s_mul_i32 s7, s7, {DIAG[3]}")
        a("s_min_u32 s7, s7, 20000")
        a("s_add_u32 s7, s7, 3000")
        a("s_mov_b32 s38, 100000")
        a("L_diag:")
        a("s_memrealtime s[60:61]")
        a("s_waitcnt lgkmcnt(0)")
        a("s_sub_u32 s51, s60, s64")
        a("s_cmp_ge_u32 s51, s7")
        a("s_cbranch_scc1 L_end")
        a("s_sub_u32 s38, s38, 1")
        a("s_cmp_eq_u32 s38, 0")
        a("s_cbranch_scc0 L_diag")
    elif HDBG:
        a("s_cmp_lt_u32 s2, 8")
        a("s_cselect_b32 s7, 0, 1")
        a("s_or_b32 s7, s7, s3")
        a("s_cmp_eq_u32 s7, 0")
        a("s_cbranch_scc0 L_dump_k")
        a("s_lshl_b32 s7, s2, 2")
        a("v_mov_b32 v5, s7")
        a("v_mov_b32 v6, s64")
        a(f"global_store_dword v5, v6, {DBG}")
        a("s_endpgm")
        a("L_dump_k:")
        a(f"s_cmp_eq_u32 s5, {15 if IL else 23}")
        a("s_cbranch_scc0 L_end")
        a("s_cmp_eq_u32 s3, 7")
        a("s_cbranch_scc0 L_end")
        a("s_lshl_b32 s7, s4, 2")
        a("v_mov_b32 v5, s7")
        a(f"v_mov_b32 v6, s{64+30}")
        a(f"global_store_dword v5, v6, {DBG} offset:32")
    else:
        a("s_lshl_b32 s7, s2, 4")
        a("s_add_u32 s7, s7, s3")
        a("s_lshl_b32 s7, s7, 6")
        a(f"s_add_u32 s7, s7, {TS}")
        a("v_mov_b32 v5, s7")
        for k in ((0, GSTAT[0]) if GSTAT else range(16)):
            a(f"v_mov_b32 v6, s{64+2*k}")
            a(f"global_store_dword v5, v6, {WS} offset:{4*k}{' sc1' if GSTAT else ''}")
        if GSTAT:
            a("s_cmp_eq_u32 s2, 248")
            a("s_cbranch_scc0 L_end")
            a("s_cmp_eq_u32 s3, 5")
            a("s_cbranch_scc0 L_end")
            a("s_mov_b64 exec, -1")
            a("s_mov_b32 s38, 100000")
            a("L_g1:")
            a("s_memrealtime s[60:61]")
            a("s_waitcnt lgkmcnt(0)")
            a("s_sub_u32 s51, s60, s64")
            a("s_cmp_ge_u32 s51, 2000")
            a("s_cbranch_scc1 L_g2")
            a("s_sub_u32 s38, s38, 1")
            a("s_cmp_eq_u32 s38, 0")
            a("s_cbranch_scc0 L_g1")
            a("L_g2:")
            a("v_mov_b32 v20, 0x7fffffff")
            a("v_mov_b32 v21, 0x80000000")
            a("v_and_b32 v22, 15, v1")
            a(f"v_cmp_le_u32 vcc, {GSTAT[1]}, v22")
            a(f"v_cmp_gt_u32 s[46:47], {GSTAT[2]}, v22")
            a("s_and_b64 s[46:47], s[46:47], vcc")
            a("v_cmp_gt_u32 s[48:49], 12, v22")
            a("s_mov_b32 s52, 0")
            a("L_g3:")
            a("s_lshl_b32 s7, s52, 12")
            a(f"s_add_u32 s7, s7, {TS}")
            a("v_lshl_add_u32 v23, v1, 6, s7")
            a(f"global_load_dword v24, v23, {WS} sc1")
            a(f"global_load_dword v25, v23, {WS} offset:{4*GSTAT[0]} sc1")
            a("s_waitcnt vmcnt(0)")
            a("v_subrev_u32 v24, s64, v24")
            a("v_cmp_eq_u32 vcc, 0, v25")
            a("v_subrev_u32 v25, s64, v25")
            a("v_cndmask_b32 v25, v25, v21, vcc")
            a("v_cndmask_b32 v25, v21, v25, s[46:47]")
            a("v_cndmask_b32 v24, v20, v24, s[48:49]")
            if GSTAT[3] != 2:
                a("s_bitcmp1_b32 s52, 1")
                a(f"s_cbranch_scc{1 - GSTAT[3]} L_g4")
            a("v_max_i32 v21, v21, v25")
            a("L_g4:")
            a("v_min_i32 v20, v20, v24")
            a("s_add_u32 s52, s52, 1")
            a("s_cmp_lt_u32 s52, 64")
            a("s_cbranch_scc1 L_g3")
            xlane("v_max_i32", "v21", "v26", ["q1", "q2", "hm", "r8", "p16", "p32"])
            xlane("v_min_i32", "v20", "v26", ["q1", "q2", "hm", "r8", "p16", "p32"])
            a("v_sub_u32 v21, v21, v20")
            a("v_readfirstlane_b32 s7, v21")
            a("v_readfirstlane_b32 s53, v20")
            a("s_mul_i32 s7, s7, 4")
            a("s_min_u32 s7, s7, 20000")
            a("s_add_u32 s7, s7, 6000")
            a("s_add_u32 s7, s7, s53")
            a("s_mov_b32 s38, 100000")
            a("L_g5:")
            a("s_memrealtime s[60:61]")
            a("s_waitcnt lgkmcnt(0)")
            a("s_sub_u32 s51, s60, s64")
            a("s_cmp_ge_u32 s51, s7")
            a("s_cbranch_scc1 L_end")
            a("s_sub_u32 s38, s38, 1")
            a("s_cmp_eq_u32 s38, 0")
            a("s_cbranch_scc0 L_g5")
a("L_end:")
a("s_endpgm")
a("L_codeend:")
a.raw(f'''.section .rodata,"a"
.p2align 6
.amdhsa_kernel {NAME}_kernel
  .amdhsa_next_free_vgpr 168
  .amdhsa_next_free_sgpr 96
  .amdhsa_accum_offset 168
  .amdhsa_group_segment_fixed_size 0
  .amdhsa_kernarg_size 96
  .amdhsa_user_sgpr_count 2
  .amdhsa_user_sgpr_kernarg_segment_ptr 1
  .amdhsa_system_sgpr_workgroup_id_x 1
  .amdhsa_float_denorm_mode_32 3
.end_amdhsa_kernel''')
open(OUTP, "w").write(a.text())
print("nops inserted:", a.nops, "lines:", len(a.lines))
```

```python
import sys, struct, math
sys.path.insert(0, "gen")
from asmlib import Asm

NAME = "sequential_preLN__sliding_block_cached__dense_activation_mish__decode"
opts = dict(x.split("=") for x in sys.argv[2:])
OUTP = sys.argv[1]
DEBUG = int(opts.get("dbg", 0))
HDBG = int(opts.get("hdbg", 0))
if HDBG: DEBUG = 1
NT = " nt" if int(opts.get("nt", 0)) else ""
NTW = " nt" if int(opts.get("ntw", 0)) else ""
NTK = " nt" if int(opts.get("ntk", 0)) else ""
NTQ = " nt" if int(opts.get("ntq", 0)) else ""
NTO = " nt" if int(opts.get("nto", 0)) else ""
NTV = " nt" if int(opts.get("ntv", 0)) else ""
KD = int(opts.get("kd", 4))
NTHR = int(opts.get("nthr", 12))
SLEEP = int(opts.get("sleep", 0))
KD0 = int(opts.get("kd0", 2))
RGATE = int(opts.get("rgate", 1))
QWAIT = int(opts.get("qwait", 1))
SPIN = 100000

def f32(x): return "0x%08x" % struct.unpack("<I", struct.pack("<f", x))[0]
LOG2E = math.log2(math.e)

RDY = 0x50000; RDA = 0x58000; QG = 0x10000; LSE = 0x40000; OP = 0x80000; YP = 0xC0000; ZP = 0xD0000; TS = 0x400000; FO = 0x100000
L_S1 = 0x000; L_FL = 0x800; L_Q = 0x900; L_SC = 0xD00; L_RED = 0x1100; L_ST = 0x1900; L_H = 0x1A00; L_Z = 0x2100; L_O = 0x2500
L_P = 0x2D00; L_C = 0x2F00
L_W = 0x4000; L_W2 = 0xB000
LDS_BYTES = 0x14000
IL = int(opts.get("il", 1))
FGATE = int(opts.get("fgate", 100))
X, K, V, WQ, WO, W1, B1, W2, OUT, DBG, WS = "s[8:9]", "s[10:11]", "s[12:13]", "s[14:15]", "s[16:17]", "s[20:21]", "s[22:23]", "s[24:25]", "s[26:27]", "s[28:29]", "s[30:31]"
SEL_LO, SEL_HI, MHI = "s40", "s41", "s42"
R = lambda a_, n: list(range(a_, a_ + n))

a = Asm()
uid = [0]
def lab(p):
    uid[0] += 1
    return f"L_{p}_{uid[0]}"

DIAG = [int(x) for x in opts["diag"].split(",")] if "diag" in opts else None
if DIAG: DEBUG = 1
GSTAT = [int(x) for x in opts["gstat"].split(",")] if "gstat" in opts else None
if GSTAT: DEBUG = 1
def ts(k):
    if DIAG and k not in (0, DIAG[2]): return
    if GSTAT and k not in (0, GSTAT[0]): return
    if HDBG and k not in (0, 15): return
    if DEBUG: a(f"s_memrealtime s[{64+2*k}:{65+2*k}]")

def end_wave():
    if DEBUG:
        ts(15)
        a("s_branch L_dump")
    else:
        a("s_endpgm")
    a.flush_hist()

def sleep():
    if SLEEP: a(f"s_sleep {SLEEP}")

DPPM = "row_mask:0xf bank_mask:0xf"
def wave_sum2(x, y, sx, sy):
    for m in ("quad_perm:[1,0,3,2]", "quad_perm:[2,3,0,1]", "row_half_mirror", "row_mirror"):
        a(f"v_add_f32_dpp {x}, {x}, {x} {m} {DPPM}")
        a(f"v_add_f32_dpp {y}, {y}, {y} {m} {DPPM}")
    a(f"v_add_f32_dpp {x}, {x}, {x} row_bcast:15 row_mask:0xa bank_mask:0xf")
    a(f"v_add_f32_dpp {y}, {y}, {y} row_bcast:15 row_mask:0xa bank_mask:0xf")
    a(f"v_add_f32_dpp {x}, {x}, {x} row_bcast:31 row_mask:0xc bank_mask:0xf")
    a(f"v_add_f32_dpp {y}, {y}, {y} row_bcast:31 row_mask:0xc bank_mask:0xf")
    if sx:
        a(f"v_readlane_b32 {sx}, {x}, 63")
        a(f"v_readlane_b32 {sy}, {y}, 63")

def bf16r(x):
    a(f"v_cvt_pk_bf16_f32 {x}, {x}, {x}")
    a(f"v_and_b32 {x}, {MHI}, {x}")

def ln_finish(vsum, vsq, vm, vr, t):
    a(f"v_mov_b32 {t}, {f32(1.0/448)}")
    a(f"v_mul_f32 {vm}, {vsum}, {t}")
    a(f"v_mul_f32 {vr}, {vsq}, {t}")
    a(f"v_fma_f32 {vr}, -{vm}, {vm}, {vr}")
    a(f"v_max_f32 {vr}, 0, {vr}")
    a(f"v_cvt_pk_bf16_f32 {t}, {vm}, {vr}")
    a(f"v_lshlrev_b32 {vm}, 16, {t}")
    a(f"v_and_b32 {vr}, {MHI}, {t}")
    a(f"v_add_f32 {vr}, {f32(1e-5)}, {vr}")
    bf16r(vr)
    a(f"v_sqrt_f32 {vr}, {vr}")
    bf16r(vr)
    a(f"v_rcp_f32 {vr}, {vr}")

def ln_apply(lo, hi, vm, vr, dst):
    a(f"v_sub_f32 {lo}, {lo}, {vm}")
    a(f"v_sub_f32 {hi}, {hi}, {vm}")
    a(f"v_cvt_pk_bf16_f32 {dst}, {lo}, {hi}")
    a(f"v_lshlrev_b32 {lo}, 16, {dst}")
    a(f"v_and_b32 {hi}, {MHI}, {dst}")
    a(f"v_mul_f32 {lo}, {lo}, {vr}")
    a(f"v_mul_f32 {hi}, {hi}, {vr}")
    a(f"v_cvt_pk_bf16_f32 {dst}, {lo}, {hi}")

def perm_pair(A, B, outs):
    for k in range(4):
        a(f"v_perm_b32 v{outs[2*k]}, v{B+k}, v{A+k}, {SEL_LO}")
        a(f"v_perm_b32 v{outs[2*k+1]}, v{B+k}, v{A+k}, {SEL_HI}")

def reduce8_hi(acc, dst, full_row=False):
    for k in range(4):
        a(f"v_permlane32_swap_b32 v{acc[2*k]}, v{acc[2*k+1]}")
    for k in range(4):
        a(f"v_add_f32 v{acc[2*k]}, v{acc[2*k]}, v{acc[2*k+1]}")
    a(f"v_permlane16_swap_b32 v{acc[0]}, v{acc[2]}")
    a(f"v_permlane16_swap_b32 v{acc[4]}, v{acc[6]}")
    a(f"v_add_f32 v{acc[0]}, v{acc[0]}, v{acc[2]}")
    a(f"v_add_f32 v{acc[4]}, v{acc[4]}, v{acc[6]}")
    if full_row:
        for m in ("row_ror:4", "row_ror:8"):
            a(f"v_add_f32_dpp v{acc[0]}, v{acc[0]}, v{acc[0]} {m} {DPPM}")
            a(f"v_add_f32_dpp v{acc[4]}, v{acc[4]}, v{acc[4]} {m} {DPPM}")
    else:
        a(f"v_add_f32_dpp v{dst}, v{acc[0]}, v{acc[0]} row_ror:8 row_mask:0xf bank_mask:0x3")
        a(f"v_add_f32_dpp v{dst}, v{acc[4]}, v{acc[4]} row_ror:8 row_mask:0xf bank_mask:0xc")

def dots16(P0, P1, x0, x1, acc):
    for j in range(8):
        a(f"v_dot2_f32_bf16 v{acc[j]}, v{P0[j]}, {x0}, 0")
    for j in range(8):
        a(f"v_dot2_f32_bf16 v{acc[j]}, v{P1[j]}, {x1}, v{acc[j]}")

def spin_head(p):
    lp, dn = lab(p), lab(p + "d")
    a(f"s_mov_b32 s38, {SPIN}")
    a(f"{lp}:")
    return lp, dn

def spin_tail(h, slp=False):
    lp, dn = h
    a(f"s_cbranch_scc1 {dn}")
    if slp: sleep()
    a("s_sub_u32 s38, s38, 1")
    a("s_cmp_eq_u32 s38, 0")
    a(f"s_cbranch_scc0 {lp}")
    a(f"{dn}:")

def xlane(op, x, t, steps):
    for s in steps:
        if s in ("p16", "p32"):
            a(f"v_mov_b32 {t}, {x}")
            a(f"v_permlane{s[1:]}_swap_b32 {x}, {t}")
            a(f"{op} {x}, {x}, {t}")
        else:
            m = {"q3": "quad_perm:[3,2,1,0]", "q1": "quad_perm:[1,0,3,2]", "q2": "quad_perm:[2,3,0,1]", "hm": "row_half_mirror",
                 "r4": "row_ror:4", "r8": "row_ror:8", "rm": "row_mirror"}[s]
            a(f"{op}_dpp {x}, {x}, {x} {m} {DPPM}")

def poll(name, loads, checks, pre=None):
    n = len(loads)
    P = [f"s[{46+2*i}:{47+2*i}]" for i in range(n)]
    for p in P: a(f"s_mov_b64 {p}, -1")
    h = spin_head(name)
    if pre: a(pre)
    for i in range(n):
        sk = lab(name + "s")
        a(f"s_mov_b64 exec, {P[i]}")
        a(f"s_cbranch_execz {sk}")
        a(loads[i])
        a(f"{sk}:")
    a("s_mov_b64 exec, -1")
    a("s_waitcnt vmcnt(0)")
    for i in range(n): checks[i](P[i])
    if n == 1: a(f"s_cmp_eq_u64 {P[0]}, 0")
    else:
        a(f"s_or_b64 s[34:35], {P[0]}, {P[1]}")
        for p in P[2:]: a(f"s_or_b64 s[34:35], s[34:35], {p}")
        a("s_cmp_eq_u64 s[34:35], 0")
    spin_tail(h, True)

def poll2(name, loads, checks, nhook, hook):
    n = len(loads)
    P = [f"s[{76+2*i}:{77+2*i}]" if not DEBUG else f"s[{46+2*i}:{47+2*i}]" for i in range(n)]
    P = [f"s[{46+2*i}:{47+2*i}]" for i in range(n)]
    lp, dn, chk, nh = lab(name), lab(name + "d"), lab(name + "c"), lab(name + "h")
    a(f"s_mov_b32 s38, {SPIN}")
    a("s_mov_b32 s60, 0")
    a(f"s_branch {chk}")
    a(f"{lp}:")
    for i in range(n):
        sk = lab(name + "s")
        a(f"s_mov_b64 exec, {P[i]}")
        a(f"s_cbranch_execz {sk}")
        a(loads[i])
        a(f"{sk}:")
    a("s_mov_b64 exec, -1")
    a(f"{chk}:")
    a("s_waitcnt vmcnt(0)")
    for i in range(nhook, n): checks[i](P[i])
    a("s_cmp_eq_u32 s60, 1")
    a(f"s_cbranch_scc1 {nh}")
    for i in range(nhook): checks[i](P[i])
    a(f"s_or_b64 s[34:35], {P[0]}, {P[1]}")
    for p in P[2:nhook]: a(f"s_or_b64 s[34:35], s[34:35], {p}")
    a("s_cmp_eq_u64 s[34:35], 0")
    a(f"s_cbranch_scc0 L_{name}_again")
    hook()
    a("s_mov_b32 s60, 1")
    a(f"{nh}:")
    a(f"s_or_b64 s[34:35], {P[nhook]}, {P[nhook+1]}")
    a("s_cmp_eq_u64 s[34:35], 0")
    a(f"s_cbranch_scc1 {dn}")
    a(f"L_{name}_again:")
    a("s_sub_u32 s38, s38, 1")
    a("s_cmp_eq_u32 s38, 0")
    a(f"s_cbranch_scc0 {lp}")
    a(f"{dn}:")

def chk_sent4(r, t):
    def f(sp):
        a(f"v_max3_u32 {t}, v{r}, v{r+1}, v{r+2}")
        a(f"v_max_u32 {t}, {t}, v{r+3}")
        a(f"v_cmp_eq_u32 {sp}, -1, {t}")
    return f
def chk_tag(regs, t):
    def f(sp):
        if len(regs) == 1: a(f"v_cmp_ne_u32 {sp}, s6, v{regs[0]}")
        else:
            a(f"v_xor_b32 {t}, v{regs[0]}, v{regs[1]}")
            a(f"v_cmp_ne_u32 {sp}, s6, v{regs[0]}")
            a(f"v_cmp_ne_u32 vcc, 0, {t}")
            a(f"s_or_b64 {sp}, {sp}, vcc")
    return f

def lds_flag_wait(name, off, nwords, extra_reads, expect, zero, tmpbase, ge=False):
    h = spin_head(name)
    for q in range(nwords // 4):
        a(f"ds_read_b128 v[{tmpbase+4*q}:{tmpbase+4*q+3}], {zero} offset:{L_FL+off+16*q}")
    for x in extra_reads: a(x)
    a("s_waitcnt lgkmcnt(0)")
    t = tmpbase
    a(f"v_add3_u32 v{t}, v{t}, v{t+1}, v{t+2}")
    if nwords == 4: a(f"v_add_u32 v{t}, v{t}, v{t+3}")
    else:
        a(f"v_add3_u32 v{t+4}, v{t+4}, v{t+5}, v{t+6}")
        a(f"v_add3_u32 v{t}, v{t}, v{t+3}, v{t+7}")
        a(f"v_add_u32 v{t}, v{t}, v{t+4}")
    a(f"v_cmp_{'gt' if ge else 'ne'}_u32 vcc, {expect}, v{t}")
    a("s_cmp_eq_u64 vcc, 0")
    spin_tail(h)

hdr = open(f"cdna_kernels/{NAME}.s.ref").read().split("; Override launch")[0]
a.raw(hdr.rstrip())
a.raw(f"; @launch grid=(256,1,1) block=(768,1,1) lds={LDS_BYTES}")
a.raw('.amdgcn_target "amdgcn-amd-amdhsa--gfx950"')
a.raw(".text")
a.raw(f".globl {NAME}_kernel\n.p2align 8\n.type {NAME}_kernel,@function\n{NAME}_kernel:")


WARM = int(opts.get("warm", 0))
FAST = int(opts.get("fast", 1)); FASTQ = int(opts.get("fastq", 1))
pads = []
def pad(name, over=False):
    if not WARM: return
    if over: a(f"s_branch L_padskip_{name}")
    a(f"L_pad_{name}:")
    a("s_setpc_b64 s[62:63]")
    if over: a(f"L_padskip_{name}:")
    pads.append(name)
def touch(*names):
    if not WARM: return
    for n in names: a(f"s_call_b64 s[62:63], L_pad_{n}")

N0 = int(opts.get("n0", 6)); S1G = int(opts.get("s1g", 2)); AD = int(opts.get("ad", 16)); VD = int(opts.get("vd", 16)); VN = int(opts.get("vn", 0)); KVW = int(opts.get("kvw", 4))
a("s_cmp_ge_u32 s2, 256")
a("s_cbranch_scc1 L_end")
a("s_load_dwordx16 s[8:23], s[0:1], 0")
a("s_load_dwordx8 s[24:31], s[0:1], 64")
ts(0)
a("v_lshrrev_b32 v2, 6, v0")
a("v_and_b32 v1, 63, v0")
a("s_and_b32 s4, s2, 7")
a("s_lshr_b32 s5, s2, 3")
a("v_readfirstlane_b32 s3, v2")
a("v_lshrrev_b32 v3, 3, v1")
a("v_and_b32 v4, 7, v1")
a("v_mov_b32 v5, 0")
a("v_lshlrev_b32 v6, 2, v1")
a(f"ds_write_b32 v6, v5 offset:{L_FL}")
a("s_lshr_b32 s39, s5, 1")
a("s_and_b32 s33, s5, 1")
a("s_cmp_ge_u32 s3, 4")
a("s_cbranch_scc1 L_hi")
a("s_lshr_b32 s44, s5, 3")
a("s_and_b32 s45, s5, 7")
a("v_min_u32 v6, 55, v1")
a("v_lshlrev_b32 v6, 4, v6")
a("s_lshl_b32 s48, s3, 5")
a("v_lshl_add_u32 v15, v3, 2, s48")
a("v_min_u32 v14, 108, v15")
a("s_mul_i32 s47, s44, 112")
a("v_add_u32 v14, s47, v14")
a("v_lshlrev_b32 v12, 1, v14")
a("s_lshl_b32 s51, s4, 10")
a("s_lshl_b32 s52, s45, 7")
a("s_add_u32 s51, s51, s52")
a("v_lshl_add_u32 v32, v4, 4, s51")
a("v_lshl_add_u32 v32, v14, 13, v32")
a("v_add_u32 v33, 0x2000, v32")
a("v_add_u32 v34, 0x4000, v32")
a("v_add_u32 v35, 0x6000, v32")
a("s_waitcnt lgkmcnt(0)")
a(f"global_load_dwordx4 v[36:39], v6, {X}")
a(f"global_load_dwordx2 v[12:13], v12, {X}")
for i in range(4):
    a(f"global_load_dwordx4 v[{16+4*i}:{19+4*i}], v{32+i}, {WQ}{NTQ}")
a("s_barrier")
a("s_branch L_s1")
a.flush_hist()
a("L_hi:")
N1 = int(opts.get("n1", 8)); HQ = int(opts.get("hq", 8));
a("s_lshl_b32 s43, s4, 22")
a("s_lshl_b32 s7, s39, 16")
a("s_add_u32 s43, s43, s7")
a(f"s_add_u32 s43, s43, {6144*512}")
a("s_and_b32 s44, s3, 3")
a("s_lshr_b32 s7, s3, 3")
a("s_cmp_eq_u32 s7, s33")
a("s_cbranch_scc0 L_B_hi")
a("s_lshl_b32 s47, s44, 11")
a("s_add_u32 s46, s43, s47")
a("v_lshlrev_b32 v6, 13, v3")
a("v_lshl_add_u32 v6, v4, 4, v6")
a("v_add_u32 v6, s46, v6")
KA = int(opts.get("ka", 12))
KB = 16 - KA
a(f"s_mul_i32 s7, s33, {KA*128}")
a("v_add_u32 v7, s7, v6")
a("s_waitcnt lgkmcnt(0)")
for i in range(KA):
    if i == min(N0, KB): a("s_barrier")
    if i == KB:
        a("s_cmp_eq_u32 s33, 1")
        a("s_cbranch_scc1 L_A_k1")
    if i >= N0: a(f"s_waitcnt vmcnt({N0-1})")
    a(f"global_load_dwordx4 v[{64+4*i}:{67+4*i}], v7, {K} offset:{i*128}{NTK if i >= KB else NT}")
a("s_branch L_A_k1")
a.flush_hist()
a("L_B_hi:")
if int(opts.get("cpf", 1)):
    a("s_getpc_b64 s[36:37]")
    a("L_pc:")
    a("v_and_b32 v5, 255, v0")
    a("v_lshlrev_b32 v5, 7, v5")
    a("v_cmp_gt_u32 vcc, L_codeend-L_pc, v5")
    a("v_cndmask_b32 v5, 0, v5, vcc")
    a("global_load_dword v167, v5, s[36:37]")
if WARM:
    for u_, n_ in enumerate(("s1b", "s1c", "k1", "v2", "bh2", "h1", "wo1", "ffn1")):
        sk = lab("et")
        a(f"s_cmp_eq_u32 s3, {11-u_}")
        a(f"s_cbranch_scc0 {sk}")
        touch(n_)
        a(f"{sk}:")
a("s_waitcnt lgkmcnt(0)")
a("s_barrier")
if int(opts.get("tw", 1)):
    a("s_mul_i32 s7, s4, 458752")
    a("s_load_dword s46, s[16:17], s7")
    a("s_add_u32 s7, s7, 458748")
    a("s_load_dword s47, s[16:17], s7")
    a("s_load_dword s48, s[20:21], 0")
    a("s_mov_b32 s7, 1605628")
    a("s_load_dword s49, s[20:21], s7")
    a("s_mul_i32 s7, s4, 200704")
    a("s_load_dword s50, s[24:25], s7")
    a("s_add_u32 s7, s7, 200700")
    a("s_load_dword s51, s[24:25], s7")
    a("s_load_dword s52, s[22:23], 0")
    a("s_load_dword s53, s[26:27], 0")
    a("s_load_dword s54, s[12:13], s43")
    a("s_waitcnt lgkmcnt(0)")
a("s_cmp_eq_u32 s33, 1")
a("s_cbranch_scc0 L_A_v")
a("s_branch L_B_hi2")
a.flush_hist()
a("L_s1:")
if DEBUG:
    for k in range(1, 16): a(f"s_mov_b64 s[{64+2*k}:{65+2*k}], 0")
ts(1)
a(f"s_mov_b32 {SEL_LO}, 0x05040100")
a(f"s_mov_b32 {SEL_HI}, 0x07060302")
a(f"s_mov_b32 {MHI}, 0xffff0000")
a("v_lshlrev_b32 v2, 3, v4")
a("v_bfe_u32 v5, v1, 3, 1")
a("v_lshl_add_u32 v2, v5, 2, v2")
a("v_bfe_u32 v5, v1, 4, 1")
a("v_lshl_add_u32 v2, v5, 1, v2")
a("v_lshrrev_b32 v5, 5, v1")
a("v_add_u32 v2, v2, v5")
a("s_lshl_b32 s7, s3, 2")
a("v_mov_b32 v10, s7")
a("v_mov_b32 v11, 1")
a("v_cmp_gt_u32 vcc, 112, v15")
a("s_mov_b64 s[34:35], vcc")
a("s_cmp_lg_u32 s3, 3")
a("s_cbranch_scc1 L_s1_noep")
a(f"s_load_dword s6, {WS}, 0")
a("L_s1_noep:")
a("v_cmp_gt_u32 vcc, 56, v1")
a("s_waitcnt vmcnt(5)")
for k in range(4):
    a(f"v_lshlrev_b32 v{40+2*k}, 16, v{36+k}")
    a(f"v_and_b32 v{41+2*k}, {MHI}, v{36+k}")
a("v_add_f32 v48, v40, v41")
a("v_mul_f32 v49, v40, v40")
a("v_add_f32 v50, v42, v43")
a("v_mul_f32 v51, v42, v42")
a("v_fmac_f32 v49, v41, v41")
a("v_fmac_f32 v51, v43, v43")
a("v_add_f32 v48, v48, v44")
a("v_add_f32 v50, v50, v46")
a("v_fmac_f32 v49, v44, v44")
a("v_fmac_f32 v51, v46, v46")
a("v_add_f32 v48, v48, v45")
a("v_add_f32 v50, v50, v47")
a("v_fmac_f32 v49, v45, v45")
a("v_fmac_f32 v51, v47, v47")
a("v_add_f32 v48, v48, v50")
a("v_add_f32 v49, v49, v51")
a("v_cndmask_b32 v48, 0, v48, vcc")
a("v_cndmask_b32 v49, 0, v49, vcc")
wave_sum2("v48", "v49", "s54", "s55")
ln_finish("s54", "s55", "v50", "v51", "v52")
pad("s1b", over=True)
a("s_waitcnt vmcnt(4)")
a("v_lshlrev_b32 v40, 16, v12")
a(f"v_and_b32 v41, {MHI}, v12")
a("v_lshlrev_b32 v42, 16, v13")
a(f"v_and_b32 v43, {MHI}, v13")
for k in range(4): a(f"v_sub_f32 v{40+k}, v{40+k}, v50")
a("v_cvt_pk_bf16_f32 v12, v40, v41")
a("v_cvt_pk_bf16_f32 v13, v42, v43")
a("v_lshlrev_b32 v40, 16, v12")
a(f"v_and_b32 v41, {MHI}, v12")
a("v_lshlrev_b32 v42, 16, v13")
a(f"v_and_b32 v43, {MHI}, v13")
for k in range(4): a(f"v_mul_f32 v{40+k}, v{40+k}, v51")
a("v_cvt_pk_bf16_f32 v12, v40, v41")
a("v_cvt_pk_bf16_f32 v13, v42, v43")
a("v_cndmask_b32 v12, 0, v12, s[34:35]")
a("v_cndmask_b32 v13, 0, v13, s[34:35]")
a("v_lshlrev_b32 v5, 2, v0")
a("v_mov_b32 v6, 0")
a("s_waitcnt vmcnt(2)")
perm_pair(16, 20, R(40, 8))
for j in range(8): a(f"v_dot2_f32_bf16 v{56+j}, v{40+j}, v12, 0")
a("s_waitcnt vmcnt(0)")
ts(2)
perm_pair(24, 28, R(48, 8))
for j in range(8): a(f"v_dot2_f32_bf16 v{56+j}, v{48+j}, v13, v{56+j}")
reduce8_hi(R(56, 8), 40)
a("s_cmp_eq_u32 s3, 3")
a("s_cbranch_scc1 L_s1_coll")
a(f"ds_write_b32 v5, v40 offset:{L_S1}")
a(f"ds_write_b32 v10, v11 offset:{L_FL}")
a(f"s_load_dword s6, {WS}, 0")
a("s_branch L_s1_done")
a.flush_hist()
pad("s1c")
a("L_s1_coll:")
a("v_lshlrev_b32 v5, 2, v1")
a("s_lshl_b32 s7, s4, 14")
a("s_lshl_b32 s51, s45, 11")
a("s_add_u32 s7, s7, s51")
a("s_lshl_b32 s51, s44, 9")
a("s_add_u32 s7, s7, s51")
a(f"s_add_u32 s7, s7, {QG}")
a("v_lshl_add_u32 v8, v2, 3, s7")
lds_flag_wait("s1", 0, 4, [f"ds_read_b32 v{41+w}, v5 offset:{L_S1+256*w}" for w in range(3)], 3, "v6", 56)
a("s_add_u32 s7, s6, 1")
a("v_add_f32 v40, v40, v41")
a("v_add_f32 v42, v42, v43")
a("v_mov_b32 v41, s7")
a("v_add_f32 v40, v40, v42")
if FASTQ:
    a(f"v_add_u32 v9, {FO}, v8")
    a(f"global_store_dwordx2 v9, v[40:41], {WS}")
a(f"global_store_dwordx2 v8, v[40:41], {WS} sc1")
a(f"ds_write_b32 v6, v11 offset:{L_FL+0x60}")
if opts.get("ack"):
    ts(3)
    a("s_waitcnt vmcnt(1)")
    ts(10)
    a("s_waitcnt vmcnt(0)")
    ts(11)
    a("s_branch L_s1_done2")
a("L_s1_done:")
ts(3)
a("L_s1_done2:")
a("s_cmp_eq_u32 s33, 1")
a("s_cbranch_scc1 L_B_go")

a("s_setprio 3")
a("s_lshl_b32 s7, s4, 14")
a("s_lshl_b32 s51, s3, 12")
a("s_add_u32 s7, s7, s51")
a(f"s_add_u32 s7, s7, {QG}")
a("v_lshl_add_u32 v9, v1, 4, s7")
a("s_lshl_b32 s7, s3, 8")
a("v_lshl_add_u32 v8, v1, 2, s7")
a("s_cmp_lg_u32 s3, 0")
a("s_cbranch_scc1 L_A_h2")
a("s_lshl_b32 s7, s4, 14")
a("s_lshl_b32 s51, s39, 9")
a("s_add_u32 s7, s7, s51")
a(f"s_add_u32 s7, s7, {OP}")
a("v_lshrrev_b32 v5, 5, v1")
a("v_lshlrev_b32 v5, 13, v5")
a("v_and_b32 v7, 31, v1")
a("v_lshl_add_u32 v5, v7, 4, v5")
a("v_add_u32 v5, s7, v5")
a("v_mov_b32 v12, -1\nv_mov_b32 v13, -1\nv_mov_b32 v14, -1\nv_mov_b32 v15, -1")
a(f"global_store_dwordx4 v5, v[12:15], {WS} sc1")
if FAST:
    a("s_lshl_b32 s7, s4, 14")
    a("s_lshl_b32 s51, s39, 4")
    a("s_add_u32 s7, s7, s51")
    a(f"s_add_u32 s7, s7, {FO+OP}")
    a("v_lshl_add_u32 v5, v1, 8, s7")
    a(f"global_store_dwordx4 v5, v[12:15], {WS}")
a("s_getreg_b32 s52, hwreg(HW_REG_XCC_ID)")
a("s_lshl_b32 s7, s4, 11")
a("s_lshl_b32 s51, s39, 7")
a("s_add_u32 s7, s7, s51")
a(f"s_add_u32 s7, s7, {RDA}")
a("v_mov_b32 v5, s7")
a("s_waitcnt vmcnt(0) lgkmcnt(0)")
a("s_add_u32 s7, s6, 1")
a("v_mov_b32 v12, s7")
a("v_mov_b32 v13, s52")
a("s_mov_b64 exec, 1")
a(f"global_store_dwordx2 v5, v[12:13], {WS} sc1")
a("s_mov_b64 exec, -1")
a("L_A_h2:")
if int(opts.get("hg", 1)): lds_flag_wait("hg", 0x80, 4, [], 4, "v6", 56)
a("s_waitcnt lgkmcnt(0)")
a("s_add_u32 s6, s6, 1")
ts(8)
poll("qp", [f"global_load_dwordx4 v[{48+4*i}:{51+4*i}], v9, {WS} offset:{i*1024} sc1" for i in range(4)],
     [chk_tag([49+4*i, 51+4*i], "v5") for i in range(4)], pre=(f"v_xor_b32 v9, {FO}, v9" if FASTQ else None))
ts(4)
a("v_add_f32 v48, v48, v52")
a("v_add_f32 v50, v50, v54")
a("v_add_f32 v56, v56, v60")
a("v_add_f32 v58, v58, v62")
a("v_permlane32_swap_b32 v48, v56")
a("v_permlane32_swap_b32 v50, v58")
a("v_add_f32 v48, v48, v56")
a("v_add_f32 v50, v50, v58")
a("v_cvt_pk_bf16_f32 v48, v48, v50")
a(f"ds_write_b32 v8, v48 offset:{L_Q}")
a(f"ds_write_b32 v10, v11 offset:{L_FL+0x20}")
ts(5)
a("s_cmp_eq_u32 s3, 0")
a("s_cbranch_scc1 L_A_soft")
APF = int(opts.get("apf", 0))
if APF:
    lds_flag_wait("aq", 0x20, 4, [], 4, "v6", 56)
    a("s_mul_i32 s7, s4, 458752")
    a("s_mul_i32 s51, s39, 28672")
    a("s_add_u32 s7, s7, s51")
    a("s_sub_u32 s51, s3, 1")
    a("s_mul_i32 s51, s51, 9216")
    a("s_add_u32 s7, s7, s51")
    a("v_lshl_add_u32 v5, v1, 4, s7")
    a("v_add_u32 v7, 0x1000, v5")
    a("v_add_u32 v8, 0x2000, v5")
    for i in range(10):
        r = (5, 7, 8)[i >> 2]
        a(f"global_load_dwordx4 v[{64+4*i}:{67+4*i}], v{r}, {WO} offset:{(i&3)*1024}{NTW}")
    a(f"ds_write_b32 v10, v11 offset:{L_FL+0x90}")
end_wave()
pad("h1")
a("L_A_soft:")
a("v_lshlrev_b32 v5, 4, v1")
a("v_lshlrev_b32 v7, 3, v1")
a("s_lshl_b32 s7, s4, 11")
a("s_lshl_b32 s51, s39, 7")
a("s_add_u32 s7, s7, s51")
a(f"s_add_u32 s7, s7, {LSE}")
a("v_lshrrev_b32 v12, 5, v1")
a("s_lshl_b32 s51, s4, 8")
a("s_lshl_b32 s52, s39, 3")
a("s_add_u32 s51, s51, s52")
a(f"s_add_u32 s51, s51, {FO+LSE}")
a("v_lshl_add_u32 v13, v12, 7, s51")
a("v_lshl_add_u32 v12, v12, 3, s7")
a("v_mov_b32 v33, s6")
a("s_mov_b32 s34, 1")
a("s_mov_b32 s35, 1")
lds_flag_wait("sc", 0x40, 4, [f"ds_read_b128 v[16:19], v5 offset:{L_SC}"], 4, "v6", 56)
ts(6)
a("v_max3_f32 v32, v16, v17, v18")
a("v_max_f32 v32, v32, v19")
xlane("v_max_f32", "v32", "v34", ["q1", "q2", "hm", "rm", "p16"])
for e in range(4): a(f"v_sub_f32 v{16+e}, v{16+e}, v32")
for e in range(4): a(f"v_exp_f32 v{16+e}, v{16+e}")
a("v_add_f32 v35, v16, v17")
a("v_add_f32 v36, v18, v19")
a("v_add_f32 v35, v35, v36")
xlane("v_add_f32", "v35", "v34", ["q1", "q2", "hm", "rm", "p16"])
a("v_rcp_f32 v36, v35")
a("v_log_f32 v35, v35")
for e in range(4): a(f"v_mul_f32 v{16+e}, v{16+e}, v36")
a("v_cvt_pk_bf16_f32 v16, v16, v17")
a("v_cvt_pk_bf16_f32 v17, v18, v19")
a(f"ds_write_b64 v7, v[16:17] offset:{L_P}")
a(f"ds_write_b32 v6, v11 offset:{L_FL+0x50}")
a("v_add_f32 v32, v32, v35")
a("s_mov_b64 exec, s[34:35]")
if FAST:
    a(f"global_store_dwordx2 v13, v[32:33], {WS}")
a(f"global_store_dwordx2 v12, v[32:33], {WS} sc1")
a("s_mov_b64 exec, -1")
ts(7)
if int(opts.get("fpf", 1)):
    a("s_setprio 0")
    a("s_mul_i32 s7, s39, 28*3584")
    a("s_mul_i32 s51, s4, 448")
    a("s_add_u32 s7, s7, s51")
    a("v_min_u32 v16, 6, v4")
    a("v_min_u32 v17, 6, v3")
    a("v_mul_u32_u24 v17, 3584, v17")
    a("v_lshl_add_u32 v17, v16, 6, v17")
    a("v_add_u32 v17, s7, v17")
    a("s_mul_i32 s7, s4, 200704")
    a("s_mul_i32 s51, s39, 12544")
    a("s_add_u32 s7, s7, s51")
    a("v_min_u32 v18, 48, v1")
    a("v_lshl_add_u32 v18, v18, 6, s7")
    lds_flag_wait("fp", 0xA0, 4, [], 4, "v6", 56)
    for u_ in range(4):
        a(f"global_load_dword v{40+u_}, v17, {W1}{NTW}")
        a(f"global_load_dword v{44+u_}, v18, {W2}{NTW}")
        if u_ < 3:
            a(f"v_add_u32 v17, {7*3584}, v17")
            a("v_add_u32 v18, 3136, v18")
end_wave()

pad("k1")
a("L_A_k1:")
a("s_lshl_b32 s7, s44, 2")
a("v_mov_b32 v45, s7")
a("v_mov_b32 v46, 1")
a("v_mov_b32 v47, 0")
if DEBUG:
    for k in range(1, 16): a(f"s_mov_b64 s[{64+2*k}:{65+2*k}], 0")
a("s_cmp_eq_u32 s33, 1")
a("s_cbranch_scc1 L_B_pf")
KG = int(opts.get("kg", 3))
a(f"s_waitcnt vmcnt({KG})")
ts(1)
a(f"ds_write_b32 v45, v46 offset:{L_FL+0x80}")
for i in range(KA, 16):
    a(f"global_load_dwordx4 v[{64+4*i}:{67+4*i}], v6, {K} offset:{i*128}{NT}")
a(f"ds_write_b32 v45, v46 offset:{L_FL+0x70}")
ts(2)
a("L_A_k2:")
a(f"s_mov_b32 {MHI}, 0xffff0000")
a("s_lshl_b32 s7, s44, 4")
a(f"s_add_u32 s7, s7, {L_SC}")
a("v_lshl_add_u32 v44, v3, 6, s7")
a("v_mov_b32 v47, 0")
a("v_lshlrev_b32 v5, 4, v4")
for i in range(8): a(f"v_mov_b32 v{48+i}, 0")
a(f"s_mov_b32 s7, {f32(0.0625*LOG2E)}")
lds_flag_wait("qx", 0x20, 4,
    [f"ds_read_b128 v[{128+(hh*4+j)*4}:{131+(hh*4+j)*4}], v5 offset:{L_Q + hh*512 + j*128}" for hh in range(2) for j in range(4)],
    4, "v47", 56)
a("s_setprio 2")
ts(4)
for gp in range(2):
    a(f"s_waitcnt vmcnt({8-8*gp})")
    if gp == 1: ts(5)
    for j in range(4):
        for k in range(4):
            for grp in (2*gp, 2*gp+1):
                for hh in range(2):
                    a(f"v_dot2c_f32_bf16 v{48+hh*4+grp}, v{64+(grp*4+j)*4+k}, v{128+(hh*4+j)*4+k}")
pad("k3", over=True)
for m in ("quad_perm:[1,0,3,2]", "quad_perm:[2,3,0,1]", "row_half_mirror"):
    for i in range(8):
        a(f"v_add_f32_dpp v{48+i}, v{48+i}, v{48+i} {m} {DPPM}")
for q in range(4): a(f"v_cvt_pk_bf16_f32 v{56+q}, v{48+2*q}, v{49+2*q}")
for q in range(4):
    a(f"v_lshlrev_b32 v{48+2*q}, 16, v{56+q}")
    a(f"v_and_b32 v{49+2*q}, {MHI}, v{56+q}")
for i in range(8): a(f"v_mul_f32 v{48+i}, s7, v{48+i}")
a("ds_write_b128 v44, v[48:51]")
a("ds_write_b128 v44, v[52:55] offset:512")
a(f"ds_write_b32 v45, v46 offset:{L_FL+0x40}")
ts(6)
if int(opts.get("wpf", 0)):
    a("s_setprio 0")
    a("s_mul_i32 s7, s4, 458752")
    a("s_mul_i32 s51, s39, 28672")
    a("s_add_u32 s7, s7, s51")
    a("s_mul_i32 s51, s44, 7168")
    a("s_add_u32 s7, s7, s51")
    a("v_lshl_add_u32 v5, v1, 4, s7")
    a("v_add_u32 v6, 0x1000, v5")
    for i in range(7):
        a(f"global_load_dwordx4 v[{64+4*i}:{67+4*i}], v{5+(i>>2)}, {WO} offset:{(i&3)*1024}{NTW}")
end_wave()

pad("v2")
a("L_A_v:")
if DEBUG:
    for k in range(1, 16): a(f"s_mov_b64 s[{64+2*k}:{65+2*k}], 0")
a(f"s_mov_b32 {SEL_LO}, 0x05040100")
a(f"s_mov_b32 {SEL_HI}, 0x07060302")
a("s_lshl_b32 s52, s44, 7")
a("s_add_u32 s51, s43, s52")
a("v_bfe_u32 v5, v1, 3, 1")
a("v_lshlrev_b32 v6, 14, v5")
a("v_lshrrev_b32 v10, 4, v1")
a("v_lshl_add_u32 v6, v10, 12, v6")
a("v_lshl_add_u32 v6, v4, 4, v6")
a("v_add_u32 v6, s51, v6")
a("v_add_u32 v7, 0x8000, v6")
a("v_mov_b32 v11, 0")
a("s_lshl_b32 s7, s4, 14")
a("s_lshl_b32 s51, s39, 9")
a("s_add_u32 s7, s7, s51")
a("s_add_u32 s7, s7, s52")
a(f"s_add_u32 s7, s7, {OP}")
a("v_lshlrev_b32 v8, 13, v5")
a("v_lshl_add_u32 v8, v4, 4, v8")
a("v_add_u32 v8, s7, v8")
a("s_lshl_b32 s7, s4, 14")
a("s_lshl_b32 s51, s44, 11")
a("s_add_u32 s7, s7, s51")
a("s_lshl_b32 s51, s39, 4")
a("s_add_u32 s7, s7, s51")
a(f"s_add_u32 s7, s7, {FO+OP}")
a("v_lshlrev_b32 v12, 13, v5")
a("v_lshl_add_u32 v12, v4, 8, v12")
a("v_add_u32 v12, s7, v12")
a("s_lshl_b32 s7, s44, 2")
a("v_mov_b32 v13, s7")
a("v_mov_b32 v14, 1")
a("v_lshrrev_b32 v5, 1, v1")
a("v_xor_b32 v5, v5, v1")
a("v_and_b32 v5, 1, v5")
a("v_lshlrev_b32 v9, 8, v5")
a("v_and_b32 v5, 1, v1")
a("v_lshl_add_u32 v9, v5, 6, v9")
a("v_lshl_add_u32 v9, v10, 4, v9")
if WARM:
    for u_, names in enumerate((("h1",), ("k3",), ("v3",), ("v4",))):
        sk = lab("vt")
        a(f"s_cmp_eq_u32 s44, {u_}")
        a(f"s_cbranch_scc0 {sk}")
        touch(*names)
        a(f"{sk}:")
lds_flag_wait("vg", int(opts.get("vg", 0x20)), 4, [], 3 if opts.get("vg") == "144" else 4, "v11", 32)
ts(1)
def vperm(t):
    if t < 4: perm_pair(40+8*t, 44+8*t, [104+4*j+t for j in range(8)])
    else: perm_pair(40+8*t, 44+8*t, [40+4*j+(t-4) for j in range(8)])
done_t = 0
for i in range(16):
    sg, e = divmod(i, 8)
    known = -1
    if VD <= i < VN:
        a(f"s_waitcnt vmcnt({VD-1})"); known = i - VD
    a(f"global_load_dwordx4 v[{40+4*i}:{43+4*i}], v{6+sg}, {V} offset:{e*512}{NTV}")
    while 2*done_t+1 <= known and done_t < 4:
        vperm(done_t); done_t += 1
    if i == 9: pad("v3", over=True)
ts(2)
while done_t < 4:
    a(f"s_waitcnt vmcnt({14-2*done_t})"); vperm(done_t); done_t += 1
PRE = int(opts.get("vpre", 2))
for t in range(4, 4+PRE):
    a(f"s_waitcnt vmcnt({14-2*t})"); vperm(t)
ts(3)
pad("v4", over=True)
lds_flag_wait("pw", 0x50, 4, [f"ds_read_b128 v[16:19], v9 offset:{L_P}", f"ds_read_b128 v[20:23], v9 offset:{L_P+128}"], 1, "v11", 32)
a("s_setprio 3")
ts(6)
for j in range(8):
    a(f"v_mfma_f32_16x16x32_bf16 v[{136+4*j}:{139+4*j}], v[16:19], v[{104+4*j}:{107+4*j}], 0")
for t in range(4+PRE, 8):
    a(f"s_waitcnt vmcnt({14-2*t})")
    if t == 7: ts(7)
    vperm(t)
for j in range(8):
    a(f"v_mfma_f32_16x16x32_bf16 v[{136+4*j}:{139+4*j}], v[20:23], v[{40+4*j}:{43+4*j}], v[{136+4*j}:{139+4*j}]")
for j in range(8):
    d = 136 + 4*j
    a(f"v_add_f32_dpp v{24+j}, v{d+3}, v{d} row_ror:8 row_mask:0xf bank_mask:0x3")
    a(f"v_add_f32_dpp v{24+j}, v{d+2}, v{d+1} row_ror:8 row_mask:0xf bank_mask:0xc")
for t in range(4): a(f"v_cvt_pk_bf16_f32 v{36+t}, v{24+2*t}, v{25+2*t}")
for t in range(4): a(f"v_min_u32 v{36+t}, -2, v{36+t}")
a("s_mov_b64 exec, 0xffff")
if FAST: a(f"global_store_dwordx4 v12, v[36:39], {WS}")
a(f"global_store_dwordx4 v8, v[36:39], {WS} sc1")
a("s_mov_b64 exec, -1")
ts(8)
if opts.get("ack"):
    a("s_waitcnt vmcnt(1)")
    ts(10)
    a("s_waitcnt vmcnt(0)")
    ts(11)
a(f"ds_write_b32 v13, v14 offset:{L_FL+0xA0}")
end_wave()

a("L_B_pf:")
PD = int(opts.get("pd", 4)); PN = int(opts.get("pn", 4)); PW = int(opts.get("pw", 12)); XS = int(opts.get("xs", 0)); WPF2 = int(opts.get("wpf2", 1))
a("s_lshl_b32 s52, s44, 7")
a("s_add_u32 s51, s43, s52")
a("v_bfe_u32 v5, v1, 3, 1")
a("v_lshlrev_b32 v8, 14, v5")
a("v_lshrrev_b32 v10, 4, v1")
a("v_lshl_add_u32 v8, v10, 12, v8")
a("v_lshl_add_u32 v8, v4, 4, v8")
a("v_add_u32 v8, s51, v8")
a("v_add_u32 v9, 0x8000, v8")
for n, i in enumerate(range(XS, 16)):
    if n < PN: a(f"s_waitcnt vmcnt({PD-1})")
    if n == PN and S1G == 2: lds_flag_wait("pg", 0x60, 4, [], 1, "v47", 56)
    a(f"global_load_dwordx4 v[{100+4*n}:{103+4*n}], v{8+(i>>3)}, {V} offset:{(i&7)*512}{NT}")
ts(1)
if PW < 16: a(f"s_waitcnt vmcnt({PW})")
a(f"ds_write_b32 v45, v46 offset:{L_FL+0x70}")
if WPF2:
    a("s_cmp_lt_u32 s39, 7")
    a("s_cbranch_scc1 L_B_pf2")
    a("s_sub_u32 s7, s39, 7")
    a("s_lshl_b32 s7, s7, 2")
    a("s_add_u32 s7, s7, s44")
    a("s_mul_i32 s7, s7, 6400")
    a("s_min_u32 s7, s7, 222976")
    a("s_mul_i32 s51, s4, 458752")
    a("s_add_u32 s7, s7, s51")
    a("s_add_u32 s7, s7, 229376")
    a("v_min_u32 v5, 49, v1")
    a("v_lshl_add_u32 v5, v5, 7, s7")
    a(f"global_load_dword v40, v5, {WO}{NTW}")
    a(f"global_load_dword v41, v5, {WO} offset:64{NTW}")
a(f"s_waitcnt vmcnt({int(opts.get('fw', 0))})")
a(f"ds_write_b32 v45, v46 offset:{L_FL+0xC0}")
a("s_branch L_B_pf3")
a("L_B_pf2:")
a("s_cmp_eq_u32 s3, 8")
a("s_cbranch_scc0 L_B_pf3")
a(f"s_load_dword s6, {WS}, 0")
a("s_lshl_b32 s7, s4, 11")
a(f"s_add_u32 s7, s7, {RDA}")
a("v_and_b32 v60, 15, v1")
a("v_lshl_add_u32 v61, v60, 7, s7")
a("s_getreg_b32 s54, hwreg(HW_REG_XCC_ID)")
a("s_setprio 3")
a("s_waitcnt lgkmcnt(0)")
a("s_add_u32 s6, s6, 1")
poll("ra", [f"global_load_dwordx2 v[62:63], v61, {WS} sc1"], [chk_tag([62], None)])
a("v_cmp_ne_u32 vcc, s54, v63")
a("s_cmp_eq_u64 vcc, 0")
a(f"s_cselect_b32 s7, {2 if FAST else 1}, 1")
a("v_mov_b32 v5, s7")
a(f"ds_write_b32 v47, v5 offset:{L_FL+0xB0}")
a("L_B_pf3:")
ts(2)
end_wave()
pad("bh2")
a("L_B_hi2:")
if DEBUG:
    for k in range(1, 16): a(f"s_mov_b64 s[{64+2*k}:{65+2*k}], 0")
a("s_cmp_lt_u32 s3, 7")
a("s_cbranch_scc1 L_B_join")
a("L_w7:")
a(f"s_load_dword s6, {WS}, 0")
a("v_mov_b32 v12, -1\nv_mov_b32 v13, -1\nv_mov_b32 v14, -1\nv_mov_b32 v15, -1")
a("s_cmp_lt_u32 s39, 14")
a("s_cbranch_scc0 L_B_exit")
a("s_cmp_lt_u32 s39, 7")
a("s_cbranch_scc0 L_w7_a")
a("s_lshl_b32 s7, s39, 3")
a("s_add_u32 s7, s7, s4")
a("s_lshl_b32 s7, s7, 7")
a(f"s_add_u32 s7, s7, {YP}")
a("v_lshl_add_u32 v5, v4, 4, s7")
a("s_mov_b64 exec, 0xff")
a(f"global_store_dwordx4 v5, v[12:15], {WS} sc1")
a("s_mov_b64 exec, -1")
a("s_branch L_w7_b")
a("L_w7_a:")
a("s_mul_i32 s57, s4, 7")
a("s_add_u32 s57, s57, s39")
a("s_sub_u32 s57, s57, 7")
a("s_mul_i32 s7, s57, 896")
a(f"s_add_u32 s7, s7, {ZP}")
a("v_min_u32 v6, 55, v1")
a("v_lshl_add_u32 v5, v6, 4, s7")
a(f"global_store_dwordx4 v5, v[12:15], {WS} sc1")
a("v_mov_b32 v6, 0")
a(f"global_load_ushort v16, v6, {OUT}")
a("L_w7_b:")
a("s_lshl_b32 s7, s39, 3")
a("s_add_u32 s7, s7, s4")
a("s_lshl_b32 s7, s7, 7")
a(f"s_add_u32 s7, s7, {RDY}")
a("v_mov_b32 v5, s7")
a("s_waitcnt vmcnt(0) lgkmcnt(0)")
a("s_add_u32 s7, s6, 1")
a("v_mov_b32 v6, s7")
a("s_mov_b64 exec, 1")
a(f"global_store_dword v5, v6, {WS} sc1")
a("s_mov_b64 exec, -1")
a("L_B_join:")
a(f"s_load_dword s6, {WS}, 0")
a(f"s_mov_b32 {SEL_LO}, 0x05040100")
a(f"s_mov_b32 {SEL_HI}, 0x07060302")
a(f"s_mov_b32 {MHI}, 0xffff0000")
a("v_lshlrev_b32 v2, 3, v4")
a("v_bfe_u32 v5, v1, 3, 1")
a("v_lshl_add_u32 v2, v5, 2, v2")
a("v_bfe_u32 v5, v1, 4, 1")
a("v_lshl_add_u32 v2, v5, 1, v2")
a("v_lshrrev_b32 v5, 5, v1")
a("v_add_u32 v2, v2, v5")
a("L_B_go:")
a("s_cmp_lt_u32 s39, 14")
a("s_cbranch_scc0 L_B_exit")
a("v_mov_b32 v6, 0")
WOG = int(opts.get("wog", 0x80))
a("s_cmp_lt_u32 s39, 7")
a("s_cbranch_scc0 L_B_go_f")
lds_flag_wait("pubw", 0x60, 8, [], 5, "v6", 56)
a("s_add_u32 s6, s6, 1")
a("s_branch L_stage_wo")
a("L_B_go_f:")
lds_flag_wait("pub", 0x60, 8, [], 5, "v6", 56)
a("s_add_u32 s6, s6, 1")
a("s_branch L_stage_ffn")
a("L_B_exit:")
end_wave()
pad("wo1")

a("L_stage_wo:")
ts(8)
a("s_lshl_b32 s7, s4, 9")
a("s_lshl_b32 s51, s3, 6")
a("s_add_u32 s7, s7, s51")
a("s_mul_i32 s7, s7, 896")
a("s_lshl_b32 s51, s39, 7")
a("s_add_u32 s7, s7, s51")
a("v_mul_u32_u24 v5, 896, v3")
a("v_lshl_add_u32 v5, v4, 4, v5")
a("v_add_u32 v5, s7, v5")
WD = int(opts.get("wd", 8))
for i in range(8):
    if i >= WD: a(f"s_waitcnt vmcnt({WD-1})")
    a(f"global_load_dwordx4 v[{8+4*i}:{11+4*i}], v5, {WO}{NTO}")
    if i < 7: a(f"v_add_u32 v5, {8*896}, v5")
a("v_and_b32 v60, 15, v1")
a("s_lshr_b32 s59, s3, 2")
a("s_and_b32 s58, s3, 3")
a("v_lshrrev_b32 v59, 4, v1")
a("s_lshl_b32 s7, s3, 13")
a(f"s_add_u32 s7, s7, {L_W}")
a("v_lshl_add_u32 v40, v1, 4, s7")
a("v_bfe_u32 v5, v1, 2, 2")
a("v_lshl_add_u32 v5, v59, 3, v5")
a("v_lshlrev_b32 v41, 7, v5")
a("v_and_b32 v5, 3, v1")
a("v_lshl_add_u32 v41, v5, 3, v41")
a("v_add_u32 v41, s7, v41")
a("v_bfe_u32 v5, v1, 4, 1")
a("v_lshlrev_b32 v45, 1, v5")
a("v_lshrrev_b32 v5, 5, v1")
a("v_add_u32 v45, v45, v5")
a("v_lshl_add_u32 v45, v45, 4, v60")
a("s_lshl_b32 s7, s3, 8")
a("v_lshl_add_u32 v45, v45, 2, s7")
a("v_and_b32 v5, 31, v1")
a("v_lshlrev_b32 v47, 3, v5")
a("s_lshl_b32 s7, s39, 3")
a("s_add_u32 s7, s7, s4")
a("s_lshl_b32 s7, s7, 7")
a(f"s_add_u32 s7, s7, {YP}")
a("v_lshl_add_u32 v46, v5, 2, s7")
a("s_lshl_b32 s55, s4, 1")
a("s_add_u32 s55, s55, s59")
a("v_mov_b32 v6, 0")
h = spin_head("dec")
a(f"ds_read_b32 v5, v6 offset:{L_FL+0xB0}")
a("s_waitcnt lgkmcnt(0)")
a("v_readfirstlane_b32 s52, v5")
a("s_cmp_lg_u32 s52, 0")
spin_tail(h)
a("s_cmp_eq_u32 s52, 2")
a("s_cbranch_scc1 L_wo_fast")
a("s_lshl_b32 s7, s4, 11")
a("s_lshl_b32 s51, s59, 3")
a("s_add_u32 s7, s7, s51")
a(f"s_add_u32 s7, s7, {LSE}")
a("v_lshl_add_u32 v48, v59, 9, s7")
a("s_movk_i32 s61, 128")
a("s_lshl_b32 s7, s55, 13")
a("s_lshl_b32 s51, s58, 7")
a("s_add_u32 s7, s7, s51")
a(f"s_add_u32 s7, s7, {OP}")
a("v_lshlrev_b32 v43, 9, v60")
a("v_lshl_add_u32 v43, v59, 4, v43")
a("v_add_u32 v43, s7, v43")
a("v_add_u32 v44, 64, v43")
a("s_branch L_wo_go")
a("L_wo_fast:")
a("s_lshl_b32 s7, s55, 7")
a(f"s_add_u32 s7, s7, {FO+LSE}")
a("v_lshl_add_u32 v48, v59, 5, s7")
a("s_movk_i32 s61, 8")
a("s_lshl_b32 s7, s55, 13")
a("s_lshl_b32 s51, s58, 11")
a("s_add_u32 s7, s7, s51")
a(f"s_add_u32 s7, s7, {FO+OP}")
a("v_lshl_add_u32 v43, v1, 4, s7")
a("v_add_u32 v44, 0x400, v43")
a("L_wo_go:")
a("v_add_u32 v49, s61, v48")
a("v_add_u32 v50, s61, v49")
a("v_add_u32 v51, s61, v50")
WL = [f"global_load_dwordx2 v[{96+2*i}:{97+2*i}], v{48+i}, {WS} sc1" for i in range(4)] + \
     [f"global_load_dwordx4 v[104:107], v43, {WS} sc1", f"global_load_dwordx4 v[108:111], v44, {WS} sc1"]
PQ = int(opts.get("pq", 6))
for i in range(8):
    if i == PQ:
        for x in WL: a(x)
    a(f"s_waitcnt vmcnt({7-i + (6 if i >= PQ else 0)})")
    a(f"ds_write_b128 v40, v[{8+4*i}:{11+4*i}] offset:{i*1024}")
if PQ >= 8:
    for x in WL: a(x)
for sg in range(2):
    for t in range(4):
        r = 64 + (sg*4 + t)*4
        a(f"ds_read_b64_tr_b16 v[{r}:{r+1}], v41 offset:{sg*4096 + t*32}")
        a(f"ds_read_b64_tr_b16 v[{r+2}:{r+3}], v41 offset:{sg*4096 + t*32 + 512}")
ts(9)
def alpha():
    a("v_max3_f32 v54, v96, v98, v100")
    a("v_max_f32 v54, v54, v102")
    xlane("v_max_f32", "v54", "v55", ["p16", "p32"])
    for i in range(4): a(f"v_sub_f32 v{96+2*i}, v{96+2*i}, v54")
    for i in range(4): a(f"v_exp_f32 v{96+2*i}, v{96+2*i}")
    a("v_add_f32 v54, v96, v98")
    a("v_add_f32 v56, v100, v102")
    a("v_add_f32 v54, v54, v56")
    xlane("v_add_f32", "v54", "v55", ["p16", "p32"])
    a("v_rcp_f32 v54, v54")
    for i in range(4): a(f"v_mul_f32 v{96+2*i}, v{96+2*i}, v54")
    ts(10)
poll2("op", WL, [chk_tag([97+2*i], None) for i in range(4)] + [chk_sent4(104, "v52"), chk_sent4(108, "v53")], 4, alpha)
a("s_waitcnt lgkmcnt(0)")
ts(11)
for t in range(4):
    a(f"v_mfma_f32_16x16x32_bf16 v[{112+4*t}:{115+4*t}], v[104:107], v[{64+4*t}:{67+4*t}], 0")
for t in range(4):
    a(f"v_mfma_f32_16x16x32_bf16 v[{112+4*t}:{115+4*t}], v[108:111], v[{80+4*t}:{83+4*t}], v[{112+4*t}:{115+4*t}]")
for t in range(4):
    a(f"v_mul_f32 v{52+t}, v96, v{112+4*t}")
    for r in range(1, 4): a(f"v_fmac_f32 v{52+t}, v{96+2*r}, v{112+4*t+r}")
a("v_permlane32_swap_b32 v52, v53")
a("v_permlane32_swap_b32 v54, v55")
a("v_add_f32 v52, v52, v53")
a("v_add_f32 v54, v54, v55")
a("v_permlane16_swap_b32 v52, v54")
a("v_add_f32 v52, v52, v54")
a(f"ds_write_b32 v45, v52 offset:{L_RED}")
a("s_waitcnt lgkmcnt(0)")
a("s_barrier")
ts(12)
a("s_cmp_lg_u32 s3, 0")
a("s_cbranch_scc1 L_wo_end")
for w in range(8): a(f"ds_read_b64 v[{80+2*w}:{81+2*w}], v47 offset:{L_RED + 256*w}")
a("s_mov_b32 s34, -1")
a("s_mov_b32 s35, 0")
a("s_waitcnt lgkmcnt(0)")
for (x, y) in ((80, 82), (84, 86), (88, 90), (92, 94), (80, 84), (88, 92), (80, 88)):
    a(f"v_add_f32 v{x}, v{x}, v{y}")
    a(f"v_add_f32 v{x+1}, v{x+1}, v{y+1}")
a("v_cvt_pk_bf16_f32 v80, v80, v81")
a("v_min_u32 v80, -2, v80")
a("s_mov_b64 exec, s[34:35]")
a(f"global_store_dword v46, v80, {WS} sc1")
a("s_mov_b64 exec, -1")
ts(13)
a("L_wo_end:")
end_wave()

a("L_stage_ffn:")
a("s_mul_i32 s57, s4, 7")
a("s_add_u32 s57, s57, s39")
a("s_sub_u32 s57, s57, 7")
a("s_cmp_eq_u32 s3, 7")
a("s_cbranch_scc1 L_final")
a("s_lshl_b32 s7, s3, 10")
a(f"s_add_u32 s7, s7, {RDY}")
a("v_lshl_add_u32 v6, v4, 7, s7")
poll("tg", [f"global_load_dword v5, v6, {WS} sc1"], [chk_tag([5], None)])
if FGATE == 100:
    a("v_mov_b32 v6, 0")
    lds_flag_wait("fg", 0xC0, 4, [], 4, "v6", 56)
elif FGATE:
    a("s_lshl_b32 s7, s4, 11")
    a(f"s_add_u32 s7, s7, {LSE+4}")
    a(f"v_and_b32 v5, {FGATE-1}, v1")
    a("v_lshl_add_u32 v6, v5, 7, s7")
    poll("fg", [f"global_load_dword v5, v6, {WS} sc1"], [chk_tag([5], None)])
a(f"s_mul_i32 s7, s3, {64*3584}")
a("s_lshl_b32 s51, s57, 6")
a("s_add_u32 s7, s7, s51")
a("v_lshrrev_b32 v43, 2, v1")
a("v_and_b32 v44, 3, v1")
a("v_mul_u32_u24 v5, 3584, v43")
a("v_lshl_add_u32 v5, v44, 4, v5")
a("v_add_u32 v5, s7, v5")
for i in range(4):
    a(f"global_load_dwordx4 v[{8+4*i}:{11+4*i}], v5, {W1}{NTW}")
    if i < 3: a(f"v_add_u32 v5, {16*3584}, v5")
a(f"s_mul_i32 s7, s57, {32*896}")
a("s_lshl_b32 s51, s3, 7")
a("s_add_u32 s7, s7, s51")
a("v_mul_u32_u24 v6, 896, v3")
a("v_lshl_add_u32 v6, v4, 4, v6")
a("v_add_u32 v5, s7, v6")
for i in range(4):
    a(f"global_load_dwordx4 v[{24+4*i}:{27+4*i}], v5, {W2}{NTW}")
    if i < 3: a(f"v_add_u32 v5, {8*896}, v5")
a("v_lshl_add_u32 v5, v2, 1, s51")
a(f"global_load_ushort v40, v5, {X}")
a("v_lshrrev_b32 v59, 4, v1")
a("v_and_b32 v60, 15, v1")
a("v_lshl_add_u32 v45, v59, 3, v4")
a("s_lshl_b32 s52, s57, 6")
a("v_lshl_add_u32 v5, v45, 1, s52")
a(f"global_load_ushort v42, v5, {B1}")
a(f"s_add_u32 s51, s51, {L_W2}")
a("v_add_u32 v41, s51, v6")
a("s_lshl_b32 s7, s3, 12")
a(f"s_add_u32 s7, s7, {L_W}")
a("v_lshl_add_u32 v47, v1, 4, s7")
a("v_bfe_u32 v5, v1, 2, 2")
a("v_lshl_add_u32 v5, v59, 3, v5")
a("v_lshlrev_b32 v48, 6, v5")
a("v_lshl_add_u32 v48, v44, 3, v48")
a("v_add_u32 v48, s7, v48")
a("v_mul_u32_u24 v49, 896, v5")
a("v_lshl_add_u32 v49, v44, 3, v49")
a("s_lshl_b32 s7, s3, 8")
a(f"s_add_u32 s7, s7, {L_W2}")
a("v_add_u32 v49, s7, v49")
a("s_lshl_b32 s7, s3, 10")
a(f"s_add_u32 s7, s7, {YP}")
a("v_lshl_add_u32 v46, v1, 4, s7")
a("s_lshl_b32 s7, s3, 7")
a("v_lshl_add_u32 v50, v2, 1, s7")
a("v_lshl_add_u32 v51, v59, 4, s7")
a("s_lshl_b32 s7, s3, 2")
a("v_lshl_add_u32 v54, v60, 5, s7")
a("v_lshlrev_b32 v55, 5, v45")
a("s_mul_i32 s7, s57, 896")
a("s_lshl_b32 s51, s3, 8")
a("s_add_u32 s7, s7, s51")
a(f"s_add_u32 s7, s7, {ZP}")
a("v_lshl_add_u32 v62, v1, 1, s7")
a("s_mov_b32 s58, 0x55555555")
a("s_mov_b32 s59, 0x55555555")
a("s_lshl_b32 s7, s3, 3")
a("v_mov_b32 v63, s7")
a("v_mov_b32 v61, 0")
for r in range(4): a(f"v_mov_b32 v{96+r}, 0x3f803f80")
for i in range(4):
    a(f"s_waitcnt vmcnt({9-i})")
    a(f"ds_write_b128 v47, v[{8+4*i}:{11+4*i}] offset:{i*1024}")
for sg in range(2):
    for t in range(2):
        r = 64 + (sg*2 + t)*4
        a(f"ds_read_b64_tr_b16 v[{r}:{r+1}], v48 offset:{sg*2048 + t*32}")
        a(f"ds_read_b64_tr_b16 v[{r+2}:{r+3}], v48 offset:{sg*2048 + t*32 + 256}")
a("s_waitcnt lgkmcnt(0)")
for t in range(2): a(f"v_mfma_f32_16x16x32_bf16 v[{100+4*t}:{103+4*t}], v[96:99], v[{64+4*t}:{67+4*t}], 0")
for t in range(2): a(f"v_mfma_f32_16x16x32_bf16 v[{100+4*t}:{103+4*t}], v[96:99], v[{72+4*t}:{75+4*t}], v[{100+4*t}:{103+4*t}]")
for i in range(4):
    a(f"s_waitcnt vmcnt({5-i})")
    a(f"ds_write_b128 v41, v[{24+4*i}:{27+4*i}] offset:{i*8*896}")
a(f"ds_write_b32 v54, v100 offset:{L_C}")
a(f"ds_write_b32 v54, v104 offset:{L_C+512}")
a("s_waitcnt vmcnt(0) lgkmcnt(0)")
a("s_barrier")
ts(9)
a(f"ds_read_b128 v[100:103], v55 offset:{L_C}")
a(f"ds_read_b128 v[104:107], v55 offset:{L_C+16}")
a("s_cmp_gt_u32 s3, 3")
a("s_cbranch_scc1 L_ffn_now2")
for T in range(8):
    if T == 4:
        a("s_cmp_eq_u32 s3, 3")
        a("s_cbranch_scc1 L_ffn_now2")
    r = 128 + 4*T
    a(f"ds_read_b64_tr_b16 v[{r}:{r+1}], v49 offset:{T*32}")
    a(f"ds_read_b64_tr_b16 v[{r+2}:{r+3}], v49 offset:{T*32 + 4*896}")
a("L_ffn_now2:")
a("v_lshlrev_b32 v40, 16, v40")
a("v_lshlrev_b32 v42, 16, v42")
a("s_mov_b32 s36, 0")
a("s_mov_b32 s37, 0x80000000")
a(f"v_mov_b32 v56, {f32(1.0/3)}")
a("s_waitcnt lgkmcnt(0)")
a("v_add_f32 v100, v100, v101")
a("v_add_f32 v102, v102, v103")
a("v_add_f32 v104, v104, v105")
a("v_add_f32 v100, v100, v102")
a("v_add_f32 v104, v104, v106")
a("v_add_f32 v57, v100, v104")
ts(10)
poll("yp", [f"global_load_dwordx4 v[96:99], v46, {WS} sc1"], [chk_sent4(96, "v52")])
ts(11)
for k in range(4):
    a(f"v_lshlrev_b32 v{104+2*k}, 16, v{96+k}")
    a(f"v_and_b32 v{105+2*k}, {MHI}, v{96+k}")
reduce8_hi(R(104, 8), 52)
bf16r("v52")
a("v_add_f32 v52, v52, v40")
a("v_cvt_pk_bf16_f32 v52, v52, v52")
a(f"ds_write_b16 v50, v52 offset:{L_H}")
a(f"ds_read_b128 v[96:99], v51 offset:{L_H}")
a(f"ds_read_b128 v[112:115], v51 offset:{L_H+64}")
a(f"v_and_b32 v52, {MHI}, v52")
a("v_mul_f32 v53, v52, v52")
wave_sum2("v52", "v53", None, None)
a("s_waitcnt lgkmcnt(0)")
for t in range(2): a(f"v_mfma_f32_16x16x32_bf16 v[{100+4*t}:{103+4*t}], v[96:99], v[{64+4*t}:{67+4*t}], 0")
for t in range(2): a(f"v_mfma_f32_16x16x32_bf16 v[{100+4*t}:{103+4*t}], v[112:115], v[{72+4*t}:{75+4*t}], v[{100+4*t}:{103+4*t}]")
a("s_mov_b64 exec, s[36:37]")
a(f"ds_write_b64 v63, v[52:53] offset:{L_ST}")
a("s_mov_b64 exec, -1")
a(f"ds_write_b32 v54, v100 offset:{L_Z}")
a(f"ds_write_b32 v54, v104 offset:{L_Z+512}")
a("s_waitcnt lgkmcnt(0)")
a("s_barrier")
ts(12)
a("s_cmp_gt_u32 s3, 3")
a("s_cbranch_scc1 L_wo_end")
a(f"ds_read_b128 v[108:111], v61 offset:{L_ST}")
a(f"ds_read_b128 v[112:115], v61 offset:{L_ST+16}")
a(f"ds_read_b128 v[116:119], v61 offset:{L_ST+32}")
a(f"ds_read_b64 v[120:121], v61 offset:{L_ST+48}")
a(f"ds_read_b128 v[100:103], v55 offset:{L_Z}")
a(f"ds_read_b128 v[104:107], v55 offset:{L_Z+16}")
a(f"s_mov_b32 s7, {f32(-LOG2E)}")
a("s_waitcnt lgkmcnt(0)" if DEBUG else "s_waitcnt lgkmcnt(2)")
for (x, y) in ((108, 110), (112, 114), (116, 118), (108, 112), (116, 120), (108, 116)):
    a(f"v_add_f32 v{x}, v{x}, v{y}")
    a(f"v_add_f32 v{x+1}, v{x+1}, v{y+1}")
ln_finish("v108", "v109", "v52", "v53", "v58")
a("s_waitcnt lgkmcnt(0)")
a("v_add_f32 v100, v100, v101")
a("v_add_f32 v102, v102, v103")
a("v_add_f32 v104, v104, v105")
a("v_add_f32 v100, v100, v102")
a("v_add_f32 v104, v104, v106")
a("v_add_f32 v100, v100, v104")
a("v_fma_f32 v100, -v52, v57, v100")
a("v_mul_f32 v100, v100, v53")
bf16r("v100")
a("v_add_f32 v100, v100, v42")
bf16r("v100")
a("v_mul_f32 v101, s7, abs(v100)")
a("v_exp_f32 v101, v101")
a("v_max_f32 v107, 0, v100")
bf16r("v101")
a("v_add_f32 v102, 1.0, v101")
a("v_log_f32 v102, v102")
a("v_fma_f32 v103, v101, v56, -0.5")
a("v_fma_f32 v103, v101, v103, 1.0")
a("v_mul_f32 v103, v101, v103")
a(f"v_cmp_gt_f32 vcc, {f32(2.0**-6)}, v101")
a(f"v_mul_f32 v102, {f32(math.log(2))}, v102")
a("v_cndmask_b32 v102, v102, v103, vcc")
bf16r("v102")
a("v_add_f32 v102, v102, v107")
bf16r("v102")
a(f"v_mul_f32 v103, {f32(-2*LOG2E)}, v102")
a("v_exp_f32 v103, v103")
a("v_mul_f32 v105, v102, v102")
a(f"v_cmp_gt_f32 vcc, {f32(2.0**-5)}, v102")
a("v_add_f32 v106, 1.0, v103")
a("v_sub_f32 v103, 1.0, v103")
a("v_rcp_f32 v106, v106")
a("v_mul_f32 v105, v105, v56")
a("v_fma_f32 v105, -v105, v102, v102")
a("v_mul_f32 v103, v103, v106")
a("v_cndmask_b32 v103, v103, v105, vcc")
bf16r("v103")
a("v_mul_f32 v100, v100, v103")
a(f"v_mov_b32_dpp v101, v100 quad_perm:[0,0,2,2] {DPPM}")
a(f"v_mov_b32_dpp v102, v100 quad_perm:[1,1,3,3] {DPPM}")
a("v_cvt_pk_bf16_f32 v101, v101, v102")
a(f"v_mov_b32_dpp v102, v101 row_half_mirror {DPPM}")
a("v_mov_b32_dpp v96, v101 quad_perm:[0,0,0,0] row_mask:0xf bank_mask:0x5")
a("v_mov_b32_dpp v97, v101 quad_perm:[2,2,2,2] row_mask:0xf bank_mask:0x5")
a("v_mov_b32_dpp v98, v101 quad_perm:[0,0,0,0] row_mask:0xf bank_mask:0xa")
a("v_mov_b32_dpp v99, v101 quad_perm:[2,2,2,2] row_mask:0xf bank_mask:0xa")
a("v_mov_b32_dpp v98, v102 quad_perm:[2,2,2,2] row_mask:0xf bank_mask:0x5")
a("v_mov_b32_dpp v99, v102 quad_perm:[0,0,0,0] row_mask:0xf bank_mask:0x5")
a("v_mov_b32_dpp v96, v102 quad_perm:[2,2,2,2] row_mask:0xf bank_mask:0xa")
a("v_mov_b32_dpp v97, v102 quad_perm:[0,0,0,0] row_mask:0xf bank_mask:0xa")
def ffn2(q):
    for T in range(4*q, 4*q+4):
        a(f"v_mfma_f32_16x16x32_bf16 v[{64+4*T}:{67+4*T}], v[96:99], v[{128+4*T}:{131+4*T}], 0")
def ffn2_out(q):
    for rho in range(4):
        a(f"v_mov_b32_dpp v{104+q}, v{64+4*(4*q+rho)} quad_perm:[0,1,2,3] row_mask:{hex(1<<rho)} bank_mask:0xf")
    a(f"v_mov_b32_dpp v{106+q}, v{104+q} quad_perm:[1,1,3,3] {DPPM}")
    a(f"v_cvt_pk_bf16_f32 v{104+q}, v{104+q}, v{106+q}")
    a(f"v_min_u32 v{104+q}, -2, v{104+q}")
    a("s_mov_b64 exec, s[58:59]")
    a(f"global_store_dword v62, v{104+q}, {WS} offset:{128*q} sc1")
    a("s_mov_b64 exec, -1")
ffn2(0)
a("s_cmp_eq_u32 s3, 3")
a("s_cbranch_scc1 L_ffn_last")
ffn2(1)
ffn2_out(0)
ffn2_out(1)
ts(13)
if int(opts.get("fdl", 4)):
    a("s_waitcnt vmcnt(0)")
    a("v_mov_b32 v5, 1")
    a(f"ds_write_b32 v63, v5 offset:{L_FL+0xD0}")
end_wave()
a("L_ffn_last:")
a("s_nop 7")
ffn2_out(0)
ts(13)
if int(opts.get("fdl", 4)):
    a("s_waitcnt vmcnt(0)")
    a("v_mov_b32 v5, 1")
    a(f"ds_write_b32 v63, v5 offset:{L_FL+0xD0}")
end_wave()

pad("fin")
a("L_final:")
a("v_min_u32 v5, 55, v1")
a("v_mul_u32_u24 v5, 896, v5")
a("s_lshl_b32 s7, s57, 4")
a(f"s_add_u32 s7, s7, {ZP}")
a("v_add_u32 v5, s7, v5")
a("v_and_b32 v6, 7, v2")
a("s_lshl_b32 s7, s57, 3")
a("v_add_u32 v6, s7, v6")
a("v_lshlrev_b32 v6, 1, v6")
a("s_mov_b32 s36, 0x01010101")
a("s_mov_b32 s37, 0x01010101")
a("v_min_u32 v7, 55, v1")
a("v_lshlrev_b32 v7, 7, v7")
a(f"v_add_u32 v7, {RDY + 7*1024}, v7")
poll("rd", [f"global_load_dword v8, v7, {WS} sc1"], [chk_tag([8], None)])
a("s_barrier")
a("s_barrier")
a(f"ds_read_u16 v50, v6 offset:{L_H}")
ts(12)
if int(opts.get("fdl", 4)):
    a("v_mov_b32 v9, 0")
    lds_flag_wait("fd", 0xD0, 8, [], int(opts.get("fdl", 4)), "v9", 56, ge=True)
poll("fin", [f"global_load_dwordx4 v[96:99], v5, {WS} sc1"], [chk_sent4(96, "v48")])
ts(13)
a("v_cmp_gt_u32 vcc, 56, v1")
a("s_waitcnt lgkmcnt(0)")
a("v_lshlrev_b32 v50, 16, v50")
for k in range(4): a(f"v_cndmask_b32 v{96+k}, 0, v{96+k}, vcc")
for k in range(4):
    a(f"v_lshlrev_b32 v{100+2*k}, 16, v{96+k}")
    a(f"v_and_b32 v{101+2*k}, {MHI}, v{96+k}")
reduce8_hi(R(100, 8), 52)
xlane("v_add_f32", "v52", None, ["q1", "q2", "hm"])
bf16r("v52")
a("v_add_f32 v52, v52, v50")
a("v_cvt_pk_bf16_f32 v52, v52, v52")
a("s_mov_b64 exec, s[36:37]")
a(f"global_store_short v6, v52, {OUT}")
a("s_cmp_lg_u32 s57, 0")
a("s_cbranch_scc1 L_fin_end")
a("s_mov_b64 exec, 1")
a("v_mov_b32 v5, 0")
a("v_mov_b32 v6, s6")
a(f"global_store_dword v5, v6, {WS} sc1")
a("L_fin_end:")
a("s_mov_b64 exec, -1")
ts(14)
end_wave()

if DEBUG:
    a("L_dump:")
    a("s_waitcnt lgkmcnt(0)")
    a("s_mov_b64 exec, 1")
    if DIAG:
        a(f"s_cmp_eq_u32 s2, {DIAG[0]}")
        a("s_cbranch_scc0 L_end")
        a(f"s_cmp_eq_u32 s3, {DIAG[1]}")
        a("s_cbranch_scc0 L_end")
        a(f"s_sub_u32 s7, s{64+2*DIAG[2]}, s64")
        a(f"s_mul_i32 s7, s7, {DIAG[3]}")
        a("s_min_u32 s7, s7, 20000")
        a("s_add_u32 s7, s7, 3000")
        a("s_mov_b32 s38, 100000")
        a("L_diag:")
        a("s_memrealtime s[60:61]")
        a("s_waitcnt lgkmcnt(0)")
        a("s_sub_u32 s51, s60, s64")
        a("s_cmp_ge_u32 s51, s7")
        a("s_cbranch_scc1 L_end")
        a("s_sub_u32 s38, s38, 1")
        a("s_cmp_eq_u32 s38, 0")
        a("s_cbranch_scc0 L_diag")
    elif HDBG:
        a("s_cmp_lt_u32 s2, 8")
        a("s_cselect_b32 s7, 0, 1")
        a("s_or_b32 s7, s7, s3")
        a("s_cmp_eq_u32 s7, 0")
        a("s_cbranch_scc0 L_dump_k")
        a("s_lshl_b32 s7, s2, 2")
        a("v_mov_b32 v5, s7")
        a("v_mov_b32 v6, s64")
        a(f"global_store_dword v5, v6, {DBG}")
        a("s_endpgm")
        a("L_dump_k:")
        a(f"s_cmp_eq_u32 s5, {15 if IL else 23}")
        a("s_cbranch_scc0 L_end")
        a("s_cmp_eq_u32 s3, 7")
        a("s_cbranch_scc0 L_end")
        a("s_lshl_b32 s7, s4, 2")
        a("v_mov_b32 v5, s7")
        a(f"v_mov_b32 v6, s{64+30}")
        a(f"global_store_dword v5, v6, {DBG} offset:32")
    else:
        a("s_lshl_b32 s7, s2, 4")
        a("s_add_u32 s7, s7, s3")
        a("s_lshl_b32 s7, s7, 6")
        a(f"s_add_u32 s7, s7, {TS}")
        a("v_mov_b32 v5, s7")
        for k in ((0, GSTAT[0]) if GSTAT else range(16)):
            a(f"v_mov_b32 v6, s{64+2*k}")
            a(f"global_store_dword v5, v6, {WS} offset:{4*k}{' sc1' if GSTAT else ''}")
        if GSTAT:
            a("s_cmp_eq_u32 s2, 248")
            a("s_cbranch_scc0 L_end")
            a("s_cmp_eq_u32 s3, 5")
            a("s_cbranch_scc0 L_end")
            a("s_mov_b64 exec, -1")
            a("s_mov_b32 s38, 100000")
            a("L_g1:")
            a("s_memrealtime s[60:61]")
            a("s_waitcnt lgkmcnt(0)")
            a("s_sub_u32 s51, s60, s64")
            a("s_cmp_ge_u32 s51, 2000")
            a("s_cbranch_scc1 L_g2")
            a("s_sub_u32 s38, s38, 1")
            a("s_cmp_eq_u32 s38, 0")
            a("s_cbranch_scc0 L_g1")
            a("L_g2:")
            a("v_mov_b32 v20, 0x7fffffff")
            a("v_mov_b32 v21, 0x80000000")
            a("v_and_b32 v22, 15, v1")
            a(f"v_cmp_le_u32 vcc, {GSTAT[1]}, v22")
            a(f"v_cmp_gt_u32 s[46:47], {GSTAT[2]}, v22")
            a("s_and_b64 s[46:47], s[46:47], vcc")
            a("v_cmp_gt_u32 s[48:49], 12, v22")
            a("s_mov_b32 s52, 0")
            a("L_g3:")
            a("s_lshl_b32 s7, s52, 12")
            a(f"s_add_u32 s7, s7, {TS}")
            a("v_lshl_add_u32 v23, v1, 6, s7")
            a(f"global_load_dword v24, v23, {WS} sc1")
            a(f"global_load_dword v25, v23, {WS} offset:{4*GSTAT[0]} sc1")
            a("s_waitcnt vmcnt(0)")
            a("v_subrev_u32 v24, s64, v24")
            a("v_cmp_eq_u32 vcc, 0, v25")
            a("v_subrev_u32 v25, s64, v25")
            a("v_cndmask_b32 v25, v25, v21, vcc")
            a("v_cndmask_b32 v25, v21, v25, s[46:47]")
            a("v_cndmask_b32 v24, v20, v24, s[48:49]")
            if GSTAT[3] != 2:
                a("s_bitcmp1_b32 s52, 1")
                a(f"s_cbranch_scc{1 - GSTAT[3]} L_g4")
            a("v_max_i32 v21, v21, v25")
            a("L_g4:")
            a("v_min_i32 v20, v20, v24")
            a("s_add_u32 s52, s52, 1")
            a("s_cmp_lt_u32 s52, 64")
            a("s_cbranch_scc1 L_g3")
            xlane("v_max_i32", "v21", "v26", ["q1", "q2", "hm", "r8", "p16", "p32"])
            xlane("v_min_i32", "v20", "v26", ["q1", "q2", "hm", "r8", "p16", "p32"])
            a("v_sub_u32 v21, v21, v20")
            a("v_readfirstlane_b32 s7, v21")
            a("v_readfirstlane_b32 s53, v20")
            a("s_mul_i32 s7, s7, 4")
            a("s_min_u32 s7, s7, 20000")
            a("s_add_u32 s7, s7, 6000")
            a("s_add_u32 s7, s7, s53")
            a("s_mov_b32 s38, 100000")
            a("L_g5:")
            a("s_memrealtime s[60:61]")
            a("s_waitcnt lgkmcnt(0)")
            a("s_sub_u32 s51, s60, s64")
            a("s_cmp_ge_u32 s51, s7")
            a("s_cbranch_scc1 L_end")
            a("s_sub_u32 s38, s38, 1")
            a("s_cmp_eq_u32 s38, 0")
            a("s_cbranch_scc0 L_g5")
a("L_end:")
a("s_endpgm")
a("L_codeend:")
a.raw(f'''.section .rodata,"a"
.p2align 6
.amdhsa_kernel {NAME}_kernel
  .amdhsa_next_free_vgpr 168
  .amdhsa_next_free_sgpr 96
  .amdhsa_accum_offset 168
  .amdhsa_group_segment_fixed_size 0
  .amdhsa_kernarg_size 96
  .amdhsa_user_sgpr_count 2
  .amdhsa_user_sgpr_kernarg_segment_ptr 1
  .amdhsa_system_sgpr_workgroup_id_x 1
  .amdhsa_float_denorm_mode_32 3
.end_amdhsa_kernel''')
open(OUTP, "w").write(a.text())
print("nops inserted:", a.nops, "lines:", len(a.lines))
```

```python
import sys, struct, math
sys.path.insert(0, "gen")
from asmlib import Asm

NAME = "sequential_preLN__sliding_block_cached__dense_activation_mish__decode"
opts = dict(x.split("=") for x in sys.argv[2:])
OUTP = sys.argv[1]
DEBUG = int(opts.get("dbg", 0))
HDBG = int(opts.get("hdbg", 0))
if HDBG: DEBUG = 1
NT = " nt" if int(opts.get("nt", 0)) else ""
NTW = " nt" if int(opts.get("ntw", 0)) else ""
NTK = " nt" if int(opts.get("ntk", 0)) else ""
NTQ = " nt" if int(opts.get("ntq", 0)) else ""
NTO = " nt" if int(opts.get("nto", 0)) else ""
NTV = " nt" if int(opts.get("ntv", 0)) else ""
KD = int(opts.get("kd", 4))
NTHR = int(opts.get("nthr", 12))
SLEEP = int(opts.get("sleep", 0))
KD0 = int(opts.get("kd0", 2))
RGATE = int(opts.get("rgate", 1))
QWAIT = int(opts.get("qwait", 1))
SPIN = 100000

def f32(x): return "0x%08x" % struct.unpack("<I", struct.pack("<f", x))[0]
LOG2E = math.log2(math.e)

RDY = 0x50000; RDA = 0x58000; QG = 0x10000; LSE = 0x40000; OP = 0x80000; YP = 0xC0000; ZP = 0xD0000; TS = 0x400000; FO = 0x100000
L_S1 = 0x000; L_FL = 0x800; L_Q = 0x900; L_SC = 0xD00; L_RED = 0x1100; L_ST = 0x1900; L_H = 0x1A00; L_Z = 0x2100; L_O = 0x2500
L_P = 0x2D00; L_C = 0x2F00
L_W = 0x4000; L_W2 = 0xB000
LDS_BYTES = 0x14000
IL = int(opts.get("il", 1))
FGATE = int(opts.get("fgate", 100))
X, K, V, WQ, WO, W1, B1, W2, OUT, DBG, WS = "s[8:9]", "s[10:11]", "s[12:13]", "s[14:15]", "s[16:17]", "s[20:21]", "s[22:23]", "s[24:25]", "s[26:27]", "s[28:29]", "s[30:31]"
SEL_LO, SEL_HI, MHI = "s40", "s41", "s42"
R = lambda a_, n: list(range(a_, a_ + n))

a = Asm()
uid = [0]
def lab(p):
    uid[0] += 1
    return f"L_{p}_{uid[0]}"

DIAG = [int(x) for x in opts["diag"].split(",")] if "diag" in opts else None
if DIAG: DEBUG = 1
GSTAT = [int(x) for x in opts["gstat"].split(",")] if "gstat" in opts else None
if GSTAT: DEBUG = 1
def ts(k):
    if DIAG and k not in (0, DIAG[2]): return
    if GSTAT and k not in (0, GSTAT[0]): return
    if HDBG and k not in (0, 15): return
    if DEBUG: a(f"s_memrealtime s[{64+2*k}:{65+2*k}]")

def end_wave():
    if DEBUG:
        ts(15)
        a("s_branch L_dump")
    else:
        a("s_endpgm")
    a.flush_hist()

def sleep():
    if SLEEP: a(f"s_sleep {SLEEP}")

DPPM = "row_mask:0xf bank_mask:0xf"
def wave_sum2(x, y, sx, sy):
    for m in ("quad_perm:[1,0,3,2]", "quad_perm:[2,3,0,1]", "row_half_mirror", "row_mirror"):
        a(f"v_add_f32_dpp {x}, {x}, {x} {m} {DPPM}")
        a(f"v_add_f32_dpp {y}, {y}, {y} {m} {DPPM}")
    a(f"v_add_f32_dpp {x}, {x}, {x} row_bcast:15 row_mask:0xa bank_mask:0xf")
    a(f"v_add_f32_dpp {y}, {y}, {y} row_bcast:15 row_mask:0xa bank_mask:0xf")
    a(f"v_add_f32_dpp {x}, {x}, {x} row_bcast:31 row_mask:0xc bank_mask:0xf")
    a(f"v_add_f32_dpp {y}, {y}, {y} row_bcast:31 row_mask:0xc bank_mask:0xf")
    if sx:
        a(f"v_readlane_b32 {sx}, {x}, 63")
        a(f"v_readlane_b32 {sy}, {y}, 63")

def bf16r(x):
    a(f"v_cvt_pk_bf16_f32 {x}, {x}, {x}")
    a(f"v_and_b32 {x}, {MHI}, {x}")

def ln_finish(vsum, vsq, vm, vr, t):
    a(f"v_mov_b32 {t}, {f32(1.0/448)}")
    a(f"v_mul_f32 {vm}, {vsum}, {t}")
    a(f"v_mul_f32 {vr}, {vsq}, {t}")
    a(f"v_fma_f32 {vr}, -{vm}, {vm}, {vr}")
    a(f"v_max_f32 {vr}, 0, {vr}")
    a(f"v_cvt_pk_bf16_f32 {t}, {vm}, {vr}")
    a(f"v_lshlrev_b32 {vm}, 16, {t}")
    a(f"v_and_b32 {vr}, {MHI}, {t}")
    a(f"v_add_f32 {vr}, {f32(1e-5)}, {vr}")
    bf16r(vr)
    a(f"v_sqrt_f32 {vr}, {vr}")
    bf16r(vr)
    a(f"v_rcp_f32 {vr}, {vr}")

def ln_apply(lo, hi, vm, vr, dst):
    a(f"v_sub_f32 {lo}, {lo}, {vm}")
    a(f"v_sub_f32 {hi}, {hi}, {vm}")
    a(f"v_cvt_pk_bf16_f32 {dst}, {lo}, {hi}")
    a(f"v_lshlrev_b32 {lo}, 16, {dst}")
    a(f"v_and_b32 {hi}, {MHI}, {dst}")
    a(f"v_mul_f32 {lo}, {lo}, {vr}")
    a(f"v_mul_f32 {hi}, {hi}, {vr}")
    a(f"v_cvt_pk_bf16_f32 {dst}, {lo}, {hi}")

def perm_pair(A, B, outs):
    for k in range(4):
        a(f"v_perm_b32 v{outs[2*k]}, v{B+k}, v{A+k}, {SEL_LO}")
        a(f"v_perm_b32 v{outs[2*k+1]}, v{B+k}, v{A+k}, {SEL_HI}")

def reduce8_hi(acc, dst, full_row=False):
    for k in range(4):
        a(f"v_permlane32_swap_b32 v{acc[2*k]}, v{acc[2*k+1]}")
    for k in range(4):
        a(f"v_add_f32 v{acc[2*k]}, v{acc[2*k]}, v{acc[2*k+1]}")
    a(f"v_permlane16_swap_b32 v{acc[0]}, v{acc[2]}")
    a(f"v_permlane16_swap_b32 v{acc[4]}, v{acc[6]}")
    a(f"v_add_f32 v{acc[0]}, v{acc[0]}, v{acc[2]}")
    a(f"v_add_f32 v{acc[4]}, v{acc[4]}, v{acc[6]}")
    if full_row:
        for m in ("row_ror:4", "row_ror:8"):
            a(f"v_add_f32_dpp v{acc[0]}, v{acc[0]}, v{acc[0]} {m} {DPPM}")
            a(f"v_add_f32_dpp v{acc[4]}, v{acc[4]}, v{acc[4]} {m} {DPPM}")
    else:
        a(f"v_add_f32_dpp v{dst}, v{acc[0]}, v{acc[0]} row_ror:8 row_mask:0xf bank_mask:0x3")
        a(f"v_add_f32_dpp v{dst}, v{acc[4]}, v{acc[4]} row_ror:8 row_mask:0xf bank_mask:0xc")

def dots16(P0, P1, x0, x1, acc):
    for j in range(8):
        a(f"v_dot2_f32_bf16 v{acc[j]}, v{P0[j]}, {x0}, 0")
    for j in range(8):
        a(f"v_dot2_f32_bf16 v{acc[j]}, v{P1[j]}, {x1}, v{acc[j]}")

def spin_head(p):
    lp, dn = lab(p), lab(p + "d")
    a(f"s_mov_b32 s38, {SPIN}")
    a(f"{lp}:")
    return lp, dn

def spin_tail(h, slp=False):
    lp, dn = h
    a(f"s_cbranch_scc1 {dn}")
    if slp: sleep()
    a("s_sub_u32 s38, s38, 1")
    a("s_cmp_eq_u32 s38, 0")
    a(f"s_cbranch_scc0 {lp}")
    a(f"{dn}:")

def xlane(op, x, t, steps):
    for s in steps:
        if s in ("p16", "p32"):
            a(f"v_mov_b32 {t}, {x}")
            a(f"v_permlane{s[1:]}_swap_b32 {x}, {t}")
            a(f"{op} {x}, {x}, {t}")
        else:
            m = {"q3": "quad_perm:[3,2,1,0]", "q1": "quad_perm:[1,0,3,2]", "q2": "quad_perm:[2,3,0,1]", "hm": "row_half_mirror",
                 "r4": "row_ror:4", "r8": "row_ror:8", "rm": "row_mirror"}[s]
            a(f"{op}_dpp {x}, {x}, {x} {m} {DPPM}")

def poll(name, loads, checks, pre=None):
    n = len(loads)
    P = [f"s[{46+2*i}:{47+2*i}]" for i in range(n)]
    for p in P: a(f"s_mov_b64 {p}, -1")
    h = spin_head(name)
    if pre: a(pre)
    for i in range(n):
        sk = lab(name + "s")
        a(f"s_mov_b64 exec, {P[i]}")
        a(f"s_cbranch_execz {sk}")
        a(loads[i])
        a(f"{sk}:")
    a("s_mov_b64 exec, -1")
    a("s_waitcnt vmcnt(0)")
    for i in range(n): checks[i](P[i])
    if n == 1: a(f"s_cmp_eq_u64 {P[0]}, 0")
    else:
        a(f"s_or_b64 s[34:35], {P[0]}, {P[1]}")
        for p in P[2:]: a(f"s_or_b64 s[34:35], s[34:35], {p}")
        a("s_cmp_eq_u64 s[34:35], 0")
    spin_tail(h, True)

def poll2(name, loads, checks, nhook, hook):
    n = len(loads)
    P = [f"s[{76+2*i}:{77+2*i}]" if not DEBUG else f"s[{46+2*i}:{47+2*i}]" for i in range(n)]
    P = [f"s[{46+2*i}:{47+2*i}]" for i in range(n)]
    lp, dn, chk, nh = lab(name), lab(name + "d"), lab(name + "c"), lab(name + "h")
    a(f"s_mov_b32 s38, {SPIN}")
    a("s_mov_b32 s60, 0")
    a(f"s_branch {chk}")
    a(f"{lp}:")
    for i in range(n):
        sk = lab(name + "s")
        a(f"s_mov_b64 exec, {P[i]}")
        a(f"s_cbranch_execz {sk}")
        a(loads[i])
        a(f"{sk}:")
    a("s_mov_b64 exec, -1")
    a(f"{chk}:")
    a("s_waitcnt vmcnt(0)")
    for i in range(nhook, n): checks[i](P[i])
    a("s_cmp_eq_u32 s60, 1")
    a(f"s_cbranch_scc1 {nh}")
    for i in range(nhook): checks[i](P[i])
    a(f"s_or_b64 s[34:35], {P[0]}, {P[1]}")
    for p in P[2:nhook]: a(f"s_or_b64 s[34:35], s[34:35], {p}")
    a("s_cmp_eq_u64 s[34:35], 0")
    a(f"s_cbranch_scc0 L_{name}_again")
    hook()
    a("s_mov_b32 s60, 1")
    a(f"{nh}:")
    a(f"s_or_b64 s[34:35], {P[nhook]}, {P[nhook+1]}")
    a("s_cmp_eq_u64 s[34:35], 0")
    a(f"s_cbranch_scc1 {dn}")
    a(f"L_{name}_again:")
    a("s_sub_u32 s38, s38, 1")
    a("s_cmp_eq_u32 s38, 0")
    a(f"s_cbranch_scc0 {lp}")
    a(f"{dn}:")

def chk_sent4(r, t):
    def f(sp):
        a(f"v_max3_u32 {t}, v{r}, v{r+1}, v{r+2}")
        a(f"v_max_u32 {t}, {t}, v{r+3}")
        a(f"v_cmp_eq_u32 {sp}, -1, {t}")
    return f
def chk_tag(regs, t):
    def f(sp):
        if len(regs) == 1: a(f"v_cmp_ne_u32 {sp}, s6, v{regs[0]}")
        else:
            a(f"v_xor_b32 {t}, v{regs[0]}, v{regs[1]}")
            a(f"v_cmp_ne_u32 {sp}, s6, v{regs[0]}")
            a(f"v_cmp_ne_u32 vcc, 0, {t}")
            a(f"s_or_b64 {sp}, {sp}, vcc")
    return f

def lds_flag_wait(name, off, nwords, extra_reads, expect, zero, tmpbase, ge=False):
    h = spin_head(name)
    for q in range(nwords // 4):
        a(f"ds_read_b128 v[{tmpbase+4*q}:{tmpbase+4*q+3}], {zero} offset:{L_FL+off+16*q}")
    for x in extra_reads: a(x)
    a("s_waitcnt lgkmcnt(0)")
    t = tmpbase
    a(f"v_add3_u32 v{t}, v{t}, v{t+1}, v{t+2}")
    if nwords == 4: a(f"v_add_u32 v{t}, v{t}, v{t+3}")
    else:
        a(f"v_add3_u32 v{t+4}, v{t+4}, v{t+5}, v{t+6}")
        a(f"v_add3_u32 v{t}, v{t}, v{t+3}, v{t+7}")
        a(f"v_add_u32 v{t}, v{t}, v{t+4}")
    a(f"v_cmp_{'gt' if ge else 'ne'}_u32 vcc, {expect}, v{t}")
    a("s_cmp_eq_u64 vcc, 0")
    spin_tail(h)

hdr = open(f"cdna_kernels/{NAME}.s.ref").read().split("; Override launch")[0]
a.raw(hdr.rstrip())
a.raw(f"; @launch grid=(256,1,1) block=(768,1,1) lds={LDS_BYTES}")
a.raw('.amdgcn_target "amdgcn-amd-amdhsa--gfx950"')
a.raw(".text")
a.raw(f".globl {NAME}_kernel\n.p2align 8\n.type {NAME}_kernel,@function\n{NAME}_kernel:")


WARM = int(opts.get("warm", 0))
FAST = int(opts.get("fast", 1)); FASTQ = int(opts.get("fastq", 1))
pads = []
def pad(name, over=False):
    if not WARM: return
    if over: a(f"s_branch L_padskip_{name}")
    a(f"L_pad_{name}:")
    a("s_setpc_b64 s[62:63]")
    if over: a(f"L_padskip_{name}:")
    pads.append(name)
def touch(*names):
    if not WARM: return
    for n in names: a(f"s_call_b64 s[62:63], L_pad_{n}")

N0 = int(opts.get("n0", 6)); S1G = int(opts.get("s1g", 2)); AD = int(opts.get("ad", 16)); VD = int(opts.get("vd", 16)); VN = int(opts.get("vn", 0)); KVW = int(opts.get("kvw", 4))
a("s_cmp_ge_u32 s2, 256")
a("s_cbranch_scc1 L_end")
a("s_load_dwordx16 s[8:23], s[0:1], 0")
a("s_load_dwordx8 s[24:31], s[0:1], 64")
ts(0)
a("v_lshrrev_b32 v2, 6, v0")
a("v_and_b32 v1, 63, v0")
a("s_and_b32 s4, s2, 7")
a("s_lshr_b32 s5, s2, 3")
a("v_readfirstlane_b32 s3, v2")
a("v_lshrrev_b32 v3, 3, v1")
a("v_and_b32 v4, 7, v1")
a("v_mov_b32 v5, 0")
a("v_lshlrev_b32 v6, 2, v1")
a(f"ds_write_b32 v6, v5 offset:{L_FL}")
a("s_lshr_b32 s39, s5, 1")
a("s_and_b32 s33, s5, 1")
a("s_cmp_ge_u32 s3, 4")
a("s_cbranch_scc1 L_hi")
a("s_lshr_b32 s44, s5, 3")
a("s_and_b32 s45, s5, 7")
a("v_min_u32 v6, 55, v1")
a("v_lshlrev_b32 v6, 4, v6")
a("s_lshl_b32 s48, s3, 5")
a("v_lshl_add_u32 v15, v3, 2, s48")
a("v_min_u32 v14, 108, v15")
a("s_mul_i32 s47, s44, 112")
a("v_add_u32 v14, s47, v14")
a("v_lshlrev_b32 v12, 1, v14")
a("s_lshl_b32 s51, s4, 10")
a("s_lshl_b32 s52, s45, 7")
a("s_add_u32 s51, s51, s52")
a("v_lshl_add_u32 v32, v4, 4, s51")
a("v_lshl_add_u32 v32, v14, 13, v32")
a("v_add_u32 v33, 0x2000, v32")
a("v_add_u32 v34, 0x4000, v32")
a("v_add_u32 v35, 0x6000, v32")
a("s_waitcnt lgkmcnt(0)")
a(f"global_load_dwordx4 v[36:39], v6, {X}")
a(f"global_load_dwordx2 v[12:13], v12, {X}")
for i in range(4):
    a(f"global_load_dwordx4 v[{16+4*i}:{19+4*i}], v{32+i}, {WQ}{NTQ}")
a("s_barrier")
a("s_branch L_s1")
a.flush_hist()
a("L_hi:")
N1 = int(opts.get("n1", 8)); HQ = int(opts.get("hq", 8));
a("s_lshl_b32 s43, s4, 22")
a("s_lshl_b32 s7, s39, 16")
a("s_add_u32 s43, s43, s7")
a(f"s_add_u32 s43, s43, {6144*512}")
a("s_and_b32 s44, s3, 3")
a("s_lshr_b32 s7, s3, 3")
a("s_cmp_eq_u32 s7, s33")
a("s_cbranch_scc0 L_B_hi")
a("s_lshl_b32 s47, s44, 11")
a("s_add_u32 s46, s43, s47")
a("v_lshlrev_b32 v6, 13, v3")
a("v_lshl_add_u32 v6, v4, 4, v6")
a("v_add_u32 v6, s46, v6")
KA = int(opts.get("ka", 12))
KB = 16 - KA
HI = int(opts.get("hi", 99))
a(f"s_mul_i32 s7, s33, {KA*128}")
a("v_add_u32 v7, s7, v6")
a("s_waitcnt lgkmcnt(0)")
for i in range(KA):
    if i == min(N0, KB): a("s_barrier")
    if i == KB:
        a("s_cmp_eq_u32 s33, 1")
        a("s_cbranch_scc1 L_A_k1")
    if i >= N0: a(f"s_waitcnt vmcnt({N0-1})")
    if i == HI:
        a("s_lshl_b32 s7, s44, 2")
        a("v_mov_b32 v45, s7")
        a("v_mov_b32 v46, 1")
        a(f"ds_write_b32 v45, v46 offset:{L_FL+0x80}")
    a(f"global_load_dwordx4 v[{64+4*i}:{67+4*i}], v7, {K} offset:{i*128}{NTK if i >= KB else NT}")
a("s_branch L_A_k1")
a.flush_hist()
a("L_B_hi:")
if int(opts.get("cpf", 1)):
    a("s_getpc_b64 s[36:37]")
    a("L_pc:")
    a("v_and_b32 v5, 255, v0")
    a("v_lshlrev_b32 v5, 7, v5")
    a("v_cmp_gt_u32 vcc, L_codeend-L_pc, v5")
    a("v_cndmask_b32 v5, 0, v5, vcc")
    a("global_load_dword v167, v5, s[36:37]")
if WARM:
    for u_, n_ in enumerate(("s1b", "s1c", "k1", "v2", "bh2", "h1", "wo1", "ffn1")):
        sk = lab("et")
        a(f"s_cmp_eq_u32 s3, {11-u_}")
        a(f"s_cbranch_scc0 {sk}")
        touch(n_)
        a(f"{sk}:")
a("s_waitcnt lgkmcnt(0)")
a("s_barrier")
if int(opts.get("tw", 1)):
    a("s_mul_i32 s7, s4, 458752")
    a("s_load_dword s46, s[16:17], s7")
    a("s_add_u32 s7, s7, 458748")
    a("s_load_dword s47, s[16:17], s7")
    a("s_load_dword s48, s[20:21], 0")
    a("s_mov_b32 s7, 1605628")
    a("s_load_dword s49, s[20:21], s7")
    a("s_mul_i32 s7, s4, 200704")
    a("s_load_dword s50, s[24:25], s7")
    a("s_add_u32 s7, s7, 200700")
    a("s_load_dword s51, s[24:25], s7")
    a("s_load_dword s52, s[22:23], 0")
    a("s_load_dword s53, s[26:27], 0")
    a("s_load_dword s54, s[12:13], s43")
    a("s_waitcnt lgkmcnt(0)")
a("s_cmp_eq_u32 s33, 1")
a("s_cbranch_scc0 L_A_v")
a("s_branch L_B_hi2")
a.flush_hist()
a("L_s1:")
if DEBUG:
    for k in range(1, 16): a(f"s_mov_b64 s[{64+2*k}:{65+2*k}], 0")
ts(1)
a(f"s_mov_b32 {SEL_LO}, 0x05040100")
a(f"s_mov_b32 {SEL_HI}, 0x07060302")
a(f"s_mov_b32 {MHI}, 0xffff0000")
a("v_lshlrev_b32 v2, 3, v4")
a("v_bfe_u32 v5, v1, 3, 1")
a("v_lshl_add_u32 v2, v5, 2, v2")
a("v_bfe_u32 v5, v1, 4, 1")
a("v_lshl_add_u32 v2, v5, 1, v2")
a("v_lshrrev_b32 v5, 5, v1")
a("v_add_u32 v2, v2, v5")
a("s_lshl_b32 s7, s3, 2")
a("v_mov_b32 v10, s7")
a("v_mov_b32 v11, 1")
a("v_cmp_gt_u32 vcc, 112, v15")
a("s_mov_b64 s[34:35], vcc")
a("s_cmp_lg_u32 s3, 3")
a("s_cbranch_scc1 L_s1_noep")
a(f"s_load_dword s6, {WS}, 0")
a("L_s1_noep:")
a("v_cmp_gt_u32 vcc, 56, v1")
a("s_waitcnt vmcnt(5)")
for k in range(4):
    a(f"v_lshlrev_b32 v{40+2*k}, 16, v{36+k}")
    a(f"v_and_b32 v{41+2*k}, {MHI}, v{36+k}")
a("v_add_f32 v48, v40, v41")
a("v_mul_f32 v49, v40, v40")
a("v_add_f32 v50, v42, v43")
a("v_mul_f32 v51, v42, v42")
a("v_fmac_f32 v49, v41, v41")
a("v_fmac_f32 v51, v43, v43")
a("v_add_f32 v48, v48, v44")
a("v_add_f32 v50, v50, v46")
a("v_fmac_f32 v49, v44, v44")
a("v_fmac_f32 v51, v46, v46")
a("v_add_f32 v48, v48, v45")
a("v_add_f32 v50, v50, v47")
a("v_fmac_f32 v49, v45, v45")
a("v_fmac_f32 v51, v47, v47")
a("v_add_f32 v48, v48, v50")
a("v_add_f32 v49, v49, v51")
a("v_cndmask_b32 v48, 0, v48, vcc")
a("v_cndmask_b32 v49, 0, v49, vcc")
wave_sum2("v48", "v49", "s54", "s55")
ln_finish("s54", "s55", "v50", "v51", "v52")
pad("s1b", over=True)
a("s_waitcnt vmcnt(4)")
a("v_lshlrev_b32 v40, 16, v12")
a(f"v_and_b32 v41, {MHI}, v12")
a("v_lshlrev_b32 v42, 16, v13")
a(f"v_and_b32 v43, {MHI}, v13")
for k in range(4): a(f"v_sub_f32 v{40+k}, v{40+k}, v50")
a("v_cvt_pk_bf16_f32 v12, v40, v41")
a("v_cvt_pk_bf16_f32 v13, v42, v43")
a("v_lshlrev_b32 v40, 16, v12")
a(f"v_and_b32 v41, {MHI}, v12")
a("v_lshlrev_b32 v42, 16, v13")
a(f"v_and_b32 v43, {MHI}, v13")
for k in range(4): a(f"v_mul_f32 v{40+k}, v{40+k}, v51")
a("v_cvt_pk_bf16_f32 v12, v40, v41")
a("v_cvt_pk_bf16_f32 v13, v42, v43")
a("v_cndmask_b32 v12, 0, v12, s[34:35]")
a("v_cndmask_b32 v13, 0, v13, s[34:35]")
a("v_lshlrev_b32 v5, 2, v0")
a("v_mov_b32 v6, 0")
a("s_waitcnt vmcnt(2)")
perm_pair(16, 20, R(40, 8))
for j in range(8): a(f"v_dot2_f32_bf16 v{56+j}, v{40+j}, v12, 0")
a("s_waitcnt vmcnt(0)")
ts(2)
perm_pair(24, 28, R(48, 8))
for j in range(8): a(f"v_dot2_f32_bf16 v{56+j}, v{48+j}, v13, v{56+j}")
reduce8_hi(R(56, 8), 40)
a("s_cmp_eq_u32 s3, 3")
a("s_cbranch_scc1 L_s1_coll")
a(f"ds_write_b32 v5, v40 offset:{L_S1}")
a(f"ds_write_b32 v10, v11 offset:{L_FL}")
a(f"s_load_dword s6, {WS}, 0")
a("s_branch L_s1_done")
a.flush_hist()
pad("s1c")
a("L_s1_coll:")
a("v_lshlrev_b32 v5, 2, v1")
a("s_lshl_b32 s7, s4, 14")
a("s_lshl_b32 s51, s45, 11")
a("s_add_u32 s7, s7, s51")
a("s_lshl_b32 s51, s44, 9")
a("s_add_u32 s7, s7, s51")
a(f"s_add_u32 s7, s7, {QG}")
a("v_lshl_add_u32 v8, v2, 3, s7")
lds_flag_wait("s1", 0, 4, [f"ds_read_b32 v{41+w}, v5 offset:{L_S1+256*w}" for w in range(3)], 3, "v6", 56)
a("s_add_u32 s7, s6, 1")
a("v_add_f32 v40, v40, v41")
a("v_add_f32 v42, v42, v43")
a("v_mov_b32 v41, s7")
a("v_add_f32 v40, v40, v42")
if FASTQ:
    a(f"v_add_u32 v9, {FO}, v8")
    a(f"global_store_dwordx2 v9, v[40:41], {WS}")
a(f"global_store_dwordx2 v8, v[40:41], {WS} sc1")
a(f"ds_write_b32 v6, v11 offset:{L_FL+0x60}")
if opts.get("ack"):
    ts(3)
    a("s_waitcnt vmcnt(1)")
    ts(10)
    a("s_waitcnt vmcnt(0)")
    ts(11)
    a("s_branch L_s1_done2")
a("L_s1_done:")
ts(3)
a("L_s1_done2:")
a("s_cmp_eq_u32 s33, 1")
a("s_cbranch_scc1 L_B_go")

a("s_setprio 3")
a("s_lshl_b32 s7, s4, 14")
a("s_lshl_b32 s51, s3, 12")
a("s_add_u32 s7, s7, s51")
a(f"s_add_u32 s7, s7, {QG}")
a("v_lshl_add_u32 v9, v1, 4, s7")
a("s_lshl_b32 s7, s3, 8")
a("v_lshl_add_u32 v8, v1, 2, s7")
a("s_cmp_lg_u32 s3, 0")
a("s_cbranch_scc1 L_A_h2")
a("s_lshl_b32 s7, s4, 14")
a("s_lshl_b32 s51, s39, 9")
a("s_add_u32 s7, s7, s51")
a(f"s_add_u32 s7, s7, {OP}")
a("v_lshrrev_b32 v5, 5, v1")
a("v_lshlrev_b32 v5, 13, v5")
a("v_and_b32 v7, 31, v1")
a("v_lshl_add_u32 v5, v7, 4, v5")
a("v_add_u32 v5, s7, v5")
a("v_mov_b32 v12, -1\nv_mov_b32 v13, -1\nv_mov_b32 v14, -1\nv_mov_b32 v15, -1")
a(f"global_store_dwordx4 v5, v[12:15], {WS} sc1")
if FAST:
    a("s_lshl_b32 s7, s4, 14")
    a("s_lshl_b32 s51, s39, 4")
    a("s_add_u32 s7, s7, s51")
    a(f"s_add_u32 s7, s7, {FO+OP}")
    a("v_lshl_add_u32 v5, v1, 8, s7")
    a(f"global_store_dwordx4 v5, v[12:15], {WS}")
a("s_getreg_b32 s52, hwreg(HW_REG_XCC_ID)")
a("s_lshl_b32 s7, s4, 11")
a("s_lshl_b32 s51, s39, 7")
a("s_add_u32 s7, s7, s51")
a(f"s_add_u32 s7, s7, {RDA}")
a("v_mov_b32 v5, s7")
a("s_waitcnt vmcnt(0) lgkmcnt(0)")
a("s_add_u32 s7, s6, 1")
a("v_mov_b32 v12, s7")
a("v_mov_b32 v13, s52")
a("s_mov_b64 exec, 1")
a(f"global_store_dwordx2 v5, v[12:13], {WS} sc1")
a("s_mov_b64 exec, -1")
a("L_A_h2:")
if int(opts.get("hg", 1)): lds_flag_wait("hg", 0x80, 4, [], 4, "v6", 56)
a("s_waitcnt lgkmcnt(0)")
a("s_add_u32 s6, s6, 1")
ts(8)
poll("qp", [f"global_load_dwordx4 v[{48+4*i}:{51+4*i}], v9, {WS} offset:{i*1024} sc1" for i in range(4)],
     [chk_tag([49+4*i, 51+4*i], "v5") for i in range(4)], pre=(f"v_xor_b32 v9, {FO}, v9" if FASTQ else None))
ts(4)
a("v_add_f32 v48, v48, v52")
a("v_add_f32 v50, v50, v54")
a("v_add_f32 v56, v56, v60")
a("v_add_f32 v58, v58, v62")
a("v_permlane32_swap_b32 v48, v56")
a("v_permlane32_swap_b32 v50, v58")
a("v_add_f32 v48, v48, v56")
a("v_add_f32 v50, v50, v58")
a("v_cvt_pk_bf16_f32 v48, v48, v50")
a(f"ds_write_b32 v8, v48 offset:{L_Q}")
a(f"ds_write_b32 v10, v11 offset:{L_FL+0x20}")
ts(5)
a("s_cmp_eq_u32 s3, 0")
a("s_cbranch_scc1 L_A_soft")
APF = int(opts.get("apf", 0))
if APF:
    lds_flag_wait("aq", 0x20, 4, [], 4, "v6", 56)
    a("s_mul_i32 s7, s4, 458752")
    a("s_mul_i32 s51, s39, 28672")
    a("s_add_u32 s7, s7, s51")
    a("s_sub_u32 s51, s3, 1")
    a("s_mul_i32 s51, s51, 9216")
    a("s_add_u32 s7, s7, s51")
    a("v_lshl_add_u32 v5, v1, 4, s7")
    a("v_add_u32 v7, 0x1000, v5")
    a("v_add_u32 v8, 0x2000, v5")
    for i in range(10):
        r = (5, 7, 8)[i >> 2]
        a(f"global_load_dwordx4 v[{64+4*i}:{67+4*i}], v{r}, {WO} offset:{(i&3)*1024}{NTW}")
    a(f"ds_write_b32 v10, v11 offset:{L_FL+0x90}")
end_wave()
pad("h1")
a("L_A_soft:")
a("v_lshlrev_b32 v5, 4, v1")
a("v_lshlrev_b32 v7, 3, v1")
a("s_lshl_b32 s7, s4, 11")
a("s_lshl_b32 s51, s39, 7")
a("s_add_u32 s7, s7, s51")
a(f"s_add_u32 s7, s7, {LSE}")
a("v_lshrrev_b32 v12, 5, v1")
a("s_lshl_b32 s51, s4, 8")
a("s_lshl_b32 s52, s39, 3")
a("s_add_u32 s51, s51, s52")
a(f"s_add_u32 s51, s51, {FO+LSE}")
a("v_lshl_add_u32 v13, v12, 7, s51")
a("v_lshl_add_u32 v12, v12, 3, s7")
a("v_mov_b32 v33, s6")
a("s_mov_b32 s34, 1")
a("s_mov_b32 s35, 1")
lds_flag_wait("sc", 0x40, 4, [f"ds_read_b128 v[16:19], v5 offset:{L_SC}"], 4, "v6", 56)
ts(6)
a("v_max3_f32 v32, v16, v17, v18")
a("v_max_f32 v32, v32, v19")
xlane("v_max_f32", "v32", "v34", ["q1", "q2", "hm", "rm", "p16"])
for e in range(4): a(f"v_sub_f32 v{16+e}, v{16+e}, v32")
for e in range(4): a(f"v_exp_f32 v{16+e}, v{16+e}")
a("v_add_f32 v35, v16, v17")
a("v_add_f32 v36, v18, v19")
a("v_add_f32 v35, v35, v36")
xlane("v_add_f32", "v35", "v34", ["q1", "q2", "hm", "rm", "p16"])
a("v_rcp_f32 v36, v35")
a("v_log_f32 v35, v35")
for e in range(4): a(f"v_mul_f32 v{16+e}, v{16+e}, v36")
a("v_cvt_pk_bf16_f32 v16, v16, v17")
a("v_cvt_pk_bf16_f32 v17, v18, v19")
a(f"ds_write_b64 v7, v[16:17] offset:{L_P}")
a(f"ds_write_b32 v6, v11 offset:{L_FL+0x50}")
a("v_add_f32 v32, v32, v35")
a("s_mov_b64 exec, s[34:35]")
if FAST:
    a(f"global_store_dwordx2 v13, v[32:33], {WS}")
a(f"global_store_dwordx2 v12, v[32:33], {WS} sc1")
a("s_mov_b64 exec, -1")
ts(7)
if int(opts.get("fpf", 1)):
    a("s_setprio 0")
    a("s_mul_i32 s7, s39, 28*3584")
    a("s_mul_i32 s51, s4, 448")
    a("s_add_u32 s7, s7, s51")
    a("v_min_u32 v16, 6, v4")
    a("v_min_u32 v17, 6, v3")
    a("v_mul_u32_u24 v17, 3584, v17")
    a("v_lshl_add_u32 v17, v16, 6, v17")
    a("v_add_u32 v17, s7, v17")
    a("s_mul_i32 s7, s4, 200704")
    a("s_mul_i32 s51, s39, 12544")
    a("s_add_u32 s7, s7, s51")
    a("v_min_u32 v18, 48, v1")
    a("v_lshl_add_u32 v18, v18, 6, s7")
    lds_flag_wait("fp", 0xA0, 4, [], 4, "v6", 56)
    for u_ in range(4):
        a(f"global_load_dword v{40+u_}, v17, {W1}{NTW}")
        a(f"global_load_dword v{44+u_}, v18, {W2}{NTW}")
        if u_ < 3:
            a(f"v_add_u32 v17, {7*3584}, v17")
            a("v_add_u32 v18, 3136, v18")
end_wave()

pad("k1")
a("L_A_k1:")
a("s_lshl_b32 s7, s44, 2")
a("v_mov_b32 v45, s7")
a("v_mov_b32 v46, 1")
a("v_mov_b32 v47, 0")
if DEBUG:
    for k in range(1, 16): a(f"s_mov_b64 s[{64+2*k}:{65+2*k}], 0")
a("s_cmp_eq_u32 s33, 1")
a("s_cbranch_scc1 L_B_pf")
KG = int(opts.get("kg", 3))
a(f"s_waitcnt vmcnt({KG})")
ts(1)
a(f"ds_write_b32 v45, v46 offset:{L_FL+0x80}")
for i in range(KA, 16):
    a(f"global_load_dwordx4 v[{64+4*i}:{67+4*i}], v6, {K} offset:{i*128}{NT}")
a(f"ds_write_b32 v45, v46 offset:{L_FL+0x70}")
ts(2)
a("L_A_k2:")
a(f"s_mov_b32 {MHI}, 0xffff0000")
a("s_lshl_b32 s7, s44, 4")
a(f"s_add_u32 s7, s7, {L_SC}")
a("v_lshl_add_u32 v44, v3, 6, s7")
a("v_mov_b32 v47, 0")
a("v_lshlrev_b32 v5, 4, v4")
for i in range(8): a(f"v_mov_b32 v{48+i}, 0")
a(f"s_mov_b32 s7, {f32(0.0625*LOG2E)}")
QR = [f"ds_read_b128 v[{128+(hh*4+j)*4}:{131+(hh*4+j)*4}], v5 offset:{L_Q + hh*512 + j*128}" for j in range(4) for hh in range(2)]
if int(opts.get("qsep", 1)):
    lds_flag_wait("qx", 0x20, 4, [], 4, "v47", 56)
    for x in QR: a(x)
else:
    lds_flag_wait("qx", 0x20, 4, QR, 4, "v47", 56)
a("s_setprio 2")
ts(4)
for gp in range(2):
    a(f"s_waitcnt vmcnt({8-8*gp})")
    if gp == 1: ts(5)
    for j in range(4):
        if gp == 0 and int(opts.get("qsep", 1)): a(f"s_waitcnt lgkmcnt({0 if DEBUG else 6-2*j})")
        for k in range(4):
            for grp in (2*gp, 2*gp+1):
                for hh in range(2):
                    if not (int(opts.get("noqk", 0)) and k): a(f"v_dot2c_f32_bf16 v{48+hh*4+grp}, v{64+(grp*4+j)*4+k}, v{128+(hh*4+j)*4+k}")
pad("k3", over=True)
for m in ("quad_perm:[1,0,3,2]", "quad_perm:[2,3,0,1]", "row_half_mirror"):
    for i in range(8):
        a(f"v_add_f32_dpp v{48+i}, v{48+i}, v{48+i} {m} {DPPM}")
for q in range(4): a(f"v_cvt_pk_bf16_f32 v{56+q}, v{48+2*q}, v{49+2*q}")
for q in range(4):
    a(f"v_lshlrev_b32 v{48+2*q}, 16, v{56+q}")
    a(f"v_and_b32 v{49+2*q}, {MHI}, v{56+q}")
for i in range(8): a(f"v_mul_f32 v{48+i}, s7, v{48+i}")
a("ds_write_b128 v44, v[48:51]")
a("ds_write_b128 v44, v[52:55] offset:512")
a(f"ds_write_b32 v45, v46 offset:{L_FL+0x40}")
ts(6)
if int(opts.get("wpf", 0)):
    a("s_setprio 0")
    a("s_mul_i32 s7, s4, 458752")
    a("s_mul_i32 s51, s39, 28672")
    a("s_add_u32 s7, s7, s51")
    a("s_mul_i32 s51, s44, 7168")
    a("s_add_u32 s7, s7, s51")
    a("v_lshl_add_u32 v5, v1, 4, s7")
    a("v_add_u32 v6, 0x1000, v5")
    for i in range(7):
        a(f"global_load_dwordx4 v[{64+4*i}:{67+4*i}], v{5+(i>>2)}, {WO} offset:{(i&3)*1024}{NTW}")
end_wave()

pad("v2")
a("L_A_v:")
if DEBUG:
    for k in range(1, 16): a(f"s_mov_b64 s[{64+2*k}:{65+2*k}], 0")
a(f"s_mov_b32 {SEL_LO}, 0x05040100")
a(f"s_mov_b32 {SEL_HI}, 0x07060302")
a("s_lshl_b32 s52, s44, 7")
a("s_add_u32 s51, s43, s52")
a("v_bfe_u32 v5, v1, 3, 1")
a("v_lshlrev_b32 v6, 14, v5")
a("v_lshrrev_b32 v10, 4, v1")
a("v_lshl_add_u32 v6, v10, 12, v6")
a("v_lshl_add_u32 v6, v4, 4, v6")
a("v_add_u32 v6, s51, v6")
a("v_add_u32 v7, 0x8000, v6")
a("v_mov_b32 v11, 0")
a("s_lshl_b32 s7, s4, 14")
a("s_lshl_b32 s51, s39, 9")
a("s_add_u32 s7, s7, s51")
a("s_add_u32 s7, s7, s52")
a(f"s_add_u32 s7, s7, {OP}")
a("v_lshlrev_b32 v8, 13, v5")
a("v_lshl_add_u32 v8, v4, 4, v8")
a("v_add_u32 v8, s7, v8")
a("s_lshl_b32 s7, s4, 14")
a("s_lshl_b32 s51, s44, 11")
a("s_add_u32 s7, s7, s51")
a("s_lshl_b32 s51, s39, 4")
a("s_add_u32 s7, s7, s51")
a(f"s_add_u32 s7, s7, {FO+OP}")
a("v_lshlrev_b32 v12, 13, v5")
a("v_lshl_add_u32 v12, v4, 8, v12")
a("v_add_u32 v12, s7, v12")
a("s_lshl_b32 s7, s44, 2")
a("v_mov_b32 v13, s7")
a("v_mov_b32 v14, 1")
a("v_lshrrev_b32 v5, 1, v1")
a("v_xor_b32 v5, v5, v1")
a("v_and_b32 v5, 1, v5")
a("v_lshlrev_b32 v9, 8, v5")
a("v_and_b32 v5, 1, v1")
a("v_lshl_add_u32 v9, v5, 6, v9")
a("v_lshl_add_u32 v9, v10, 4, v9")
if WARM:
    for u_, names in enumerate((("h1",), ("k3",), ("v3",), ("v4",))):
        sk = lab("vt")
        a(f"s_cmp_eq_u32 s44, {u_}")
        a(f"s_cbranch_scc0 {sk}")
        touch(*names)
        a(f"{sk}:")
lds_flag_wait("vg", int(opts.get("vg", 0x20)), 4, [], 3 if opts.get("vg") == "144" else 4, "v11", 32)
ts(1)
def vperm(t):
    if t < 4: perm_pair(40+8*t, 44+8*t, [104+4*j+t for j in range(8)])
    else: perm_pair(40+8*t, 44+8*t, [40+4*j+(t-4) for j in range(8)])
done_t = 0
for i in range(16):
    sg, e = divmod(i, 8)
    known = -1
    if VD <= i < VN:
        a(f"s_waitcnt vmcnt({VD-1})"); known = i - VD
    a(f"global_load_dwordx4 v[{40+4*i}:{43+4*i}], v{6+sg}, {V} offset:{e*512}{NTV}")
    while 2*done_t+1 <= known and done_t < 4:
        vperm(done_t); done_t += 1
    if i == 9: pad("v3", over=True)
ts(2)
while done_t < 4:
    a(f"s_waitcnt vmcnt({14-2*done_t})"); vperm(done_t); done_t += 1
PRE = int(opts.get("vpre", 2))
for t in range(4, 4+PRE):
    a(f"s_waitcnt vmcnt({14-2*t})"); vperm(t)
ts(3)
pad("v4", over=True)
lds_flag_wait("pw", 0x50, 4, [f"ds_read_b128 v[16:19], v9 offset:{L_P}", f"ds_read_b128 v[20:23], v9 offset:{L_P+128}"], 1, "v11", 32)
a("s_setprio 3")
ts(6)
for j in range(8):
    a(f"v_mfma_f32_16x16x32_bf16 v[{136+4*j}:{139+4*j}], v[16:19], v[{104+4*j}:{107+4*j}], 0")
for t in range(4+PRE, 8):
    a(f"s_waitcnt vmcnt({14-2*t})")
    if t == 7: ts(7)
    vperm(t)
for j in range(8):
    a(f"v_mfma_f32_16x16x32_bf16 v[{136+4*j}:{139+4*j}], v[20:23], v[{40+4*j}:{43+4*j}], v[{136+4*j}:{139+4*j}]")
for j in range(8):
    d = 136 + 4*j
    a(f"v_add_f32_dpp v{24+j}, v{d+3}, v{d} row_ror:8 row_mask:0xf bank_mask:0x3")
    a(f"v_add_f32_dpp v{24+j}, v{d+2}, v{d+1} row_ror:8 row_mask:0xf bank_mask:0xc")
for t in range(4): a(f"v_cvt_pk_bf16_f32 v{36+t}, v{24+2*t}, v{25+2*t}")
for t in range(4): a(f"v_min_u32 v{36+t}, -2, v{36+t}")
a("s_mov_b64 exec, 0xffff")
if FAST: a(f"global_store_dwordx4 v12, v[36:39], {WS}")
a(f"global_store_dwordx4 v8, v[36:39], {WS} sc1")
a("s_mov_b64 exec, -1")
ts(8)
if opts.get("ack"):
    a("s_waitcnt vmcnt(1)")
    ts(10)
    a("s_waitcnt vmcnt(0)")
    ts(11)
a(f"ds_write_b32 v13, v14 offset:{L_FL+0xA0}")
end_wave()

a("L_B_pf:")
PD = int(opts.get("pd", 4)); PN = int(opts.get("pn", 4)); PW = int(opts.get("pw", 12)); XS = int(opts.get("xs", 0)); WPF2 = int(opts.get("wpf2", 1))
a("s_lshl_b32 s52, s44, 7")
a("s_add_u32 s51, s43, s52")
a("v_bfe_u32 v5, v1, 3, 1")
a("v_lshlrev_b32 v8, 14, v5")
a("v_lshrrev_b32 v10, 4, v1")
a("v_lshl_add_u32 v8, v10, 12, v8")
a("v_lshl_add_u32 v8, v4, 4, v8")
a("v_add_u32 v8, s51, v8")
a("v_add_u32 v9, 0x8000, v8")
for n, i in enumerate(range(XS, 16)):
    if n < PN: a(f"s_waitcnt vmcnt({PD-1})")
    if n == PN and S1G == 2: lds_flag_wait("pg", 0x60, 4, [], 1, "v47", 56)
    a(f"global_load_dwordx4 v[{100+4*n}:{103+4*n}], v{8+(i>>3)}, {V} offset:{(i&7)*512}{NT}")
ts(1)
if PW < 16: a(f"s_waitcnt vmcnt({PW})")
a(f"ds_write_b32 v45, v46 offset:{L_FL+0x70}")
if WPF2:
    a("s_cmp_lt_u32 s39, 7")
    a("s_cbranch_scc1 L_B_pf2")
    a("s_sub_u32 s7, s39, 7")
    a("s_lshl_b32 s7, s7, 2")
    a("s_add_u32 s7, s7, s44")
    a("s_mul_i32 s7, s7, 6400")
    a("s_min_u32 s7, s7, 222976")
    a("s_mul_i32 s51, s4, 458752")
    a("s_add_u32 s7, s7, s51")
    a("s_add_u32 s7, s7, 229376")
    a("v_min_u32 v5, 49, v1")
    a("v_lshl_add_u32 v5, v5, 7, s7")
    a(f"global_load_dword v40, v5, {WO}{NTW}")
    a(f"global_load_dword v41, v5, {WO} offset:64{NTW}")
a(f"s_waitcnt vmcnt({int(opts.get('fw', 0))})")
a(f"ds_write_b32 v45, v46 offset:{L_FL+0xC0}")
a("s_branch L_B_pf3")
a("L_B_pf2:")
a("s_cmp_eq_u32 s3, 8")
a("s_cbranch_scc0 L_B_pf3")
a(f"s_load_dword s6, {WS}, 0")
a("s_lshl_b32 s7, s4, 11")
a(f"s_add_u32 s7, s7, {RDA}")
a("v_and_b32 v60, 15, v1")
a("v_lshl_add_u32 v61, v60, 7, s7")
a("s_getreg_b32 s54, hwreg(HW_REG_XCC_ID)")
a("s_setprio 3")
a("s_waitcnt lgkmcnt(0)")
a("s_add_u32 s6, s6, 1")
poll("ra", [f"global_load_dwordx2 v[62:63], v61, {WS} sc1"], [chk_tag([62], None)])
a("v_cmp_ne_u32 vcc, s54, v63")
a("s_cmp_eq_u64 vcc, 0")
a(f"s_cselect_b32 s7, {2 if FAST else 1}, 1")
a("v_mov_b32 v5, s7")
a(f"ds_write_b32 v47, v5 offset:{L_FL+0xB0}")
a("L_B_pf3:")
ts(2)
end_wave()
pad("bh2")
a("L_B_hi2:")
if DEBUG:
    for k in range(1, 16): a(f"s_mov_b64 s[{64+2*k}:{65+2*k}], 0")
a("s_cmp_lt_u32 s3, 7")
a("s_cbranch_scc1 L_B_join")
a("L_w7:")
a(f"s_load_dword s6, {WS}, 0")
a("v_mov_b32 v12, -1\nv_mov_b32 v13, -1\nv_mov_b32 v14, -1\nv_mov_b32 v15, -1")
a("s_cmp_lt_u32 s39, 14")
a("s_cbranch_scc0 L_B_exit")
a("s_cmp_lt_u32 s39, 7")
a("s_cbranch_scc0 L_w7_a")
a("s_lshl_b32 s7, s39, 3")
a("s_add_u32 s7, s7, s4")
a("s_lshl_b32 s7, s7, 7")
a(f"s_add_u32 s7, s7, {YP}")
a("v_lshl_add_u32 v5, v4, 4, s7")
a("s_mov_b64 exec, 0xff")
a(f"global_store_dwordx4 v5, v[12:15], {WS} sc1")
a("s_mov_b64 exec, -1")
a("s_branch L_w7_b")
a("L_w7_a:")
a("s_mul_i32 s57, s4, 7")
a("s_add_u32 s57, s57, s39")
a("s_sub_u32 s57, s57, 7")
a("s_mul_i32 s7, s57, 896")
a(f"s_add_u32 s7, s7, {ZP}")
a("v_min_u32 v6, 55, v1")
a("v_lshl_add_u32 v5, v6, 4, s7")
a(f"global_store_dwordx4 v5, v[12:15], {WS} sc1")
a("v_mov_b32 v6, 0")
a(f"global_load_ushort v16, v6, {OUT}")
a("L_w7_b:")
a("s_lshl_b32 s7, s39, 3")
a("s_add_u32 s7, s7, s4")
a("s_lshl_b32 s7, s7, 7")
a(f"s_add_u32 s7, s7, {RDY}")
a("v_mov_b32 v5, s7")
a("s_waitcnt vmcnt(0) lgkmcnt(0)")
a("s_add_u32 s7, s6, 1")
a("v_mov_b32 v6, s7")
a("s_mov_b64 exec, 1")
a(f"global_store_dword v5, v6, {WS} sc1")
a("s_mov_b64 exec, -1")
a("L_B_join:")
a(f"s_load_dword s6, {WS}, 0")
a(f"s_mov_b32 {SEL_LO}, 0x05040100")
a(f"s_mov_b32 {SEL_HI}, 0x07060302")
a(f"s_mov_b32 {MHI}, 0xffff0000")
a("v_lshlrev_b32 v2, 3, v4")
a("v_bfe_u32 v5, v1, 3, 1")
a("v_lshl_add_u32 v2, v5, 2, v2")
a("v_bfe_u32 v5, v1, 4, 1")
a("v_lshl_add_u32 v2, v5, 1, v2")
a("v_lshrrev_b32 v5, 5, v1")
a("v_add_u32 v2, v2, v5")
a("L_B_go:")
a("s_cmp_lt_u32 s39, 14")
a("s_cbranch_scc0 L_B_exit")
a("v_mov_b32 v6, 0")
WOG = int(opts.get("wog", 0x80))
a("s_cmp_lt_u32 s39, 7")
a("s_cbranch_scc0 L_B_go_f")
lds_flag_wait("pubw", 0x60, 8, [], 5, "v6", 56)
a("s_add_u32 s6, s6, 1")
a("s_branch L_stage_wo")
a("L_B_go_f:")
lds_flag_wait("pub", 0x60, 8, [], 5, "v6", 56)
a("s_add_u32 s6, s6, 1")
a("s_branch L_stage_ffn")
a("L_B_exit:")
end_wave()
pad("wo1")

a("L_stage_wo:")
ts(8)
a("s_lshl_b32 s7, s4, 9")
a("s_lshl_b32 s51, s3, 6")
a("s_add_u32 s7, s7, s51")
a("s_mul_i32 s7, s7, 896")
a("s_lshl_b32 s51, s39, 7")
a("s_add_u32 s7, s7, s51")
a("v_mul_u32_u24 v5, 896, v3")
a("v_lshl_add_u32 v5, v4, 4, v5")
a("v_add_u32 v5, s7, v5")
WD = int(opts.get("wd", 8))
for i in range(8):
    if i >= WD: a(f"s_waitcnt vmcnt({WD-1})")
    EXP_NOWO = int(opts.get("nowo", 0))
    a(f"global_load_dwordx4 v[{8+4*i}:{11+4*i}], v5, {WO}{NTO}")
    if i < 7 and not EXP_NOWO: a(f"v_add_u32 v5, {8*896}, v5")
a("v_and_b32 v60, 15, v1")
a("s_lshr_b32 s59, s3, 2")
a("s_and_b32 s58, s3, 3")
a("v_lshrrev_b32 v59, 4, v1")
a("s_lshl_b32 s7, s3, 13")
a(f"s_add_u32 s7, s7, {L_W}")
a("v_lshl_add_u32 v40, v1, 4, s7")
a("v_bfe_u32 v5, v1, 2, 2")
a("v_lshl_add_u32 v5, v59, 3, v5")
a("v_lshlrev_b32 v41, 7, v5")
a("v_and_b32 v5, 3, v1")
a("v_lshl_add_u32 v41, v5, 3, v41")
a("v_add_u32 v41, s7, v41")
a("v_bfe_u32 v5, v1, 4, 1")
a("v_lshlrev_b32 v45, 1, v5")
a("v_lshrrev_b32 v5, 5, v1")
a("v_add_u32 v45, v45, v5")
a("v_lshl_add_u32 v45, v45, 4, v60")
a("s_lshl_b32 s7, s3, 8")
a("v_lshl_add_u32 v45, v45, 2, s7")
a("v_and_b32 v5, 31, v1")
a("v_lshlrev_b32 v47, 3, v5")
a("s_lshl_b32 s7, s39, 3")
a("s_add_u32 s7, s7, s4")
a("s_lshl_b32 s7, s7, 7")
a(f"s_add_u32 s7, s7, {YP}")
a("v_lshl_add_u32 v46, v5, 2, s7")
a("s_lshl_b32 s55, s4, 1")
a("s_add_u32 s55, s55, s59")
a("v_mov_b32 v6, 0")
h = spin_head("dec")
a(f"ds_read_b32 v5, v6 offset:{L_FL+0xB0}")
a("s_waitcnt lgkmcnt(0)")
a("v_readfirstlane_b32 s52, v5")
a("s_cmp_lg_u32 s52, 0")
spin_tail(h)
a("s_cmp_eq_u32 s52, 2")
a("s_cbranch_scc1 L_wo_fast")
a("s_lshl_b32 s7, s4, 11")
a("s_lshl_b32 s51, s59, 3")
a("s_add_u32 s7, s7, s51")
a(f"s_add_u32 s7, s7, {LSE}")
a("v_lshl_add_u32 v48, v59, 9, s7")
a("s_movk_i32 s61, 128")
a("s_lshl_b32 s7, s55, 13")
a("s_lshl_b32 s51, s58, 7")
a("s_add_u32 s7, s7, s51")
a(f"s_add_u32 s7, s7, {OP}")
a("v_lshlrev_b32 v43, 9, v60")
a("v_lshl_add_u32 v43, v59, 4, v43")
a("v_add_u32 v43, s7, v43")
a("v_add_u32 v44, 64, v43")
a("s_branch L_wo_go")
a("L_wo_fast:")
a("s_lshl_b32 s7, s55, 7")
a(f"s_add_u32 s7, s7, {FO+LSE}")
a("v_lshl_add_u32 v48, v59, 5, s7")
a("s_movk_i32 s61, 8")
a("s_lshl_b32 s7, s55, 13")
a("s_lshl_b32 s51, s58, 11")
a("s_add_u32 s7, s7, s51")
a(f"s_add_u32 s7, s7, {FO+OP}")
a("v_lshl_add_u32 v43, v1, 4, s7")
a("v_add_u32 v44, 0x400, v43")
a("L_wo_go:")
a("v_add_u32 v49, s61, v48")
a("v_add_u32 v50, s61, v49")
a("v_add_u32 v51, s61, v50")
WL = [f"global_load_dwordx2 v[{96+2*i}:{97+2*i}], v{48+i}, {WS} sc1" for i in range(4)] + \
     [f"global_load_dwordx4 v[104:107], v43, {WS} sc1", f"global_load_dwordx4 v[108:111], v44, {WS} sc1"]
PQ = int(opts.get("pq", 6))
for i in range(8):
    if i == PQ:
        for x in WL: a(x)
    a(f"s_waitcnt vmcnt({7-i + (6 if i >= PQ else 0)})")
    a(f"ds_write_b128 v40, v[{8+4*i}:{11+4*i}] offset:{i*1024}")
if PQ >= 8:
    for x in WL: a(x)
for sg in range(2):
    for t in range(4):
        r = 64 + (sg*4 + t)*4
        a(f"ds_read_b64_tr_b16 v[{r}:{r+1}], v41 offset:{sg*4096 + t*32}")
        a(f"ds_read_b64_tr_b16 v[{r+2}:{r+3}], v41 offset:{sg*4096 + t*32 + 512}")
ts(9)
def alpha():
    a("v_max3_f32 v54, v96, v98, v100")
    a("v_max_f32 v54, v54, v102")
    xlane("v_max_f32", "v54", "v55", ["p16", "p32"])
    for i in range(4): a(f"v_sub_f32 v{96+2*i}, v{96+2*i}, v54")
    for i in range(4): a(f"v_exp_f32 v{96+2*i}, v{96+2*i}")
    a("v_add_f32 v54, v96, v98")
    a("v_add_f32 v56, v100, v102")
    a("v_add_f32 v54, v54, v56")
    xlane("v_add_f32", "v54", "v55", ["p16", "p32"])
    a("v_rcp_f32 v54, v54")
    for i in range(4): a(f"v_mul_f32 v{96+2*i}, v{96+2*i}, v54")
    ts(10)
poll2("op", WL, [chk_tag([97+2*i], None) for i in range(4)] + [chk_sent4(104, "v52"), chk_sent4(108, "v53")], 4, alpha)
a("s_waitcnt lgkmcnt(0)")
ts(11)
for t in range(4):
    a(f"v_mfma_f32_16x16x32_bf16 v[{112+4*t}:{115+4*t}], v[104:107], v[{64+4*t}:{67+4*t}], 0")
for t in range(4):
    a(f"v_mfma_f32_16x16x32_bf16 v[{112+4*t}:{115+4*t}], v[108:111], v[{80+4*t}:{83+4*t}], v[{112+4*t}:{115+4*t}]")
for t in range(4):
    a(f"v_mul_f32 v{52+t}, v96, v{112+4*t}")
    for r in range(1, 4): a(f"v_fmac_f32 v{52+t}, v{96+2*r}, v{112+4*t+r}")
a("v_permlane32_swap_b32 v52, v53")
a("v_permlane32_swap_b32 v54, v55")
a("v_add_f32 v52, v52, v53")
a("v_add_f32 v54, v54, v55")
a("v_permlane16_swap_b32 v52, v54")
a("v_add_f32 v52, v52, v54")
a(f"ds_write_b32 v45, v52 offset:{L_RED}")
a("s_waitcnt lgkmcnt(0)")
a("s_barrier")
ts(12)
a("s_cmp_lg_u32 s3, 0")
a("s_cbranch_scc1 L_wo_end")
for w in range(8): a(f"ds_read_b64 v[{80+2*w}:{81+2*w}], v47 offset:{L_RED + 256*w}")
a("s_mov_b32 s34, -1")
a("s_mov_b32 s35, 0")
a("s_waitcnt lgkmcnt(0)")
for (x, y) in ((80, 82), (84, 86), (88, 90), (92, 94), (80, 84), (88, 92), (80, 88)):
    a(f"v_add_f32 v{x}, v{x}, v{y}")
    a(f"v_add_f32 v{x+1}, v{x+1}, v{y+1}")
a("v_cvt_pk_bf16_f32 v80, v80, v81")
a("v_min_u32 v80, -2, v80")
a("s_mov_b64 exec, s[34:35]")
a(f"global_store_dword v46, v80, {WS} sc1")
a("s_mov_b64 exec, -1")
ts(13)
a("L_wo_end:")
end_wave()

a("L_stage_ffn:")
a("s_mul_i32 s57, s4, 7")
a("s_add_u32 s57, s57, s39")
a("s_sub_u32 s57, s57, 7")
a("s_cmp_eq_u32 s3, 7")
a("s_cbranch_scc1 L_final")
a("s_lshl_b32 s7, s3, 10")
a(f"s_add_u32 s7, s7, {RDY}")
a("v_lshl_add_u32 v6, v4, 7, s7")
poll("tg", [f"global_load_dword v5, v6, {WS} sc1"], [chk_tag([5], None)])
if FGATE == 100:
    a("v_mov_b32 v6, 0")
    lds_flag_wait("fg", 0xC0, 4, [], 4, "v6", 56)
elif FGATE:
    a("s_lshl_b32 s7, s4, 11")
    a(f"s_add_u32 s7, s7, {LSE+4}")
    a(f"v_and_b32 v5, {FGATE-1}, v1")
    a("v_lshl_add_u32 v6, v5, 7, s7")
    poll("fg", [f"global_load_dword v5, v6, {WS} sc1"], [chk_tag([5], None)])
a(f"s_mul_i32 s7, s3, {64*3584}")
a("s_lshl_b32 s51, s57, 6")
a("s_add_u32 s7, s7, s51")
a("v_lshrrev_b32 v43, 2, v1")
a("v_and_b32 v44, 3, v1")
a("v_mul_u32_u24 v5, 3584, v43")
a("v_lshl_add_u32 v5, v44, 4, v5")
a("v_add_u32 v5, s7, v5")
for i in range(4):
    a(f"global_load_dwordx4 v[{8+4*i}:{11+4*i}], v5, {W1}{NTW}")
    if i < 3: a(f"v_add_u32 v5, {16*3584}, v5")
a(f"s_mul_i32 s7, s57, {32*896}")
a("s_lshl_b32 s51, s3, 7")
a("s_add_u32 s7, s7, s51")
a("v_mul_u32_u24 v6, 896, v3")
a("v_lshl_add_u32 v6, v4, 4, v6")
a("v_add_u32 v5, s7, v6")
for i in range(4):
    a(f"global_load_dwordx4 v[{24+4*i}:{27+4*i}], v5, {W2}{NTW}")
    if i < 3: a(f"v_add_u32 v5, {8*896}, v5")
a("v_lshl_add_u32 v5, v2, 1, s51")
a(f"global_load_ushort v40, v5, {X}")
a("v_lshrrev_b32 v59, 4, v1")
a("v_and_b32 v60, 15, v1")
a("v_lshl_add_u32 v45, v59, 3, v4")
a("s_lshl_b32 s52, s57, 6")
a("v_lshl_add_u32 v5, v45, 1, s52")
a(f"global_load_ushort v42, v5, {B1}")
a(f"s_add_u32 s51, s51, {L_W2}")
a("v_add_u32 v41, s51, v6")
a("s_lshl_b32 s7, s3, 12")
a(f"s_add_u32 s7, s7, {L_W}")
a("v_lshl_add_u32 v47, v1, 4, s7")
a("v_bfe_u32 v5, v1, 2, 2")
a("v_lshl_add_u32 v5, v59, 3, v5")
a("v_lshlrev_b32 v48, 6, v5")
a("v_lshl_add_u32 v48, v44, 3, v48")
a("v_add_u32 v48, s7, v48")
a("v_mul_u32_u24 v49, 896, v5")
a("v_lshl_add_u32 v49, v44, 3, v49")
a("s_lshl_b32 s7, s3, 8")
a(f"s_add_u32 s7, s7, {L_W2}")
a("v_add_u32 v49, s7, v49")
a("s_lshl_b32 s7, s3, 10")
a(f"s_add_u32 s7, s7, {YP}")
a("v_lshl_add_u32 v46, v1, 4, s7")
a("s_lshl_b32 s7, s3, 7")
a("v_lshl_add_u32 v50, v2, 1, s7")
a("v_lshl_add_u32 v51, v59, 4, s7")
a("s_lshl_b32 s7, s3, 2")
a("v_lshl_add_u32 v54, v60, 5, s7")
a("v_lshlrev_b32 v55, 5, v45")
a("s_mul_i32 s7, s57, 896")
a("s_lshl_b32 s51, s3, 8")
a("s_add_u32 s7, s7, s51")
a(f"s_add_u32 s7, s7, {ZP}")
a("v_lshl_add_u32 v62, v1, 1, s7")
a("s_mov_b32 s58, 0x55555555")
a("s_mov_b32 s59, 0x55555555")
a("s_lshl_b32 s7, s3, 3")
a("v_mov_b32 v63, s7")
a("v_mov_b32 v61, 0")
for r in range(4): a(f"v_mov_b32 v{96+r}, 0x3f803f80")
for i in range(4):
    a(f"s_waitcnt vmcnt({9-i})")
    a(f"ds_write_b128 v47, v[{8+4*i}:{11+4*i}] offset:{i*1024}")
for sg in range(2):
    for t in range(2):
        r = 64 + (sg*2 + t)*4
        a(f"ds_read_b64_tr_b16 v[{r}:{r+1}], v48 offset:{sg*2048 + t*32}")
        a(f"ds_read_b64_tr_b16 v[{r+2}:{r+3}], v48 offset:{sg*2048 + t*32 + 256}")
a("s_waitcnt lgkmcnt(0)")
for t in range(2): a(f"v_mfma_f32_16x16x32_bf16 v[{100+4*t}:{103+4*t}], v[96:99], v[{64+4*t}:{67+4*t}], 0")
for t in range(2): a(f"v_mfma_f32_16x16x32_bf16 v[{100+4*t}:{103+4*t}], v[96:99], v[{72+4*t}:{75+4*t}], v[{100+4*t}:{103+4*t}]")
for i in range(4):
    a(f"s_waitcnt vmcnt({5-i})")
    a(f"ds_write_b128 v41, v[{24+4*i}:{27+4*i}] offset:{i*8*896}")
a(f"ds_write_b32 v54, v100 offset:{L_C}")
a(f"ds_write_b32 v54, v104 offset:{L_C+512}")
a("s_waitcnt vmcnt(0) lgkmcnt(0)")
a("s_barrier")
ts(9)
a(f"ds_read_b128 v[100:103], v55 offset:{L_C}")
a(f"ds_read_b128 v[104:107], v55 offset:{L_C+16}")
a("s_cmp_gt_u32 s3, 3")
a("s_cbranch_scc1 L_ffn_now2")
for T in range(8):
    if T == 4:
        a("s_cmp_eq_u32 s3, 3")
        a("s_cbranch_scc1 L_ffn_now2")
    r = 128 + 4*T
    a(f"ds_read_b64_tr_b16 v[{r}:{r+1}], v49 offset:{T*32}")
    a(f"ds_read_b64_tr_b16 v[{r+2}:{r+3}], v49 offset:{T*32 + 4*896}")
a("L_ffn_now2:")
a("v_lshlrev_b32 v40, 16, v40")
a("v_lshlrev_b32 v42, 16, v42")
a("s_mov_b32 s36, 0")
a("s_mov_b32 s37, 0x80000000")
a(f"v_mov_b32 v56, {f32(1.0/3)}")
a("s_waitcnt lgkmcnt(0)")
a("v_add_f32 v100, v100, v101")
a("v_add_f32 v102, v102, v103")
a("v_add_f32 v104, v104, v105")
a("v_add_f32 v100, v100, v102")
a("v_add_f32 v104, v104, v106")
a("v_add_f32 v57, v100, v104")
ts(10)
poll("yp", [f"global_load_dwordx4 v[96:99], v46, {WS} sc1"], [chk_sent4(96, "v52")])
ts(11)
for k in range(4):
    a(f"v_lshlrev_b32 v{104+2*k}, 16, v{96+k}")
    a(f"v_and_b32 v{105+2*k}, {MHI}, v{96+k}")
reduce8_hi(R(104, 8), 52)
bf16r("v52")
a("v_add_f32 v52, v52, v40")
a("v_cvt_pk_bf16_f32 v52, v52, v52")
a(f"ds_write_b16 v50, v52 offset:{L_H}")
a(f"ds_read_b128 v[96:99], v51 offset:{L_H}")
a(f"ds_read_b128 v[112:115], v51 offset:{L_H+64}")
a(f"v_and_b32 v52, {MHI}, v52")
a("v_mul_f32 v53, v52, v52")
wave_sum2("v52", "v53", None, None)
a("s_waitcnt lgkmcnt(0)")
for t in range(2): a(f"v_mfma_f32_16x16x32_bf16 v[{100+4*t}:{103+4*t}], v[96:99], v[{64+4*t}:{67+4*t}], 0")
for t in range(2): a(f"v_mfma_f32_16x16x32_bf16 v[{100+4*t}:{103+4*t}], v[112:115], v[{72+4*t}:{75+4*t}], v[{100+4*t}:{103+4*t}]")
a("s_mov_b64 exec, s[36:37]")
a(f"ds_write_b64 v63, v[52:53] offset:{L_ST}")
a("s_mov_b64 exec, -1")
a(f"ds_write_b32 v54, v100 offset:{L_Z}")
a(f"ds_write_b32 v54, v104 offset:{L_Z+512}")
a("s_waitcnt lgkmcnt(0)")
a("s_barrier")
ts(12)
a("s_cmp_gt_u32 s3, 3")
a("s_cbranch_scc1 L_wo_end")
a(f"ds_read_b128 v[108:111], v61 offset:{L_ST}")
a(f"ds_read_b128 v[112:115], v61 offset:{L_ST+16}")
a(f"ds_read_b128 v[116:119], v61 offset:{L_ST+32}")
a(f"ds_read_b64 v[120:121], v61 offset:{L_ST+48}")
a(f"ds_read_b128 v[100:103], v55 offset:{L_Z}")
a(f"ds_read_b128 v[104:107], v55 offset:{L_Z+16}")
a(f"s_mov_b32 s7, {f32(-LOG2E)}")
a("s_waitcnt lgkmcnt(0)" if DEBUG else "s_waitcnt lgkmcnt(2)")
for (x, y) in ((108, 110), (112, 114), (116, 118), (108, 112), (116, 120), (108, 116)):
    a(f"v_add_f32 v{x}, v{x}, v{y}")
    a(f"v_add_f32 v{x+1}, v{x+1}, v{y+1}")
ln_finish("v108", "v109", "v52", "v53", "v58")
a("s_waitcnt lgkmcnt(0)")
a("v_add_f32 v100, v100, v101")
a("v_add_f32 v102, v102, v103")
a("v_add_f32 v104, v104, v105")
a("v_add_f32 v100, v100, v102")
a("v_add_f32 v104, v104, v106")
a("v_add_f32 v100, v100, v104")
a("v_fma_f32 v100, -v52, v57, v100")
a("v_mul_f32 v100, v100, v53")
bf16r("v100")
a("v_add_f32 v100, v100, v42")
bf16r("v100")
a("v_mul_f32 v101, s7, abs(v100)")
a("v_exp_f32 v101, v101")
a("v_max_f32 v107, 0, v100")
bf16r("v101")
a("v_add_f32 v102, 1.0, v101")
a("v_log_f32 v102, v102")
a("v_fma_f32 v103, v101, v56, -0.5")
a("v_fma_f32 v103, v101, v103, 1.0")
a("v_mul_f32 v103, v101, v103")
a(f"v_cmp_gt_f32 vcc, {f32(2.0**-6)}, v101")
a(f"v_mul_f32 v102, {f32(math.log(2))}, v102")
a("v_cndmask_b32 v102, v102, v103, vcc")
bf16r("v102")
a("v_add_f32 v102, v102, v107")
bf16r("v102")
a(f"v_mul_f32 v103, {f32(-2*LOG2E)}, v102")
a("v_exp_f32 v103, v103")
a("v_mul_f32 v105, v102, v102")
a(f"v_cmp_gt_f32 vcc, {f32(2.0**-5)}, v102")
a("v_add_f32 v106, 1.0, v103")
a("v_sub_f32 v103, 1.0, v103")
a("v_rcp_f32 v106, v106")
a("v_mul_f32 v105, v105, v56")
a("v_fma_f32 v105, -v105, v102, v102")
a("v_mul_f32 v103, v103, v106")
a("v_cndmask_b32 v103, v103, v105, vcc")
bf16r("v103")
a("v_mul_f32 v100, v100, v103")
a(f"v_mov_b32_dpp v101, v100 quad_perm:[0,0,2,2] {DPPM}")
a(f"v_mov_b32_dpp v102, v100 quad_perm:[1,1,3,3] {DPPM}")
a("v_cvt_pk_bf16_f32 v101, v101, v102")
a(f"v_mov_b32_dpp v102, v101 row_half_mirror {DPPM}")
a("v_mov_b32_dpp v96, v101 quad_perm:[0,0,0,0] row_mask:0xf bank_mask:0x5")
a("v_mov_b32_dpp v97, v101 quad_perm:[2,2,2,2] row_mask:0xf bank_mask:0x5")
a("v_mov_b32_dpp v98, v101 quad_perm:[0,0,0,0] row_mask:0xf bank_mask:0xa")
a("v_mov_b32_dpp v99, v101 quad_perm:[2,2,2,2] row_mask:0xf bank_mask:0xa")
a("v_mov_b32_dpp v98, v102 quad_perm:[2,2,2,2] row_mask:0xf bank_mask:0x5")
a("v_mov_b32_dpp v99, v102 quad_perm:[0,0,0,0] row_mask:0xf bank_mask:0x5")
a("v_mov_b32_dpp v96, v102 quad_perm:[2,2,2,2] row_mask:0xf bank_mask:0xa")
a("v_mov_b32_dpp v97, v102 quad_perm:[0,0,0,0] row_mask:0xf bank_mask:0xa")
def ffn2(q):
    for T in range(4*q, 4*q+4):
        a(f"v_mfma_f32_16x16x32_bf16 v[{64+4*T}:{67+4*T}], v[96:99], v[{128+4*T}:{131+4*T}], 0")
def ffn2_out(q):
    for rho in range(4):
        a(f"v_mov_b32_dpp v{104+q}, v{64+4*(4*q+rho)} quad_perm:[0,1,2,3] row_mask:{hex(1<<rho)} bank_mask:0xf")
    a(f"v_mov_b32_dpp v{106+q}, v{104+q} quad_perm:[1,1,3,3] {DPPM}")
    a(f"v_cvt_pk_bf16_f32 v{104+q}, v{104+q}, v{106+q}")
    a(f"v_min_u32 v{104+q}, -2, v{104+q}")
    a("s_mov_b64 exec, s[58:59]")
    a(f"global_store_dword v62, v{104+q}, {WS} offset:{128*q} sc1")
    a("s_mov_b64 exec, -1")
ffn2(0)
a("s_cmp_eq_u32 s3, 3")
a("s_cbranch_scc1 L_ffn_last")
ffn2(1)
ffn2_out(0)
ffn2_out(1)
ts(13)
if int(opts.get("fdl", 4)):
    a("s_waitcnt vmcnt(0)")
    a("v_mov_b32 v5, 1")
    a(f"ds_write_b32 v63, v5 offset:{L_FL+0xD0}")
end_wave()
a("L_ffn_last:")
a("s_nop 7")
ffn2_out(0)
ts(13)
if int(opts.get("fdl", 4)):
    a("s_waitcnt vmcnt(0)")
    a("v_mov_b32 v5, 1")
    a(f"ds_write_b32 v63, v5 offset:{L_FL+0xD0}")
end_wave()

pad("fin")
a("L_final:")
a("v_min_u32 v5, 55, v1")
a("v_mul_u32_u24 v5, 896, v5")
a("s_lshl_b32 s7, s57, 4")
a(f"s_add_u32 s7, s7, {ZP}")
a("v_add_u32 v5, s7, v5")
a("v_and_b32 v6, 7, v2")
a("s_lshl_b32 s7, s57, 3")
a("v_add_u32 v6, s7, v6")
a("v_lshlrev_b32 v6, 1, v6")
a("s_mov_b32 s36, 0x01010101")
a("s_mov_b32 s37, 0x01010101")
a("v_min_u32 v7, 55, v1")
a("v_lshlrev_b32 v7, 7, v7")
a(f"v_add_u32 v7, {RDY + 7*1024}, v7")
poll("rd", [f"global_load_dword v8, v7, {WS} sc1"], [chk_tag([8], None)])
a("s_barrier")
a("s_barrier")
a(f"ds_read_u16 v50, v6 offset:{L_H}")
ts(12)
if int(opts.get("fdl", 4)):
    a("v_mov_b32 v9, 0")
    lds_flag_wait("fd", 0xD0, 8, [], int(opts.get("fdl", 4)), "v9", 56, ge=True)
poll("fin", [f"global_load_dwordx4 v[96:99], v5, {WS} sc1"], [chk_sent4(96, "v48")])
ts(13)
a("v_cmp_gt_u32 vcc, 56, v1")
a("s_waitcnt lgkmcnt(0)")
a("v_lshlrev_b32 v50, 16, v50")
for k in range(4): a(f"v_cndmask_b32 v{96+k}, 0, v{96+k}, vcc")
for k in range(4):
    a(f"v_lshlrev_b32 v{100+2*k}, 16, v{96+k}")
    a(f"v_and_b32 v{101+2*k}, {MHI}, v{96+k}")
reduce8_hi(R(100, 8), 52)
xlane("v_add_f32", "v52", None, ["q1", "q2", "hm"])
bf16r("v52")
a("v_add_f32 v52, v52, v50")
a("v_cvt_pk_bf16_f32 v52, v52, v52")
a("s_mov_b64 exec, s[36:37]")
a(f"global_store_short v6, v52, {OUT}")
a("s_cmp_lg_u32 s57, 0")
a("s_cbranch_scc1 L_fin_end")
a("s_mov_b64 exec, 1")
a("v_mov_b32 v5, 0")
a("v_mov_b32 v6, s6")
a(f"global_store_dword v5, v6, {WS} sc1")
a("L_fin_end:")
a("s_mov_b64 exec, -1")
ts(14)
end_wave()

if DEBUG:
    a("L_dump:")
    a("s_waitcnt lgkmcnt(0)")
    a("s_mov_b64 exec, 1")
    if DIAG:
        a(f"s_cmp_eq_u32 s2, {DIAG[0]}")
        a("s_cbranch_scc0 L_end")
        a(f"s_cmp_eq_u32 s3, {DIAG[1]}")
        a("s_cbranch_scc0 L_end")
        a(f"s_sub_u32 s7, s{64+2*DIAG[2]}, s64")
        a(f"s_mul_i32 s7, s7, {DIAG[3]}")
        a("s_min_u32 s7, s7, 20000")
        a("s_add_u32 s7, s7, 3000")
        a("s_mov_b32 s38, 100000")
        a("L_diag:")
        a("s_memrealtime s[60:61]")
        a("s_waitcnt lgkmcnt(0)")
        a("s_sub_u32 s51, s60, s64")
        a("s_cmp_ge_u32 s51, s7")
        a("s_cbranch_scc1 L_end")
        a("s_sub_u32 s38, s38, 1")
        a("s_cmp_eq_u32 s38, 0")
        a("s_cbranch_scc0 L_diag")
    elif HDBG:
        a("s_cmp_lt_u32 s2, 8")
        a("s_cselect_b32 s7, 0, 1")
        a("s_or_b32 s7, s7, s3")
        a("s_cmp_eq_u32 s7, 0")
        a("s_cbranch_scc0 L_dump_k")
        a("s_lshl_b32 s7, s2, 2")
        a("v_mov_b32 v5, s7")
        a("v_mov_b32 v6, s64")
        a(f"global_store_dword v5, v6, {DBG}")
        a("s_endpgm")
        a("L_dump_k:")
        a(f"s_cmp_eq_u32 s5, {15 if IL else 23}")
        a("s_cbranch_scc0 L_end")
        a("s_cmp_eq_u32 s3, 7")
        a("s_cbranch_scc0 L_end")
        a("s_lshl_b32 s7, s4, 2")
        a("v_mov_b32 v5, s7")
        a(f"v_mov_b32 v6, s{64+30}")
        a(f"global_store_dword v5, v6, {DBG} offset:32")
    else:
        a("s_lshl_b32 s7, s2, 4")
        a("s_add_u32 s7, s7, s3")
        a("s_lshl_b32 s7, s7, 6")
        a(f"s_add_u32 s7, s7, {TS}")
        a("v_mov_b32 v5, s7")
        for k in ((0, GSTAT[0]) if GSTAT else range(16)):
            a(f"v_mov_b32 v6, s{64+2*k}")
            a(f"global_store_dword v5, v6, {WS} offset:{4*k}{' sc1' if GSTAT else ''}")
        if GSTAT:
            a("s_cmp_eq_u32 s2, 248")
            a("s_cbranch_scc0 L_end")
            a("s_cmp_eq_u32 s3, 5")
            a("s_cbranch_scc0 L_end")
            a("s_mov_b64 exec, -1")
            a("s_mov_b32 s38, 100000")
            a("L_g1:")
            a("s_memrealtime s[60:61]")
            a("s_waitcnt lgkmcnt(0)")
            a("s_sub_u32 s51, s60, s64")
            a("s_cmp_ge_u32 s51, 2000")
            a("s_cbranch_scc1 L_g2")
            a("s_sub_u32 s38, s38, 1")
            a("s_cmp_eq_u32 s38, 0")
            a("s_cbranch_scc0 L_g1")
            a("L_g2:")
            a("v_mov_b32 v20, 0x7fffffff")
            a("v_mov_b32 v21, 0x80000000")
            a("v_and_b32 v22, 15, v1")
            a(f"v_cmp_le_u32 vcc, {GSTAT[1]}, v22")
            a(f"v_cmp_gt_u32 s[46:47], {GSTAT[2]}, v22")
            a("s_and_b64 s[46:47], s[46:47], vcc")
            a("v_cmp_gt_u32 s[48:49], 12, v22")
            a("s_mov_b32 s52, 0")
            a("L_g3:")
            a("s_lshl_b32 s7, s52, 12")
            a(f"s_add_u32 s7, s7, {TS}")
            a("v_lshl_add_u32 v23, v1, 6, s7")
            a(f"global_load_dword v24, v23, {WS} sc1")
            a(f"global_load_dword v25, v23, {WS} offset:{4*GSTAT[0]} sc1")
            a("s_waitcnt vmcnt(0)")
            a("v_subrev_u32 v24, s64, v24")
            a("v_cmp_eq_u32 vcc, 0, v25")
            a("v_subrev_u32 v25, s64, v25")
            a("v_cndmask_b32 v25, v25, v21, vcc")
            a("v_cndmask_b32 v25, v21, v25, s[46:47]")
            a("v_cndmask_b32 v24, v20, v24, s[48:49]")
            if GSTAT[3] != 2:
                a("s_bitcmp1_b32 s52, 1")
                a(f"s_cbranch_scc{1 - GSTAT[3]} L_g4")
            a("v_max_i32 v21, v21, v25")
            a("L_g4:")
            a("v_min_i32 v20, v20, v24")
            a("s_add_u32 s52, s52, 1")
            a("s_cmp_lt_u32 s52, 64")
            a("s_cbranch_scc1 L_g3")
            xlane("v_max_i32", "v21", "v26", ["q1", "q2", "hm", "r8", "p16", "p32"])
            xlane("v_min_i32", "v20", "v26", ["q1", "q2", "hm", "r8", "p16", "p32"])
            a("v_sub_u32 v21, v21, v20")
            a("v_readfirstlane_b32 s7, v21")
            a("v_readfirstlane_b32 s53, v20")
            a("s_mul_i32 s7, s7, 4")
            a("s_min_u32 s7, s7, 20000")
            a("s_add_u32 s7, s7, 6000")
            a("s_add_u32 s7, s7, s53")
            a("s_mov_b32 s38, 100000")
            a("L_g5:")
            a("s_memrealtime s[60:61]")
            a("s_waitcnt lgkmcnt(0)")
            a("s_sub_u32 s51, s60, s64")
            a("s_cmp_ge_u32 s51, s7")
            a("s_cbranch_scc1 L_end")
            a("s_sub_u32 s38, s38, 1")
            a("s_cmp_eq_u32 s38, 0")
            a("s_cbranch_scc0 L_g5")
a("L_end:")
a("s_endpgm")
a("L_codeend:")
a.raw(f'''.section .rodata,"a"
.p2align 6
.amdhsa_kernel {NAME}_kernel
  .amdhsa_next_free_vgpr 168
  .amdhsa_next_free_sgpr 96
  .amdhsa_accum_offset 168
  .amdhsa_group_segment_fixed_size 0
  .amdhsa_kernarg_size 96
  .amdhsa_user_sgpr_count 2
  .amdhsa_user_sgpr_kernarg_segment_ptr 1
  .amdhsa_system_sgpr_workgroup_id_x 1
  .amdhsa_float_denorm_mode_32 3
.end_amdhsa_kernel''')
open(OUTP, "w").write(a.text())
print("nops inserted:", a.nops, "lines:", len(a.lines))
```

```python
import sys, struct, math
sys.path.insert(0, "gen")
from asmlib import Asm

NAME = "sequential_preLN__sliding_block_cached__dense_activation_mish__decode"
opts = dict(x.split("=") for x in sys.argv[2:])
OUTP = sys.argv[1]
DEBUG = int(opts.get("dbg", 0))
HDBG = int(opts.get("hdbg", 0))
if HDBG: DEBUG = 1
NT = " nt" if int(opts.get("nt", 0)) else ""
NTW = " nt" if int(opts.get("ntw", 0)) else ""
NTK = " nt" if int(opts.get("ntk", 0)) else ""
NTQ = " nt" if int(opts.get("ntq", 0)) else ""
NTO = " nt" if int(opts.get("nto", 0)) else ""
NTV = " nt" if int(opts.get("ntv", 0)) else ""
KD = int(opts.get("kd", 4))
NTHR = int(opts.get("nthr", 12))
SLEEP = int(opts.get("sleep", 0))
KD0 = int(opts.get("kd0", 2))
RGATE = int(opts.get("rgate", 1))
QWAIT = int(opts.get("qwait", 1))
SPIN = 100000

def f32(x): return "0x%08x" % struct.unpack("<I", struct.pack("<f", x))[0]
LOG2E = math.log2(math.e)

RDY = 0x50000; RDA = 0x58000; QG = 0x10000; LSE = 0x40000; OP = 0x80000; YP = 0xC0000; ZP = 0xD0000; TS = 0x400000; FO = 0x100000
L_S1 = 0x000; L_FL = 0x800; L_Q = 0x900; L_SC = 0xD00; L_RED = 0x1100; L_ST = 0x1900; L_H = 0x1A00; L_Z = 0x2100; L_O = 0x2500
L_P = 0x2D00; L_C = 0x2F00
L_W = 0x4000; L_W2 = 0xB000
LDS_BYTES = 0x14000
IL = int(opts.get("il", 1))
FGATE = int(opts.get("fgate", 100))
X, K, V, WQ, WO, W1, B1, W2, OUT, DBG, WS = "s[8:9]", "s[10:11]", "s[12:13]", "s[14:15]", "s[16:17]", "s[20:21]", "s[22:23]", "s[24:25]", "s[26:27]", "s[28:29]", "s[30:31]"
SEL_LO, SEL_HI, MHI = "s40", "s41", "s42"
R = lambda a_, n: list(range(a_, a_ + n))

a = Asm()
uid = [0]
def lab(p):
    uid[0] += 1
    return f"L_{p}_{uid[0]}"

DIAG = [int(x) for x in opts["diag"].split(",")] if "diag" in opts else None
if DIAG: DEBUG = 1
GSTAT = [int(x) for x in opts["gstat"].split(",")] if "gstat" in opts else None
if GSTAT: DEBUG = 1
def ts(k):
    if DIAG and k not in (0, DIAG[2]): return
    if GSTAT and k not in (0, GSTAT[0]): return
    if HDBG and k not in (0, 15): return
    if DEBUG: a(f"s_memrealtime s[{64+2*k}:{65+2*k}]")

def end_wave():
    if DEBUG:
        ts(15)
        a("s_branch L_dump")
    else:
        a("s_endpgm")
    a.flush_hist()

def sleep():
    if SLEEP: a(f"s_sleep {SLEEP}")

DPPM = "row_mask:0xf bank_mask:0xf"
def wave_sum2(x, y, sx, sy):
    for m in ("quad_perm:[1,0,3,2]", "quad_perm:[2,3,0,1]", "row_half_mirror", "row_mirror"):
        a(f"v_add_f32_dpp {x}, {x}, {x} {m} {DPPM}")
        a(f"v_add_f32_dpp {y}, {y}, {y} {m} {DPPM}")
    a(f"v_add_f32_dpp {x}, {x}, {x} row_bcast:15 row_mask:0xa bank_mask:0xf")
    a(f"v_add_f32_dpp {y}, {y}, {y} row_bcast:15 row_mask:0xa bank_mask:0xf")
    a(f"v_add_f32_dpp {x}, {x}, {x} row_bcast:31 row_mask:0xc bank_mask:0xf")
    a(f"v_add_f32_dpp {y}, {y}, {y} row_bcast:31 row_mask:0xc bank_mask:0xf")
    if sx:
        a(f"v_readlane_b32 {sx}, {x}, 63")
        a(f"v_readlane_b32 {sy}, {y}, 63")

def bf16r(x):
    a(f"v_cvt_pk_bf16_f32 {x}, {x}, {x}")
    a(f"v_and_b32 {x}, {MHI}, {x}")

def ln_finish(vsum, vsq, vm, vr, t):
    a(f"v_mov_b32 {t}, {f32(1.0/448)}")
    a(f"v_mul_f32 {vm}, {vsum}, {t}")
    a(f"v_mul_f32 {vr}, {vsq}, {t}")
    a(f"v_fma_f32 {vr}, -{vm}, {vm}, {vr}")
    a(f"v_max_f32 {vr}, 0, {vr}")
    a(f"v_cvt_pk_bf16_f32 {t}, {vm}, {vr}")
    a(f"v_lshlrev_b32 {vm}, 16, {t}")
    a(f"v_and_b32 {vr}, {MHI}, {t}")
    a(f"v_add_f32 {vr}, {f32(1e-5)}, {vr}")
    bf16r(vr)
    a(f"v_sqrt_f32 {vr}, {vr}")
    bf16r(vr)
    a(f"v_rcp_f32 {vr}, {vr}")

def ln_apply(lo, hi, vm, vr, dst):
    a(f"v_sub_f32 {lo}, {lo}, {vm}")
    a(f"v_sub_f32 {hi}, {hi}, {vm}")
    a(f"v_cvt_pk_bf16_f32 {dst}, {lo}, {hi}")
    a(f"v_lshlrev_b32 {lo}, 16, {dst}")
    a(f"v_and_b32 {hi}, {MHI}, {dst}")
    a(f"v_mul_f32 {lo}, {lo}, {vr}")
    a(f"v_mul_f32 {hi}, {hi}, {vr}")
    a(f"v_cvt_pk_bf16_f32 {dst}, {lo}, {hi}")

def perm_pair(A, B, outs):
    for k in range(4):
        a(f"v_perm_b32 v{outs[2*k]}, v{B+k}, v{A+k}, {SEL_LO}")
        a(f"v_perm_b32 v{outs[2*k+1]}, v{B+k}, v{A+k}, {SEL_HI}")

def reduce8_hi(acc, dst, full_row=False):
    for k in range(4):
        a(f"v_permlane32_swap_b32 v{acc[2*k]}, v{acc[2*k+1]}")
    for k in range(4):
        a(f"v_add_f32 v{acc[2*k]}, v{acc[2*k]}, v{acc[2*k+1]}")
    a(f"v_permlane16_swap_b32 v{acc[0]}, v{acc[2]}")
    a(f"v_permlane16_swap_b32 v{acc[4]}, v{acc[6]}")
    a(f"v_add_f32 v{acc[0]}, v{acc[0]}, v{acc[2]}")
    a(f"v_add_f32 v{acc[4]}, v{acc[4]}, v{acc[6]}")
    if full_row:
        for m in ("row_ror:4", "row_ror:8"):
            a(f"v_add_f32_dpp v{acc[0]}, v{acc[0]}, v{acc[0]} {m} {DPPM}")
            a(f"v_add_f32_dpp v{acc[4]}, v{acc[4]}, v{acc[4]} {m} {DPPM}")
    else:
        a(f"v_add_f32_dpp v{dst}, v{acc[0]}, v{acc[0]} row_ror:8 row_mask:0xf bank_mask:0x3")
        a(f"v_add_f32_dpp v{dst}, v{acc[4]}, v{acc[4]} row_ror:8 row_mask:0xf bank_mask:0xc")

def dots16(P0, P1, x0, x1, acc):
    for j in range(8):
        a(f"v_dot2_f32_bf16 v{acc[j]}, v{P0[j]}, {x0}, 0")
    for j in range(8):
        a(f"v_dot2_f32_bf16 v{acc[j]}, v{P1[j]}, {x1}, v{acc[j]}")

def spin_head(p):
    lp, dn = lab(p), lab(p + "d")
    a(f"s_mov_b32 s38, {SPIN}")
    a(f"{lp}:")
    return lp, dn

def spin_tail(h, slp=False):
    lp, dn = h
    a(f"s_cbranch_scc1 {dn}")
    if slp: sleep()
    a("s_sub_u32 s38, s38, 1")
    a("s_cmp_eq_u32 s38, 0")
    a(f"s_cbranch_scc0 {lp}")
    a(f"{dn}:")

def xlane(op, x, t, steps):
    for s in steps:
        if s in ("p16", "p32"):
            a(f"v_mov_b32 {t}, {x}")
            a(f"v_permlane{s[1:]}_swap_b32 {x}, {t}")
            a(f"{op} {x}, {x}, {t}")
        else:
            m = {"q3": "quad_perm:[3,2,1,0]", "q1": "quad_perm:[1,0,3,2]", "q2": "quad_perm:[2,3,0,1]", "hm": "row_half_mirror",
                 "r4": "row_ror:4", "r8": "row_ror:8", "rm": "row_mirror"}[s]
            a(f"{op}_dpp {x}, {x}, {x} {m} {DPPM}")

def poll(name, loads, checks, pre=None):
    n = len(loads)
    P = [f"s[{46+2*i}:{47+2*i}]" for i in range(n)]
    for p in P: a(f"s_mov_b64 {p}, -1")
    h = spin_head(name)
    if pre: a(pre)
    for i in range(n):
        sk = lab(name + "s")
        a(f"s_mov_b64 exec, {P[i]}")
        a(f"s_cbranch_execz {sk}")
        a(loads[i])
        a(f"{sk}:")
    a("s_mov_b64 exec, -1")
    a("s_waitcnt vmcnt(0)")
    for i in range(n): checks[i](P[i])
    if n == 1: a(f"s_cmp_eq_u64 {P[0]}, 0")
    else:
        a(f"s_or_b64 s[34:35], {P[0]}, {P[1]}")
        for p in P[2:]: a(f"s_or_b64 s[34:35], s[34:35], {p}")
        a("s_cmp_eq_u64 s[34:35], 0")
    spin_tail(h, True)

def poll2(name, loads, checks, nhook, hook):
    n = len(loads)
    P = [f"s[{76+2*i}:{77+2*i}]" if not DEBUG else f"s[{46+2*i}:{47+2*i}]" for i in range(n)]
    P = [f"s[{46+2*i}:{47+2*i}]" for i in range(n)]
    lp, dn, chk, nh = lab(name), lab(name + "d"), lab(name + "c"), lab(name + "h")
    a(f"s_mov_b32 s38, {SPIN}")
    a("s_mov_b32 s60, 0")
    a(f"s_branch {chk}")
    a(f"{lp}:")
    for i in range(n):
        sk = lab(name + "s")
        a(f"s_mov_b64 exec, {P[i]}")
        a(f"s_cbranch_execz {sk}")
        a(loads[i])
        a(f"{sk}:")
    a("s_mov_b64 exec, -1")
    a(f"{chk}:")
    a("s_waitcnt vmcnt(0)")
    for i in range(nhook, n): checks[i](P[i])
    a("s_cmp_eq_u32 s60, 1")
    a(f"s_cbranch_scc1 {nh}")
    for i in range(nhook): checks[i](P[i])
    a(f"s_or_b64 s[34:35], {P[0]}, {P[1]}")
    for p in P[2:nhook]: a(f"s_or_b64 s[34:35], s[34:35], {p}")
    a("s_cmp_eq_u64 s[34:35], 0")
    a(f"s_cbranch_scc0 L_{name}_again")
    hook()
    a("s_mov_b32 s60, 1")
    a(f"{nh}:")
    a(f"s_or_b64 s[34:35], {P[nhook]}, {P[nhook+1]}")
    a("s_cmp_eq_u64 s[34:35], 0")
    a(f"s_cbranch_scc1 {dn}")
    a(f"L_{name}_again:")
    a("s_sub_u32 s38, s38, 1")
    a("s_cmp_eq_u32 s38, 0")
    a(f"s_cbranch_scc0 {lp}")
    a(f"{dn}:")

def chk_sent4(r, t):
    def f(sp):
        a(f"v_max3_u32 {t}, v{r}, v{r+1}, v{r+2}")
        a(f"v_max_u32 {t}, {t}, v{r+3}")
        a(f"v_cmp_eq_u32 {sp}, -1, {t}")
    return f
def chk_tag(regs, t):
    def f(sp):
        if len(regs) == 1: a(f"v_cmp_ne_u32 {sp}, s6, v{regs[0]}")
        else:
            a(f"v_xor_b32 {t}, v{regs[0]}, v{regs[1]}")
            a(f"v_cmp_ne_u32 {sp}, s6, v{regs[0]}")
            a(f"v_cmp_ne_u32 vcc, 0, {t}")
            a(f"s_or_b64 {sp}, {sp}, vcc")
    return f

def lds_flag_wait(name, off, nwords, extra_reads, expect, zero, tmpbase, ge=False):
    h = spin_head(name)
    for q in range(nwords // 4):
        a(f"ds_read_b128 v[{tmpbase+4*q}:{tmpbase+4*q+3}], {zero} offset:{L_FL+off+16*q}")
    for x in extra_reads: a(x)
    a("s_waitcnt lgkmcnt(0)")
    t = tmpbase
    a(f"v_add3_u32 v{t}, v{t}, v{t+1}, v{t+2}")
    if nwords == 4: a(f"v_add_u32 v{t}, v{t}, v{t+3}")
    else:
        a(f"v_add3_u32 v{t+4}, v{t+4}, v{t+5}, v{t+6}")
        a(f"v_add3_u32 v{t}, v{t}, v{t+3}, v{t+7}")
        a(f"v_add_u32 v{t}, v{t}, v{t+4}")
    a(f"v_cmp_{'gt' if ge else 'ne'}_u32 vcc, {expect}, v{t}")
    a("s_cmp_eq_u64 vcc, 0")
    spin_tail(h)

hdr = open(f"cdna_kernels/{NAME}.s.ref").read().split("; Override launch")[0]
a.raw(hdr.rstrip())
a.raw(f"; @launch grid=(256,1,1) block=(768,1,1) lds={LDS_BYTES}")
a.raw('.amdgcn_target "amdgcn-amd-amdhsa--gfx950"')
a.raw(".text")
a.raw(f".globl {NAME}_kernel\n.p2align 8\n.type {NAME}_kernel,@function\n{NAME}_kernel:")


WARM = int(opts.get("warm", 0))
FAST = int(opts.get("fast", 1)); FASTQ = int(opts.get("fastq", 1))
pads = []
def pad(name, over=False):
    if not WARM: return
    if over: a(f"s_branch L_padskip_{name}")
    a(f"L_pad_{name}:")
    a("s_setpc_b64 s[62:63]")
    if over: a(f"L_padskip_{name}:")
    pads.append(name)
def touch(*names):
    if not WARM: return
    for n in names: a(f"s_call_b64 s[62:63], L_pad_{n}")

N0 = int(opts.get("n0", 7)); S1G = int(opts.get("s1g", 2)); AD = int(opts.get("ad", 16)); VD = int(opts.get("vd", 16)); VN = int(opts.get("vn", 0)); KVW = int(opts.get("kvw", 4))
a("s_cmp_ge_u32 s2, 256")
a("s_cbranch_scc1 L_end")
a("s_load_dwordx16 s[8:23], s[0:1], 0")
a("s_load_dwordx8 s[24:31], s[0:1], 64")
ts(0)
a("v_lshrrev_b32 v2, 6, v0")
a("v_and_b32 v1, 63, v0")
a("s_and_b32 s4, s2, 7")
a("s_lshr_b32 s5, s2, 3")
a("v_readfirstlane_b32 s3, v2")
a("v_lshrrev_b32 v3, 3, v1")
a("v_and_b32 v4, 7, v1")
a("v_mov_b32 v5, 0")
a("v_lshlrev_b32 v6, 2, v1")
a(f"ds_write_b32 v6, v5 offset:{L_FL}")
a("s_lshr_b32 s39, s5, 1")
a("s_and_b32 s33, s5, 1")
a("s_cmp_ge_u32 s3, 4")
a("s_cbranch_scc1 L_hi")
a("s_lshr_b32 s44, s5, 3")
a("s_and_b32 s45, s5, 7")
a("v_min_u32 v6, 55, v1")
a("v_lshlrev_b32 v6, 4, v6")
a("s_lshl_b32 s48, s3, 5")
a("v_lshl_add_u32 v15, v3, 2, s48")
a("v_min_u32 v14, 108, v15")
a("s_mul_i32 s47, s44, 112")
a("v_add_u32 v14, s47, v14")
a("v_lshlrev_b32 v12, 1, v14")
a("s_lshl_b32 s51, s4, 10")
a("s_lshl_b32 s52, s45, 7")
a("s_add_u32 s51, s51, s52")
a("v_lshl_add_u32 v32, v4, 4, s51")
a("v_lshl_add_u32 v32, v14, 13, v32")
a("v_add_u32 v33, 0x2000, v32")
a("v_add_u32 v34, 0x4000, v32")
a("v_add_u32 v35, 0x6000, v32")
a("s_waitcnt lgkmcnt(0)")
a(f"global_load_dwordx4 v[36:39], v6, {X}")
a(f"global_load_dwordx2 v[12:13], v12, {X}")
for i in range(4):
    a(f"global_load_dwordx4 v[{16+4*i}:{19+4*i}], v{32+i}, {WQ}{NTQ}")
a("s_barrier")
a("s_branch L_s1")
a.flush_hist()
a("L_hi:")
N1 = int(opts.get("n1", 8)); HQ = int(opts.get("hq", 8));
a("s_lshl_b32 s43, s4, 22")
a("s_lshl_b32 s7, s39, 16")
a("s_add_u32 s43, s43, s7")
a(f"s_add_u32 s43, s43, {6144*512}")
a("s_and_b32 s44, s3, 3")
a("s_lshr_b32 s7, s3, 3")
a("s_cmp_eq_u32 s7, s33")
a("s_cbranch_scc0 L_B_hi")
a("s_lshl_b32 s47, s44, 11")
a("s_add_u32 s46, s43, s47")
a("v_lshlrev_b32 v6, 13, v3")
a("v_lshl_add_u32 v6, v4, 4, v6")
a("v_add_u32 v6, s46, v6")
KA = int(opts.get("ka", 12))
KB = 16 - KA
HI = int(opts.get("hi", 99))
a(f"s_mul_i32 s7, s33, {KA*128}")
a("v_add_u32 v7, s7, v6")
a("s_waitcnt lgkmcnt(0)")
for i in range(KA):
    if i == min(N0, KB): a("s_barrier")
    if i == KB:
        a("s_cmp_eq_u32 s33, 1")
        a("s_cbranch_scc1 L_A_k1")
    if i >= N0: a(f"s_waitcnt vmcnt({N0-1})")
    if i == HI:
        a("s_lshl_b32 s7, s44, 2")
        a("v_mov_b32 v45, s7")
        a("v_mov_b32 v46, 1")
        a(f"ds_write_b32 v45, v46 offset:{L_FL+0x80}")
    a(f"global_load_dwordx4 v[{64+4*i}:{67+4*i}], v7, {K} offset:{i*128}{NTK if i >= KB else NT}")
a("s_branch L_A_k1")
a.flush_hist()
a("L_B_hi:")
if int(opts.get("cpf", 1)):
    a("s_getpc_b64 s[36:37]")
    a("L_pc:")
    a("v_and_b32 v5, 255, v0")
    a("v_lshlrev_b32 v5, 7, v5")
    a("v_cmp_gt_u32 vcc, L_codeend-L_pc, v5")
    a("v_cndmask_b32 v5, 0, v5, vcc")
    a("global_load_dword v167, v5, s[36:37]")
if WARM:
    for u_, n_ in enumerate(("s1b", "s1c", "k1", "v2", "bh2", "h1", "wo1", "ffn1")):
        sk = lab("et")
        a(f"s_cmp_eq_u32 s3, {11-u_}")
        a(f"s_cbranch_scc0 {sk}")
        touch(n_)
        a(f"{sk}:")
a("s_waitcnt lgkmcnt(0)")
a("s_barrier")
if int(opts.get("tw", 1)):
    a("s_mul_i32 s7, s4, 458752")
    a("s_load_dword s46, s[16:17], s7")
    a("s_add_u32 s7, s7, 458748")
    a("s_load_dword s47, s[16:17], s7")
    a("s_load_dword s48, s[20:21], 0")
    a("s_mov_b32 s7, 1605628")
    a("s_load_dword s49, s[20:21], s7")
    a("s_mul_i32 s7, s4, 200704")
    a("s_load_dword s50, s[24:25], s7")
    a("s_add_u32 s7, s7, 200700")
    a("s_load_dword s51, s[24:25], s7")
    a("s_load_dword s52, s[22:23], 0")
    a("s_load_dword s53, s[26:27], 0")
    a("s_load_dword s54, s[12:13], s43")
    a("s_waitcnt lgkmcnt(0)")
a("s_cmp_eq_u32 s33, 1")
a("s_cbranch_scc0 L_A_v")
a("s_branch L_B_hi2")
a.flush_hist()
a("L_s1:")
if DEBUG:
    for k in range(1, 16): a(f"s_mov_b64 s[{64+2*k}:{65+2*k}], 0")
ts(1)
a(f"s_mov_b32 {SEL_LO}, 0x05040100")
a(f"s_mov_b32 {SEL_HI}, 0x07060302")
a(f"s_mov_b32 {MHI}, 0xffff0000")
a("v_lshlrev_b32 v2, 3, v4")
a("v_bfe_u32 v5, v1, 3, 1")
a("v_lshl_add_u32 v2, v5, 2, v2")
a("v_bfe_u32 v5, v1, 4, 1")
a("v_lshl_add_u32 v2, v5, 1, v2")
a("v_lshrrev_b32 v5, 5, v1")
a("v_add_u32 v2, v2, v5")
a("s_lshl_b32 s7, s3, 2")
a("v_mov_b32 v10, s7")
a("v_mov_b32 v11, 1")
a("v_cmp_gt_u32 vcc, 112, v15")
a("s_mov_b64 s[34:35], vcc")
a("s_cmp_lg_u32 s3, 3")
a("s_cbranch_scc1 L_s1_noep")
a(f"s_load_dword s6, {WS}, 0")
a("L_s1_noep:")
a("v_cmp_gt_u32 vcc, 56, v1")
a("s_waitcnt vmcnt(5)")
for k in range(4):
    a(f"v_lshlrev_b32 v{40+2*k}, 16, v{36+k}")
    a(f"v_and_b32 v{41+2*k}, {MHI}, v{36+k}")
a("v_add_f32 v48, v40, v41")
a("v_mul_f32 v49, v40, v40")
a("v_add_f32 v50, v42, v43")
a("v_mul_f32 v51, v42, v42")
a("v_fmac_f32 v49, v41, v41")
a("v_fmac_f32 v51, v43, v43")
a("v_add_f32 v48, v48, v44")
a("v_add_f32 v50, v50, v46")
a("v_fmac_f32 v49, v44, v44")
a("v_fmac_f32 v51, v46, v46")
a("v_add_f32 v48, v48, v45")
a("v_add_f32 v50, v50, v47")
a("v_fmac_f32 v49, v45, v45")
a("v_fmac_f32 v51, v47, v47")
a("v_add_f32 v48, v48, v50")
a("v_add_f32 v49, v49, v51")
a("v_cndmask_b32 v48, 0, v48, vcc")
a("v_cndmask_b32 v49, 0, v49, vcc")
wave_sum2("v48", "v49", "s54", "s55")
ln_finish("s54", "s55", "v50", "v51", "v52")
pad("s1b", over=True)
a("s_waitcnt vmcnt(4)")
a("v_lshlrev_b32 v40, 16, v12")
a(f"v_and_b32 v41, {MHI}, v12")
a("v_lshlrev_b32 v42, 16, v13")
a(f"v_and_b32 v43, {MHI}, v13")
for k in range(4): a(f"v_sub_f32 v{40+k}, v{40+k}, v50")
a("v_cvt_pk_bf16_f32 v12, v40, v41")
a("v_cvt_pk_bf16_f32 v13, v42, v43")
a("v_lshlrev_b32 v40, 16, v12")
a(f"v_and_b32 v41, {MHI}, v12")
a("v_lshlrev_b32 v42, 16, v13")
a(f"v_and_b32 v43, {MHI}, v13")
for k in range(4): a(f"v_mul_f32 v{40+k}, v{40+k}, v51")
a("v_cvt_pk_bf16_f32 v12, v40, v41")
a("v_cvt_pk_bf16_f32 v13, v42, v43")
a("v_cndmask_b32 v12, 0, v12, s[34:35]")
a("v_cndmask_b32 v13, 0, v13, s[34:35]")
a("v_lshlrev_b32 v5, 2, v0")
a("v_mov_b32 v6, 0")
a("s_waitcnt vmcnt(2)")
perm_pair(16, 20, R(40, 8))
for j in range(8): a(f"v_dot2_f32_bf16 v{56+j}, v{40+j}, v12, 0")
a("s_waitcnt vmcnt(0)")
ts(2)
perm_pair(24, 28, R(48, 8))
for j in range(8): a(f"v_dot2_f32_bf16 v{56+j}, v{48+j}, v13, v{56+j}")
reduce8_hi(R(56, 8), 40)
a("s_cmp_eq_u32 s3, 3")
a("s_cbranch_scc1 L_s1_coll")
a(f"ds_write_b32 v5, v40 offset:{L_S1}")
a(f"ds_write_b32 v10, v11 offset:{L_FL}")
a(f"s_load_dword s6, {WS}, 0")
a("s_branch L_s1_done")
a.flush_hist()
pad("s1c")
a("L_s1_coll:")
a("v_lshlrev_b32 v5, 2, v1")
a("s_lshl_b32 s7, s4, 14")
a("s_lshl_b32 s51, s45, 11")
a("s_add_u32 s7, s7, s51")
a("s_lshl_b32 s51, s44, 9")
a("s_add_u32 s7, s7, s51")
a(f"s_add_u32 s7, s7, {QG}")
a("v_lshl_add_u32 v8, v2, 3, s7")
lds_flag_wait("s1", 0, 4, [f"ds_read_b32 v{41+w}, v5 offset:{L_S1+256*w}" for w in range(3)], 3, "v6", 56)
a("s_add_u32 s7, s6, 1")
a("v_add_f32 v40, v40, v41")
a("v_add_f32 v42, v42, v43")
a("v_mov_b32 v41, s7")
a("v_add_f32 v40, v40, v42")
if FASTQ:
    a(f"v_add_u32 v9, {FO}, v8")
    a(f"global_store_dwordx2 v9, v[40:41], {WS}")
a(f"global_store_dwordx2 v8, v[40:41], {WS} sc1")
a(f"ds_write_b32 v6, v11 offset:{L_FL+0x60}")
if opts.get("ack"):
    ts(3)
    a("s_waitcnt vmcnt(1)")
    ts(10)
    a("s_waitcnt vmcnt(0)")
    ts(11)
    a("s_branch L_s1_done2")
a("L_s1_done:")
ts(3)
a("L_s1_done2:")
a("s_cmp_eq_u32 s33, 1")
a("s_cbranch_scc1 L_B_go")

a("s_setprio 3")
a("s_lshl_b32 s7, s4, 14")
a("s_lshl_b32 s51, s3, 12")
a("s_add_u32 s7, s7, s51")
a(f"s_add_u32 s7, s7, {QG}")
a("v_lshl_add_u32 v9, v1, 4, s7")
a("s_lshl_b32 s7, s3, 8")
a("v_lshl_add_u32 v8, v1, 2, s7")
a("s_cmp_lg_u32 s3, 0")
a("s_cbranch_scc1 L_A_h2")
a("s_lshl_b32 s7, s4, 14")
a("s_lshl_b32 s51, s39, 9")
a("s_add_u32 s7, s7, s51")
a(f"s_add_u32 s7, s7, {OP}")
a("v_lshrrev_b32 v5, 5, v1")
a("v_lshlrev_b32 v5, 13, v5")
a("v_and_b32 v7, 31, v1")
a("v_lshl_add_u32 v5, v7, 4, v5")
a("v_add_u32 v5, s7, v5")
a("v_mov_b32 v12, -1\nv_mov_b32 v13, -1\nv_mov_b32 v14, -1\nv_mov_b32 v15, -1")
a(f"global_store_dwordx4 v5, v[12:15], {WS} sc1")
if FAST:
    a("s_lshl_b32 s7, s4, 14")
    a("s_lshl_b32 s51, s39, 4")
    a("s_add_u32 s7, s7, s51")
    a(f"s_add_u32 s7, s7, {FO+OP}")
    a("v_lshl_add_u32 v5, v1, 8, s7")
    a(f"global_store_dwordx4 v5, v[12:15], {WS}")
a("s_getreg_b32 s52, hwreg(HW_REG_XCC_ID)")
a("s_lshl_b32 s7, s4, 11")
a("s_lshl_b32 s51, s39, 7")
a("s_add_u32 s7, s7, s51")
a(f"s_add_u32 s7, s7, {RDA}")
a("v_mov_b32 v5, s7")
a("s_waitcnt vmcnt(0) lgkmcnt(0)")
a("s_add_u32 s7, s6, 1")
a("v_mov_b32 v12, s7")
a("v_mov_b32 v13, s52")
a("s_mov_b64 exec, 1")
a(f"global_store_dwordx2 v5, v[12:13], {WS} sc1")
a("s_mov_b64 exec, -1")
a("L_A_h2:")
if int(opts.get("hg", 1)): lds_flag_wait("hg", 0x80, 4, [], 4, "v6", 56)
a("s_waitcnt lgkmcnt(0)")
a("s_add_u32 s6, s6, 1")
ts(8)
poll("qp", [f"global_load_dwordx4 v[{48+4*i}:{51+4*i}], v9, {WS} offset:{i*1024} sc1" for i in range(4)],
     [chk_tag([49+4*i, 51+4*i], "v5") for i in range(4)], pre=(f"v_xor_b32 v9, {FO}, v9" if FASTQ else None))
ts(4)
a("v_add_f32 v48, v48, v52")
a("v_add_f32 v50, v50, v54")
a("v_add_f32 v56, v56, v60")
a("v_add_f32 v58, v58, v62")
a("v_permlane32_swap_b32 v48, v56")
a("v_permlane32_swap_b32 v50, v58")
a("v_add_f32 v48, v48, v56")
a("v_add_f32 v50, v50, v58")
a("v_cvt_pk_bf16_f32 v48, v48, v50")
a(f"ds_write_b32 v8, v48 offset:{L_Q}")
a(f"ds_write_b32 v10, v11 offset:{L_FL+0x20}")
ts(5)
a("s_cmp_eq_u32 s3, 0")
a("s_cbranch_scc1 L_A_soft")
APF = int(opts.get("apf", 0))
if APF:
    lds_flag_wait("aq", 0x20, 4, [], 4, "v6", 56)
    a("s_mul_i32 s7, s4, 458752")
    a("s_mul_i32 s51, s39, 28672")
    a("s_add_u32 s7, s7, s51")
    a("s_sub_u32 s51, s3, 1")
    a("s_mul_i32 s51, s51, 9216")
    a("s_add_u32 s7, s7, s51")
    a("v_lshl_add_u32 v5, v1, 4, s7")
    a("v_add_u32 v7, 0x1000, v5")
    a("v_add_u32 v8, 0x2000, v5")
    for i in range(10):
        r = (5, 7, 8)[i >> 2]
        a(f"global_load_dwordx4 v[{64+4*i}:{67+4*i}], v{r}, {WO} offset:{(i&3)*1024}{NTW}")
    a(f"ds_write_b32 v10, v11 offset:{L_FL+0x90}")
end_wave()
pad("h1")
a("L_A_soft:")
a("v_lshlrev_b32 v5, 4, v1")
a("v_lshlrev_b32 v7, 3, v1")
a("s_lshl_b32 s7, s4, 11")
a("s_lshl_b32 s51, s39, 7")
a("s_add_u32 s7, s7, s51")
a(f"s_add_u32 s7, s7, {LSE}")
a("v_lshrrev_b32 v12, 5, v1")
a("s_lshl_b32 s51, s4, 8")
a("s_lshl_b32 s52, s39, 3")
a("s_add_u32 s51, s51, s52")
a(f"s_add_u32 s51, s51, {FO+LSE}")
a("v_lshl_add_u32 v13, v12, 7, s51")
a("v_lshl_add_u32 v12, v12, 3, s7")
a("v_mov_b32 v33, s6")
a("s_mov_b32 s34, 1")
a("s_mov_b32 s35, 1")
lds_flag_wait("sc", 0x40, 4, [f"ds_read_b128 v[16:19], v5 offset:{L_SC}"], 4, "v6", 56)
ts(6)
a("v_max3_f32 v32, v16, v17, v18")
a("v_max_f32 v32, v32, v19")
xlane("v_max_f32", "v32", "v34", ["q1", "q2", "hm", "rm", "p16"])
for e in range(4): a(f"v_sub_f32 v{16+e}, v{16+e}, v32")
for e in range(4): a(f"v_exp_f32 v{16+e}, v{16+e}")
a("v_add_f32 v35, v16, v17")
a("v_add_f32 v36, v18, v19")
a("v_add_f32 v35, v35, v36")
xlane("v_add_f32", "v35", "v34", ["q1", "q2", "hm", "rm", "p16"])
a("v_rcp_f32 v36, v35")
a("v_log_f32 v35, v35")
for e in range(4): a(f"v_mul_f32 v{16+e}, v{16+e}, v36")
a("v_cvt_pk_bf16_f32 v16, v16, v17")
a("v_cvt_pk_bf16_f32 v17, v18, v19")
a(f"ds_write_b64 v7, v[16:17] offset:{L_P}")
a(f"ds_write_b32 v6, v11 offset:{L_FL+0x50}")
a("v_add_f32 v32, v32, v35")
a("s_mov_b64 exec, s[34:35]")
if FAST:
    a(f"global_store_dwordx2 v13, v[32:33], {WS}")
a(f"global_store_dwordx2 v12, v[32:33], {WS} sc1")
a("s_mov_b64 exec, -1")
ts(7)
if int(opts.get("fpf", 1)):
    a("s_setprio 0")
    a("s_mul_i32 s7, s39, 28*3584")
    a("s_mul_i32 s51, s4, 448")
    a("s_add_u32 s7, s7, s51")
    a("v_min_u32 v16, 6, v4")
    a("v_min_u32 v17, 6, v3")
    a("v_mul_u32_u24 v17, 3584, v17")
    a("v_lshl_add_u32 v17, v16, 6, v17")
    a("v_add_u32 v17, s7, v17")
    a("s_mul_i32 s7, s4, 200704")
    a("s_mul_i32 s51, s39, 12544")
    a("s_add_u32 s7, s7, s51")
    a("v_min_u32 v18, 48, v1")
    a("v_lshl_add_u32 v18, v18, 6, s7")
    lds_flag_wait("fp", 0xA0, 4, [], 4, "v6", 56)
    for u_ in range(4):
        a(f"global_load_dword v{40+u_}, v17, {W1}{NTW}")
        a(f"global_load_dword v{44+u_}, v18, {W2}{NTW}")
        if u_ < 3:
            a(f"v_add_u32 v17, {7*3584}, v17")
            a("v_add_u32 v18, 3136, v18")
end_wave()

pad("k1")
a("L_A_k1:")
a("s_lshl_b32 s7, s44, 2")
a("v_mov_b32 v45, s7")
a("v_mov_b32 v46, 1")
a("v_mov_b32 v47, 0")
if DEBUG:
    for k in range(1, 16): a(f"s_mov_b64 s[{64+2*k}:{65+2*k}], 0")
a("s_cmp_eq_u32 s33, 1")
a("s_cbranch_scc1 L_B_pf")
KG = int(opts.get("kg", 3))
a(f"s_waitcnt vmcnt({KG})")
ts(1)
a(f"ds_write_b32 v45, v46 offset:{L_FL+0x80}")
for i in range(KA, 16):
    a(f"global_load_dwordx4 v[{64+4*i}:{67+4*i}], v6, {K} offset:{i*128}{NT}")
a(f"ds_write_b32 v45, v46 offset:{L_FL+0x70}")
ts(2)
a("L_A_k2:")
a(f"s_mov_b32 {MHI}, 0xffff0000")
a("s_lshl_b32 s7, s44, 4")
a(f"s_add_u32 s7, s7, {L_SC}")
a("v_lshl_add_u32 v44, v3, 6, s7")
a("v_mov_b32 v47, 0")
a("v_lshlrev_b32 v5, 4, v4")
for i in range(8): a(f"v_mov_b32 v{48+i}, 0")
a(f"s_mov_b32 s7, {f32(0.0625*LOG2E)}")
QR = [f"ds_read_b128 v[{128+(hh*4+j)*4}:{131+(hh*4+j)*4}], v5 offset:{L_Q + hh*512 + j*128}" for j in range(4) for hh in range(2)]
if int(opts.get("qsep", 1)):
    lds_flag_wait("qx", 0x20, 4, [], 4, "v47", 56)
    for x in QR: a(x)
else:
    lds_flag_wait("qx", 0x20, 4, QR, 4, "v47", 56)
a("s_setprio 2")
ts(4)
for gp in range(2):
    a(f"s_waitcnt vmcnt({8-8*gp})")
    if gp == 1: ts(5)
    for j in range(4):
        if gp == 0 and int(opts.get("qsep", 1)): a(f"s_waitcnt lgkmcnt({0 if DEBUG else 6-2*j})")
        for k in range(4):
            for grp in (2*gp, 2*gp+1):
                for hh in range(2):
                    if not (int(opts.get("noqk", 0)) and k): a(f"v_dot2c_f32_bf16 v{48+hh*4+grp}, v{64+(grp*4+j)*4+k}, v{128+(hh*4+j)*4+k}")
pad("k3", over=True)
for m in ("quad_perm:[1,0,3,2]", "quad_perm:[2,3,0,1]", "row_half_mirror"):
    for i in range(8):
        a(f"v_add_f32_dpp v{48+i}, v{48+i}, v{48+i} {m} {DPPM}")
for q in range(4): a(f"v_cvt_pk_bf16_f32 v{56+q}, v{48+2*q}, v{49+2*q}")
for q in range(4):
    a(f"v_lshlrev_b32 v{48+2*q}, 16, v{56+q}")
    a(f"v_and_b32 v{49+2*q}, {MHI}, v{56+q}")
for i in range(8): a(f"v_mul_f32 v{48+i}, s7, v{48+i}")
a("ds_write_b128 v44, v[48:51]")
a("ds_write_b128 v44, v[52:55] offset:512")
a(f"ds_write_b32 v45, v46 offset:{L_FL+0x40}")
ts(6)
if int(opts.get("wpf", 0)):
    a("s_setprio 0")
    a("s_mul_i32 s7, s4, 458752")
    a("s_mul_i32 s51, s39, 28672")
    a("s_add_u32 s7, s7, s51")
    a("s_mul_i32 s51, s44, 7168")
    a("s_add_u32 s7, s7, s51")
    a("v_lshl_add_u32 v5, v1, 4, s7")
    a("v_add_u32 v6, 0x1000, v5")
    for i in range(7):
        a(f"global_load_dwordx4 v[{64+4*i}:{67+4*i}], v{5+(i>>2)}, {WO} offset:{(i&3)*1024}{NTW}")
end_wave()

pad("v2")
a("L_A_v:")
if DEBUG:
    for k in range(1, 16): a(f"s_mov_b64 s[{64+2*k}:{65+2*k}], 0")
a(f"s_mov_b32 {SEL_LO}, 0x05040100")
a(f"s_mov_b32 {SEL_HI}, 0x07060302")
a("s_lshl_b32 s52, s44, 7")
a("s_add_u32 s51, s43, s52")
a("v_bfe_u32 v5, v1, 3, 1")
a("v_lshlrev_b32 v6, 14, v5")
a("v_lshrrev_b32 v10, 4, v1")
a("v_lshl_add_u32 v6, v10, 12, v6")
a("v_lshl_add_u32 v6, v4, 4, v6")
a("v_add_u32 v6, s51, v6")
a("v_add_u32 v7, 0x8000, v6")
a("v_mov_b32 v11, 0")
a("s_lshl_b32 s7, s4, 14")
a("s_lshl_b32 s51, s39, 9")
a("s_add_u32 s7, s7, s51")
a("s_add_u32 s7, s7, s52")
a(f"s_add_u32 s7, s7, {OP}")
a("v_lshlrev_b32 v8, 13, v5")
a("v_lshl_add_u32 v8, v4, 4, v8")
a("v_add_u32 v8, s7, v8")
a("s_lshl_b32 s7, s4, 14")
a("s_lshl_b32 s51, s44, 11")
a("s_add_u32 s7, s7, s51")
a("s_lshl_b32 s51, s39, 4")
a("s_add_u32 s7, s7, s51")
a(f"s_add_u32 s7, s7, {FO+OP}")
a("v_lshlrev_b32 v12, 13, v5")
a("v_lshl_add_u32 v12, v4, 8, v12")
a("v_add_u32 v12, s7, v12")
a("s_lshl_b32 s7, s44, 2")
a("v_mov_b32 v13, s7")
a("v_mov_b32 v14, 1")
a("v_lshrrev_b32 v5, 1, v1")
a("v_xor_b32 v5, v5, v1")
a("v_and_b32 v5, 1, v5")
a("v_lshlrev_b32 v9, 8, v5")
a("v_and_b32 v5, 1, v1")
a("v_lshl_add_u32 v9, v5, 6, v9")
a("v_lshl_add_u32 v9, v10, 4, v9")
if WARM:
    for u_, names in enumerate((("h1",), ("k3",), ("v3",), ("v4",))):
        sk = lab("vt")
        a(f"s_cmp_eq_u32 s44, {u_}")
        a(f"s_cbranch_scc0 {sk}")
        touch(*names)
        a(f"{sk}:")
lds_flag_wait("vg", int(opts.get("vg", 0x20)), 4, [], 3 if opts.get("vg") == "144" else 4, "v11", 32)
ts(1)
def vperm(t):
    if t < 4: perm_pair(40+8*t, 44+8*t, [104+4*j+t for j in range(8)])
    else: perm_pair(40+8*t, 44+8*t, [40+4*j+(t-4) for j in range(8)])
done_t = 0
for i in range(16):
    sg, e = divmod(i, 8)
    known = -1
    if VD <= i < VN:
        a(f"s_waitcnt vmcnt({VD-1})"); known = i - VD
    a(f"global_load_dwordx4 v[{40+4*i}:{43+4*i}], v{6+sg}, {V} offset:{e*512}{NTV}")
    while 2*done_t+1 <= known and done_t < 4:
        vperm(done_t); done_t += 1
    if i == 9: pad("v3", over=True)
ts(2)
while done_t < 4:
    a(f"s_waitcnt vmcnt({14-2*done_t})"); vperm(done_t); done_t += 1
PRE = int(opts.get("vpre", 2))
for t in range(4, 4+PRE):
    a(f"s_waitcnt vmcnt({14-2*t})"); vperm(t)
ts(3)
pad("v4", over=True)
lds_flag_wait("pw", 0x50, 4, [f"ds_read_b128 v[16:19], v9 offset:{L_P}", f"ds_read_b128 v[20:23], v9 offset:{L_P+128}"], 1, "v11", 32)
a("s_setprio 3")
ts(6)
for j in range(8):
    a(f"v_mfma_f32_16x16x32_bf16 v[{136+4*j}:{139+4*j}], v[16:19], v[{104+4*j}:{107+4*j}], 0")
for t in range(4+PRE, 8):
    a(f"s_waitcnt vmcnt({14-2*t})")
    if t == 7: ts(7)
    vperm(t)
for j in range(8):
    a(f"v_mfma_f32_16x16x32_bf16 v[{136+4*j}:{139+4*j}], v[20:23], v[{40+4*j}:{43+4*j}], v[{136+4*j}:{139+4*j}]")
for j in range(8):
    d = 136 + 4*j
    a(f"v_add_f32_dpp v{24+j}, v{d+3}, v{d} row_ror:8 row_mask:0xf bank_mask:0x3")
    a(f"v_add_f32_dpp v{24+j}, v{d+2}, v{d+1} row_ror:8 row_mask:0xf bank_mask:0xc")
for t in range(4): a(f"v_cvt_pk_bf16_f32 v{36+t}, v{24+2*t}, v{25+2*t}")
for t in range(4): a(f"v_min_u32 v{36+t}, -2, v{36+t}")
a("s_mov_b64 exec, 0xffff")
if FAST: a(f"global_store_dwordx4 v12, v[36:39], {WS}")
a(f"global_store_dwordx4 v8, v[36:39], {WS} sc1")
a("s_mov_b64 exec, -1")
ts(8)
if opts.get("ack"):
    a("s_waitcnt vmcnt(1)")
    ts(10)
    a("s_waitcnt vmcnt(0)")
    ts(11)
a(f"ds_write_b32 v13, v14 offset:{L_FL+0xA0}")
end_wave()

a("L_B_pf:")
PD = int(opts.get("pd", 7)); PN = int(opts.get("pn", 6)); PW = int(opts.get("pw", 12)); XS = int(opts.get("xs", 0)); WPF2 = int(opts.get("wpf2", 1))
a("s_lshl_b32 s52, s44, 7")
a("s_add_u32 s51, s43, s52")
a("v_bfe_u32 v5, v1, 3, 1")
a("v_lshlrev_b32 v8, 14, v5")
a("v_lshrrev_b32 v10, 4, v1")
a("v_lshl_add_u32 v8, v10, 12, v8")
a("v_lshl_add_u32 v8, v4, 4, v8")
a("v_add_u32 v8, s51, v8")
a("v_add_u32 v9, 0x8000, v8")
for n, i in enumerate(range(XS, 16)):
    if n < PN: a(f"s_waitcnt vmcnt({PD-1})")
    if n == PN and S1G == 2: lds_flag_wait("pg", 0x60, 4, [], 1, "v47", 56)
    a(f"global_load_dwordx4 v[{100+4*n}:{103+4*n}], v{8+(i>>3)}, {V} offset:{(i&7)*512}{NT}")
ts(1)
if PW < 16: a(f"s_waitcnt vmcnt({PW})")
a(f"ds_write_b32 v45, v46 offset:{L_FL+0x70}")
if WPF2:
    a("s_cmp_lt_u32 s39, 7")
    a("s_cbranch_scc1 L_B_pf2")
    a("s_sub_u32 s7, s39, 7")
    a("s_lshl_b32 s7, s7, 2")
    a("s_add_u32 s7, s7, s44")
    a("s_mul_i32 s7, s7, 6400")
    a("s_min_u32 s7, s7, 222976")
    a("s_mul_i32 s51, s4, 458752")
    a("s_add_u32 s7, s7, s51")
    a("s_add_u32 s7, s7, 229376")
    a("v_min_u32 v5, 49, v1")
    a("v_lshl_add_u32 v5, v5, 7, s7")
    a(f"global_load_dword v40, v5, {WO}{NTW}")
    if int(opts.get("w1pf", 1)):
        a("s_sub_u32 s7, s39, 7")
        a("s_lshl_b32 s7, s7, 2")
        a("s_add_u32 s7, s7, s44")
        a("s_mul_i32 s7, s7, 13")
        a("v_mul_u32_u24 v5, 52, v1")
        a("v_lshrrev_b32 v5, 8, v5")
        a("v_mul_u32_u24 v6, 5, v5")
        a("v_sub_u32 v6, v1, v6")
        a("v_add_u32 v5, s7, v5")
        a("v_min_u32 v5, 447, v5")
        a("v_mul_u32_u24 v5, 3584, v5")
        a("s_mul_i32 s7, s4, 448")
        a("v_lshl_add_u32 v6, v6, 7, s7")
        a("s_add_u32 s7, s7, 444")
        a("v_min_u32 v6, s7, v6")
        a("v_add_u32 v5, v5, v6")
        a(f"global_load_dword v41, v5, {W1}{NTW}")
a(f"s_waitcnt vmcnt({int(opts.get('fw2', 6))})")
a(f"ds_write_b32 v45, v46 offset:{L_FL+0xF0}")
a(f"s_waitcnt vmcnt({int(opts.get('fw', 0))})")
a(f"ds_write_b32 v45, v46 offset:{L_FL+0xC0}")
a("s_branch L_B_pf3")
a("L_B_pf2:")
a("s_cmp_eq_u32 s3, 8")
a("s_cbranch_scc0 L_B_pf3")
a(f"s_load_dword s6, {WS}, 0")
a("s_lshl_b32 s7, s4, 11")
a(f"s_add_u32 s7, s7, {RDA}")
a("v_and_b32 v60, 15, v1")
a("v_lshl_add_u32 v61, v60, 7, s7")
a("s_getreg_b32 s54, hwreg(HW_REG_XCC_ID)")
a("s_setprio 3")
a("s_waitcnt lgkmcnt(0)")
a("s_add_u32 s6, s6, 1")
poll("ra", [f"global_load_dwordx2 v[62:63], v61, {WS} sc1"], [chk_tag([62], None)])
a("v_cmp_ne_u32 vcc, s54, v63")
a("s_cmp_eq_u64 vcc, 0")
a(f"s_cselect_b32 s7, {2 if FAST else 1}, 1")
a("v_mov_b32 v5, s7")
a(f"ds_write_b32 v47, v5 offset:{L_FL+0xB0}")
a("L_B_pf3:")
ts(2)
end_wave()
pad("bh2")
a("L_B_hi2:")
if DEBUG:
    for k in range(1, 16): a(f"s_mov_b64 s[{64+2*k}:{65+2*k}], 0")
a("s_cmp_lt_u32 s3, 7")
a("s_cbranch_scc1 L_B_join")
a("L_w7:")
a(f"s_load_dword s6, {WS}, 0")
a("v_mov_b32 v12, -1\nv_mov_b32 v13, -1\nv_mov_b32 v14, -1\nv_mov_b32 v15, -1")
a("s_cmp_lt_u32 s39, 14")
a("s_cbranch_scc0 L_B_exit")
a("s_cmp_lt_u32 s39, 7")
a("s_cbranch_scc0 L_w7_a")
a("s_lshl_b32 s7, s39, 3")
a("s_add_u32 s7, s7, s4")
a("s_lshl_b32 s7, s7, 7")
a(f"s_add_u32 s7, s7, {YP}")
a("v_lshl_add_u32 v5, v4, 4, s7")
a("s_mov_b64 exec, 0xff")
a(f"global_store_dwordx4 v5, v[12:15], {WS} sc1")
a("s_mov_b64 exec, -1")
a("s_branch L_w7_b")
a("L_w7_a:")
a("s_mul_i32 s57, s4, 7")
a("s_add_u32 s57, s57, s39")
a("s_sub_u32 s57, s57, 7")
a("s_mul_i32 s7, s57, 896")
a(f"s_add_u32 s7, s7, {ZP}")
a("v_min_u32 v6, 55, v1")
a("v_lshl_add_u32 v5, v6, 4, s7")
a(f"global_store_dwordx4 v5, v[12:15], {WS} sc1")
a("v_mov_b32 v6, 0")
a(f"global_load_ushort v16, v6, {OUT}")
a("L_w7_b:")
a("s_lshl_b32 s7, s39, 3")
a("s_add_u32 s7, s7, s4")
a("s_lshl_b32 s7, s7, 7")
a(f"s_add_u32 s7, s7, {RDY}")
a("v_mov_b32 v5, s7")
a("s_waitcnt vmcnt(0) lgkmcnt(0)")
a("s_add_u32 s7, s6, 1")
a("v_mov_b32 v6, s7")
a("s_mov_b64 exec, 1")
a(f"global_store_dword v5, v6, {WS} sc1")
a("s_mov_b64 exec, -1")
a("L_B_join:")
a(f"s_load_dword s6, {WS}, 0")
a(f"s_mov_b32 {SEL_LO}, 0x05040100")
a(f"s_mov_b32 {SEL_HI}, 0x07060302")
a(f"s_mov_b32 {MHI}, 0xffff0000")
a("v_lshlrev_b32 v2, 3, v4")
a("v_bfe_u32 v5, v1, 3, 1")
a("v_lshl_add_u32 v2, v5, 2, v2")
a("v_bfe_u32 v5, v1, 4, 1")
a("v_lshl_add_u32 v2, v5, 1, v2")
a("v_lshrrev_b32 v5, 5, v1")
a("v_add_u32 v2, v2, v5")
a("L_B_go:")
a("s_cmp_lt_u32 s39, 14")
a("s_cbranch_scc0 L_B_exit")
a("v_mov_b32 v6, 0")
WOG = int(opts.get("wog", 0x80))
a("s_cmp_lt_u32 s39, 7")
a("s_cbranch_scc0 L_B_go_f")
lds_flag_wait("pubw", 0x60, 8, [], 5, "v6", 56)
a("s_add_u32 s6, s6, 1")
a("s_branch L_stage_wo")
a("L_B_go_f:")
lds_flag_wait("pub", 0x60, 8, [], 5, "v6", 56)
a("s_add_u32 s6, s6, 1")
a("s_branch L_stage_ffn")
a("L_B_exit:")
end_wave()
pad("wo1")

a("L_stage_wo:")
ts(8)
a("s_lshl_b32 s7, s4, 9")
a("s_lshl_b32 s51, s3, 6")
a("s_add_u32 s7, s7, s51")
a("s_mul_i32 s7, s7, 896")
a("s_lshl_b32 s51, s39, 7")
a("s_add_u32 s7, s7, s51")
a("v_mul_u32_u24 v5, 896, v3")
a("v_lshl_add_u32 v5, v4, 4, v5")
a("v_add_u32 v5, s7, v5")
WD = int(opts.get("wd", 8))
for i in range(8):
    if i >= WD: a(f"s_waitcnt vmcnt({WD-1})")
    EXP_NOWO = int(opts.get("nowo", 0))
    a(f"global_load_dwordx4 v[{8+4*i}:{11+4*i}], v5, {WO}{NTO}")
    if i < 7 and not EXP_NOWO: a(f"v_add_u32 v5, {8*896}, v5")
a("v_and_b32 v60, 15, v1")
a("s_lshr_b32 s59, s3, 2")
a("s_and_b32 s58, s3, 3")
a("v_lshrrev_b32 v59, 4, v1")
a("s_lshl_b32 s7, s3, 13")
a(f"s_add_u32 s7, s7, {L_W}")
a("v_lshl_add_u32 v40, v1, 4, s7")
a("v_bfe_u32 v5, v1, 2, 2")
a("v_lshl_add_u32 v5, v59, 3, v5")
a("v_lshlrev_b32 v41, 7, v5")
a("v_and_b32 v5, 3, v1")
a("v_lshl_add_u32 v41, v5, 3, v41")
a("v_add_u32 v41, s7, v41")
a("v_bfe_u32 v5, v1, 4, 1")
a("v_lshlrev_b32 v45, 1, v5")
a("v_lshrrev_b32 v5, 5, v1")
a("v_add_u32 v45, v45, v5")
a("v_lshl_add_u32 v45, v45, 4, v60")
a("s_lshl_b32 s7, s3, 8")
a("v_lshl_add_u32 v45, v45, 2, s7")
a("v_and_b32 v5, 31, v1")
a("v_lshlrev_b32 v47, 3, v5")
a("s_lshl_b32 s7, s39, 3")
a("s_add_u32 s7, s7, s4")
a("s_lshl_b32 s7, s7, 7")
a(f"s_add_u32 s7, s7, {YP}")
a("v_lshl_add_u32 v46, v5, 2, s7")
a("s_lshl_b32 s55, s4, 1")
a("s_add_u32 s55, s55, s59")
a("v_mov_b32 v6, 0")
h = spin_head("dec")
a(f"ds_read_b32 v5, v6 offset:{L_FL+0xB0}")
a("s_waitcnt lgkmcnt(0)")
a("v_readfirstlane_b32 s52, v5")
a("s_cmp_lg_u32 s52, 0")
spin_tail(h)
a("s_cmp_eq_u32 s52, 2")
a("s_cbranch_scc1 L_wo_fast")
a("s_lshl_b32 s7, s4, 11")
a("s_lshl_b32 s51, s59, 3")
a("s_add_u32 s7, s7, s51")
a(f"s_add_u32 s7, s7, {LSE}")
a("v_lshl_add_u32 v48, v59, 9, s7")
a("s_movk_i32 s61, 128")
a("s_lshl_b32 s7, s55, 13")
a("s_lshl_b32 s51, s58, 7")
a("s_add_u32 s7, s7, s51")
a(f"s_add_u32 s7, s7, {OP}")
a("v_lshlrev_b32 v43, 9, v60")
a("v_lshl_add_u32 v43, v59, 4, v43")
a("v_add_u32 v43, s7, v43")
a("v_add_u32 v44, 64, v43")
a("s_branch L_wo_go")
a("L_wo_fast:")
a("s_lshl_b32 s7, s55, 7")
a(f"s_add_u32 s7, s7, {FO+LSE}")
a("v_lshl_add_u32 v48, v59, 5, s7")
a("s_movk_i32 s61, 8")
a("s_lshl_b32 s7, s55, 13")
a("s_lshl_b32 s51, s58, 11")
a("s_add_u32 s7, s7, s51")
a(f"s_add_u32 s7, s7, {FO+OP}")
a("v_lshl_add_u32 v43, v1, 4, s7")
a("v_add_u32 v44, 0x400, v43")
a("L_wo_go:")
a("v_add_u32 v49, s61, v48")
a("v_add_u32 v50, s61, v49")
a("v_add_u32 v51, s61, v50")
WL = [f"global_load_dwordx2 v[{96+2*i}:{97+2*i}], v{48+i}, {WS} sc1" for i in range(4)] + \
     [f"global_load_dwordx4 v[104:107], v43, {WS} sc1", f"global_load_dwordx4 v[108:111], v44, {WS} sc1"]
PQ = int(opts.get("pq", 6))
for i in range(8):
    if i == PQ:
        for x in WL: a(x)
    a(f"s_waitcnt vmcnt({7-i + (6 if i >= PQ else 0)})")
    a(f"ds_write_b128 v40, v[{8+4*i}:{11+4*i}] offset:{i*1024}")
if PQ >= 8:
    for x in WL: a(x)
for sg in range(2):
    for t in range(4):
        r = 64 + (sg*4 + t)*4
        a(f"ds_read_b64_tr_b16 v[{r}:{r+1}], v41 offset:{sg*4096 + t*32}")
        a(f"ds_read_b64_tr_b16 v[{r+2}:{r+3}], v41 offset:{sg*4096 + t*32 + 512}")
ts(9)
def alpha():
    a("v_max3_f32 v54, v96, v98, v100")
    a("v_max_f32 v54, v54, v102")
    xlane("v_max_f32", "v54", "v55", ["p16", "p32"])
    for i in range(4): a(f"v_sub_f32 v{96+2*i}, v{96+2*i}, v54")
    for i in range(4): a(f"v_exp_f32 v{96+2*i}, v{96+2*i}")
    a("v_add_f32 v54, v96, v98")
    a("v_add_f32 v56, v100, v102")
    a("v_add_f32 v54, v54, v56")
    xlane("v_add_f32", "v54", "v55", ["p16", "p32"])
    a("v_rcp_f32 v54, v54")
    for i in range(4): a(f"v_mul_f32 v{96+2*i}, v{96+2*i}, v54")
    ts(10)
poll2("op", WL, [chk_tag([97+2*i], None) for i in range(4)] + [chk_sent4(104, "v52"), chk_sent4(108, "v53")], 4, alpha)
a("s_waitcnt lgkmcnt(0)")
ts(11)
for t in range(4):
    a(f"v_mfma_f32_16x16x32_bf16 v[{112+4*t}:{115+4*t}], v[104:107], v[{64+4*t}:{67+4*t}], 0")
for t in range(4):
    a(f"v_mfma_f32_16x16x32_bf16 v[{112+4*t}:{115+4*t}], v[108:111], v[{80+4*t}:{83+4*t}], v[{112+4*t}:{115+4*t}]")
for t in range(4):
    a(f"v_mul_f32 v{52+t}, v96, v{112+4*t}")
    for r in range(1, 4): a(f"v_fmac_f32 v{52+t}, v{96+2*r}, v{112+4*t+r}")
a("v_permlane32_swap_b32 v52, v53")
a("v_permlane32_swap_b32 v54, v55")
a("v_add_f32 v52, v52, v53")
a("v_add_f32 v54, v54, v55")
a("v_permlane16_swap_b32 v52, v54")
a("v_add_f32 v52, v52, v54")
a(f"ds_write_b32 v45, v52 offset:{L_RED}")
a("s_waitcnt lgkmcnt(0)")
a("s_barrier")
ts(12)
a("s_cmp_lg_u32 s3, 0")
a("s_cbranch_scc1 L_wo_end")
for w in range(8): a(f"ds_read_b64 v[{80+2*w}:{81+2*w}], v47 offset:{L_RED + 256*w}")
a("s_mov_b32 s34, -1")
a("s_mov_b32 s35, 0")
a("s_waitcnt lgkmcnt(0)")
for (x, y) in ((80, 82), (84, 86), (88, 90), (92, 94), (80, 84), (88, 92), (80, 88)):
    a(f"v_add_f32 v{x}, v{x}, v{y}")
    a(f"v_add_f32 v{x+1}, v{x+1}, v{y+1}")
a("v_cvt_pk_bf16_f32 v80, v80, v81")
a("v_min_u32 v80, -2, v80")
a("s_mov_b64 exec, s[34:35]")
a(f"global_store_dword v46, v80, {WS} sc1")
a("s_mov_b64 exec, -1")
ts(13)
a("L_wo_end:")
end_wave()

a("L_stage_ffn:")
a("s_mul_i32 s57, s4, 7")
a("s_add_u32 s57, s57, s39")
a("s_sub_u32 s57, s57, 7")
a("s_cmp_eq_u32 s3, 7")
a("s_cbranch_scc1 L_final")
a("s_lshl_b32 s7, s3, 10")
a(f"s_add_u32 s7, s7, {RDY}")
a("v_lshl_add_u32 v6, v4, 7, s7")
a("s_lshl_b32 s51, s3, 7")
a("v_lshl_add_u32 v5, v2, 1, s51")
a(f"global_load_ushort v40, v5, {X}")
a("v_lshrrev_b32 v59, 4, v1")
a("v_and_b32 v60, 15, v1")
a("v_lshl_add_u32 v45, v59, 3, v4")
a("s_lshl_b32 s52, s57, 6")
a("v_lshl_add_u32 v5, v45, 1, s52")
a(f"global_load_ushort v42, v5, {B1}")
poll("tg", [f"global_load_dword v5, v6, {WS} sc1"], [chk_tag([5], None)])
a("v_lshrrev_b32 v43, 2, v1")
a("v_and_b32 v44, 3, v1")
a("v_mov_b32 v61, 0")
W2G = int(opts.get("w2g", 0xF0))
if W2G: lds_flag_wait("f2", W2G, 4, [], 4, "v61", 112)
a(f"s_mul_i32 s7, s57, {32*896}")
a("s_lshl_b32 s51, s3, 7")
a("s_add_u32 s7, s7, s51")
a("v_mul_u32_u24 v6, 896, v3")
a("v_lshl_add_u32 v6, v4, 4, v6")
a("v_add_u32 v5, s7, v6")
for i in range(4):
    a(f"global_load_dwordx4 v[{24+4*i}:{27+4*i}], v5, {W2}{NTW}")
    if i < 3: a(f"v_add_u32 v5, {8*896}, v5")
ts(7)
lds_flag_wait("fg", 0xC0, 4, [], 4, "v61", 112)
ts(8)
a(f"s_mul_i32 s7, s3, {64*3584}")
a("s_lshl_b32 s52, s57, 6")
a("s_add_u32 s7, s7, s52")
a("v_mul_u32_u24 v5, 3584, v43")
a("v_lshl_add_u32 v5, v44, 4, v5")
a("v_add_u32 v5, s7, v5")
for i in range(4):
    a(f"global_load_dwordx4 v[{8+4*i}:{11+4*i}], v5, {W1}{NTW}")
    if i < 3: a(f"v_add_u32 v5, {16*3584}, v5")
a(f"s_add_u32 s51, s51, {L_W2}")
a("v_add_u32 v41, s51, v6")
a("s_lshl_b32 s7, s3, 12")
a(f"s_add_u32 s7, s7, {L_W}")
a("v_lshl_add_u32 v47, v1, 4, s7")
a("v_bfe_u32 v5, v1, 2, 2")
a("v_lshl_add_u32 v5, v59, 3, v5")
a("v_lshlrev_b32 v48, 6, v5")
a("v_lshl_add_u32 v48, v44, 3, v48")
a("v_add_u32 v48, s7, v48")
a("v_mul_u32_u24 v49, 896, v5")
a("v_lshl_add_u32 v49, v44, 3, v49")
a("s_lshl_b32 s7, s3, 8")
a(f"s_add_u32 s7, s7, {L_W2}")
a("v_add_u32 v49, s7, v49")
a("s_lshl_b32 s7, s3, 10")
a(f"s_add_u32 s7, s7, {YP}")
a("v_lshl_add_u32 v46, v1, 4, s7")
a("s_lshl_b32 s7, s3, 7")
a("v_lshl_add_u32 v50, v2, 1, s7")
a("v_lshl_add_u32 v51, v59, 4, s7")
a("s_lshl_b32 s7, s3, 2")
a("v_lshl_add_u32 v54, v60, 5, s7")
a("v_lshlrev_b32 v55, 5, v45")
a("s_mul_i32 s7, s57, 896")
a("s_lshl_b32 s51, s3, 8")
a("s_add_u32 s7, s7, s51")
a(f"s_add_u32 s7, s7, {ZP}")
a("v_lshl_add_u32 v62, v1, 1, s7")
a("s_mov_b32 s58, 0x55555555")
a("s_mov_b32 s59, 0x55555555")
a("s_lshl_b32 s7, s3, 3")
a("v_mov_b32 v63, s7")
a("v_mov_b32 v61, 0")
for r in range(4): a(f"v_mov_b32 v{96+r}, 0x3f803f80")
for i in range(4):
    a(f"s_waitcnt vmcnt({7-i})")
    a(f"ds_write_b128 v41, v[{24+4*i}:{27+4*i}] offset:{i*8*896}")
for i in range(4):
    a(f"s_waitcnt vmcnt({3-i})")
    a(f"ds_write_b128 v47, v[{8+4*i}:{11+4*i}] offset:{i*1024}")
for sg in range(2):
    for t in range(2):
        r = 64 + (sg*2 + t)*4
        a(f"ds_read_b64_tr_b16 v[{r}:{r+1}], v48 offset:{sg*2048 + t*32}")
        a(f"ds_read_b64_tr_b16 v[{r+2}:{r+3}], v48 offset:{sg*2048 + t*32 + 256}")
a("s_waitcnt lgkmcnt(0)")
for t in range(2): a(f"v_mfma_f32_16x16x32_bf16 v[{100+4*t}:{103+4*t}], v[96:99], v[{64+4*t}:{67+4*t}], 0")
for t in range(2): a(f"v_mfma_f32_16x16x32_bf16 v[{100+4*t}:{103+4*t}], v[96:99], v[{72+4*t}:{75+4*t}], v[{100+4*t}:{103+4*t}]")
a(f"ds_write_b32 v54, v100 offset:{L_C}")
a(f"ds_write_b32 v54, v104 offset:{L_C+512}")
a("s_waitcnt vmcnt(0) lgkmcnt(0)")
a("s_barrier")
ts(9)
a(f"ds_read_b128 v[100:103], v55 offset:{L_C}")
a(f"ds_read_b128 v[104:107], v55 offset:{L_C+16}")
a("s_cmp_gt_u32 s3, 3")
a("s_cbranch_scc1 L_ffn_now2")
for T in range(8):
    if T == 4:
        a("s_cmp_eq_u32 s3, 3")
        a("s_cbranch_scc1 L_ffn_now2")
    r = 128 + 4*T
    a(f"ds_read_b64_tr_b16 v[{r}:{r+1}], v49 offset:{T*32}")
    a(f"ds_read_b64_tr_b16 v[{r+2}:{r+3}], v49 offset:{T*32 + 4*896}")
a("L_ffn_now2:")
a("v_lshlrev_b32 v40, 16, v40")
a("v_lshlrev_b32 v42, 16, v42")
a("s_mov_b32 s36, 0")
a("s_mov_b32 s37, 0x80000000")
a(f"v_mov_b32 v56, {f32(1.0/3)}")
a("s_waitcnt lgkmcnt(0)")
a("v_add_f32 v100, v100, v101")
a("v_add_f32 v102, v102, v103")
a("v_add_f32 v104, v104, v105")
a("v_add_f32 v100, v100, v102")
a("v_add_f32 v104, v104, v106")
a("v_add_f32 v57, v100, v104")
ts(10)
poll("yp", [f"global_load_dwordx4 v[96:99], v46, {WS} sc1"], [chk_sent4(96, "v52")])
ts(11)
for k in range(4):
    a(f"v_lshlrev_b32 v{104+2*k}, 16, v{96+k}")
    a(f"v_and_b32 v{105+2*k}, {MHI}, v{96+k}")
reduce8_hi(R(104, 8), 52)
bf16r("v52")
a("v_add_f32 v52, v52, v40")
a("v_cvt_pk_bf16_f32 v52, v52, v52")
a(f"ds_write_b16 v50, v52 offset:{L_H}")
a(f"ds_read_b128 v[96:99], v51 offset:{L_H}")
a(f"ds_read_b128 v[112:115], v51 offset:{L_H+64}")
a(f"v_and_b32 v52, {MHI}, v52")
a("v_mul_f32 v53, v52, v52")
wave_sum2("v52", "v53", None, None)
a("s_waitcnt lgkmcnt(0)")
for t in range(2): a(f"v_mfma_f32_16x16x32_bf16 v[{100+4*t}:{103+4*t}], v[96:99], v[{64+4*t}:{67+4*t}], 0")
for t in range(2): a(f"v_mfma_f32_16x16x32_bf16 v[{100+4*t}:{103+4*t}], v[112:115], v[{72+4*t}:{75+4*t}], v[{100+4*t}:{103+4*t}]")
a("s_mov_b64 exec, s[36:37]")
a(f"ds_write_b64 v63, v[52:53] offset:{L_ST}")
a("s_mov_b64 exec, -1")
a(f"ds_write_b32 v54, v100 offset:{L_Z}")
a(f"ds_write_b32 v54, v104 offset:{L_Z+512}")
a("s_waitcnt lgkmcnt(0)")
a("s_barrier")
ts(12)
a("s_cmp_gt_u32 s3, 3")
a("s_cbranch_scc1 L_wo_end")
a(f"ds_read_b128 v[108:111], v61 offset:{L_ST}")
a(f"ds_read_b128 v[112:115], v61 offset:{L_ST+16}")
a(f"ds_read_b128 v[116:119], v61 offset:{L_ST+32}")
a(f"ds_read_b64 v[120:121], v61 offset:{L_ST+48}")
a(f"ds_read_b128 v[100:103], v55 offset:{L_Z}")
a(f"ds_read_b128 v[104:107], v55 offset:{L_Z+16}")
a(f"s_mov_b32 s7, {f32(-LOG2E)}")
a("s_waitcnt lgkmcnt(0)" if DEBUG else "s_waitcnt lgkmcnt(2)")
for (x, y) in ((108, 110), (112, 114), (116, 118), (108, 112), (116, 120), (108, 116)):
    a(f"v_add_f32 v{x}, v{x}, v{y}")
    a(f"v_add_f32 v{x+1}, v{x+1}, v{y+1}")
ln_finish("v108", "v109", "v52", "v53", "v58")
a("s_waitcnt lgkmcnt(0)")
a("v_add_f32 v100, v100, v101")
a("v_add_f32 v102, v102, v103")
a("v_add_f32 v104, v104, v105")
a("v_add_f32 v100, v100, v102")
a("v_add_f32 v104, v104, v106")
a("v_add_f32 v100, v100, v104")
a("v_fma_f32 v100, -v52, v57, v100")
a("v_mul_f32 v100, v100, v53")
bf16r("v100")
a("v_add_f32 v100, v100, v42")
bf16r("v100")
a("v_mul_f32 v101, s7, abs(v100)")
a("v_exp_f32 v101, v101")
a("v_max_f32 v107, 0, v100")
bf16r("v101")
a("v_add_f32 v102, 1.0, v101")
a("v_log_f32 v102, v102")
a("v_fma_f32 v103, v101, v56, -0.5")
a("v_fma_f32 v103, v101, v103, 1.0")
a("v_mul_f32 v103, v101, v103")
a(f"v_cmp_gt_f32 vcc, {f32(2.0**-6)}, v101")
a(f"v_mul_f32 v102, {f32(math.log(2))}, v102")
a("v_cndmask_b32 v102, v102, v103, vcc")
bf16r("v102")
a("v_add_f32 v102, v102, v107")
bf16r("v102")
a(f"v_mul_f32 v103, {f32(-2*LOG2E)}, v102")
a("v_exp_f32 v103, v103")
a("v_mul_f32 v105, v102, v102")
a(f"v_cmp_gt_f32 vcc, {f32(2.0**-5)}, v102")
a("v_add_f32 v106, 1.0, v103")
a("v_sub_f32 v103, 1.0, v103")
a("v_rcp_f32 v106, v106")
a("v_mul_f32 v105, v105, v56")
a("v_fma_f32 v105, -v105, v102, v102")
a("v_mul_f32 v103, v103, v106")
a("v_cndmask_b32 v103, v103, v105, vcc")
bf16r("v103")
a("v_mul_f32 v100, v100, v103")
a(f"v_mov_b32_dpp v101, v100 quad_perm:[0,0,2,2] {DPPM}")
a(f"v_mov_b32_dpp v102, v100 quad_perm:[1,1,3,3] {DPPM}")
a("v_cvt_pk_bf16_f32 v101, v101, v102")
a(f"v_mov_b32_dpp v102, v101 row_half_mirror {DPPM}")
a("v_mov_b32_dpp v96, v101 quad_perm:[0,0,0,0] row_mask:0xf bank_mask:0x5")
a("v_mov_b32_dpp v97, v101 quad_perm:[2,2,2,2] row_mask:0xf bank_mask:0x5")
a("v_mov_b32_dpp v98, v101 quad_perm:[0,0,0,0] row_mask:0xf bank_mask:0xa")
a("v_mov_b32_dpp v99, v101 quad_perm:[2,2,2,2] row_mask:0xf bank_mask:0xa")
a("v_mov_b32_dpp v98, v102 quad_perm:[2,2,2,2] row_mask:0xf bank_mask:0x5")
a("v_mov_b32_dpp v99, v102 quad_perm:[0,0,0,0] row_mask:0xf bank_mask:0x5")
a("v_mov_b32_dpp v96, v102 quad_perm:[2,2,2,2] row_mask:0xf bank_mask:0xa")
a("v_mov_b32_dpp v97, v102 quad_perm:[0,0,0,0] row_mask:0xf bank_mask:0xa")
def ffn2(q):
    for T in range(4*q, 4*q+4):
        a(f"v_mfma_f32_16x16x32_bf16 v[{64+4*T}:{67+4*T}], v[96:99], v[{128+4*T}:{131+4*T}], 0")
def ffn2_out(q):
    for rho in range(4):
        a(f"v_mov_b32_dpp v{104+q}, v{64+4*(4*q+rho)} quad_perm:[0,1,2,3] row_mask:{hex(1<<rho)} bank_mask:0xf")
    a(f"v_mov_b32_dpp v{106+q}, v{104+q} quad_perm:[1,1,3,3] {DPPM}")
    a(f"v_cvt_pk_bf16_f32 v{104+q}, v{104+q}, v{106+q}")
    a(f"v_min_u32 v{104+q}, -2, v{104+q}")
    a("s_mov_b64 exec, s[58:59]")
    a(f"global_store_dword v62, v{104+q}, {WS} offset:{128*q} sc1")
    a("s_mov_b64 exec, -1")
ffn2(0)
a("s_cmp_eq_u32 s3, 3")
a("s_cbranch_scc1 L_ffn_last")
ffn2(1)
ffn2_out(0)
ffn2_out(1)
ts(13)
if int(opts.get("fdl", 4)):
    a("s_waitcnt vmcnt(0)")
    a("v_mov_b32 v5, 1")
    a(f"ds_write_b32 v63, v5 offset:{L_FL+0xD0}")
end_wave()
a("L_ffn_last:")
a("s_nop 7")
ffn2_out(0)
ts(13)
if int(opts.get("fdl", 4)):
    a("s_waitcnt vmcnt(0)")
    a("v_mov_b32 v5, 1")
    a(f"ds_write_b32 v63, v5 offset:{L_FL+0xD0}")
end_wave()

pad("fin")
a("L_final:")
a("v_min_u32 v5, 55, v1")
a("v_mul_u32_u24 v5, 896, v5")
a("s_lshl_b32 s7, s57, 4")
a(f"s_add_u32 s7, s7, {ZP}")
a("v_add_u32 v5, s7, v5")
a("v_and_b32 v6, 7, v2")
a("s_lshl_b32 s7, s57, 3")
a("v_add_u32 v6, s7, v6")
a("v_lshlrev_b32 v6, 1, v6")
a("s_mov_b32 s36, 0x01010101")
a("s_mov_b32 s37, 0x01010101")
a("v_min_u32 v7, 55, v1")
a("v_lshlrev_b32 v7, 7, v7")
a(f"v_add_u32 v7, {RDY + 7*1024}, v7")
poll("rd", [f"global_load_dword v8, v7, {WS} sc1"], [chk_tag([8], None)])
a("s_barrier")
a("s_barrier")
a(f"ds_read_u16 v50, v6 offset:{L_H}")
ts(12)
if int(opts.get("fdl", 4)):
    a("v_mov_b32 v9, 0")
    lds_flag_wait("fd", 0xD0, 8, [], int(opts.get("fdl", 4)), "v9", 56, ge=True)
poll("fin", [f"global_load_dwordx4 v[96:99], v5, {WS} sc1"], [chk_sent4(96, "v48")])
ts(13)
a("v_cmp_gt_u32 vcc, 56, v1")
a("s_waitcnt lgkmcnt(0)")
a("v_lshlrev_b32 v50, 16, v50")
for k in range(4): a(f"v_cndmask_b32 v{96+k}, 0, v{96+k}, vcc")
for k in range(4):
    a(f"v_lshlrev_b32 v{100+2*k}, 16, v{96+k}")
    a(f"v_and_b32 v{101+2*k}, {MHI}, v{96+k}")
reduce8_hi(R(100, 8), 52)
xlane("v_add_f32", "v52", None, ["q1", "q2", "hm"])
bf16r("v52")
a("v_add_f32 v52, v52, v50")
a("v_cvt_pk_bf16_f32 v52, v52, v52")
a("s_mov_b64 exec, s[36:37]")
a(f"global_store_short v6, v52, {OUT}")
a("s_cmp_lg_u32 s57, 0")
a("s_cbranch_scc1 L_fin_end")
a("s_mov_b64 exec, 1")
a("v_mov_b32 v5, 0")
a("v_mov_b32 v6, s6")
a(f"global_store_dword v5, v6, {WS} sc1")
a("L_fin_end:")
a("s_mov_b64 exec, -1")
ts(14)
end_wave()

if DEBUG:
    a("L_dump:")
    a("s_waitcnt lgkmcnt(0)")
    a("s_mov_b64 exec, 1")
    if DIAG:
        a(f"s_cmp_eq_u32 s2, {DIAG[0]}")
        a("s_cbranch_scc0 L_end")
        a(f"s_cmp_eq_u32 s3, {DIAG[1]}")
        a("s_cbranch_scc0 L_end")
        a(f"s_sub_u32 s7, s{64+2*DIAG[2]}, s64")
        a(f"s_mul_i32 s7, s7, {DIAG[3]}")
        a("s_min_u32 s7, s7, 20000")
        a("s_add_u32 s7, s7, 3000")
        a("s_mov_b32 s38, 100000")
        a("L_diag:")
        a("s_memrealtime s[60:61]")
        a("s_waitcnt lgkmcnt(0)")
        a("s_sub_u32 s51, s60, s64")
        a("s_cmp_ge_u32 s51, s7")
        a("s_cbranch_scc1 L_end")
        a("s_sub_u32 s38, s38, 1")
        a("s_cmp_eq_u32 s38, 0")
        a("s_cbranch_scc0 L_diag")
    elif HDBG:
        a("s_cmp_lt_u32 s2, 8")
        a("s_cselect_b32 s7, 0, 1")
        a("s_or_b32 s7, s7, s3")
        a("s_cmp_eq_u32 s7, 0")
        a("s_cbranch_scc0 L_dump_k")
        a("s_lshl_b32 s7, s2, 2")
        a("v_mov_b32 v5, s7")
        a("v_mov_b32 v6, s64")
        a(f"global_store_dword v5, v6, {DBG}")
        a("s_endpgm")
        a("L_dump_k:")
        a(f"s_cmp_eq_u32 s5, {15 if IL else 23}")
        a("s_cbranch_scc0 L_end")
        a("s_cmp_eq_u32 s3, 7")
        a("s_cbranch_scc0 L_end")
        a("s_lshl_b32 s7, s4, 2")
        a("v_mov_b32 v5, s7")
        a(f"v_mov_b32 v6, s{64+30}")
        a(f"global_store_dword v5, v6, {DBG} offset:32")
    else:
        a("s_lshl_b32 s7, s2, 4")
        a("s_add_u32 s7, s7, s3")
        a("s_lshl_b32 s7, s7, 6")
        a(f"s_add_u32 s7, s7, {TS}")
        a("v_mov_b32 v5, s7")
        for k in ((0, GSTAT[0]) if GSTAT else range(16)):
            a(f"v_mov_b32 v6, s{64+2*k}")
            a(f"global_store_dword v5, v6, {WS} offset:{4*k}{' sc1' if GSTAT else ''}")
        if GSTAT:
            a("s_cmp_eq_u32 s2, 248")
            a("s_cbranch_scc0 L_end")
            a("s_cmp_eq_u32 s3, 5")
            a("s_cbranch_scc0 L_end")
            a("s_mov_b64 exec, -1")
            a("s_mov_b32 s38, 100000")
            a("L_g1:")
            a("s_memrealtime s[60:61]")
            a("s_waitcnt lgkmcnt(0)")
            a("s_sub_u32 s51, s60, s64")
            a("s_cmp_ge_u32 s51, 2000")
            a("s_cbranch_scc1 L_g2")
            a("s_sub_u32 s38, s38, 1")
            a("s_cmp_eq_u32 s38, 0")
            a("s_cbranch_scc0 L_g1")
            a("L_g2:")
            a("v_mov_b32 v20, 0x7fffffff")
            a("v_mov_b32 v21, 0x80000000")
            a("v_and_b32 v22, 15, v1")
            a(f"v_cmp_le_u32 vcc, {GSTAT[1]}, v22")
            a(f"v_cmp_gt_u32 s[46:47], {GSTAT[2]}, v22")
            a("s_and_b64 s[46:47], s[46:47], vcc")
            a("v_cmp_gt_u32 s[48:49], 12, v22")
            a("s_mov_b32 s52, 0")
            a("L_g3:")
            a("s_lshl_b32 s7, s52, 12")
            a(f"s_add_u32 s7, s7, {TS}")
            a("v_lshl_add_u32 v23, v1, 6, s7")
            a(f"global_load_dword v24, v23, {WS} sc1")
            a(f"global_load_dword v25, v23, {WS} offset:{4*GSTAT[0]} sc1")
            a("s_waitcnt vmcnt(0)")
            a("v_subrev_u32 v24, s64, v24")
            a("v_cmp_eq_u32 vcc, 0, v25")
            a("v_subrev_u32 v25, s64, v25")
            a("v_cndmask_b32 v25, v25, v21, vcc")
            a("v_cndmask_b32 v25, v21, v25, s[46:47]")
            a("v_cndmask_b32 v24, v20, v24, s[48:49]")
            if GSTAT[3] != 2:
                a("s_bitcmp1_b32 s52, 1")
                a(f"s_cbranch_scc{1 - GSTAT[3]} L_g4")
            a("v_max_i32 v21, v21, v25")
            a("L_g4:")
            a("v_min_i32 v20, v20, v24")
            a("s_add_u32 s52, s52, 1")
            a("s_cmp_lt_u32 s52, 64")
            a("s_cbranch_scc1 L_g3")
            xlane("v_max_i32", "v21", "v26", ["q1", "q2", "hm", "r8", "p16", "p32"])
            xlane("v_min_i32", "v20", "v26", ["q1", "q2", "hm", "r8", "p16", "p32"])
            a("v_sub_u32 v21, v21, v20")
            a("v_readfirstlane_b32 s7, v21")
            a("v_readfirstlane_b32 s53, v20")
            a("s_mul_i32 s7, s7, 4")
            a("s_min_u32 s7, s7, 20000")
            a("s_add_u32 s7, s7, 6000")
            a("s_add_u32 s7, s7, s53")
            a("s_mov_b32 s38, 100000")
            a("L_g5:")
            a("s_memrealtime s[60:61]")
            a("s_waitcnt lgkmcnt(0)")
            a("s_sub_u32 s51, s60, s64")
            a("s_cmp_ge_u32 s51, s7")
            a("s_cbranch_scc1 L_end")
            a("s_sub_u32 s38, s38, 1")
            a("s_cmp_eq_u32 s38, 0")
            a("s_cbranch_scc0 L_g5")
a("L_end:")
a("s_endpgm")
a("L_codeend:")
a.raw(f'''.section .rodata,"a"
.p2align 6
.amdhsa_kernel {NAME}_kernel
  .amdhsa_next_free_vgpr 168
  .amdhsa_next_free_sgpr 96
  .amdhsa_accum_offset 168
  .amdhsa_group_segment_fixed_size 0
  .amdhsa_kernarg_size 96
  .amdhsa_user_sgpr_count 2
  .amdhsa_user_sgpr_kernarg_segment_ptr 1
  .amdhsa_system_sgpr_workgroup_id_x 1
  .amdhsa_float_denorm_mode_32 3
.end_amdhsa_kernel''')
open(OUTP, "w").write(a.text())
print("nops inserted:", a.nops, "lines:", len(a.lines))
```

```python
import sys, struct, math
sys.path.insert(0, "gen")
from asmlib import Asm

NAME = "sequential_preLN__sliding_block_cached__dense_activation_mish__decode"
opts = dict(x.split("=") for x in sys.argv[2:])
OUTP = sys.argv[1]
DEBUG = int(opts.get("dbg", 0))
HDBG = int(opts.get("hdbg", 0))
if HDBG: DEBUG = 1
NT = " nt" if int(opts.get("nt", 0)) else ""
NTW = " nt" if int(opts.get("ntw", 0)) else ""
NTK = " nt" if int(opts.get("ntk", 0)) else ""
NTQ = " nt" if int(opts.get("ntq", 0)) else ""
NTO = " nt" if int(opts.get("nto", 0)) else ""
NTV = " nt" if int(opts.get("ntv", 0)) else ""
KD = int(opts.get("kd", 4))
NTHR = int(opts.get("nthr", 12))
SLEEP = int(opts.get("sleep", 0))
KD0 = int(opts.get("kd0", 2))
RGATE = int(opts.get("rgate", 1))
QWAIT = int(opts.get("qwait", 1))
SPIN = 100000

def f32(x): return "0x%08x" % struct.unpack("<I", struct.pack("<f", x))[0]
LOG2E = math.log2(math.e)

RDY = 0x50000; RDA = 0x58000; QG = 0x10000; LSE = 0x40000; OP = 0x80000; YP = 0xC0000; ZP = 0xD0000; TS = 0x400000; FO = 0x100000
L_S1 = 0x000; L_FL = 0x800; L_Q = 0x900; L_SC = 0xD00; L_RED = 0x1100; L_ST = 0x1900; L_H = 0x1A00; L_Z = 0x2100; L_O = 0x2500
L_P = 0x2D00; L_C = 0x2F00
L_W = 0x4000; L_W2 = 0xB000
LDS_BYTES = 0x14000
IL = int(opts.get("il", 1))
FGATE = int(opts.get("fgate", 100))
X, K, V, WQ, WO, W1, B1, W2, OUT, DBG, WS = "s[8:9]", "s[10:11]", "s[12:13]", "s[14:15]", "s[16:17]", "s[20:21]", "s[22:23]", "s[24:25]", "s[26:27]", "s[28:29]", "s[30:31]"
SEL_LO, SEL_HI, MHI = "s40", "s41", "s42"
R = lambda a_, n: list(range(a_, a_ + n))

a = Asm()
uid = [0]
def lab(p):
    uid[0] += 1
    return f"L_{p}_{uid[0]}"

DIAG = [int(x) for x in opts["diag"].split(",")] if "diag" in opts else None
if DIAG: DEBUG = 1
GSTAT = [int(x) for x in opts["gstat"].split(",")] if "gstat" in opts else None
if GSTAT: DEBUG = 1
def ts(k):
    if DIAG and k not in (0, DIAG[2]): return
    if GSTAT and k not in (0, GSTAT[0]): return
    if HDBG and k not in (0, 15): return
    if DEBUG: a(f"s_memrealtime s[{64+2*k}:{65+2*k}]")

def end_wave():
    if DEBUG:
        ts(15)
        a("s_branch L_dump")
    else:
        a("s_endpgm")
    a.flush_hist()

def sleep():
    if SLEEP: a(f"s_sleep {SLEEP}")

DPPM = "row_mask:0xf bank_mask:0xf"
def wave_sum2(x, y, sx, sy):
    for m in ("quad_perm:[1,0,3,2]", "quad_perm:[2,3,0,1]", "row_half_mirror", "row_mirror"):
        a(f"v_add_f32_dpp {x}, {x}, {x} {m} {DPPM}")
        a(f"v_add_f32_dpp {y}, {y}, {y} {m} {DPPM}")
    a(f"v_add_f32_dpp {x}, {x}, {x} row_bcast:15 row_mask:0xa bank_mask:0xf")
    a(f"v_add_f32_dpp {y}, {y}, {y} row_bcast:15 row_mask:0xa bank_mask:0xf")
    a(f"v_add_f32_dpp {x}, {x}, {x} row_bcast:31 row_mask:0xc bank_mask:0xf")
    a(f"v_add_f32_dpp {y}, {y}, {y} row_bcast:31 row_mask:0xc bank_mask:0xf")
    if sx:
        a(f"v_readlane_b32 {sx}, {x}, 63")
        a(f"v_readlane_b32 {sy}, {y}, 63")

def bf16r(x):
    a(f"v_cvt_pk_bf16_f32 {x}, {x}, {x}")
    a(f"v_and_b32 {x}, {MHI}, {x}")

def ln_finish(vsum, vsq, vm, vr, t):
    a(f"v_mov_b32 {t}, {f32(1.0/448)}")
    a(f"v_mul_f32 {vm}, {vsum}, {t}")
    a(f"v_mul_f32 {vr}, {vsq}, {t}")
    a(f"v_fma_f32 {vr}, -{vm}, {vm}, {vr}")
    a(f"v_max_f32 {vr}, 0, {vr}")
    a(f"v_cvt_pk_bf16_f32 {t}, {vm}, {vr}")
    a(f"v_lshlrev_b32 {vm}, 16, {t}")
    a(f"v_and_b32 {vr}, {MHI}, {t}")
    a(f"v_add_f32 {vr}, {f32(1e-5)}, {vr}")
    bf16r(vr)
    a(f"v_sqrt_f32 {vr}, {vr}")
    bf16r(vr)
    a(f"v_rcp_f32 {vr}, {vr}")

def ln_apply(lo, hi, vm, vr, dst):
    a(f"v_sub_f32 {lo}, {lo}, {vm}")
    a(f"v_sub_f32 {hi}, {hi}, {vm}")
    a(f"v_cvt_pk_bf16_f32 {dst}, {lo}, {hi}")
    a(f"v_lshlrev_b32 {lo}, 16, {dst}")
    a(f"v_and_b32 {hi}, {MHI}, {dst}")
    a(f"v_mul_f32 {lo}, {lo}, {vr}")
    a(f"v_mul_f32 {hi}, {hi}, {vr}")
    a(f"v_cvt_pk_bf16_f32 {dst}, {lo}, {hi}")

def perm_pair(A, B, outs):
    for k in range(4):
        a(f"v_perm_b32 v{outs[2*k]}, v{B+k}, v{A+k}, {SEL_LO}")
        a(f"v_perm_b32 v{outs[2*k+1]}, v{B+k}, v{A+k}, {SEL_HI}")

def reduce8_hi(acc, dst, full_row=False):
    for k in range(4):
        a(f"v_permlane32_swap_b32 v{acc[2*k]}, v{acc[2*k+1]}")
    for k in range(4):
        a(f"v_add_f32 v{acc[2*k]}, v{acc[2*k]}, v{acc[2*k+1]}")
    a(f"v_permlane16_swap_b32 v{acc[0]}, v{acc[2]}")
    a(f"v_permlane16_swap_b32 v{acc[4]}, v{acc[6]}")
    a(f"v_add_f32 v{acc[0]}, v{acc[0]}, v{acc[2]}")
    a(f"v_add_f32 v{acc[4]}, v{acc[4]}, v{acc[6]}")
    if full_row:
        for m in ("row_ror:4", "row_ror:8"):
            a(f"v_add_f32_dpp v{acc[0]}, v{acc[0]}, v{acc[0]} {m} {DPPM}")
            a(f"v_add_f32_dpp v{acc[4]}, v{acc[4]}, v{acc[4]} {m} {DPPM}")
    else:
        a(f"v_add_f32_dpp v{dst}, v{acc[0]}, v{acc[0]} row_ror:8 row_mask:0xf bank_mask:0x3")
        a(f"v_add_f32_dpp v{dst}, v{acc[4]}, v{acc[4]} row_ror:8 row_mask:0xf bank_mask:0xc")

def dots16(P0, P1, x0, x1, acc):
    for j in range(8):
        a(f"v_dot2_f32_bf16 v{acc[j]}, v{P0[j]}, {x0}, 0")
    for j in range(8):
        a(f"v_dot2_f32_bf16 v{acc[j]}, v{P1[j]}, {x1}, v{acc[j]}")

def spin_head(p):
    lp, dn = lab(p), lab(p + "d")
    a(f"s_mov_b32 s38, {SPIN}")
    a(f"{lp}:")
    return lp, dn

def spin_tail(h, slp=False):
    lp, dn = h
    a(f"s_cbranch_scc1 {dn}")
    if slp: sleep()
    a("s_sub_u32 s38, s38, 1")
    a("s_cmp_eq_u32 s38, 0")
    a(f"s_cbranch_scc0 {lp}")
    a(f"{dn}:")

def xlane(op, x, t, steps):
    for s in steps:
        if s in ("p16", "p32"):
            a(f"v_mov_b32 {t}, {x}")
            a(f"v_permlane{s[1:]}_swap_b32 {x}, {t}")
            a(f"{op} {x}, {x}, {t}")
        else:
            m = {"q3": "quad_perm:[3,2,1,0]", "q1": "quad_perm:[1,0,3,2]", "q2": "quad_perm:[2,3,0,1]", "hm": "row_half_mirror",
                 "r4": "row_ror:4", "r8": "row_ror:8", "rm": "row_mirror"}[s]
            a(f"{op}_dpp {x}, {x}, {x} {m} {DPPM}")

def poll(name, loads, checks, pre=None):
    n = len(loads)
    P = [f"s[{46+2*i}:{47+2*i}]" for i in range(n)]
    for p in P: a(f"s_mov_b64 {p}, -1")
    h = spin_head(name)
    if pre: a(pre)
    for i in range(n):
        sk = lab(name + "s")
        a(f"s_mov_b64 exec, {P[i]}")
        a(f"s_cbranch_execz {sk}")
        a(loads[i])
        a(f"{sk}:")
    a("s_mov_b64 exec, -1")
    a("s_waitcnt vmcnt(0)")
    for i in range(n): checks[i](P[i])
    if n == 1: a(f"s_cmp_eq_u64 {P[0]}, 0")
    else:
        a(f"s_or_b64 s[34:35], {P[0]}, {P[1]}")
        for p in P[2:]: a(f"s_or_b64 s[34:35], s[34:35], {p}")
        a("s_cmp_eq_u64 s[34:35], 0")
    spin_tail(h, True)

def poll2(name, loads, checks, nhook, hook):
    n = len(loads)
    P = [f"s[{76+2*i}:{77+2*i}]" if not DEBUG else f"s[{46+2*i}:{47+2*i}]" for i in range(n)]
    P = [f"s[{46+2*i}:{47+2*i}]" for i in range(n)]
    lp, dn, chk, nh = lab(name), lab(name + "d"), lab(name + "c"), lab(name + "h")
    a(f"s_mov_b32 s38, {SPIN}")
    a("s_mov_b32 s60, 0")
    a(f"s_branch {chk}")
    a(f"{lp}:")
    for i in range(n):
        sk = lab(name + "s")
        a(f"s_mov_b64 exec, {P[i]}")
        a(f"s_cbranch_execz {sk}")
        a(loads[i])
        a(f"{sk}:")
    a("s_mov_b64 exec, -1")
    a(f"{chk}:")
    a("s_waitcnt vmcnt(0)")
    for i in range(nhook, n): checks[i](P[i])
    a("s_cmp_eq_u32 s60, 1")
    a(f"s_cbranch_scc1 {nh}")
    for i in range(nhook): checks[i](P[i])
    a(f"s_or_b64 s[34:35], {P[0]}, {P[1]}")
    for p in P[2:nhook]: a(f"s_or_b64 s[34:35], s[34:35], {p}")
    a("s_cmp_eq_u64 s[34:35], 0")
    a(f"s_cbranch_scc0 L_{name}_again")
    hook()
    a("s_mov_b32 s60, 1")
    a(f"{nh}:")
    a(f"s_or_b64 s[34:35], {P[nhook]}, {P[nhook+1]}")
    a("s_cmp_eq_u64 s[34:35], 0")
    a(f"s_cbranch_scc1 {dn}")
    a(f"L_{name}_again:")
    a("s_sub_u32 s38, s38, 1")
    a("s_cmp_eq_u32 s38, 0")
    a(f"s_cbranch_scc0 {lp}")
    a(f"{dn}:")

def chk_sent4(r, t):
    def f(sp):
        a(f"v_max3_u32 {t}, v{r}, v{r+1}, v{r+2}")
        a(f"v_max_u32 {t}, {t}, v{r+3}")
        a(f"v_cmp_eq_u32 {sp}, -1, {t}")
    return f
def chk_tag(regs, t):
    def f(sp):
        if len(regs) == 1: a(f"v_cmp_ne_u32 {sp}, s6, v{regs[0]}")
        else:
            a(f"v_xor_b32 {t}, v{regs[0]}, v{regs[1]}")
            a(f"v_cmp_ne_u32 {sp}, s6, v{regs[0]}")
            a(f"v_cmp_ne_u32 vcc, 0, {t}")
            a(f"s_or_b64 {sp}, {sp}, vcc")
    return f

def lds_flag_wait(name, off, nwords, extra_reads, expect, zero, tmpbase, ge=False):
    h = spin_head(name)
    for q in range(nwords // 4):
        a(f"ds_read_b128 v[{tmpbase+4*q}:{tmpbase+4*q+3}], {zero} offset:{L_FL+off+16*q}")
    for x in extra_reads: a(x)
    a("s_waitcnt lgkmcnt(0)")
    t = tmpbase
    a(f"v_add3_u32 v{t}, v{t}, v{t+1}, v{t+2}")
    if nwords == 4: a(f"v_add_u32 v{t}, v{t}, v{t+3}")
    else:
        a(f"v_add3_u32 v{t+4}, v{t+4}, v{t+5}, v{t+6}")
        a(f"v_add3_u32 v{t}, v{t}, v{t+3}, v{t+7}")
        a(f"v_add_u32 v{t}, v{t}, v{t+4}")
    a(f"v_cmp_{'gt' if ge else 'ne'}_u32 vcc, {expect}, v{t}")
    a("s_cmp_eq_u64 vcc, 0")
    spin_tail(h)

hdr = open(f"cdna_kernels/{NAME}.s.ref").read().split("; Override launch")[0]
a.raw(hdr.rstrip())
a.raw(f"; @launch grid=(256,1,1) block=(768,1,1) lds={LDS_BYTES}")
a.raw('.amdgcn_target "amdgcn-amd-amdhsa--gfx950"')
a.raw(".text")
a.raw(f".globl {NAME}_kernel\n.p2align 8\n.type {NAME}_kernel,@function\n{NAME}_kernel:")


WARM = int(opts.get("warm", 0))
FAST = int(opts.get("fast", 1)); FASTQ = int(opts.get("fastq", 1))
pads = []
def pad(name, over=False):
    if not WARM: return
    if over: a(f"s_branch L_padskip_{name}")
    a(f"L_pad_{name}:")
    a("s_setpc_b64 s[62:63]")
    if over: a(f"L_padskip_{name}:")
    pads.append(name)
def touch(*names):
    if not WARM: return
    for n in names: a(f"s_call_b64 s[62:63], L_pad_{n}")

N0 = int(opts.get("n0", 7)); S1G = int(opts.get("s1g", 2)); AD = int(opts.get("ad", 16)); VD = int(opts.get("vd", 16)); VN = int(opts.get("vn", 0)); KVW = int(opts.get("kvw", 4))
a("s_cmp_ge_u32 s2, 256")
a("s_cbranch_scc1 L_end")
a("s_load_dwordx16 s[8:23], s[0:1], 0")
a("s_load_dwordx8 s[24:31], s[0:1], 64")
ts(0)
a("v_lshrrev_b32 v2, 6, v0")
a("v_and_b32 v1, 63, v0")
a("s_and_b32 s4, s2, 7")
a("s_lshr_b32 s5, s2, 3")
a("v_readfirstlane_b32 s3, v2")
a("v_lshrrev_b32 v3, 3, v1")
a("v_and_b32 v4, 7, v1")
a("v_mov_b32 v5, 0")
a("v_lshlrev_b32 v6, 2, v1")
a(f"ds_write_b32 v6, v5 offset:{L_FL}")
a("s_lshr_b32 s39, s5, 1")
a("s_and_b32 s33, s5, 1")
a("s_cmp_ge_u32 s3, 4")
a("s_cbranch_scc1 L_hi")
a("s_lshr_b32 s44, s5, 3")
a("s_and_b32 s45, s5, 7")
a("v_min_u32 v6, 55, v1")
a("v_lshlrev_b32 v6, 4, v6")
a("s_lshl_b32 s48, s3, 5")
a("v_lshl_add_u32 v15, v3, 2, s48")
a("v_min_u32 v14, 108, v15")
a("s_mul_i32 s47, s44, 112")
a("v_add_u32 v14, s47, v14")
a("v_lshlrev_b32 v12, 1, v14")
a("s_lshl_b32 s51, s4, 10")
a("s_lshl_b32 s52, s45, 7")
a("s_add_u32 s51, s51, s52")
a("v_lshl_add_u32 v32, v4, 4, s51")
a("v_lshl_add_u32 v32, v14, 13, v32")
a("v_add_u32 v33, 0x2000, v32")
a("v_add_u32 v34, 0x4000, v32")
a("v_add_u32 v35, 0x6000, v32")
a("s_waitcnt lgkmcnt(0)")
a(f"global_load_dwordx4 v[36:39], v6, {X}")
a(f"global_load_dwordx2 v[12:13], v12, {X}")
for i in range(4):
    a(f"global_load_dwordx4 v[{16+4*i}:{19+4*i}], v{32+i}, {WQ}{NTQ}")
a("s_barrier")
a("s_branch L_s1")
a.flush_hist()
a("L_hi:")
N1 = int(opts.get("n1", 8)); HQ = int(opts.get("hq", 8));
a("s_lshl_b32 s43, s4, 22")
a("s_lshl_b32 s7, s39, 16")
a("s_add_u32 s43, s43, s7")
a(f"s_add_u32 s43, s43, {6144*512}")
a("s_and_b32 s44, s3, 3")
a("s_lshr_b32 s7, s3, 3")
a("s_cmp_eq_u32 s7, s33")
a("s_cbranch_scc0 L_B_hi")
a("s_lshl_b32 s47, s44, 11")
a("s_add_u32 s46, s43, s47")
a("v_lshlrev_b32 v6, 13, v3")
a("v_lshl_add_u32 v6, v4, 4, v6")
a("v_add_u32 v6, s46, v6")
KA = int(opts.get("ka", 12))
KB = 16 - KA
HI = int(opts.get("hi", 99))
a(f"s_mul_i32 s7, s33, {KA*128}")
a("v_add_u32 v7, s7, v6")
a("s_waitcnt lgkmcnt(0)")
for i in range(KA):
    if i == min(N0, KB): a("s_barrier")
    if i == KB:
        a("s_cmp_eq_u32 s33, 1")
        a("s_cbranch_scc1 L_A_k1")
    if i >= N0: a(f"s_waitcnt vmcnt({N0-1})")
    if i == HI:
        a("s_lshl_b32 s7, s44, 2")
        a("v_mov_b32 v45, s7")
        a("v_mov_b32 v46, 1")
        a(f"ds_write_b32 v45, v46 offset:{L_FL+0x80}")
    a(f"global_load_dwordx4 v[{64+4*i}:{67+4*i}], v7, {K} offset:{i*128}{NTK if i >= KB else NT}")
a("s_branch L_A_k1")
a.flush_hist()
a("L_B_hi:")
if int(opts.get("cpf", 1)):
    a("s_getpc_b64 s[36:37]")
    a("L_pc:")
    a("v_and_b32 v5, 255, v0")
    a("v_lshlrev_b32 v5, 7, v5")
    a("v_cmp_gt_u32 vcc, L_codeend-L_pc, v5")
    a("v_cndmask_b32 v5, 0, v5, vcc")
    a("global_load_dword v167, v5, s[36:37]")
if WARM:
    for u_, n_ in enumerate(("s1b", "s1c", "k1", "v2", "bh2", "h1", "wo1", "ffn1")):
        sk = lab("et")
        a(f"s_cmp_eq_u32 s3, {11-u_}")
        a(f"s_cbranch_scc0 {sk}")
        touch(n_)
        a(f"{sk}:")
a("s_waitcnt lgkmcnt(0)")
if int(opts.get("kick", 0)):
    a("s_load_dword s55, s[10:11], s43")
    a("s_load_dword s56, s[14:15], 0")
    a("s_mov_b32 s7, 3670012")
    a("s_load_dword s57, s[14:15], s7")
    a("s_mov_b32 s7, 1835008")
    a("s_load_dword s58, s[14:15], s7")
    a("s_load_dword s59, s[30:31], 128")
    a("s_load_dword s60, s[12:13], s43")
a("s_barrier")
if int(opts.get("tw", 1)):
    a("s_mul_i32 s7, s4, 458752")
    a("s_load_dword s46, s[16:17], s7")
    a("s_add_u32 s7, s7, 458748")
    a("s_load_dword s47, s[16:17], s7")
    a("s_load_dword s48, s[20:21], 0")
    a("s_mov_b32 s7, 1605628")
    a("s_load_dword s49, s[20:21], s7")
    a("s_mul_i32 s7, s4, 200704")
    a("s_load_dword s50, s[24:25], s7")
    a("s_add_u32 s7, s7, 200700")
    a("s_load_dword s51, s[24:25], s7")
    a("s_load_dword s52, s[22:23], 0")
    a("s_load_dword s53, s[26:27], 0")
    a("s_load_dword s54, s[12:13], s43")
    a("s_waitcnt lgkmcnt(0)")
a("s_cmp_eq_u32 s33, 1")
a("s_cbranch_scc0 L_A_v")
a("s_branch L_B_hi2")
a.flush_hist()
a("L_s1:")
if DEBUG:
    for k in range(1, 16): a(f"s_mov_b64 s[{64+2*k}:{65+2*k}], 0")
ts(1)
a(f"s_mov_b32 {SEL_LO}, 0x05040100")
a(f"s_mov_b32 {SEL_HI}, 0x07060302")
a(f"s_mov_b32 {MHI}, 0xffff0000")
a("v_lshlrev_b32 v2, 3, v4")
a("v_bfe_u32 v5, v1, 3, 1")
a("v_lshl_add_u32 v2, v5, 2, v2")
a("v_bfe_u32 v5, v1, 4, 1")
a("v_lshl_add_u32 v2, v5, 1, v2")
a("v_lshrrev_b32 v5, 5, v1")
a("v_add_u32 v2, v2, v5")
a("s_lshl_b32 s7, s3, 2")
a("v_mov_b32 v10, s7")
a("v_mov_b32 v11, 1")
a("v_cmp_gt_u32 vcc, 112, v15")
a("s_mov_b64 s[34:35], vcc")
a("s_cmp_lg_u32 s3, 3")
a("s_cbranch_scc1 L_s1_noep")
a(f"s_load_dword s6, {WS}, 0")
a("L_s1_noep:")
a("v_cmp_gt_u32 vcc, 56, v1")
a("s_waitcnt vmcnt(5)")
for k in range(4):
    a(f"v_lshlrev_b32 v{40+2*k}, 16, v{36+k}")
    a(f"v_and_b32 v{41+2*k}, {MHI}, v{36+k}")
a("v_add_f32 v48, v40, v41")
a("v_mul_f32 v49, v40, v40")
a("v_add_f32 v50, v42, v43")
a("v_mul_f32 v51, v42, v42")
a("v_fmac_f32 v49, v41, v41")
a("v_fmac_f32 v51, v43, v43")
a("v_add_f32 v48, v48, v44")
a("v_add_f32 v50, v50, v46")
a("v_fmac_f32 v49, v44, v44")
a("v_fmac_f32 v51, v46, v46")
a("v_add_f32 v48, v48, v45")
a("v_add_f32 v50, v50, v47")
a("v_fmac_f32 v49, v45, v45")
a("v_fmac_f32 v51, v47, v47")
a("v_add_f32 v48, v48, v50")
a("v_add_f32 v49, v49, v51")
a("v_cndmask_b32 v48, 0, v48, vcc")
a("v_cndmask_b32 v49, 0, v49, vcc")
wave_sum2("v48", "v49", "s54", "s55")
ln_finish("s54", "s55", "v50", "v51", "v52")
pad("s1b", over=True)
a("s_waitcnt vmcnt(4)")
a("v_lshlrev_b32 v40, 16, v12")
a(f"v_and_b32 v41, {MHI}, v12")
a("v_lshlrev_b32 v42, 16, v13")
a(f"v_and_b32 v43, {MHI}, v13")
for k in range(4): a(f"v_sub_f32 v{40+k}, v{40+k}, v50")
a("v_cvt_pk_bf16_f32 v12, v40, v41")
a("v_cvt_pk_bf16_f32 v13, v42, v43")
a("v_lshlrev_b32 v40, 16, v12")
a(f"v_and_b32 v41, {MHI}, v12")
a("v_lshlrev_b32 v42, 16, v13")
a(f"v_and_b32 v43, {MHI}, v13")
for k in range(4): a(f"v_mul_f32 v{40+k}, v{40+k}, v51")
a("v_cvt_pk_bf16_f32 v12, v40, v41")
a("v_cvt_pk_bf16_f32 v13, v42, v43")
a("v_cndmask_b32 v12, 0, v12, s[34:35]")
a("v_cndmask_b32 v13, 0, v13, s[34:35]")
a("v_lshlrev_b32 v5, 2, v0")
a("v_mov_b32 v6, 0")
a("s_waitcnt vmcnt(2)")
perm_pair(16, 20, R(40, 8))
for j in range(8): a(f"v_dot2_f32_bf16 v{56+j}, v{40+j}, v12, 0")
a("s_waitcnt vmcnt(0)")
ts(2)
perm_pair(24, 28, R(48, 8))
for j in range(8): a(f"v_dot2_f32_bf16 v{56+j}, v{48+j}, v13, v{56+j}")
reduce8_hi(R(56, 8), 40)
a("s_cmp_eq_u32 s3, 3")
a("s_cbranch_scc1 L_s1_coll")
a(f"ds_write_b32 v5, v40 offset:{L_S1}")
a(f"ds_write_b32 v10, v11 offset:{L_FL}")
a(f"s_load_dword s6, {WS}, 0")
a("s_branch L_s1_done")
a.flush_hist()
pad("s1c")
a("L_s1_coll:")
a("v_lshlrev_b32 v5, 2, v1")
a("s_lshl_b32 s7, s4, 14")
a("s_lshl_b32 s51, s45, 11")
a("s_add_u32 s7, s7, s51")
a("s_lshl_b32 s51, s44, 9")
a("s_add_u32 s7, s7, s51")
a(f"s_add_u32 s7, s7, {QG}")
a("v_lshl_add_u32 v8, v2, 3, s7")
lds_flag_wait("s1", 0, 4, [f"ds_read_b32 v{41+w}, v5 offset:{L_S1+256*w}" for w in range(3)], 3, "v6", 56)
a("s_add_u32 s7, s6, 1")
a("v_add_f32 v40, v40, v41")
a("v_add_f32 v42, v42, v43")
a("v_mov_b32 v41, s7")
a("v_add_f32 v40, v40, v42")
if FASTQ:
    a(f"v_add_u32 v9, {FO}, v8")
    a(f"global_store_dwordx2 v9, v[40:41], {WS}")
a(f"global_store_dwordx2 v8, v[40:41], {WS} sc1")
a(f"ds_write_b32 v6, v11 offset:{L_FL+0x60}")
if opts.get("ack"):
    ts(3)
    a("s_waitcnt vmcnt(1)")
    ts(10)
    a("s_waitcnt vmcnt(0)")
    ts(11)
    a("s_branch L_s1_done2")
a("L_s1_done:")
ts(3)
a("L_s1_done2:")
a("s_cmp_eq_u32 s33, 1")
a("s_cbranch_scc1 L_B_go")

a("s_setprio 3")
a("s_lshl_b32 s7, s4, 14")
a("s_lshl_b32 s51, s3, 12")
a("s_add_u32 s7, s7, s51")
a(f"s_add_u32 s7, s7, {QG}")
a("v_lshl_add_u32 v9, v1, 4, s7")
a("s_lshl_b32 s7, s3, 8")
a("v_lshl_add_u32 v8, v1, 2, s7")
a("s_cmp_lg_u32 s3, 0")
a("s_cbranch_scc1 L_A_h2")
a("s_lshl_b32 s7, s4, 14")
a("s_lshl_b32 s51, s39, 9")
a("s_add_u32 s7, s7, s51")
a(f"s_add_u32 s7, s7, {OP}")
a("v_lshrrev_b32 v5, 5, v1")
a("v_lshlrev_b32 v5, 13, v5")
a("v_and_b32 v7, 31, v1")
a("v_lshl_add_u32 v5, v7, 4, v5")
a("v_add_u32 v5, s7, v5")
a("v_mov_b32 v12, -1\nv_mov_b32 v13, -1\nv_mov_b32 v14, -1\nv_mov_b32 v15, -1")
a(f"global_store_dwordx4 v5, v[12:15], {WS} sc1")
if FAST:
    a("s_lshl_b32 s7, s4, 14")
    a("s_lshl_b32 s51, s39, 4")
    a("s_add_u32 s7, s7, s51")
    a(f"s_add_u32 s7, s7, {FO+OP}")
    a("v_lshl_add_u32 v5, v1, 8, s7")
    a(f"global_store_dwordx4 v5, v[12:15], {WS}")
a("s_getreg_b32 s52, hwreg(HW_REG_XCC_ID)")
a("s_lshl_b32 s7, s4, 11")
a("s_lshl_b32 s51, s39, 7")
a("s_add_u32 s7, s7, s51")
a(f"s_add_u32 s7, s7, {RDA}")
a("v_mov_b32 v5, s7")
a("s_waitcnt vmcnt(0) lgkmcnt(0)")
a("s_add_u32 s7, s6, 1")
a("v_mov_b32 v12, s7")
a("v_mov_b32 v13, s52")
a("s_mov_b64 exec, 1")
a(f"global_store_dwordx2 v5, v[12:13], {WS} sc1")
a("s_mov_b64 exec, -1")
a("L_A_h2:")
if int(opts.get("hg", 1)): lds_flag_wait("hg", 0x80, 4, [], 4, "v6", 56)
a("s_waitcnt lgkmcnt(0)")
a("s_add_u32 s6, s6, 1")
ts(8)
poll("qp", [f"global_load_dwordx4 v[{48+4*i}:{51+4*i}], v9, {WS} offset:{i*1024} sc1" for i in range(4)],
     [chk_tag([49+4*i, 51+4*i], "v5") for i in range(4)], pre=(f"v_xor_b32 v9, {FO}, v9" if FASTQ else None))
ts(4)
a("v_add_f32 v48, v48, v52")
a("v_add_f32 v50, v50, v54")
a("v_add_f32 v56, v56, v60")
a("v_add_f32 v58, v58, v62")
a("v_permlane32_swap_b32 v48, v56")
a("v_permlane32_swap_b32 v50, v58")
a("v_add_f32 v48, v48, v56")
a("v_add_f32 v50, v50, v58")
a("v_cvt_pk_bf16_f32 v48, v48, v50")
a(f"ds_write_b32 v8, v48 offset:{L_Q}")
a(f"ds_write_b32 v10, v11 offset:{L_FL+0x20}")
ts(5)
a("s_cmp_eq_u32 s3, 0")
a("s_cbranch_scc1 L_A_soft")
APF = int(opts.get("apf", 0))
if APF:
    lds_flag_wait("aq", 0x20, 4, [], 4, "v6", 56)
    a("s_mul_i32 s7, s4, 458752")
    a("s_mul_i32 s51, s39, 28672")
    a("s_add_u32 s7, s7, s51")
    a("s_sub_u32 s51, s3, 1")
    a("s_mul_i32 s51, s51, 9216")
    a("s_add_u32 s7, s7, s51")
    a("v_lshl_add_u32 v5, v1, 4, s7")
    a("v_add_u32 v7, 0x1000, v5")
    a("v_add_u32 v8, 0x2000, v5")
    for i in range(10):
        r = (5, 7, 8)[i >> 2]
        a(f"global_load_dwordx4 v[{64+4*i}:{67+4*i}], v{r}, {WO} offset:{(i&3)*1024}{NTW}")
    a(f"ds_write_b32 v10, v11 offset:{L_FL+0x90}")
end_wave()
pad("h1")
a("L_A_soft:")
a("v_lshlrev_b32 v5, 4, v1")
a("v_lshlrev_b32 v7, 3, v1")
a("s_lshl_b32 s7, s4, 11")
a("s_lshl_b32 s51, s39, 7")
a("s_add_u32 s7, s7, s51")
a(f"s_add_u32 s7, s7, {LSE}")
a("v_lshrrev_b32 v12, 5, v1")
a("s_lshl_b32 s51, s4, 8")
a("s_lshl_b32 s52, s39, 3")
a("s_add_u32 s51, s51, s52")
a(f"s_add_u32 s51, s51, {FO+LSE}")
a("v_lshl_add_u32 v13, v12, 7, s51")
a("v_lshl_add_u32 v12, v12, 3, s7")
a("v_mov_b32 v33, s6")
a("s_mov_b32 s34, 1")
a("s_mov_b32 s35, 1")
if int(opts.get("hprio", 1)): a("s_setprio 1")
lds_flag_wait("sc", 0x40, 4, [f"ds_read_b128 v[16:19], v5 offset:{L_SC}"], 4, "v6", 56)
if int(opts.get("hprio", 1)): a("s_setprio 3")
ts(6)
a("v_max3_f32 v32, v16, v17, v18")
a("v_max_f32 v32, v32, v19")
xlane("v_max_f32", "v32", "v34", ["q1", "q2", "hm", "rm", "p16"])
for e in range(4): a(f"v_sub_f32 v{16+e}, v{16+e}, v32")
for e in range(4): a(f"v_exp_f32 v{16+e}, v{16+e}")
a("v_add_f32 v35, v16, v17")
a("v_add_f32 v36, v18, v19")
a("v_add_f32 v35, v35, v36")
xlane("v_add_f32", "v35", "v34", ["q1", "q2", "hm", "rm", "p16"])
a("v_rcp_f32 v36, v35")
a("v_log_f32 v35, v35")
for e in range(4): a(f"v_mul_f32 v{16+e}, v{16+e}, v36")
a("v_cvt_pk_bf16_f32 v16, v16, v17")
a("v_cvt_pk_bf16_f32 v17, v18, v19")
a(f"ds_write_b64 v7, v[16:17] offset:{L_P}")
a(f"ds_write_b32 v6, v11 offset:{L_FL+0x50}")
a("v_add_f32 v32, v32, v35")
a("s_mov_b64 exec, s[34:35]")
if FAST:
    a(f"global_store_dwordx2 v13, v[32:33], {WS}")
a(f"global_store_dwordx2 v12, v[32:33], {WS} sc1")
a("s_mov_b64 exec, -1")
ts(7)
if int(opts.get("fpf", 1)):
    a("s_setprio 0")
    a("s_mul_i32 s7, s39, 28*3584")
    a("s_mul_i32 s51, s4, 448")
    a("s_add_u32 s7, s7, s51")
    a("v_min_u32 v16, 6, v4")
    a("v_min_u32 v17, 6, v3")
    a("v_mul_u32_u24 v17, 3584, v17")
    a("v_lshl_add_u32 v17, v16, 6, v17")
    a("v_add_u32 v17, s7, v17")
    a("s_mul_i32 s7, s4, 200704")
    a("s_mul_i32 s51, s39, 12544")
    a("s_add_u32 s7, s7, s51")
    a("v_min_u32 v18, 48, v1")
    a("v_lshl_add_u32 v18, v18, 6, s7")
    lds_flag_wait("fp", 0xA0, 4, [], 4, "v6", 56)
    for u_ in range(4):
        a(f"global_load_dword v{40+u_}, v17, {W1}{NTW}")
        a(f"global_load_dword v{44+u_}, v18, {W2}{NTW}")
        if u_ < 3:
            a(f"v_add_u32 v17, {7*3584}, v17")
            a("v_add_u32 v18, 3136, v18")
end_wave()

pad("k1")
a("L_A_k1:")
a("s_lshl_b32 s7, s44, 2")
a("v_mov_b32 v45, s7")
a("v_mov_b32 v46, 1")
a("v_mov_b32 v47, 0")
if DEBUG:
    for k in range(1, 16): a(f"s_mov_b64 s[{64+2*k}:{65+2*k}], 0")
a("s_cmp_eq_u32 s33, 1")
a("s_cbranch_scc1 L_B_pf")
KG = int(opts.get("kg", 3))
a(f"s_waitcnt vmcnt({KG})")
ts(1)
a(f"ds_write_b32 v45, v46 offset:{L_FL+0x80}")
for i in range(KA, 16):
    a(f"global_load_dwordx4 v[{64+4*i}:{67+4*i}], v6, {K} offset:{i*128}{NT}")
a(f"ds_write_b32 v45, v46 offset:{L_FL+0x70}")
ts(2)
a("L_A_k2:")
a(f"s_mov_b32 {MHI}, 0xffff0000")
a("s_lshl_b32 s7, s44, 4")
a(f"s_add_u32 s7, s7, {L_SC}")
a("v_lshl_add_u32 v44, v3, 6, s7")
a("v_mov_b32 v47, 0")
a("v_lshlrev_b32 v5, 4, v4")
for i in range(8): a(f"v_mov_b32 v{48+i}, 0")
a(f"s_mov_b32 s7, {f32(0.0625*LOG2E)}")
QR = [f"ds_read_b128 v[{128+(hh*4+j)*4}:{131+(hh*4+j)*4}], v5 offset:{L_Q + hh*512 + j*128}" for j in range(4) for hh in range(2)]
if int(opts.get("qsep", 1)):
    lds_flag_wait("qx", 0x20, 4, [], 4, "v47", 56)
    for x in QR: a(x)
else:
    lds_flag_wait("qx", 0x20, 4, QR, 4, "v47", 56)
a("s_setprio 2")
ts(4)
for gp in range(2):
    a(f"s_waitcnt vmcnt({8-8*gp})")
    if gp == 1: ts(5)
    for j in range(4):
        if gp == 0 and int(opts.get("qsep", 1)): a(f"s_waitcnt lgkmcnt({0 if DEBUG else 6-2*j})")
        for k in range(4):
            for grp in (2*gp, 2*gp+1):
                for hh in range(2):
                    if not (int(opts.get("noqk", 0)) and k): a(f"v_dot2c_f32_bf16 v{48+hh*4+grp}, v{64+(grp*4+j)*4+k}, v{128+(hh*4+j)*4+k}")
pad("k3", over=True)
for m in ("quad_perm:[1,0,3,2]", "quad_perm:[2,3,0,1]", "row_half_mirror"):
    for i in range(8):
        a(f"v_add_f32_dpp v{48+i}, v{48+i}, v{48+i} {m} {DPPM}")
for q in range(4): a(f"v_cvt_pk_bf16_f32 v{56+q}, v{48+2*q}, v{49+2*q}")
for q in range(4):
    a(f"v_lshlrev_b32 v{48+2*q}, 16, v{56+q}")
    a(f"v_and_b32 v{49+2*q}, {MHI}, v{56+q}")
for i in range(8): a(f"v_mul_f32 v{48+i}, s7, v{48+i}")
a("ds_write_b128 v44, v[48:51]")
a("ds_write_b128 v44, v[52:55] offset:512")
a(f"ds_write_b32 v45, v46 offset:{L_FL+0x40}")
ts(6)
if int(opts.get("wpf", 0)):
    a("s_setprio 0")
    a("s_mul_i32 s7, s4, 458752")
    a("s_mul_i32 s51, s39, 28672")
    a("s_add_u32 s7, s7, s51")
    a("s_mul_i32 s51, s44, 7168")
    a("s_add_u32 s7, s7, s51")
    a("v_lshl_add_u32 v5, v1, 4, s7")
    a("v_add_u32 v6, 0x1000, v5")
    for i in range(7):
        a(f"global_load_dwordx4 v[{64+4*i}:{67+4*i}], v{5+(i>>2)}, {WO} offset:{(i&3)*1024}{NTW}")
end_wave()

pad("v2")
a("L_A_v:")
if DEBUG:
    for k in range(1, 16): a(f"s_mov_b64 s[{64+2*k}:{65+2*k}], 0")
a(f"s_mov_b32 {SEL_LO}, 0x05040100")
a(f"s_mov_b32 {SEL_HI}, 0x07060302")
a("s_lshl_b32 s52, s44, 7")
a("s_add_u32 s51, s43, s52")
a("v_bfe_u32 v5, v1, 3, 1")
a("v_lshlrev_b32 v6, 14, v5")
a("v_lshrrev_b32 v10, 4, v1")
a("v_lshl_add_u32 v6, v10, 12, v6")
a("v_lshl_add_u32 v6, v4, 4, v6")
a("v_add_u32 v6, s51, v6")
a("v_add_u32 v7, 0x8000, v6")
a("v_mov_b32 v11, 0")
a("s_lshl_b32 s7, s4, 14")
a("s_lshl_b32 s51, s39, 9")
a("s_add_u32 s7, s7, s51")
a("s_add_u32 s7, s7, s52")
a(f"s_add_u32 s7, s7, {OP}")
a("v_lshlrev_b32 v8, 13, v5")
a("v_lshl_add_u32 v8, v4, 4, v8")
a("v_add_u32 v8, s7, v8")
a("s_lshl_b32 s7, s4, 14")
a("s_lshl_b32 s51, s44, 11")
a("s_add_u32 s7, s7, s51")
a("s_lshl_b32 s51, s39, 4")
a("s_add_u32 s7, s7, s51")
a(f"s_add_u32 s7, s7, {FO+OP}")
a("v_lshlrev_b32 v12, 13, v5")
a("v_lshl_add_u32 v12, v4, 8, v12")
a("v_add_u32 v12, s7, v12")
a("s_lshl_b32 s7, s44, 2")
a("v_mov_b32 v13, s7")
a("v_mov_b32 v14, 1")
a("v_lshrrev_b32 v5, 1, v1")
a("v_xor_b32 v5, v5, v1")
a("v_and_b32 v5, 1, v5")
a("v_lshlrev_b32 v9, 8, v5")
a("v_and_b32 v5, 1, v1")
a("v_lshl_add_u32 v9, v5, 6, v9")
a("v_lshl_add_u32 v9, v10, 4, v9")
if WARM:
    for u_, names in enumerate((("h1",), ("k3",), ("v3",), ("v4",))):
        sk = lab("vt")
        a(f"s_cmp_eq_u32 s44, {u_}")
        a(f"s_cbranch_scc0 {sk}")
        touch(*names)
        a(f"{sk}:")
lds_flag_wait("vg", int(opts.get("vg", 0x20)), 4, [], 3 if opts.get("vg") == "144" else 4, "v11", 32)
ts(1)
def vperm(t):
    if t < 4: perm_pair(40+8*t, 44+8*t, [104+4*j+t for j in range(8)])
    else: perm_pair(40+8*t, 44+8*t, [40+4*j+(t-4) for j in range(8)])
done_t = 0
for i in range(16):
    sg, e = divmod(i, 8)
    known = -1
    VSPLIT = int(opts.get("vsplit", 99))
    if i == VSPLIT: lds_flag_wait("v2g", 0x20, 4, [], 4, "v11", 32)
    if VD <= i < VN:
        a(f"s_waitcnt vmcnt({VD-1})"); known = i - VD
    a(f"global_load_dwordx4 v[{40+4*i}:{43+4*i}], v{6+sg}, {V} offset:{e*512}{NTV}")
    while 2*done_t+1 <= known and done_t < 4:
        vperm(done_t); done_t += 1
    if i == 9: pad("v3", over=True)
ts(2)
while done_t < 4:
    a(f"s_waitcnt vmcnt({14-2*done_t})"); vperm(done_t); done_t += 1
PRE = int(opts.get("vpre", 2))
for t in range(4, 4+PRE):
    a(f"s_waitcnt vmcnt({14-2*t})"); vperm(t)
ts(3)
pad("v4", over=True)
lds_flag_wait("pw", 0x50, 4, [f"ds_read_b128 v[16:19], v9 offset:{L_P}", f"ds_read_b128 v[20:23], v9 offset:{L_P+128}"], 1, "v11", 32)
a("s_setprio 3")
ts(6)
for j in range(8):
    a(f"v_mfma_f32_16x16x32_bf16 v[{136+4*j}:{139+4*j}], v[16:19], v[{104+4*j}:{107+4*j}], 0")
for t in range(4+PRE, 8):
    a(f"s_waitcnt vmcnt({14-2*t})")
    if t == 7: ts(7)
    vperm(t)
for j in range(8):
    a(f"v_mfma_f32_16x16x32_bf16 v[{136+4*j}:{139+4*j}], v[20:23], v[{40+4*j}:{43+4*j}], v[{136+4*j}:{139+4*j}]")
for j in range(8):
    d = 136 + 4*j
    a(f"v_add_f32_dpp v{24+j}, v{d+3}, v{d} row_ror:8 row_mask:0xf bank_mask:0x3")
    a(f"v_add_f32_dpp v{24+j}, v{d+2}, v{d+1} row_ror:8 row_mask:0xf bank_mask:0xc")
for t in range(4): a(f"v_cvt_pk_bf16_f32 v{36+t}, v{24+2*t}, v{25+2*t}")
for t in range(4): a(f"v_min_u32 v{36+t}, -2, v{36+t}")
a("s_mov_b64 exec, 0xffff")
if FAST: a(f"global_store_dwordx4 v12, v[36:39], {WS}")
a(f"global_store_dwordx4 v8, v[36:39], {WS} sc1")
a("s_mov_b64 exec, -1")
ts(8)
if opts.get("ack"):
    a("s_waitcnt vmcnt(1)")
    ts(10)
    a("s_waitcnt vmcnt(0)")
    ts(11)
a(f"ds_write_b32 v13, v14 offset:{L_FL+0xA0}")
end_wave()

a("L_B_pf:")
PD = int(opts.get("pd", 7)); PN = int(opts.get("pn", 6)); PW = int(opts.get("pw", 12)); XS = int(opts.get("xs", 0)); WPF2 = int(opts.get("wpf2", 1))
a("s_lshl_b32 s52, s44, 7")
a("s_add_u32 s51, s43, s52")
a("v_bfe_u32 v5, v1, 3, 1")
a("v_lshlrev_b32 v8, 14, v5")
a("v_lshrrev_b32 v10, 4, v1")
a("v_lshl_add_u32 v8, v10, 12, v8")
a("v_lshl_add_u32 v8, v4, 4, v8")
a("v_add_u32 v8, s51, v8")
a("v_add_u32 v9, 0x8000, v8")
for n, i in enumerate(range(XS, 16)):
    if n < PN: a(f"s_waitcnt vmcnt({PD-1})")
    if n == PN and S1G == 2: lds_flag_wait("pg", 0x60, 4, [], 1, "v47", 56)
    a(f"global_load_dwordx4 v[{100+4*n}:{103+4*n}], v{8+(i>>3)}, {V} offset:{(i&7)*512}{NT}")
ts(1)
if PW < 16: a(f"s_waitcnt vmcnt({PW})")
a(f"ds_write_b32 v45, v46 offset:{L_FL+0x70}")
if WPF2:
    a("s_cmp_lt_u32 s39, 7")
    a("s_cbranch_scc1 L_B_pf2")
    a("s_sub_u32 s7, s39, 7")
    a("s_lshl_b32 s7, s7, 2")
    a("s_add_u32 s7, s7, s44")
    a("s_mul_i32 s7, s7, 6400")
    a("s_min_u32 s7, s7, 222976")
    a("s_mul_i32 s51, s4, 458752")
    a("s_add_u32 s7, s7, s51")
    a("s_add_u32 s7, s7, 229376")
    a("v_min_u32 v5, 49, v1")
    a("v_lshl_add_u32 v5, v5, 7, s7")
    a(f"global_load_dword v40, v5, {WO}{NTW}")
    if int(opts.get("w1pf", 1)):
        a("s_sub_u32 s7, s39, 7")
        a("s_lshl_b32 s7, s7, 2")
        a("s_add_u32 s7, s7, s44")
        a("s_mul_i32 s7, s7, 13")
        a("v_mul_u32_u24 v5, 52, v1")
        a("v_lshrrev_b32 v5, 8, v5")
        a("v_mul_u32_u24 v6, 5, v5")
        a("v_sub_u32 v6, v1, v6")
        a("v_add_u32 v5, s7, v5")
        a("v_min_u32 v5, 447, v5")
        a("v_mul_u32_u24 v5, 3584, v5")
        a("s_mul_i32 s7, s4, 448")
        a("v_lshl_add_u32 v6, v6, 7, s7")
        a("s_add_u32 s7, s7, 444")
        a("v_min_u32 v6, s7, v6")
        a("v_add_u32 v5, v5, v6")
        a(f"global_load_dword v41, v5, {W1}{NTW}")
a(f"s_waitcnt vmcnt({int(opts.get('fw2', 6))})")
a(f"ds_write_b32 v45, v46 offset:{L_FL+0xF0}")
a(f"s_waitcnt vmcnt({int(opts.get('fw', 0))})")
a(f"ds_write_b32 v45, v46 offset:{L_FL+0xC0}")
a("s_branch L_B_pf3")
a("L_B_pf2:")
a("s_cmp_eq_u32 s3, 8")
a("s_cbranch_scc0 L_B_pf3")
a(f"s_load_dword s6, {WS}, 0")
a("s_lshl_b32 s7, s4, 11")
a(f"s_add_u32 s7, s7, {RDA}")
a("v_and_b32 v60, 15, v1")
a("v_lshl_add_u32 v61, v60, 7, s7")
a("s_getreg_b32 s54, hwreg(HW_REG_XCC_ID)")
a("s_setprio 3")
a("s_waitcnt lgkmcnt(0)")
a("s_add_u32 s6, s6, 1")
poll("ra", [f"global_load_dwordx2 v[62:63], v61, {WS} sc1"], [chk_tag([62], None)])
a("v_cmp_ne_u32 vcc, s54, v63")
a("s_cmp_eq_u64 vcc, 0")
a(f"s_cselect_b32 s7, {2 if FAST else 1}, 1")
a("v_mov_b32 v5, s7")
a(f"ds_write_b32 v47, v5 offset:{L_FL+0xB0}")
a("L_B_pf3:")
ts(2)
end_wave()
pad("bh2")
a("L_B_hi2:")
if DEBUG:
    for k in range(1, 16): a(f"s_mov_b64 s[{64+2*k}:{65+2*k}], 0")
a("s_cmp_lt_u32 s3, 7")
a("s_cbranch_scc1 L_B_join")
a("L_w7:")
a(f"s_load_dword s6, {WS}, 0")
a("v_mov_b32 v12, -1\nv_mov_b32 v13, -1\nv_mov_b32 v14, -1\nv_mov_b32 v15, -1")
a("s_cmp_lt_u32 s39, 14")
a("s_cbranch_scc0 L_B_exit")
a("s_cmp_lt_u32 s39, 7")
a("s_cbranch_scc0 L_w7_a")
a("s_lshl_b32 s7, s39, 3")
a("s_add_u32 s7, s7, s4")
a("s_lshl_b32 s7, s7, 7")
a(f"s_add_u32 s7, s7, {YP}")
a("v_lshl_add_u32 v5, v4, 4, s7")
a("s_mov_b64 exec, 0xff")
a(f"global_store_dwordx4 v5, v[12:15], {WS} sc1")
a("s_mov_b64 exec, -1")
a("s_branch L_w7_b")
a("L_w7_a:")
a("s_mul_i32 s57, s4, 7")
a("s_add_u32 s57, s57, s39")
a("s_sub_u32 s57, s57, 7")
a("s_mul_i32 s7, s57, 896")
a(f"s_add_u32 s7, s7, {ZP}")
a("v_min_u32 v6, 55, v1")
a("v_lshl_add_u32 v5, v6, 4, s7")
a(f"global_store_dwordx4 v5, v[12:15], {WS} sc1")
a("v_mov_b32 v6, 0")
a(f"global_load_ushort v16, v6, {OUT}")
a("L_w7_b:")
a("s_lshl_b32 s7, s39, 3")
a("s_add_u32 s7, s7, s4")
a("s_lshl_b32 s7, s7, 7")
a(f"s_add_u32 s7, s7, {RDY}")
a("v_mov_b32 v5, s7")
a("s_waitcnt vmcnt(0) lgkmcnt(0)")
a("s_add_u32 s7, s6, 1")
a("v_mov_b32 v6, s7")
a("s_mov_b64 exec, 1")
a(f"global_store_dword v5, v6, {WS} sc1")
a("s_mov_b64 exec, -1")
a("L_B_join:")
a(f"s_load_dword s6, {WS}, 0")
a(f"s_mov_b32 {SEL_LO}, 0x05040100")
a(f"s_mov_b32 {SEL_HI}, 0x07060302")
a(f"s_mov_b32 {MHI}, 0xffff0000")
a("v_lshlrev_b32 v2, 3, v4")
a("v_bfe_u32 v5, v1, 3, 1")
a("v_lshl_add_u32 v2, v5, 2, v2")
a("v_bfe_u32 v5, v1, 4, 1")
a("v_lshl_add_u32 v2, v5, 1, v2")
a("v_lshrrev_b32 v5, 5, v1")
a("v_add_u32 v2, v2, v5")
a("L_B_go:")
a("s_cmp_lt_u32 s39, 14")
a("s_cbranch_scc0 L_B_exit")
a("v_mov_b32 v6, 0")
WOG = int(opts.get("wog", 0x80))
a("s_cmp_lt_u32 s39, 7")
a("s_cbranch_scc0 L_B_go_f")
lds_flag_wait("pubw", 0x60, 8, [], 5, "v6", 56)
a("s_add_u32 s6, s6, 1")
a("s_branch L_stage_wo")
a("L_B_go_f:")
lds_flag_wait("pub", 0x60, 8, [], 5, "v6", 56)
a("s_add_u32 s6, s6, 1")
a("s_branch L_stage_ffn")
a("L_B_exit:")
end_wave()
pad("wo1")

a("L_stage_wo:")
ts(8)
a("s_lshl_b32 s7, s4, 9")
a("s_lshl_b32 s51, s3, 6")
a("s_add_u32 s7, s7, s51")
a("s_mul_i32 s7, s7, 896")
a("s_lshl_b32 s51, s39, 7")
a("s_add_u32 s7, s7, s51")
a("v_mul_u32_u24 v5, 896, v3")
a("v_lshl_add_u32 v5, v4, 4, v5")
a("v_add_u32 v5, s7, v5")
WD = int(opts.get("wd", 8))
for i in range(8):
    if i >= WD: a(f"s_waitcnt vmcnt({WD-1})")
    EXP_NOWO = int(opts.get("nowo", 0))
    a(f"global_load_dwordx4 v[{8+4*i}:{11+4*i}], v5, {WO}{NTO}")
    if i < 7 and not EXP_NOWO: a(f"v_add_u32 v5, {8*896}, v5")
a("v_and_b32 v60, 15, v1")
a("s_lshr_b32 s59, s3, 2")
a("s_and_b32 s58, s3, 3")
a("v_lshrrev_b32 v59, 4, v1")
a("s_lshl_b32 s7, s3, 13")
a(f"s_add_u32 s7, s7, {L_W}")
a("v_lshl_add_u32 v40, v1, 4, s7")
a("v_bfe_u32 v5, v1, 2, 2")
a("v_lshl_add_u32 v5, v59, 3, v5")
a("v_lshlrev_b32 v41, 7, v5")
a("v_and_b32 v5, 3, v1")
a("v_lshl_add_u32 v41, v5, 3, v41")
a("v_add_u32 v41, s7, v41")
a("v_bfe_u32 v5, v1, 4, 1")
a("v_lshlrev_b32 v45, 1, v5")
a("v_lshrrev_b32 v5, 5, v1")
a("v_add_u32 v45, v45, v5")
a("v_lshl_add_u32 v45, v45, 4, v60")
a("s_lshl_b32 s7, s3, 8")
a("v_lshl_add_u32 v45, v45, 2, s7")
a("v_and_b32 v5, 31, v1")
a("v_lshlrev_b32 v47, 3, v5")
a("s_lshl_b32 s7, s39, 3")
a("s_add_u32 s7, s7, s4")
a("s_lshl_b32 s7, s7, 7")
a(f"s_add_u32 s7, s7, {YP}")
a("v_lshl_add_u32 v46, v5, 2, s7")
a("s_lshl_b32 s55, s4, 1")
a("s_add_u32 s55, s55, s59")
a("v_mov_b32 v6, 0")
h = spin_head("dec")
a(f"ds_read_b32 v5, v6 offset:{L_FL+0xB0}")
a("s_waitcnt lgkmcnt(0)")
a("v_readfirstlane_b32 s52, v5")
a("s_cmp_lg_u32 s52, 0")
spin_tail(h)
a("s_cmp_eq_u32 s52, 2")
a("s_cbranch_scc1 L_wo_fast")
a("s_lshl_b32 s7, s4, 11")
a("s_lshl_b32 s51, s59, 3")
a("s_add_u32 s7, s7, s51")
a(f"s_add_u32 s7, s7, {LSE}")
a("v_lshl_add_u32 v48, v59, 9, s7")
a("s_movk_i32 s61, 128")
a("s_lshl_b32 s7, s55, 13")
a("s_lshl_b32 s51, s58, 7")
a("s_add_u32 s7, s7, s51")
a(f"s_add_u32 s7, s7, {OP}")
a("v_lshlrev_b32 v43, 9, v60")
a("v_lshl_add_u32 v43, v59, 4, v43")
a("v_add_u32 v43, s7, v43")
a("v_add_u32 v44, 64, v43")
a("s_branch L_wo_go")
a("L_wo_fast:")
a("s_lshl_b32 s7, s55, 7")
a(f"s_add_u32 s7, s7, {FO+LSE}")
a("v_lshl_add_u32 v48, v59, 5, s7")
a("s_movk_i32 s61, 8")
a("s_lshl_b32 s7, s55, 13")
a("s_lshl_b32 s51, s58, 11")
a("s_add_u32 s7, s7, s51")
a(f"s_add_u32 s7, s7, {FO+OP}")
a("v_lshl_add_u32 v43, v1, 4, s7")
a("v_add_u32 v44, 0x400, v43")
a("L_wo_go:")
a("v_add_u32 v49, s61, v48")
a("v_add_u32 v50, s61, v49")
a("v_add_u32 v51, s61, v50")
WL = [f"global_load_dwordx2 v[{96+2*i}:{97+2*i}], v{48+i}, {WS} sc1" for i in range(4)] + \
     [f"global_load_dwordx4 v[104:107], v43, {WS} sc1", f"global_load_dwordx4 v[108:111], v44, {WS} sc1"]
PQ = int(opts.get("pq", 6))
for i in range(8):
    if i == PQ:
        for x in WL: a(x)
    a(f"s_waitcnt vmcnt({7-i + (6 if i >= PQ else 0)})")
    a(f"ds_write_b128 v40, v[{8+4*i}:{11+4*i}] offset:{i*1024}")
if PQ >= 8:
    for x in WL: a(x)
for sg in range(2):
    for t in range(4):
        r = 64 + (sg*4 + t)*4
        a(f"ds_read_b64_tr_b16 v[{r}:{r+1}], v41 offset:{sg*4096 + t*32}")
        a(f"ds_read_b64_tr_b16 v[{r+2}:{r+3}], v41 offset:{sg*4096 + t*32 + 512}")
ts(9)
def alpha():
    a("v_max3_f32 v54, v96, v98, v100")
    a("v_max_f32 v54, v54, v102")
    xlane("v_max_f32", "v54", "v55", ["p16", "p32"])
    for i in range(4): a(f"v_sub_f32 v{96+2*i}, v{96+2*i}, v54")
    for i in range(4): a(f"v_exp_f32 v{96+2*i}, v{96+2*i}")
    a("v_add_f32 v54, v96, v98")
    a("v_add_f32 v56, v100, v102")
    a("v_add_f32 v54, v54, v56")
    xlane("v_add_f32", "v54", "v55", ["p16", "p32"])
    a("v_rcp_f32 v54, v54")
    for i in range(4): a(f"v_mul_f32 v{96+2*i}, v{96+2*i}, v54")
    ts(10)
poll2("op", WL, [chk_tag([97+2*i], None) for i in range(4)] + [chk_sent4(104, "v52"), chk_sent4(108, "v53")], 4, alpha)
a("s_waitcnt lgkmcnt(0)")
ts(11)
for t in range(4):
    a(f"v_mfma_f32_16x16x32_bf16 v[{112+4*t}:{115+4*t}], v[104:107], v[{64+4*t}:{67+4*t}], 0")
for t in range(4):
    a(f"v_mfma_f32_16x16x32_bf16 v[{112+4*t}:{115+4*t}], v[108:111], v[{80+4*t}:{83+4*t}], v[{112+4*t}:{115+4*t}]")
for t in range(4):
    a(f"v_mul_f32 v{52+t}, v96, v{112+4*t}")
    for r in range(1, 4): a(f"v_fmac_f32 v{52+t}, v{96+2*r}, v{112+4*t+r}")
a("v_permlane32_swap_b32 v52, v53")
a("v_permlane32_swap_b32 v54, v55")
a("v_add_f32 v52, v52, v53")
a("v_add_f32 v54, v54, v55")
a("v_permlane16_swap_b32 v52, v54")
a("v_add_f32 v52, v52, v54")
a(f"ds_write_b32 v45, v52 offset:{L_RED}")
a("s_waitcnt lgkmcnt(0)")
a("s_barrier")
ts(12)
a("s_cmp_lg_u32 s3, 0")
a("s_cbranch_scc1 L_wo_end")
for w in range(8): a(f"ds_read_b64 v[{80+2*w}:{81+2*w}], v47 offset:{L_RED + 256*w}")
a("s_mov_b32 s34, -1")
a("s_mov_b32 s35, 0")
a("s_waitcnt lgkmcnt(0)")
for (x, y) in ((80, 82), (84, 86), (88, 90), (92, 94), (80, 84), (88, 92), (80, 88)):
    a(f"v_add_f32 v{x}, v{x}, v{y}")
    a(f"v_add_f32 v{x+1}, v{x+1}, v{y+1}")
a("v_cvt_pk_bf16_f32 v80, v80, v81")
a("v_min_u32 v80, -2, v80")
a("s_mov_b64 exec, s[34:35]")
a(f"global_store_dword v46, v80, {WS} sc1")
a("s_mov_b64 exec, -1")
ts(13)
a("L_wo_end:")
end_wave()

a("L_stage_ffn:")
a("s_mul_i32 s57, s4, 7")
a("s_add_u32 s57, s57, s39")
a("s_sub_u32 s57, s57, 7")
a("s_cmp_eq_u32 s3, 7")
a("s_cbranch_scc1 L_final")
a("s_lshl_b32 s7, s3, 10")
a(f"s_add_u32 s7, s7, {RDY}")
a("v_lshl_add_u32 v6, v4, 7, s7")
a("s_lshl_b32 s51, s3, 7")
a("v_lshl_add_u32 v5, v2, 1, s51")
a(f"global_load_ushort v40, v5, {X}")
a("v_lshrrev_b32 v59, 4, v1")
a("v_and_b32 v60, 15, v1")
a("v_lshl_add_u32 v45, v59, 3, v4")
a("s_lshl_b32 s52, s57, 6")
a("v_lshl_add_u32 v5, v45, 1, s52")
a(f"global_load_ushort v42, v5, {B1}")
poll("tg", [f"global_load_dword v5, v6, {WS} sc1"], [chk_tag([5], None)])
a("v_lshrrev_b32 v43, 2, v1")
a("v_and_b32 v44, 3, v1")
a("v_mov_b32 v61, 0")
W2G = int(opts.get("w2g", 0xF0))
if W2G: lds_flag_wait("f2", W2G, 4, [], 4, "v61", 112)
a(f"s_mul_i32 s7, s57, {32*896}")
a("s_lshl_b32 s51, s3, 7")
a("s_add_u32 s7, s7, s51")
a("v_mul_u32_u24 v6, 896, v3")
a("v_lshl_add_u32 v6, v4, 4, v6")
a("v_add_u32 v5, s7, v6")
for i in range(4):
    a(f"global_load_dwordx4 v[{24+4*i}:{27+4*i}], v5, {W2}{NTW}")
    if i < 3: a(f"v_add_u32 v5, {8*896}, v5")
ts(7)
lds_flag_wait("fg", 0xC0, 4, [], 4, "v61", 112)
ts(8)
a(f"s_mul_i32 s7, s3, {64*3584}")
a("s_lshl_b32 s52, s57, 6")
a("s_add_u32 s7, s7, s52")
a("v_mul_u32_u24 v5, 3584, v43")
a("v_lshl_add_u32 v5, v44, 4, v5")
a("v_add_u32 v5, s7, v5")
for i in range(4):
    a(f"global_load_dwordx4 v[{8+4*i}:{11+4*i}], v5, {W1}{NTW}")
    if i < 3: a(f"v_add_u32 v5, {16*3584}, v5")
a(f"s_add_u32 s51, s51, {L_W2}")
a("v_add_u32 v41, s51, v6")
a("s_lshl_b32 s7, s3, 12")
a(f"s_add_u32 s7, s7, {L_W}")
a("v_lshl_add_u32 v47, v1, 4, s7")
a("v_bfe_u32 v5, v1, 2, 2")
a("v_lshl_add_u32 v5, v59, 3, v5")
a("v_lshlrev_b32 v48, 6, v5")
a("v_lshl_add_u32 v48, v44, 3, v48")
a("v_add_u32 v48, s7, v48")
a("v_mul_u32_u24 v49, 896, v5")
a("v_lshl_add_u32 v49, v44, 3, v49")
a("s_lshl_b32 s7, s3, 8")
a(f"s_add_u32 s7, s7, {L_W2}")
a("v_add_u32 v49, s7, v49")
a("s_lshl_b32 s7, s3, 10")
a(f"s_add_u32 s7, s7, {YP}")
a("v_lshl_add_u32 v46, v1, 4, s7")
a("s_lshl_b32 s7, s3, 7")
a("v_lshl_add_u32 v50, v2, 1, s7")
a("v_lshl_add_u32 v51, v59, 4, s7")
a("s_lshl_b32 s7, s3, 2")
a("v_lshl_add_u32 v54, v60, 5, s7")
a("v_lshlrev_b32 v55, 5, v45")
a("s_mul_i32 s7, s57, 896")
a("s_lshl_b32 s51, s3, 8")
a("s_add_u32 s7, s7, s51")
a(f"s_add_u32 s7, s7, {ZP}")
a("v_lshl_add_u32 v62, v1, 1, s7")
a("s_mov_b32 s58, 0x55555555")
a("s_mov_b32 s59, 0x55555555")
a("s_lshl_b32 s7, s3, 3")
a("v_mov_b32 v63, s7")
a("v_mov_b32 v61, 0")
for r in range(4): a(f"v_mov_b32 v{96+r}, 0x3f803f80")
for i in range(4):
    a(f"s_waitcnt vmcnt({7-i})")
    a(f"ds_write_b128 v41, v[{24+4*i}:{27+4*i}] offset:{i*8*896}")
for i in range(4):
    a(f"s_waitcnt vmcnt({3-i})")
    a(f"ds_write_b128 v47, v[{8+4*i}:{11+4*i}] offset:{i*1024}")
for sg in range(2):
    for t in range(2):
        r = 64 + (sg*2 + t)*4
        a(f"ds_read_b64_tr_b16 v[{r}:{r+1}], v48 offset:{sg*2048 + t*32}")
        a(f"ds_read_b64_tr_b16 v[{r+2}:{r+3}], v48 offset:{sg*2048 + t*32 + 256}")
a("s_waitcnt lgkmcnt(0)")
for t in range(2): a(f"v_mfma_f32_16x16x32_bf16 v[{100+4*t}:{103+4*t}], v[96:99], v[{64+4*t}:{67+4*t}], 0")
for t in range(2): a(f"v_mfma_f32_16x16x32_bf16 v[{100+4*t}:{103+4*t}], v[96:99], v[{72+4*t}:{75+4*t}], v[{100+4*t}:{103+4*t}]")
a(f"ds_write_b32 v54, v100 offset:{L_C}")
a(f"ds_write_b32 v54, v104 offset:{L_C+512}")
a("s_waitcnt vmcnt(0) lgkmcnt(0)")
a("s_barrier")
ts(9)
a(f"ds_read_b128 v[100:103], v55 offset:{L_C}")
a(f"ds_read_b128 v[104:107], v55 offset:{L_C+16}")
a("s_cmp_gt_u32 s3, 3")
a("s_cbranch_scc1 L_ffn_now2")
for T in range(8):
    if T == 4:
        a("s_cmp_eq_u32 s3, 3")
        a("s_cbranch_scc1 L_ffn_now2")
    r = 128 + 4*T
    a(f"ds_read_b64_tr_b16 v[{r}:{r+1}], v49 offset:{T*32}")
    a(f"ds_read_b64_tr_b16 v[{r+2}:{r+3}], v49 offset:{T*32 + 4*896}")
a("L_ffn_now2:")
a("v_lshlrev_b32 v40, 16, v40")
a("v_lshlrev_b32 v42, 16, v42")
a("s_mov_b32 s36, 0")
a("s_mov_b32 s37, 0x80000000")
a(f"v_mov_b32 v56, {f32(1.0/3)}")
a("s_waitcnt lgkmcnt(0)")
a("v_add_f32 v100, v100, v101")
a("v_add_f32 v102, v102, v103")
a("v_add_f32 v104, v104, v105")
a("v_add_f32 v100, v100, v102")
a("v_add_f32 v104, v104, v106")
a("v_add_f32 v57, v100, v104")
ts(10)
poll("yp", [f"global_load_dwordx4 v[96:99], v46, {WS} sc1"], [chk_sent4(96, "v52")])
ts(11)
for k in range(4):
    a(f"v_lshlrev_b32 v{104+2*k}, 16, v{96+k}")
    a(f"v_and_b32 v{105+2*k}, {MHI}, v{96+k}")
reduce8_hi(R(104, 8), 52)
bf16r("v52")
a("v_add_f32 v52, v52, v40")
a("v_cvt_pk_bf16_f32 v52, v52, v52")
a(f"ds_write_b16 v50, v52 offset:{L_H}")
a(f"ds_read_b128 v[96:99], v51 offset:{L_H}")
a(f"ds_read_b128 v[112:115], v51 offset:{L_H+64}")
a(f"v_and_b32 v52, {MHI}, v52")
a("v_mul_f32 v53, v52, v52")
wave_sum2("v52", "v53", None, None)
a("s_waitcnt lgkmcnt(0)")
for t in range(2): a(f"v_mfma_f32_16x16x32_bf16 v[{100+4*t}:{103+4*t}], v[96:99], v[{64+4*t}:{67+4*t}], 0")
for t in range(2): a(f"v_mfma_f32_16x16x32_bf16 v[{100+4*t}:{103+4*t}], v[112:115], v[{72+4*t}:{75+4*t}], v[{100+4*t}:{103+4*t}]")
a("s_mov_b64 exec, s[36:37]")
a(f"ds_write_b64 v63, v[52:53] offset:{L_ST}")
a("s_mov_b64 exec, -1")
a(f"ds_write_b32 v54, v100 offset:{L_Z}")
a(f"ds_write_b32 v54, v104 offset:{L_Z+512}")
a("s_waitcnt lgkmcnt(0)")
a("s_barrier")
ts(12)
a("s_cmp_gt_u32 s3, 3")
a("s_cbranch_scc1 L_wo_end")
a(f"ds_read_b128 v[108:111], v61 offset:{L_ST}")
a(f"ds_read_b128 v[112:115], v61 offset:{L_ST+16}")
a(f"ds_read_b128 v[116:119], v61 offset:{L_ST+32}")
a(f"ds_read_b64 v[120:121], v61 offset:{L_ST+48}")
a(f"ds_read_b128 v[100:103], v55 offset:{L_Z}")
a(f"ds_read_b128 v[104:107], v55 offset:{L_Z+16}")
a(f"s_mov_b32 s7, {f32(-LOG2E)}")
a("s_waitcnt lgkmcnt(0)" if DEBUG else "s_waitcnt lgkmcnt(2)")
for (x, y) in ((108, 110), (112, 114), (116, 118), (108, 112), (116, 120), (108, 116)):
    a(f"v_add_f32 v{x}, v{x}, v{y}")
    a(f"v_add_f32 v{x+1}, v{x+1}, v{y+1}")
ln_finish("v108", "v109", "v52", "v53", "v58")
a("s_waitcnt lgkmcnt(0)")
a("v_add_f32 v100, v100, v101")
a("v_add_f32 v102, v102, v103")
a("v_add_f32 v104, v104, v105")
a("v_add_f32 v100, v100, v102")
a("v_add_f32 v104, v104, v106")
a("v_add_f32 v100, v100, v104")
a("v_fma_f32 v100, -v52, v57, v100")
a("v_mul_f32 v100, v100, v53")
bf16r("v100")
a("v_add_f32 v100, v100, v42")
bf16r("v100")
a("v_mul_f32 v101, s7, abs(v100)")
a("v_exp_f32 v101, v101")
a("v_max_f32 v107, 0, v100")
bf16r("v101")
a("v_add_f32 v102, 1.0, v101")
a("v_log_f32 v102, v102")
a("v_fma_f32 v103, v101, v56, -0.5")
a("v_fma_f32 v103, v101, v103, 1.0")
a("v_mul_f32 v103, v101, v103")
a(f"v_cmp_gt_f32 vcc, {f32(2.0**-6)}, v101")
a(f"v_mul_f32 v102, {f32(math.log(2))}, v102")
a("v_cndmask_b32 v102, v102, v103, vcc")
bf16r("v102")
a("v_add_f32 v102, v102, v107")
bf16r("v102")
a(f"v_mul_f32 v103, {f32(-2*LOG2E)}, v102")
a("v_exp_f32 v103, v103")
a("v_mul_f32 v105, v102, v102")
a(f"v_cmp_gt_f32 vcc, {f32(2.0**-5)}, v102")
a("v_add_f32 v106, 1.0, v103")
a("v_sub_f32 v103, 1.0, v103")
a("v_rcp_f32 v106, v106")
a("v_mul_f32 v105, v105, v56")
a("v_fma_f32 v105, -v105, v102, v102")
a("v_mul_f32 v103, v103, v106")
a("v_cndmask_b32 v103, v103, v105, vcc")
bf16r("v103")
a("v_mul_f32 v100, v100, v103")
a(f"v_mov_b32_dpp v101, v100 quad_perm:[0,0,2,2] {DPPM}")
a(f"v_mov_b32_dpp v102, v100 quad_perm:[1,1,3,3] {DPPM}")
a("v_cvt_pk_bf16_f32 v101, v101, v102")
a(f"v_mov_b32_dpp v102, v101 row_half_mirror {DPPM}")
a("v_mov_b32_dpp v96, v101 quad_perm:[0,0,0,0] row_mask:0xf bank_mask:0x5")
a("v_mov_b32_dpp v97, v101 quad_perm:[2,2,2,2] row_mask:0xf bank_mask:0x5")
a("v_mov_b32_dpp v98, v101 quad_perm:[0,0,0,0] row_mask:0xf bank_mask:0xa")
a("v_mov_b32_dpp v99, v101 quad_perm:[2,2,2,2] row_mask:0xf bank_mask:0xa")
a("v_mov_b32_dpp v98, v102 quad_perm:[2,2,2,2] row_mask:0xf bank_mask:0x5")
a("v_mov_b32_dpp v99, v102 quad_perm:[0,0,0,0] row_mask:0xf bank_mask:0x5")
a("v_mov_b32_dpp v96, v102 quad_perm:[2,2,2,2] row_mask:0xf bank_mask:0xa")
a("v_mov_b32_dpp v97, v102 quad_perm:[0,0,0,0] row_mask:0xf bank_mask:0xa")
def ffn2(q):
    for T in range(4*q, 4*q+4):
        a(f"v_mfma_f32_16x16x32_bf16 v[{64+4*T}:{67+4*T}], v[96:99], v[{128+4*T}:{131+4*T}], 0")
def ffn2_out(q):
    for rho in range(4):
        a(f"v_mov_b32_dpp v{104+q}, v{64+4*(4*q+rho)} quad_perm:[0,1,2,3] row_mask:{hex(1<<rho)} bank_mask:0xf")
    a(f"v_mov_b32_dpp v{106+q}, v{104+q} quad_perm:[1,1,3,3] {DPPM}")
    a(f"v_cvt_pk_bf16_f32 v{104+q}, v{104+q}, v{106+q}")
    a(f"v_min_u32 v{104+q}, -2, v{104+q}")
    a("s_mov_b64 exec, s[58:59]")
    a(f"global_store_dword v62, v{104+q}, {WS} offset:{128*q} sc1")
    a("s_mov_b64 exec, -1")
ffn2(0)
a("s_cmp_eq_u32 s3, 3")
a("s_cbranch_scc1 L_ffn_last")
ffn2(1)
ffn2_out(0)
ffn2_out(1)
ts(13)
if int(opts.get("fdl", 4)):
    a("s_waitcnt vmcnt(0)")
    a("v_mov_b32 v5, 1")
    a(f"ds_write_b32 v63, v5 offset:{L_FL+0xD0}")
end_wave()
a("L_ffn_last:")
a("s_nop 7")
ffn2_out(0)
ts(13)
if int(opts.get("fdl", 4)):
    a("s_waitcnt vmcnt(0)")
    a("v_mov_b32 v5, 1")
    a(f"ds_write_b32 v63, v5 offset:{L_FL+0xD0}")
end_wave()

pad("fin")
a("L_final:")
a("v_min_u32 v5, 55, v1")
a("v_mul_u32_u24 v5, 896, v5")
a("s_lshl_b32 s7, s57, 4")
a(f"s_add_u32 s7, s7, {ZP}")
a("v_add_u32 v5, s7, v5")
a("v_and_b32 v6, 7, v2")
a("s_lshl_b32 s7, s57, 3")
a("v_add_u32 v6, s7, v6")
a("v_lshlrev_b32 v6, 1, v6")
a("s_mov_b32 s36, 0x01010101")
a("s_mov_b32 s37, 0x01010101")
a("v_min_u32 v7, 55, v1")
a("v_lshlrev_b32 v7, 7, v7")
a(f"v_add_u32 v7, {RDY + 7*1024}, v7")
poll("rd", [f"global_load_dword v8, v7, {WS} sc1"], [chk_tag([8], None)])
a("s_barrier")
a("s_barrier")
a(f"ds_read_u16 v50, v6 offset:{L_H}")
ts(12)
if int(opts.get("fdl", 4)):
    a("v_mov_b32 v9, 0")
    lds_flag_wait("fd", 0xD0, 8, [], int(opts.get("fdl", 4)), "v9", 56, ge=True)
poll("fin", [f"global_load_dwordx4 v[96:99], v5, {WS} sc1"], [chk_sent4(96, "v48")])
ts(13)
a("v_cmp_gt_u32 vcc, 56, v1")
a("s_waitcnt lgkmcnt(0)")
a("v_lshlrev_b32 v50, 16, v50")
for k in range(4): a(f"v_cndmask_b32 v{96+k}, 0, v{96+k}, vcc")
for k in range(4):
    a(f"v_lshlrev_b32 v{100+2*k}, 16, v{96+k}")
    a(f"v_and_b32 v{101+2*k}, {MHI}, v{96+k}")
reduce8_hi(R(100, 8), 52)
xlane("v_add_f32", "v52", None, ["q1", "q2", "hm"])
bf16r("v52")
a("v_add_f32 v52, v52, v50")
a("v_cvt_pk_bf16_f32 v52, v52, v52")
a("s_mov_b64 exec, s[36:37]")
a(f"global_store_short v6, v52, {OUT}")
a("s_cmp_lg_u32 s57, 0")
a("s_cbranch_scc1 L_fin_end")
a("s_mov_b64 exec, 1")
a("v_mov_b32 v5, 0")
a("v_mov_b32 v6, s6")
a(f"global_store_dword v5, v6, {WS} sc1")
a("L_fin_end:")
a("s_mov_b64 exec, -1")
ts(14)
end_wave()

if DEBUG:
    a("L_dump:")
    a("s_waitcnt lgkmcnt(0)")
    a("s_mov_b64 exec, 1")
    if DIAG:
        a(f"s_cmp_eq_u32 s2, {DIAG[0]}")
        a("s_cbranch_scc0 L_end")
        a(f"s_cmp_eq_u32 s3, {DIAG[1]}")
        a("s_cbranch_scc0 L_end")
        a(f"s_sub_u32 s7, s{64+2*DIAG[2]}, s64")
        a(f"s_mul_i32 s7, s7, {DIAG[3]}")
        a("s_min_u32 s7, s7, 20000")
        a("s_add_u32 s7, s7, 3000")
        a("s_mov_b32 s38, 100000")
        a("L_diag:")
        a("s_memrealtime s[60:61]")
        a("s_waitcnt lgkmcnt(0)")
        a("s_sub_u32 s51, s60, s64")
        a("s_cmp_ge_u32 s51, s7")
        a("s_cbranch_scc1 L_end")
        a("s_sub_u32 s38, s38, 1")
        a("s_cmp_eq_u32 s38, 0")
        a("s_cbranch_scc0 L_diag")
    elif HDBG:
        a("s_cmp_lt_u32 s2, 8")
        a("s_cselect_b32 s7, 0, 1")
        a("s_or_b32 s7, s7, s3")
        a("s_cmp_eq_u32 s7, 0")
        a("s_cbranch_scc0 L_dump_k")
        a("s_lshl_b32 s7, s2, 2")
        a("v_mov_b32 v5, s7")
        a("v_mov_b32 v6, s64")
        a(f"global_store_dword v5, v6, {DBG}")
        a("s_endpgm")
        a("L_dump_k:")
        a(f"s_cmp_eq_u32 s5, {15 if IL else 23}")
        a("s_cbranch_scc0 L_end")
        a("s_cmp_eq_u32 s3, 7")
        a("s_cbranch_scc0 L_end")
        a("s_lshl_b32 s7, s4, 2")
        a("v_mov_b32 v5, s7")
        a(f"v_mov_b32 v6, s{64+30}")
        a(f"global_store_dword v5, v6, {DBG} offset:32")
    else:
        a("s_lshl_b32 s7, s2, 4")
        a("s_add_u32 s7, s7, s3")
        a("s_lshl_b32 s7, s7, 6")
        a(f"s_add_u32 s7, s7, {TS}")
        a("v_mov_b32 v5, s7")
        for k in ((0, GSTAT[0]) if GSTAT else range(16)):
            a(f"v_mov_b32 v6, s{64+2*k}")
            a(f"global_store_dword v5, v6, {WS} offset:{4*k}{' sc1' if GSTAT else ''}")
        if GSTAT:
            a("s_cmp_eq_u32 s2, 248")
            a("s_cbranch_scc0 L_end")
            a("s_cmp_eq_u32 s3, 5")
            a("s_cbranch_scc0 L_end")
            a("s_mov_b64 exec, -1")
            a("s_mov_b32 s38, 100000")
            a("L_g1:")
            a("s_memrealtime s[60:61]")
            a("s_waitcnt lgkmcnt(0)")
            a("s_sub_u32 s51, s60, s64")
            a("s_cmp_ge_u32 s51, 2000")
            a("s_cbranch_scc1 L_g2")
            a("s_sub_u32 s38, s38, 1")
            a("s_cmp_eq_u32 s38, 0")
            a("s_cbranch_scc0 L_g1")
            a("L_g2:")
            a("v_mov_b32 v20, 0x7fffffff")
            a("v_mov_b32 v21, 0x80000000")
            a("v_and_b32 v22, 15, v1")
            a(f"v_cmp_le_u32 vcc, {GSTAT[1]}, v22")
            a(f"v_cmp_gt_u32 s[46:47], {GSTAT[2]}, v22")
            a("s_and_b64 s[46:47], s[46:47], vcc")
            a("v_cmp_gt_u32 s[48:49], 12, v22")
            a("s_mov_b32 s52, 0")
            a("L_g3:")
            a("s_lshl_b32 s7, s52, 12")
            a(f"s_add_u32 s7, s7, {TS}")
            a("v_lshl_add_u32 v23, v1, 6, s7")
            a(f"global_load_dword v24, v23, {WS} sc1")
            a(f"global_load_dword v25, v23, {WS} offset:{4*GSTAT[0]} sc1")
            a("s_waitcnt vmcnt(0)")
            a("v_subrev_u32 v24, s64, v24")
            a("v_cmp_eq_u32 vcc, 0, v25")
            a("v_subrev_u32 v25, s64, v25")
            a("v_cndmask_b32 v25, v25, v21, vcc")
            a("v_cndmask_b32 v25, v21, v25, s[46:47]")
            a("v_cndmask_b32 v24, v20, v24, s[48:49]")
            if GSTAT[3] != 2:
                a("s_bitcmp1_b32 s52, 1")
                a(f"s_cbranch_scc{1 - GSTAT[3]} L_g4")
            a("v_max_i32 v21, v21, v25")
            a("L_g4:")
            a("v_min_i32 v20, v20, v24")
            a("s_add_u32 s52, s52, 1")
            a("s_cmp_lt_u32 s52, 64")
            a("s_cbranch_scc1 L_g3")
            xlane("v_max_i32", "v21", "v26", ["q1", "q2", "hm", "r8", "p16", "p32"])
            xlane("v_min_i32", "v20", "v26", ["q1", "q2", "hm", "r8", "p16", "p32"])
            a("v_sub_u32 v21, v21, v20")
            a("v_readfirstlane_b32 s7, v21")
            a("v_readfirstlane_b32 s53, v20")
            a("s_mul_i32 s7, s7, 4")
            a("s_min_u32 s7, s7, 20000")
            a("s_add_u32 s7, s7, 6000")
            a("s_add_u32 s7, s7, s53")
            a("s_mov_b32 s38, 100000")
            a("L_g5:")
            a("s_memrealtime s[60:61]")
            a("s_waitcnt lgkmcnt(0)")
            a("s_sub_u32 s51, s60, s64")
            a("s_cmp_ge_u32 s51, s7")
            a("s_cbranch_scc1 L_end")
            a("s_sub_u32 s38, s38, 1")
            a("s_cmp_eq_u32 s38, 0")
            a("s_cbranch_scc0 L_g5")
a("L_end:")
a("s_endpgm")
a("L_codeend:")
a.raw(f'''.section .rodata,"a"
.p2align 6
.amdhsa_kernel {NAME}_kernel
  .amdhsa_next_free_vgpr 168
  .amdhsa_next_free_sgpr 96
  .amdhsa_accum_offset 168
  .amdhsa_group_segment_fixed_size 0
  .amdhsa_kernarg_size 96
  .amdhsa_user_sgpr_count 2
  .amdhsa_user_sgpr_kernarg_segment_ptr 1
  .amdhsa_system_sgpr_workgroup_id_x 1
  .amdhsa_float_denorm_mode_32 3
.end_amdhsa_kernel''')
open(OUTP, "w").write(a.text())
print("nops inserted:", a.nops, "lines:", len(a.lines))
```

```python
import sys, struct, math
sys.path.insert(0, "gen")
from asmlib import Asm

NAME = "sequential_preLN__sliding_block_cached__dense_activation_mish__decode"
opts = dict(x.split("=") for x in sys.argv[2:])
OUTP = sys.argv[1]
DEBUG = int(opts.get("dbg", 0))
HDBG = int(opts.get("hdbg", 0))
if HDBG: DEBUG = 1
NT = " nt" if int(opts.get("nt", 0)) else ""
NTW = " nt" if int(opts.get("ntw", 0)) else ""
NTK = " nt" if int(opts.get("ntk", 0)) else ""
NTQ = " nt" if int(opts.get("ntq", 0)) else ""
NTO = " nt" if int(opts.get("nto", 0)) else ""
NTV = " nt" if int(opts.get("ntv", 0)) else ""
KD = int(opts.get("kd", 4))
NTHR = int(opts.get("nthr", 12))
SLEEP = int(opts.get("sleep", 0))
KD0 = int(opts.get("kd0", 2))
RGATE = int(opts.get("rgate", 1))
QWAIT = int(opts.get("qwait", 1))
SPIN = 100000

def f32(x): return "0x%08x" % struct.unpack("<I", struct.pack("<f", x))[0]
LOG2E = math.log2(math.e)

RDY = 0x50000; RDA = 0x58000; QG = 0x10000; LSE = 0x40000; OP = 0x80000; YP = 0xC0000; ZP = 0xD0000; TS = 0x400000; FO = 0x100000
L_S1 = 0x000; L_FL = 0x800; L_Q = 0x900; L_SC = 0xD00; L_RED = 0x1100; L_ST = 0x1900; L_H = 0x1A00; L_Z = 0x2100; L_O = 0x2500
L_P = 0x2D00; L_C = 0x2F00
L_W = 0x4000; L_W2 = 0xB000
LDS_BYTES = 0x14000
IL = int(opts.get("il", 1))
FGATE = int(opts.get("fgate", 100))
X, K, V, WQ, WO, W1, B1, W2, OUT, DBG, WS = "s[8:9]", "s[10:11]", "s[12:13]", "s[14:15]", "s[16:17]", "s[20:21]", "s[22:23]", "s[24:25]", "s[26:27]", "s[28:29]", "s[30:31]"
SEL_LO, SEL_HI, MHI = "s40", "s41", "s42"
R = lambda a_, n: list(range(a_, a_ + n))

a = Asm()
uid = [0]
def lab(p):
    uid[0] += 1
    return f"L_{p}_{uid[0]}"

DIAG = [int(x) for x in opts["diag"].split(",")] if "diag" in opts else None
if DIAG: DEBUG = 1
GSTAT = [int(x) for x in opts["gstat"].split(",")] if "gstat" in opts else None
if GSTAT: DEBUG = 1
def ts(k):
    if DIAG and k not in (0, DIAG[2]): return
    if GSTAT and k not in (0, GSTAT[0]): return
    if HDBG and k not in (0, 15): return
    if DEBUG: a(f"s_memrealtime s[{64+2*k}:{65+2*k}]")

def end_wave():
    if DEBUG:
        ts(15)
        a("s_branch L_dump")
    else:
        a("s_endpgm")
    a.flush_hist()

def sleep():
    if SLEEP: a(f"s_sleep {SLEEP}")

DPPM = "row_mask:0xf bank_mask:0xf"
def wave_sum2(x, y, sx, sy):
    for m in ("quad_perm:[1,0,3,2]", "quad_perm:[2,3,0,1]", "row_half_mirror", "row_mirror"):
        a(f"v_add_f32_dpp {x}, {x}, {x} {m} {DPPM}")
        a(f"v_add_f32_dpp {y}, {y}, {y} {m} {DPPM}")
    a(f"v_add_f32_dpp {x}, {x}, {x} row_bcast:15 row_mask:0xa bank_mask:0xf")
    a(f"v_add_f32_dpp {y}, {y}, {y} row_bcast:15 row_mask:0xa bank_mask:0xf")
    a(f"v_add_f32_dpp {x}, {x}, {x} row_bcast:31 row_mask:0xc bank_mask:0xf")
    a(f"v_add_f32_dpp {y}, {y}, {y} row_bcast:31 row_mask:0xc bank_mask:0xf")
    if sx:
        a(f"v_readlane_b32 {sx}, {x}, 63")
        a(f"v_readlane_b32 {sy}, {y}, 63")

def bf16r(x):
    a(f"v_cvt_pk_bf16_f32 {x}, {x}, {x}")
    a(f"v_and_b32 {x}, {MHI}, {x}")

def ln_finish(vsum, vsq, vm, vr, t):
    a(f"v_mov_b32 {t}, {f32(1.0/448)}")
    a(f"v_mul_f32 {vm}, {vsum}, {t}")
    a(f"v_mul_f32 {vr}, {vsq}, {t}")
    a(f"v_fma_f32 {vr}, -{vm}, {vm}, {vr}")
    a(f"v_max_f32 {vr}, 0, {vr}")
    a(f"v_cvt_pk_bf16_f32 {t}, {vm}, {vr}")
    a(f"v_lshlrev_b32 {vm}, 16, {t}")
    a(f"v_and_b32 {vr}, {MHI}, {t}")
    a(f"v_add_f32 {vr}, {f32(1e-5)}, {vr}")
    bf16r(vr)
    a(f"v_sqrt_f32 {vr}, {vr}")
    bf16r(vr)
    a(f"v_rcp_f32 {vr}, {vr}")

def ln_apply(lo, hi, vm, vr, dst):
    a(f"v_sub_f32 {lo}, {lo}, {vm}")
    a(f"v_sub_f32 {hi}, {hi}, {vm}")
    a(f"v_cvt_pk_bf16_f32 {dst}, {lo}, {hi}")
    a(f"v_lshlrev_b32 {lo}, 16, {dst}")
    a(f"v_and_b32 {hi}, {MHI}, {dst}")
    a(f"v_mul_f32 {lo}, {lo}, {vr}")
    a(f"v_mul_f32 {hi}, {hi}, {vr}")
    a(f"v_cvt_pk_bf16_f32 {dst}, {lo}, {hi}")

def perm_pair(A, B, outs):
    for k in range(4):
        a(f"v_perm_b32 v{outs[2*k]}, v{B+k}, v{A+k}, {SEL_LO}")
        a(f"v_perm_b32 v{outs[2*k+1]}, v{B+k}, v{A+k}, {SEL_HI}")

def reduce8_hi(acc, dst, full_row=False):
    for k in range(4):
        a(f"v_permlane32_swap_b32 v{acc[2*k]}, v{acc[2*k+1]}")
    for k in range(4):
        a(f"v_add_f32 v{acc[2*k]}, v{acc[2*k]}, v{acc[2*k+1]}")
    a(f"v_permlane16_swap_b32 v{acc[0]}, v{acc[2]}")
    a(f"v_permlane16_swap_b32 v{acc[4]}, v{acc[6]}")
    a(f"v_add_f32 v{acc[0]}, v{acc[0]}, v{acc[2]}")
    a(f"v_add_f32 v{acc[4]}, v{acc[4]}, v{acc[6]}")
    if full_row:
        for m in ("row_ror:4", "row_ror:8"):
            a(f"v_add_f32_dpp v{acc[0]}, v{acc[0]}, v{acc[0]} {m} {DPPM}")
            a(f"v_add_f32_dpp v{acc[4]}, v{acc[4]}, v{acc[4]} {m} {DPPM}")
    else:
        a(f"v_add_f32_dpp v{dst}, v{acc[0]}, v{acc[0]} row_ror:8 row_mask:0xf bank_mask:0x3")
        a(f"v_add_f32_dpp v{dst}, v{acc[4]}, v{acc[4]} row_ror:8 row_mask:0xf bank_mask:0xc")

def dots16(P0, P1, x0, x1, acc):
    for j in range(8):
        a(f"v_dot2_f32_bf16 v{acc[j]}, v{P0[j]}, {x0}, 0")
    for j in range(8):
        a(f"v_dot2_f32_bf16 v{acc[j]}, v{P1[j]}, {x1}, v{acc[j]}")

def spin_head(p):
    lp, dn = lab(p), lab(p + "d")
    a(f"s_mov_b32 s38, {SPIN}")
    a(f"{lp}:")
    return lp, dn

def spin_tail(h, slp=False):
    lp, dn = h
    a(f"s_cbranch_scc1 {dn}")
    if slp: sleep()
    a("s_sub_u32 s38, s38, 1")
    a("s_cmp_eq_u32 s38, 0")
    a(f"s_cbranch_scc0 {lp}")
    a(f"{dn}:")

def xlane(op, x, t, steps):
    for s in steps:
        if s in ("p16", "p32"):
            a(f"v_mov_b32 {t}, {x}")
            a(f"v_permlane{s[1:]}_swap_b32 {x}, {t}")
            a(f"{op} {x}, {x}, {t}")
        else:
            m = {"q3": "quad_perm:[3,2,1,0]", "q1": "quad_perm:[1,0,3,2]", "q2": "quad_perm:[2,3,0,1]", "hm": "row_half_mirror",
                 "r4": "row_ror:4", "r8": "row_ror:8", "rm": "row_mirror"}[s]
            a(f"{op}_dpp {x}, {x}, {x} {m} {DPPM}")

def poll(name, loads, checks, pre=None):
    n = len(loads)
    P = [f"s[{46+2*i}:{47+2*i}]" for i in range(n)]
    for p in P: a(f"s_mov_b64 {p}, -1")
    h = spin_head(name)
    if pre: a(pre)
    for i in range(n):
        sk = lab(name + "s")
        a(f"s_mov_b64 exec, {P[i]}")
        a(f"s_cbranch_execz {sk}")
        a(loads[i])
        a(f"{sk}:")
    a("s_mov_b64 exec, -1")
    a("s_waitcnt vmcnt(0)")
    for i in range(n): checks[i](P[i])
    if n == 1: a(f"s_cmp_eq_u64 {P[0]}, 0")
    else:
        a(f"s_or_b64 s[34:35], {P[0]}, {P[1]}")
        for p in P[2:]: a(f"s_or_b64 s[34:35], s[34:35], {p}")
        a("s_cmp_eq_u64 s[34:35], 0")
    spin_tail(h, True)

def poll2(name, loads, checks, nhook, hook):
    n = len(loads)
    P = [f"s[{76+2*i}:{77+2*i}]" if not DEBUG else f"s[{46+2*i}:{47+2*i}]" for i in range(n)]
    P = [f"s[{46+2*i}:{47+2*i}]" for i in range(n)]
    lp, dn, chk, nh = lab(name), lab(name + "d"), lab(name + "c"), lab(name + "h")
    a(f"s_mov_b32 s38, {SPIN}")
    a("s_mov_b32 s60, 0")
    a(f"s_branch {chk}")
    a(f"{lp}:")
    for i in range(n):
        sk = lab(name + "s")
        a(f"s_mov_b64 exec, {P[i]}")
        a(f"s_cbranch_execz {sk}")
        a(loads[i])
        a(f"{sk}:")
    a("s_mov_b64 exec, -1")
    a(f"{chk}:")
    a("s_waitcnt vmcnt(0)")
    for i in range(nhook, n): checks[i](P[i])
    a("s_cmp_eq_u32 s60, 1")
    a(f"s_cbranch_scc1 {nh}")
    for i in range(nhook): checks[i](P[i])
    a(f"s_or_b64 s[34:35], {P[0]}, {P[1]}")
    for p in P[2:nhook]: a(f"s_or_b64 s[34:35], s[34:35], {p}")
    a("s_cmp_eq_u64 s[34:35], 0")
    a(f"s_cbranch_scc0 L_{name}_again")
    hook()
    a("s_mov_b32 s60, 1")
    a(f"{nh}:")
    a(f"s_or_b64 s[34:35], {P[nhook]}, {P[nhook+1]}")
    a("s_cmp_eq_u64 s[34:35], 0")
    a(f"s_cbranch_scc1 {dn}")
    a(f"L_{name}_again:")
    a("s_sub_u32 s38, s38, 1")
    a("s_cmp_eq_u32 s38, 0")
    a(f"s_cbranch_scc0 {lp}")
    a(f"{dn}:")

def chk_sent4(r, t):
    def f(sp):
        a(f"v_max3_u32 {t}, v{r}, v{r+1}, v{r+2}")
        a(f"v_max_u32 {t}, {t}, v{r+3}")
        a(f"v_cmp_eq_u32 {sp}, -1, {t}")
    return f
def chk_tag(regs, t):
    def f(sp):
        if len(regs) == 1: a(f"v_cmp_ne_u32 {sp}, s6, v{regs[0]}")
        else:
            a(f"v_xor_b32 {t}, v{regs[0]}, v{regs[1]}")
            a(f"v_cmp_ne_u32 {sp}, s6, v{regs[0]}")
            a(f"v_cmp_ne_u32 vcc, 0, {t}")
            a(f"s_or_b64 {sp}, {sp}, vcc")
    return f

def lds_flag_wait(name, off, nwords, extra_reads, expect, zero, tmpbase, ge=False):
    h = spin_head(name)
    for q in range(nwords // 4):
        a(f"ds_read_b128 v[{tmpbase+4*q}:{tmpbase+4*q+3}], {zero} offset:{L_FL+off+16*q}")
    for x in extra_reads: a(x)
    a("s_waitcnt lgkmcnt(0)")
    t = tmpbase
    a(f"v_add3_u32 v{t}, v{t}, v{t+1}, v{t+2}")
    if nwords == 4: a(f"v_add_u32 v{t}, v{t}, v{t+3}")
    else:
        a(f"v_add3_u32 v{t+4}, v{t+4}, v{t+5}, v{t+6}")
        a(f"v_add3_u32 v{t}, v{t}, v{t+3}, v{t+7}")
        a(f"v_add_u32 v{t}, v{t}, v{t+4}")
    a(f"v_cmp_{'gt' if ge else 'ne'}_u32 vcc, {expect}, v{t}")
    a("s_cmp_eq_u64 vcc, 0")
    spin_tail(h)

hdr = open(f"cdna_kernels/{NAME}.s.ref").read().split("; Override launch")[0]
a.raw(hdr.rstrip())
a.raw(f"; @launch grid=(256,1,1) block=(768,1,1) lds={LDS_BYTES}")
a.raw('.amdgcn_target "amdgcn-amd-amdhsa--gfx950"')
a.raw(".text")
a.raw(f".globl {NAME}_kernel\n.p2align 8\n.type {NAME}_kernel,@function\n{NAME}_kernel:")


WARM = int(opts.get("warm", 0))
FAST = int(opts.get("fast", 1)); FASTQ = int(opts.get("fastq", 1))
pads = []
def pad(name, over=False):
    if not WARM: return
    if over: a(f"s_branch L_padskip_{name}")
    a(f"L_pad_{name}:")
    a("s_setpc_b64 s[62:63]")
    if over: a(f"L_padskip_{name}:")
    pads.append(name)
def touch(*names):
    if not WARM: return
    for n in names: a(f"s_call_b64 s[62:63], L_pad_{n}")

N0 = int(opts.get("n0", 7)); S1G = int(opts.get("s1g", 2)); AD = int(opts.get("ad", 16)); VD = int(opts.get("vd", 16)); VN = int(opts.get("vn", 0)); KVW = int(opts.get("kvw", 4))
a("s_cmp_ge_u32 s2, 256")
a("s_cbranch_scc1 L_end")
a("s_load_dwordx16 s[8:23], s[0:1], 0")
a("s_load_dwordx8 s[24:31], s[0:1], 64")
ts(0)
a("v_lshrrev_b32 v2, 6, v0")
a("v_and_b32 v1, 63, v0")
a("s_and_b32 s4, s2, 7")
a("s_lshr_b32 s5, s2, 3")
a("v_readfirstlane_b32 s3, v2")
a("v_lshrrev_b32 v3, 3, v1")
a("v_and_b32 v4, 7, v1")
a("v_mov_b32 v5, 0")
a("v_lshlrev_b32 v6, 2, v1")
a(f"ds_write_b32 v6, v5 offset:{L_FL}")
a("s_lshr_b32 s39, s5, 1")
a("s_and_b32 s33, s5, 1")
a("s_cmp_ge_u32 s3, 4")
a("s_cbranch_scc1 L_hi")
a("s_lshr_b32 s44, s5, 3")
a("s_and_b32 s45, s5, 7")
a("v_min_u32 v6, 55, v1")
a("v_lshlrev_b32 v6, 4, v6")
a("s_lshl_b32 s48, s3, 5")
a("v_lshl_add_u32 v15, v3, 2, s48")
a("v_min_u32 v14, 108, v15")
a("s_mul_i32 s47, s44, 112")
a("v_add_u32 v14, s47, v14")
a("v_lshlrev_b32 v12, 1, v14")
a("s_lshl_b32 s51, s4, 10")
a("s_lshl_b32 s52, s45, 7")
a("s_add_u32 s51, s51, s52")
a("v_lshl_add_u32 v32, v4, 4, s51")
a("v_lshl_add_u32 v32, v14, 13, v32")
a("v_add_u32 v33, 0x2000, v32")
a("v_add_u32 v34, 0x4000, v32")
a("v_add_u32 v35, 0x6000, v32")
a("s_waitcnt lgkmcnt(0)")
a(f"global_load_dwordx4 v[36:39], v6, {X}")
a(f"global_load_dwordx2 v[12:13], v12, {X}")
for i in range(4):
    a(f"global_load_dwordx4 v[{16+4*i}:{19+4*i}], v{32+i}, {WQ}{NTQ}")
a("s_barrier")
a("s_branch L_s1")
a.flush_hist()
a("L_hi:")
N1 = int(opts.get("n1", 8)); HQ = int(opts.get("hq", 8));
a("s_lshl_b32 s43, s4, 22")
a("s_lshl_b32 s7, s39, 16")
a("s_add_u32 s43, s43, s7")
a(f"s_add_u32 s43, s43, {6144*512}")
a("s_and_b32 s44, s3, 3")
a("s_lshr_b32 s7, s3, 3")
a("s_cmp_eq_u32 s7, s33")
a("s_cbranch_scc0 L_B_hi")
a("s_lshl_b32 s47, s44, 11")
a("s_add_u32 s46, s43, s47")
a("v_lshlrev_b32 v6, 13, v3")
a("v_lshl_add_u32 v6, v4, 4, v6")
a("v_add_u32 v6, s46, v6")
KA = int(opts.get("ka", 12))
KB = 16 - KA
HI = int(opts.get("hi", 99))
a(f"s_mul_i32 s7, s33, {KA*128}")
a("v_add_u32 v7, s7, v6")
a("s_waitcnt lgkmcnt(0)")
for i in range(KA):
    if i == min(N0, KB): a("s_barrier")
    if i == KB:
        a("s_cmp_eq_u32 s33, 1")
        a("s_cbranch_scc1 L_A_k1")
    if i >= N0: a(f"s_waitcnt vmcnt({N0-1})")
    if i == HI:
        a("s_lshl_b32 s7, s44, 2")
        a("v_mov_b32 v45, s7")
        a("v_mov_b32 v46, 1")
        a(f"ds_write_b32 v45, v46 offset:{L_FL+0x80}")
    a(f"global_load_dwordx4 v[{64+4*i}:{67+4*i}], v7, {K} offset:{i*128}{NTK if i >= KB else NT}")
a("s_branch L_A_k1")
a.flush_hist()
a("L_B_hi:")
if int(opts.get("cpf", 1)):
    a("s_getpc_b64 s[36:37]")
    a("L_pc:")
    a("v_and_b32 v5, 255, v0")
    a("v_lshlrev_b32 v5, 7, v5")
    a("v_cmp_gt_u32 vcc, L_codeend-L_pc, v5")
    a("v_cndmask_b32 v5, 0, v5, vcc")
    a("global_load_dword v167, v5, s[36:37]")
if WARM:
    for u_, n_ in enumerate(("s1b", "s1c", "k1", "v2", "bh2", "h1", "wo1", "ffn1")):
        sk = lab("et")
        a(f"s_cmp_eq_u32 s3, {11-u_}")
        a(f"s_cbranch_scc0 {sk}")
        touch(n_)
        a(f"{sk}:")
a("s_waitcnt lgkmcnt(0)")
if int(opts.get("kick", 0)):
    a("s_load_dword s55, s[10:11], s43")
    a("s_load_dword s56, s[14:15], 0")
    a("s_mov_b32 s7, 3670012")
    a("s_load_dword s57, s[14:15], s7")
    a("s_mov_b32 s7, 1835008")
    a("s_load_dword s58, s[14:15], s7")
    a("s_load_dword s59, s[30:31], 128")
    a("s_load_dword s60, s[12:13], s43")
a("s_barrier")
if int(opts.get("tw", 1)):
    a("s_mul_i32 s7, s4, 458752")
    a("s_load_dword s46, s[16:17], s7")
    a("s_add_u32 s7, s7, 458748")
    a("s_load_dword s47, s[16:17], s7")
    a("s_load_dword s48, s[20:21], 0")
    a("s_mov_b32 s7, 1605628")
    a("s_load_dword s49, s[20:21], s7")
    a("s_mul_i32 s7, s4, 200704")
    a("s_load_dword s50, s[24:25], s7")
    a("s_add_u32 s7, s7, 200700")
    a("s_load_dword s51, s[24:25], s7")
    a("s_load_dword s52, s[22:23], 0")
    a("s_load_dword s53, s[26:27], 0")
    a("s_load_dword s54, s[12:13], s43")
    a("s_waitcnt lgkmcnt(0)")
a("s_cmp_eq_u32 s33, 1")
a("s_cbranch_scc0 L_A_v")
a("s_branch L_B_hi2")
a.flush_hist()
a("L_s1:")
if DEBUG:
    for k in range(1, 16): a(f"s_mov_b64 s[{64+2*k}:{65+2*k}], 0")
ts(1)
a(f"s_mov_b32 {SEL_LO}, 0x05040100")
a(f"s_mov_b32 {SEL_HI}, 0x07060302")
a(f"s_mov_b32 {MHI}, 0xffff0000")
a("v_lshlrev_b32 v2, 3, v4")
a("v_bfe_u32 v5, v1, 3, 1")
a("v_lshl_add_u32 v2, v5, 2, v2")
a("v_bfe_u32 v5, v1, 4, 1")
a("v_lshl_add_u32 v2, v5, 1, v2")
a("v_lshrrev_b32 v5, 5, v1")
a("v_add_u32 v2, v2, v5")
a("s_lshl_b32 s7, s3, 2")
a("v_mov_b32 v10, s7")
a("v_mov_b32 v11, 1")
a("v_cmp_gt_u32 vcc, 112, v15")
a("s_mov_b64 s[34:35], vcc")
a("s_cmp_lg_u32 s3, 3")
a("s_cbranch_scc1 L_s1_noep")
a(f"s_load_dword s6, {WS}, 0")
a("L_s1_noep:")
a("v_cmp_gt_u32 vcc, 56, v1")
a("s_waitcnt vmcnt(5)")
for k in range(4):
    a(f"v_lshlrev_b32 v{40+2*k}, 16, v{36+k}")
    a(f"v_and_b32 v{41+2*k}, {MHI}, v{36+k}")
a("v_add_f32 v48, v40, v41")
a("v_mul_f32 v49, v40, v40")
a("v_add_f32 v50, v42, v43")
a("v_mul_f32 v51, v42, v42")
a("v_fmac_f32 v49, v41, v41")
a("v_fmac_f32 v51, v43, v43")
a("v_add_f32 v48, v48, v44")
a("v_add_f32 v50, v50, v46")
a("v_fmac_f32 v49, v44, v44")
a("v_fmac_f32 v51, v46, v46")
a("v_add_f32 v48, v48, v45")
a("v_add_f32 v50, v50, v47")
a("v_fmac_f32 v49, v45, v45")
a("v_fmac_f32 v51, v47, v47")
a("v_add_f32 v48, v48, v50")
a("v_add_f32 v49, v49, v51")
a("v_cndmask_b32 v48, 0, v48, vcc")
a("v_cndmask_b32 v49, 0, v49, vcc")
wave_sum2("v48", "v49", "s54", "s55")
ln_finish("s54", "s55", "v50", "v51", "v52")
pad("s1b", over=True)
a("s_waitcnt vmcnt(4)")
a("v_lshlrev_b32 v40, 16, v12")
a(f"v_and_b32 v41, {MHI}, v12")
a("v_lshlrev_b32 v42, 16, v13")
a(f"v_and_b32 v43, {MHI}, v13")
for k in range(4): a(f"v_sub_f32 v{40+k}, v{40+k}, v50")
a("v_cvt_pk_bf16_f32 v12, v40, v41")
a("v_cvt_pk_bf16_f32 v13, v42, v43")
a("v_lshlrev_b32 v40, 16, v12")
a(f"v_and_b32 v41, {MHI}, v12")
a("v_lshlrev_b32 v42, 16, v13")
a(f"v_and_b32 v43, {MHI}, v13")
for k in range(4): a(f"v_mul_f32 v{40+k}, v{40+k}, v51")
a("v_cvt_pk_bf16_f32 v12, v40, v41")
a("v_cvt_pk_bf16_f32 v13, v42, v43")
a("v_cndmask_b32 v12, 0, v12, s[34:35]")
a("v_cndmask_b32 v13, 0, v13, s[34:35]")
a("v_lshlrev_b32 v5, 2, v0")
a("v_mov_b32 v6, 0")
a("s_waitcnt vmcnt(2)")
perm_pair(16, 20, R(40, 8))
for j in range(8): a(f"v_dot2_f32_bf16 v{56+j}, v{40+j}, v12, 0")
a("s_waitcnt vmcnt(0)")
ts(2)
perm_pair(24, 28, R(48, 8))
for j in range(8): a(f"v_dot2_f32_bf16 v{56+j}, v{48+j}, v13, v{56+j}")
reduce8_hi(R(56, 8), 40)
a("s_cmp_eq_u32 s3, 3")
a("s_cbranch_scc1 L_s1_coll")
a(f"ds_write_b32 v5, v40 offset:{L_S1}")
a(f"ds_write_b32 v10, v11 offset:{L_FL}")
a(f"s_load_dword s6, {WS}, 0")
a("s_branch L_s1_done")
a.flush_hist()
pad("s1c")
a("L_s1_coll:")
a("v_lshlrev_b32 v5, 2, v1")
a("s_lshl_b32 s7, s4, 14")
a("s_lshl_b32 s51, s45, 11")
a("s_add_u32 s7, s7, s51")
a("s_lshl_b32 s51, s44, 9")
a("s_add_u32 s7, s7, s51")
a(f"s_add_u32 s7, s7, {QG}")
a("v_lshl_add_u32 v8, v2, 3, s7")
lds_flag_wait("s1", 0, 4, [f"ds_read_b32 v{41+w}, v5 offset:{L_S1+256*w}" for w in range(3)], 3, "v6", 56)
a("s_add_u32 s7, s6, 1")
a("v_add_f32 v40, v40, v41")
a("v_add_f32 v42, v42, v43")
a("v_mov_b32 v41, s7")
a("v_add_f32 v40, v40, v42")
if FASTQ:
    a(f"v_add_u32 v9, {FO}, v8")
    a(f"global_store_dwordx2 v9, v[40:41], {WS}")
a(f"global_store_dwordx2 v8, v[40:41], {WS} sc1")
a(f"ds_write_b32 v6, v11 offset:{L_FL+0x60}")
if opts.get("ack"):
    ts(3)
    a("s_waitcnt vmcnt(1)")
    ts(10)
    a("s_waitcnt vmcnt(0)")
    ts(11)
    a("s_branch L_s1_done2")
a("L_s1_done:")
ts(3)
a("L_s1_done2:")
a("s_cmp_eq_u32 s33, 1")
a("s_cbranch_scc1 L_B_go")

a("s_setprio 3")
a("s_lshl_b32 s7, s4, 14")
a("s_lshl_b32 s51, s3, 12")
a("s_add_u32 s7, s7, s51")
a(f"s_add_u32 s7, s7, {QG}")
a("v_lshl_add_u32 v9, v1, 4, s7")
a("s_lshl_b32 s7, s3, 8")
a("v_lshl_add_u32 v8, v1, 2, s7")
a("s_cmp_lg_u32 s3, 0")
a("s_cbranch_scc1 L_A_h2")
a("s_lshl_b32 s7, s4, 14")
a("s_lshl_b32 s51, s39, 9")
a("s_add_u32 s7, s7, s51")
a(f"s_add_u32 s7, s7, {OP}")
a("v_lshrrev_b32 v5, 5, v1")
a("v_lshlrev_b32 v5, 13, v5")
a("v_and_b32 v7, 31, v1")
a("v_lshl_add_u32 v5, v7, 4, v5")
a("v_add_u32 v5, s7, v5")
a("v_mov_b32 v12, -1\nv_mov_b32 v13, -1\nv_mov_b32 v14, -1\nv_mov_b32 v15, -1")
a(f"global_store_dwordx4 v5, v[12:15], {WS} sc1")
if FAST:
    a("s_lshl_b32 s7, s4, 14")
    a("s_lshl_b32 s51, s39, 4")
    a("s_add_u32 s7, s7, s51")
    a(f"s_add_u32 s7, s7, {FO+OP}")
    a("v_lshl_add_u32 v5, v1, 8, s7")
    a(f"global_store_dwordx4 v5, v[12:15], {WS}")
a("s_getreg_b32 s52, hwreg(HW_REG_XCC_ID)")
a("s_lshl_b32 s7, s4, 11")
a("s_lshl_b32 s51, s39, 7")
a("s_add_u32 s7, s7, s51")
a(f"s_add_u32 s7, s7, {RDA}")
a("v_mov_b32 v5, s7")
a("s_waitcnt vmcnt(0) lgkmcnt(0)")
a("s_add_u32 s7, s6, 1")
a("v_mov_b32 v12, s7")
a("v_mov_b32 v13, s52")
a("s_mov_b64 exec, 1")
a(f"global_store_dwordx2 v5, v[12:13], {WS} sc1")
a("s_mov_b64 exec, -1")
a("L_A_h2:")
if int(opts.get("hg", 1)): lds_flag_wait("hg", 0x80, 4, [], 4, "v6", 56)
a("s_waitcnt lgkmcnt(0)")
a("s_add_u32 s6, s6, 1")
ts(8)
poll("qp", [f"global_load_dwordx4 v[{48+4*i}:{51+4*i}], v9, {WS} offset:{i*1024} sc1" for i in range(4)],
     [chk_tag([49+4*i, 51+4*i], "v5") for i in range(4)], pre=(f"v_xor_b32 v9, {FO}, v9" if FASTQ else None))
ts(4)
a("v_add_f32 v48, v48, v52")
a("v_add_f32 v50, v50, v54")
a("v_add_f32 v56, v56, v60")
a("v_add_f32 v58, v58, v62")
a("v_permlane32_swap_b32 v48, v56")
a("v_permlane32_swap_b32 v50, v58")
a("v_add_f32 v48, v48, v56")
a("v_add_f32 v50, v50, v58")
a("v_cvt_pk_bf16_f32 v48, v48, v50")
a(f"ds_write_b32 v8, v48 offset:{L_Q}")
a(f"ds_write_b32 v10, v11 offset:{L_FL+0x20}")
ts(5)
a("s_cmp_eq_u32 s3, 0")
a("s_cbranch_scc1 L_A_soft")
APF = int(opts.get("apf", 0))
if APF:
    lds_flag_wait("aq", 0x20, 4, [], 4, "v6", 56)
    a("s_mul_i32 s7, s4, 458752")
    a("s_mul_i32 s51, s39, 28672")
    a("s_add_u32 s7, s7, s51")
    a("s_sub_u32 s51, s3, 1")
    a("s_mul_i32 s51, s51, 9216")
    a("s_add_u32 s7, s7, s51")
    a("v_lshl_add_u32 v5, v1, 4, s7")
    a("v_add_u32 v7, 0x1000, v5")
    a("v_add_u32 v8, 0x2000, v5")
    for i in range(10):
        r = (5, 7, 8)[i >> 2]
        a(f"global_load_dwordx4 v[{64+4*i}:{67+4*i}], v{r}, {WO} offset:{(i&3)*1024}{NTW}")
    a(f"ds_write_b32 v10, v11 offset:{L_FL+0x90}")
end_wave()
pad("h1")
a("L_A_soft:")
a("v_lshlrev_b32 v5, 4, v1")
a("v_lshlrev_b32 v7, 3, v1")
a("s_lshl_b32 s7, s4, 11")
a("s_lshl_b32 s51, s39, 7")
a("s_add_u32 s7, s7, s51")
a(f"s_add_u32 s7, s7, {LSE}")
a("v_lshrrev_b32 v12, 5, v1")
a("s_lshl_b32 s51, s4, 8")
a("s_lshl_b32 s52, s39, 3")
a("s_add_u32 s51, s51, s52")
a(f"s_add_u32 s51, s51, {FO+LSE}")
a("v_lshl_add_u32 v13, v12, 7, s51")
a("v_lshl_add_u32 v12, v12, 3, s7")
a("v_mov_b32 v33, s6")
a("s_mov_b32 s34, 1")
a("s_mov_b32 s35, 1")
if int(opts.get("hprio", 1)): a("s_setprio 1")
lds_flag_wait("sc", 0x40, 4, [f"ds_read_b128 v[16:19], v5 offset:{L_SC}"], 4, "v6", 56)
if int(opts.get("hprio", 1)): a("s_setprio 3")
ts(6)
a("v_max3_f32 v32, v16, v17, v18")
a("v_max_f32 v32, v32, v19")
xlane("v_max_f32", "v32", "v34", ["q1", "q2", "hm", "rm", "p16"])
for e in range(4): a(f"v_sub_f32 v{16+e}, v{16+e}, v32")
for e in range(4): a(f"v_exp_f32 v{16+e}, v{16+e}")
a("v_add_f32 v35, v16, v17")
a("v_add_f32 v36, v18, v19")
a("v_add_f32 v35, v35, v36")
xlane("v_add_f32", "v35", "v34", ["q1", "q2", "hm", "rm", "p16"])
a("v_rcp_f32 v36, v35")
a("v_log_f32 v35, v35")
for e in range(4): a(f"v_mul_f32 v{16+e}, v{16+e}, v36")
a("v_cvt_pk_bf16_f32 v16, v16, v17")
a("v_cvt_pk_bf16_f32 v17, v18, v19")
a(f"ds_write_b64 v7, v[16:17] offset:{L_P}")
a(f"ds_write_b32 v6, v11 offset:{L_FL+0x50}")
a("v_add_f32 v32, v32, v35")
a("s_mov_b64 exec, s[34:35]")
if FAST:
    a(f"global_store_dwordx2 v13, v[32:33], {WS}")
a(f"global_store_dwordx2 v12, v[32:33], {WS} sc1")
a("s_mov_b64 exec, -1")
ts(7)
if int(opts.get("fpf", 1)):
    a("s_setprio 0")
    a("s_mul_i32 s7, s39, 28*3584")
    a("s_mul_i32 s51, s4, 448")
    a("s_add_u32 s7, s7, s51")
    a("v_min_u32 v16, 6, v4")
    a("v_min_u32 v17, 6, v3")
    a("v_mul_u32_u24 v17, 3584, v17")
    a("v_lshl_add_u32 v17, v16, 6, v17")
    a("v_add_u32 v17, s7, v17")
    a("s_mul_i32 s7, s4, 200704")
    a("s_mul_i32 s51, s39, 12544")
    a("s_add_u32 s7, s7, s51")
    a("v_min_u32 v18, 48, v1")
    a("v_lshl_add_u32 v18, v18, 6, s7")
    lds_flag_wait("fp", 0xA0, 4, [], 4, "v6", 56)
    for u_ in range(4):
        a(f"global_load_dword v{40+u_}, v17, {W1}{NTW}")
        a(f"global_load_dword v{44+u_}, v18, {W2}{NTW}")
        if u_ < 3:
            a(f"v_add_u32 v17, {7*3584}, v17")
            a("v_add_u32 v18, 3136, v18")
end_wave()

pad("k1")
a("L_A_k1:")
a("s_lshl_b32 s7, s44, 2")
a("v_mov_b32 v45, s7")
a("v_mov_b32 v46, 1")
a("v_mov_b32 v47, 0")
if DEBUG:
    for k in range(1, 16): a(f"s_mov_b64 s[{64+2*k}:{65+2*k}], 0")
a("s_cmp_eq_u32 s33, 1")
a("s_cbranch_scc1 L_B_pf")
KG = int(opts.get("kg", 3))
a(f"s_waitcnt vmcnt({KG})")
ts(1)
a(f"ds_write_b32 v45, v46 offset:{L_FL+0x80}")
for i in range(KA, 16):
    a(f"global_load_dwordx4 v[{64+4*i}:{67+4*i}], v6, {K} offset:{i*128}{NT}")
a(f"ds_write_b32 v45, v46 offset:{L_FL+0x70}")
ts(2)
a("L_A_k2:")
a(f"s_mov_b32 {MHI}, 0xffff0000")
a("s_lshl_b32 s7, s44, 4")
a(f"s_add_u32 s7, s7, {L_SC}")
a("v_lshl_add_u32 v44, v3, 6, s7")
a("v_mov_b32 v47, 0")
a("v_lshlrev_b32 v5, 4, v4")
for i in range(8): a(f"v_mov_b32 v{48+i}, 0")
a(f"s_mov_b32 s7, {f32(0.0625*LOG2E)}")
QR = [f"ds_read_b128 v[{128+(hh*4+j)*4}:{131+(hh*4+j)*4}], v5 offset:{L_Q + hh*512 + j*128}" for j in range(4) for hh in range(2)]
if int(opts.get("qsep", 1)):
    lds_flag_wait("qx", 0x20, 4, [], 4, "v47", 56)
    for x in QR: a(x)
else:
    lds_flag_wait("qx", 0x20, 4, QR, 4, "v47", 56)
a("s_setprio 2")
ts(4)
for gp in range(2):
    a(f"s_waitcnt vmcnt({8-8*gp})")
    if gp == 1: ts(5)
    for j in range(4):
        if gp == 0 and int(opts.get("qsep", 1)): a(f"s_waitcnt lgkmcnt({0 if DEBUG else 6-2*j})")
        for k in range(4):
            for grp in (2*gp, 2*gp+1):
                for hh in range(2):
                    if not (int(opts.get("noqk", 0)) and k): a(f"v_dot2c_f32_bf16 v{48+hh*4+grp}, v{64+(grp*4+j)*4+k}, v{128+(hh*4+j)*4+k}")
pad("k3", over=True)
for m in ("quad_perm:[1,0,3,2]", "quad_perm:[2,3,0,1]", "row_half_mirror"):
    for i in range(8):
        a(f"v_add_f32_dpp v{48+i}, v{48+i}, v{48+i} {m} {DPPM}")
for q in range(4): a(f"v_cvt_pk_bf16_f32 v{56+q}, v{48+2*q}, v{49+2*q}")
for q in range(4):
    a(f"v_lshlrev_b32 v{48+2*q}, 16, v{56+q}")
    a(f"v_and_b32 v{49+2*q}, {MHI}, v{56+q}")
for i in range(8): a(f"v_mul_f32 v{48+i}, s7, v{48+i}")
a("ds_write_b128 v44, v[48:51]")
a("ds_write_b128 v44, v[52:55] offset:512")
a(f"ds_write_b32 v45, v46 offset:{L_FL+0x40}")
ts(6)
if int(opts.get("wpf", 0)):
    a("s_setprio 0")
    a("s_mul_i32 s7, s4, 458752")
    a("s_mul_i32 s51, s39, 28672")
    a("s_add_u32 s7, s7, s51")
    a("s_mul_i32 s51, s44, 7168")
    a("s_add_u32 s7, s7, s51")
    a("v_lshl_add_u32 v5, v1, 4, s7")
    a("v_add_u32 v6, 0x1000, v5")
    for i in range(7):
        a(f"global_load_dwordx4 v[{64+4*i}:{67+4*i}], v{5+(i>>2)}, {WO} offset:{(i&3)*1024}{NTW}")
end_wave()

pad("v2")
a("L_A_v:")
if DEBUG:
    for k in range(1, 16): a(f"s_mov_b64 s[{64+2*k}:{65+2*k}], 0")
a(f"s_mov_b32 {SEL_LO}, 0x05040100")
a(f"s_mov_b32 {SEL_HI}, 0x07060302")
a("s_lshl_b32 s52, s44, 7")
a("s_add_u32 s51, s43, s52")
a("v_bfe_u32 v5, v1, 3, 1")
a("v_lshlrev_b32 v6, 14, v5")
a("v_lshrrev_b32 v10, 4, v1")
a("v_lshl_add_u32 v6, v10, 12, v6")
a("v_lshl_add_u32 v6, v4, 4, v6")
a("v_add_u32 v6, s51, v6")
a("v_add_u32 v7, 0x8000, v6")
a("v_mov_b32 v11, 0")
a("s_lshl_b32 s7, s4, 14")
a("s_lshl_b32 s51, s39, 9")
a("s_add_u32 s7, s7, s51")
a("s_add_u32 s7, s7, s52")
a(f"s_add_u32 s7, s7, {OP}")
a("v_lshlrev_b32 v8, 13, v5")
a("v_lshl_add_u32 v8, v4, 4, v8")
a("v_add_u32 v8, s7, v8")
a("s_lshl_b32 s7, s4, 14")
a("s_lshl_b32 s51, s44, 11")
a("s_add_u32 s7, s7, s51")
a("s_lshl_b32 s51, s39, 4")
a("s_add_u32 s7, s7, s51")
a(f"s_add_u32 s7, s7, {FO+OP}")
a("v_lshlrev_b32 v12, 13, v5")
a("v_lshl_add_u32 v12, v4, 8, v12")
a("v_add_u32 v12, s7, v12")
a("s_lshl_b32 s7, s44, 2")
a("v_mov_b32 v13, s7")
a("v_mov_b32 v14, 1")
a("v_lshrrev_b32 v5, 1, v1")
a("v_xor_b32 v5, v5, v1")
a("v_and_b32 v5, 1, v5")
a("v_lshlrev_b32 v9, 8, v5")
a("v_and_b32 v5, 1, v1")
a("v_lshl_add_u32 v9, v5, 6, v9")
a("v_lshl_add_u32 v9, v10, 4, v9")
if WARM:
    for u_, names in enumerate((("h1",), ("k3",), ("v3",), ("v4",))):
        sk = lab("vt")
        a(f"s_cmp_eq_u32 s44, {u_}")
        a(f"s_cbranch_scc0 {sk}")
        touch(*names)
        a(f"{sk}:")
lds_flag_wait("vg", int(opts.get("vg", 0x20)), 4, [], 3 if opts.get("vg") == "144" else 4, "v11", 32)
ts(1)
def vperm(t):
    if t < 4: perm_pair(40+8*t, 44+8*t, [104+4*j+t for j in range(8)])
    else: perm_pair(40+8*t, 44+8*t, [40+4*j+(t-4) for j in range(8)])
done_t = 0
for i in range(16):
    sg, e = divmod(i, 8)
    known = -1
    VSPLIT = int(opts.get("vsplit", 99))
    if i == VSPLIT: lds_flag_wait("v2g", 0x20, 4, [], 4, "v11", 32)
    if VD <= i < VN:
        a(f"s_waitcnt vmcnt({VD-1})"); known = i - VD
    a(f"global_load_dwordx4 v[{40+4*i}:{43+4*i}], v{6+sg}, {V} offset:{e*512}{NTV}")
    while 2*done_t+1 <= known and done_t < 4:
        vperm(done_t); done_t += 1
    if i == 9: pad("v3", over=True)
ts(2)
while done_t < 4:
    a(f"s_waitcnt vmcnt({14-2*done_t})"); vperm(done_t); done_t += 1
PRE = int(opts.get("vpre", 2))
for t in range(4, 4+PRE):
    a(f"s_waitcnt vmcnt({14-2*t})"); vperm(t)
ts(3)
pad("v4", over=True)
lds_flag_wait("pw", 0x50, 4, [f"ds_read_b128 v[16:19], v9 offset:{L_P}", f"ds_read_b128 v[20:23], v9 offset:{L_P+128}"], 1, "v11", 32)
a("s_setprio 3")
ts(6)
for j in range(8):
    a(f"v_mfma_f32_16x16x32_bf16 v[{136+4*j}:{139+4*j}], v[16:19], v[{104+4*j}:{107+4*j}], 0")
for t in range(4+PRE, 8):
    a(f"s_waitcnt vmcnt({14-2*t})")
    if t == 7: ts(7)
    vperm(t)
for j in range(8):
    a(f"v_mfma_f32_16x16x32_bf16 v[{136+4*j}:{139+4*j}], v[20:23], v[{40+4*j}:{43+4*j}], v[{136+4*j}:{139+4*j}]")
for j in range(8):
    d = 136 + 4*j
    a(f"v_add_f32_dpp v{24+j}, v{d+3}, v{d} row_ror:8 row_mask:0xf bank_mask:0x3")
    a(f"v_add_f32_dpp v{24+j}, v{d+2}, v{d+1} row_ror:8 row_mask:0xf bank_mask:0xc")
for t in range(4): a(f"v_cvt_pk_bf16_f32 v{36+t}, v{24+2*t}, v{25+2*t}")
for t in range(4): a(f"v_min_u32 v{36+t}, -2, v{36+t}")
a("s_mov_b64 exec, 0xffff")
if FAST: a(f"global_store_dwordx4 v12, v[36:39], {WS}")
a(f"global_store_dwordx4 v8, v[36:39], {WS} sc1")
a("s_mov_b64 exec, -1")
ts(8)
if opts.get("ack"):
    a("s_waitcnt vmcnt(1)")
    ts(10)
    a("s_waitcnt vmcnt(0)")
    ts(11)
a(f"ds_write_b32 v13, v14 offset:{L_FL+0xA0}")
end_wave()

a("L_B_pf:")
PD = int(opts.get("pd", 7)); PN = int(opts.get("pn", 6)); PW = int(opts.get("pw", 12)); XS = int(opts.get("xs", 0)); WPF2 = int(opts.get("wpf2", 1))
a("s_lshl_b32 s52, s44, 7")
a("s_add_u32 s51, s43, s52")
a("v_bfe_u32 v5, v1, 3, 1")
a("v_lshlrev_b32 v8, 14, v5")
a("v_lshrrev_b32 v10, 4, v1")
a("v_lshl_add_u32 v8, v10, 12, v8")
a("v_lshl_add_u32 v8, v4, 4, v8")
a("v_add_u32 v8, s51, v8")
a("v_add_u32 v9, 0x8000, v8")
XSW = int(opts.get("xsw", 0))
for n, i in enumerate(range(XS, 16)):
    if XSW and i == 16 - 2*XSW:
        a("s_cmp_lt_u32 s39, 7")
        a("s_cbranch_scc1 L_B_pfx")
    if n < PN: a(f"s_waitcnt vmcnt({PD-1})")
    if n == PN and S1G == 2: lds_flag_wait("pg", 0x60, 4, [], 1, "v47", 56)
    a(f"global_load_dwordx4 v[{100+4*n}:{103+4*n}], v{8+(i>>3)}, {V} offset:{(i&7)*512}{NT}")
if XSW:
    a("s_cmp_lt_u32 s39, 14")
    a("s_cbranch_scc1 L_B_pfx")
    a("s_lshl_b32 s7, s39, 16")
    a("v_subrev_u32 v9, s7, v9")
    a("s_and_b32 s7, s39, 1")
    a(f"s_mul_i32 s7, s7, {XSW*512}")
    a("v_add_u32 v9, s7, v9")
    for aa in range(7):
        for x_ in range(XSW):
            a(f"global_load_dwordx4 v[{64+4*((aa*XSW+x_)%8)}:{67+4*((aa*XSW+x_)%8)}], v9, {V} offset:{(8-2*XSW+x_)*512}{NT}")
        if aa < 6: a("v_add_u32 v9, 0x10000, v9")
    a("L_B_pfx:")
ts(1)
if PW < 16: a(f"s_waitcnt vmcnt({PW})")
a(f"ds_write_b32 v45, v46 offset:{L_FL+0x70}")
if WPF2:
    a("s_cmp_lt_u32 s39, 7")
    a("s_cbranch_scc1 L_B_pf2")
    a("s_sub_u32 s7, s39, 7")
    a("s_lshl_b32 s7, s7, 2")
    a("s_add_u32 s7, s7, s44")
    a("s_mul_i32 s7, s7, 6400")
    a("s_min_u32 s7, s7, 222976")
    a("s_mul_i32 s51, s4, 458752")
    a("s_add_u32 s7, s7, s51")
    a("s_add_u32 s7, s7, 229376")
    a("v_min_u32 v5, 49, v1")
    a("v_lshl_add_u32 v5, v5, 7, s7")
    a(f"global_load_dword v40, v5, {WO}{NTW}")
    if int(opts.get("w1pf", 1)):
        a("s_sub_u32 s7, s39, 7")
        a("s_lshl_b32 s7, s7, 2")
        a("s_add_u32 s7, s7, s44")
        a("s_mul_i32 s7, s7, 13")
        a("v_mul_u32_u24 v5, 52, v1")
        a("v_lshrrev_b32 v5, 8, v5")
        a("v_mul_u32_u24 v6, 5, v5")
        a("v_sub_u32 v6, v1, v6")
        a("v_add_u32 v5, s7, v5")
        a("v_min_u32 v5, 447, v5")
        a("v_mul_u32_u24 v5, 3584, v5")
        a("s_mul_i32 s7, s4, 448")
        a("v_lshl_add_u32 v6, v6, 7, s7")
        a("s_add_u32 s7, s7, 444")
        a("v_min_u32 v6, s7, v6")
        a("v_add_u32 v5, v5, v6")
        a(f"global_load_dword v41, v5, {W1}{NTW}")
a(f"s_waitcnt vmcnt({int(opts.get('fw2', 6))})")
a(f"ds_write_b32 v45, v46 offset:{L_FL+0xF0}")
a(f"s_waitcnt vmcnt({int(opts.get('fw', 0))})")
a(f"ds_write_b32 v45, v46 offset:{L_FL+0xC0}")
a("s_branch L_B_pf3")
a("L_B_pf2:")
a("s_cmp_eq_u32 s3, 8")
a("s_cbranch_scc0 L_B_pf3")
a(f"s_load_dword s6, {WS}, 0")
a("s_lshl_b32 s7, s4, 11")
a(f"s_add_u32 s7, s7, {RDA}")
a("v_and_b32 v60, 15, v1")
a("v_lshl_add_u32 v61, v60, 7, s7")
a("s_getreg_b32 s54, hwreg(HW_REG_XCC_ID)")
a("s_setprio 3")
a("s_waitcnt lgkmcnt(0)")
a("s_add_u32 s6, s6, 1")
poll("ra", [f"global_load_dwordx2 v[62:63], v61, {WS} sc1"], [chk_tag([62], None)])
a("v_cmp_ne_u32 vcc, s54, v63")
a("s_cmp_eq_u64 vcc, 0")
a(f"s_cselect_b32 s7, {2 if FAST else 1}, 1")
a("v_mov_b32 v5, s7")
a(f"ds_write_b32 v47, v5 offset:{L_FL+0xB0}")
a("L_B_pf3:")
ts(2)
end_wave()
pad("bh2")
a("L_B_hi2:")
if DEBUG:
    for k in range(1, 16): a(f"s_mov_b64 s[{64+2*k}:{65+2*k}], 0")
a("s_cmp_lt_u32 s3, 7")
a("s_cbranch_scc1 L_B_join")
a("L_w7:")
a(f"s_load_dword s6, {WS}, 0")
a("v_mov_b32 v12, -1\nv_mov_b32 v13, -1\nv_mov_b32 v14, -1\nv_mov_b32 v15, -1")
a("s_cmp_lt_u32 s39, 14")
a("s_cbranch_scc0 L_B_exit")
a("s_cmp_lt_u32 s39, 7")
a("s_cbranch_scc0 L_w7_a")
a("s_lshl_b32 s7, s39, 3")
a("s_add_u32 s7, s7, s4")
a("s_lshl_b32 s7, s7, 7")
a(f"s_add_u32 s7, s7, {YP}")
a("v_lshl_add_u32 v5, v4, 4, s7")
a("s_mov_b64 exec, 0xff")
a(f"global_store_dwordx4 v5, v[12:15], {WS} sc1")
a("s_mov_b64 exec, -1")
a("s_branch L_w7_b")
a("L_w7_a:")
a("s_mul_i32 s57, s4, 7")
a("s_add_u32 s57, s57, s39")
a("s_sub_u32 s57, s57, 7")
a("s_mul_i32 s7, s57, 896")
a(f"s_add_u32 s7, s7, {ZP}")
a("v_min_u32 v6, 55, v1")
a("v_lshl_add_u32 v5, v6, 4, s7")
a(f"global_store_dwordx4 v5, v[12:15], {WS} sc1")
a("v_mov_b32 v6, 0")
a(f"global_load_ushort v16, v6, {OUT}")
a("L_w7_b:")
a("s_lshl_b32 s7, s39, 3")
a("s_add_u32 s7, s7, s4")
a("s_lshl_b32 s7, s7, 7")
a(f"s_add_u32 s7, s7, {RDY}")
a("v_mov_b32 v5, s7")
a("s_waitcnt vmcnt(0) lgkmcnt(0)")
a("s_add_u32 s7, s6, 1")
a("v_mov_b32 v6, s7")
a("s_mov_b64 exec, 1")
a(f"global_store_dword v5, v6, {WS} sc1")
a("s_mov_b64 exec, -1")
a("L_B_join:")
a(f"s_load_dword s6, {WS}, 0")
a(f"s_mov_b32 {SEL_LO}, 0x05040100")
a(f"s_mov_b32 {SEL_HI}, 0x07060302")
a(f"s_mov_b32 {MHI}, 0xffff0000")
a("v_lshlrev_b32 v2, 3, v4")
a("v_bfe_u32 v5, v1, 3, 1")
a("v_lshl_add_u32 v2, v5, 2, v2")
a("v_bfe_u32 v5, v1, 4, 1")
a("v_lshl_add_u32 v2, v5, 1, v2")
a("v_lshrrev_b32 v5, 5, v1")
a("v_add_u32 v2, v2, v5")
a("L_B_go:")
a("s_cmp_lt_u32 s39, 14")
a("s_cbranch_scc0 L_B_exit")
a("v_mov_b32 v6, 0")
WOG = int(opts.get("wog", 0x80))
a("s_cmp_lt_u32 s39, 7")
a("s_cbranch_scc0 L_B_go_f")
lds_flag_wait("pubw", 0x60, 8, [], 5, "v6", 56)
a("s_add_u32 s6, s6, 1")
a("s_branch L_stage_wo")
a("L_B_go_f:")
lds_flag_wait("pub", 0x60, 8, [], 5, "v6", 56)
a("s_add_u32 s6, s6, 1")
a("s_branch L_stage_ffn")
a("L_B_exit:")
end_wave()
pad("wo1")

a("L_stage_wo:")
ts(8)
a("s_lshl_b32 s7, s4, 9")
a("s_lshl_b32 s51, s3, 6")
a("s_add_u32 s7, s7, s51")
a("s_mul_i32 s7, s7, 896")
a("s_lshl_b32 s51, s39, 7")
a("s_add_u32 s7, s7, s51")
a("v_mul_u32_u24 v5, 896, v3")
a("v_lshl_add_u32 v5, v4, 4, v5")
a("v_add_u32 v5, s7, v5")
WD = int(opts.get("wd", 8))
for i in range(8):
    if i >= WD: a(f"s_waitcnt vmcnt({WD-1})")
    EXP_NOWO = int(opts.get("nowo", 0))
    a(f"global_load_dwordx4 v[{8+4*i}:{11+4*i}], v5, {WO}{NTO}")
    if i < 7 and not EXP_NOWO: a(f"v_add_u32 v5, {8*896}, v5")
a("v_and_b32 v60, 15, v1")
a("s_lshr_b32 s59, s3, 2")
a("s_and_b32 s58, s3, 3")
a("v_lshrrev_b32 v59, 4, v1")
a("s_lshl_b32 s7, s3, 13")
a(f"s_add_u32 s7, s7, {L_W}")
a("v_lshl_add_u32 v40, v1, 4, s7")
a("v_bfe_u32 v5, v1, 2, 2")
a("v_lshl_add_u32 v5, v59, 3, v5")
a("v_lshlrev_b32 v41, 7, v5")
a("v_and_b32 v5, 3, v1")
a("v_lshl_add_u32 v41, v5, 3, v41")
a("v_add_u32 v41, s7, v41")
a("v_bfe_u32 v5, v1, 4, 1")
a("v_lshlrev_b32 v45, 1, v5")
a("v_lshrrev_b32 v5, 5, v1")
a("v_add_u32 v45, v45, v5")
a("v_lshl_add_u32 v45, v45, 4, v60")
a("s_lshl_b32 s7, s3, 8")
a("v_lshl_add_u32 v45, v45, 2, s7")
a("v_and_b32 v5, 31, v1")
a("v_lshlrev_b32 v47, 3, v5")
a("s_lshl_b32 s7, s39, 3")
a("s_add_u32 s7, s7, s4")
a("s_lshl_b32 s7, s7, 7")
a(f"s_add_u32 s7, s7, {YP}")
a("v_lshl_add_u32 v46, v5, 2, s7")
a("s_lshl_b32 s55, s4, 1")
a("s_add_u32 s55, s55, s59")
a("v_mov_b32 v6, 0")
h = spin_head("dec")
a(f"ds_read_b32 v5, v6 offset:{L_FL+0xB0}")
a("s_waitcnt lgkmcnt(0)")
a("v_readfirstlane_b32 s52, v5")
a("s_cmp_lg_u32 s52, 0")
spin_tail(h)
a("s_cmp_eq_u32 s52, 2")
a("s_cbranch_scc1 L_wo_fast")
a("s_lshl_b32 s7, s4, 11")
a("s_lshl_b32 s51, s59, 3")
a("s_add_u32 s7, s7, s51")
a(f"s_add_u32 s7, s7, {LSE}")
a("v_lshl_add_u32 v48, v59, 9, s7")
a("s_movk_i32 s61, 128")
a("s_lshl_b32 s7, s55, 13")
a("s_lshl_b32 s51, s58, 7")
a("s_add_u32 s7, s7, s51")
a(f"s_add_u32 s7, s7, {OP}")
a("v_lshlrev_b32 v43, 9, v60")
a("v_lshl_add_u32 v43, v59, 4, v43")
a("v_add_u32 v43, s7, v43")
a("v_add_u32 v44, 64, v43")
a("s_branch L_wo_go")
a("L_wo_fast:")
a("s_lshl_b32 s7, s55, 7")
a(f"s_add_u32 s7, s7, {FO+LSE}")
a("v_lshl_add_u32 v48, v59, 5, s7")
a("s_movk_i32 s61, 8")
a("s_lshl_b32 s7, s55, 13")
a("s_lshl_b32 s51, s58, 11")
a("s_add_u32 s7, s7, s51")
a(f"s_add_u32 s7, s7, {FO+OP}")
a("v_lshl_add_u32 v43, v1, 4, s7")
a("v_add_u32 v44, 0x400, v43")
a("L_wo_go:")
a("v_add_u32 v49, s61, v48")
a("v_add_u32 v50, s61, v49")
a("v_add_u32 v51, s61, v50")
WL = [f"global_load_dwordx2 v[{96+2*i}:{97+2*i}], v{48+i}, {WS} sc1" for i in range(4)] + \
     [f"global_load_dwordx4 v[104:107], v43, {WS} sc1", f"global_load_dwordx4 v[108:111], v44, {WS} sc1"]
PQ = int(opts.get("pq", 6))
for i in range(8):
    if i == PQ:
        for x in WL: a(x)
    a(f"s_waitcnt vmcnt({7-i + (6 if i >= PQ else 0)})")
    a(f"ds_write_b128 v40, v[{8+4*i}:{11+4*i}] offset:{i*1024}")
if PQ >= 8:
    for x in WL: a(x)
for sg in range(2):
    for t in range(4):
        r = 64 + (sg*4 + t)*4
        a(f"ds_read_b64_tr_b16 v[{r}:{r+1}], v41 offset:{sg*4096 + t*32}")
        a(f"ds_read_b64_tr_b16 v[{r+2}:{r+3}], v41 offset:{sg*4096 + t*32 + 512}")
ts(9)
def alpha():
    a("v_max3_f32 v54, v96, v98, v100")
    a("v_max_f32 v54, v54, v102")
    xlane("v_max_f32", "v54", "v55", ["p16", "p32"])
    for i in range(4): a(f"v_sub_f32 v{96+2*i}, v{96+2*i}, v54")
    for i in range(4): a(f"v_exp_f32 v{96+2*i}, v{96+2*i}")
    a("v_add_f32 v54, v96, v98")
    a("v_add_f32 v56, v100, v102")
    a("v_add_f32 v54, v54, v56")
    xlane("v_add_f32", "v54", "v55", ["p16", "p32"])
    a("v_rcp_f32 v54, v54")
    for i in range(4): a(f"v_mul_f32 v{96+2*i}, v{96+2*i}, v54")
    ts(10)
poll2("op", WL, [chk_tag([97+2*i], None) for i in range(4)] + [chk_sent4(104, "v52"), chk_sent4(108, "v53")], 4, alpha)
a("s_waitcnt lgkmcnt(0)")
ts(11)
for t in range(4):
    a(f"v_mfma_f32_16x16x32_bf16 v[{112+4*t}:{115+4*t}], v[104:107], v[{64+4*t}:{67+4*t}], 0")
for t in range(4):
    a(f"v_mfma_f32_16x16x32_bf16 v[{112+4*t}:{115+4*t}], v[108:111], v[{80+4*t}:{83+4*t}], v[{112+4*t}:{115+4*t}]")
for t in range(4):
    a(f"v_mul_f32 v{52+t}, v96, v{112+4*t}")
    for r in range(1, 4): a(f"v_fmac_f32 v{52+t}, v{96+2*r}, v{112+4*t+r}")
a("v_permlane32_swap_b32 v52, v53")
a("v_permlane32_swap_b32 v54, v55")
a("v_add_f32 v52, v52, v53")
a("v_add_f32 v54, v54, v55")
a("v_permlane16_swap_b32 v52, v54")
a("v_add_f32 v52, v52, v54")
a(f"ds_write_b32 v45, v52 offset:{L_RED}")
a("s_waitcnt lgkmcnt(0)")
a("s_barrier")
ts(12)
a("s_cmp_lg_u32 s3, 0")
a("s_cbranch_scc1 L_wo_end")
for w in range(8): a(f"ds_read_b64 v[{80+2*w}:{81+2*w}], v47 offset:{L_RED + 256*w}")
a("s_mov_b32 s34, -1")
a("s_mov_b32 s35, 0")
a("s_waitcnt lgkmcnt(0)")
for (x, y) in ((80, 82), (84, 86), (88, 90), (92, 94), (80, 84), (88, 92), (80, 88)):
    a(f"v_add_f32 v{x}, v{x}, v{y}")
    a(f"v_add_f32 v{x+1}, v{x+1}, v{y+1}")
a("v_cvt_pk_bf16_f32 v80, v80, v81")
a("v_min_u32 v80, -2, v80")
a("s_mov_b64 exec, s[34:35]")
a(f"global_store_dword v46, v80, {WS} sc1")
a("s_mov_b64 exec, -1")
ts(13)
a("L_wo_end:")
end_wave()

a("L_stage_ffn:")
a("s_mul_i32 s57, s4, 7")
a("s_add_u32 s57, s57, s39")
a("s_sub_u32 s57, s57, 7")
a("s_cmp_eq_u32 s3, 7")
a("s_cbranch_scc1 L_final")
a("s_lshl_b32 s7, s3, 10")
a(f"s_add_u32 s7, s7, {RDY}")
a("v_lshl_add_u32 v6, v4, 7, s7")
a("s_lshl_b32 s51, s3, 7")
a("v_lshl_add_u32 v5, v2, 1, s51")
a(f"global_load_ushort v40, v5, {X}")
a("v_lshrrev_b32 v59, 4, v1")
a("v_and_b32 v60, 15, v1")
a("v_lshl_add_u32 v45, v59, 3, v4")
a("s_lshl_b32 s52, s57, 6")
a("v_lshl_add_u32 v5, v45, 1, s52")
a(f"global_load_ushort v42, v5, {B1}")
TGL = int(opts.get("tgl", 1))
if TGL:
    a("v_mov_b32 v122, v6")
    a(f"global_load_dword v123, v122, {WS} sc1")
else:
    poll("tg", [f"global_load_dword v5, v6, {WS} sc1"], [chk_tag([5], None)])
a("v_lshrrev_b32 v43, 2, v1")
a("v_and_b32 v44, 3, v1")
a("v_mov_b32 v61, 0")
W2G = int(opts.get("w2g", 0xF0))
if W2G: lds_flag_wait("f2", W2G, 4, [], 4, "v61", 112)
a(f"s_mul_i32 s7, s57, {32*896}")
a("s_lshl_b32 s51, s3, 7")
a("s_add_u32 s7, s7, s51")
a("v_mul_u32_u24 v6, 896, v3")
a("v_lshl_add_u32 v6, v4, 4, v6")
a("v_add_u32 v5, s7, v6")
for i in range(4):
    a(f"global_load_dwordx4 v[{24+4*i}:{27+4*i}], v5, {W2}{NTW}")
    if i < 3: a(f"v_add_u32 v5, {8*896}, v5")
ts(7)
lds_flag_wait("fg", 0xC0, 4, [], 4, "v61", 112)
ts(8)
a(f"s_mul_i32 s7, s3, {64*3584}")
a("s_lshl_b32 s52, s57, 6")
a("s_add_u32 s7, s7, s52")
a("v_mul_u32_u24 v5, 3584, v43")
a("v_lshl_add_u32 v5, v44, 4, v5")
a("v_add_u32 v5, s7, v5")
for i in range(4):
    a(f"global_load_dwordx4 v[{8+4*i}:{11+4*i}], v5, {W1}{NTW}")
    if i < 3: a(f"v_add_u32 v5, {16*3584}, v5")
a(f"s_add_u32 s51, s51, {L_W2}")
a("v_add_u32 v41, s51, v6")
a("s_lshl_b32 s7, s3, 12")
a(f"s_add_u32 s7, s7, {L_W}")
a("v_lshl_add_u32 v47, v1, 4, s7")
a("v_bfe_u32 v5, v1, 2, 2")
a("v_lshl_add_u32 v5, v59, 3, v5")
a("v_lshlrev_b32 v48, 6, v5")
a("v_lshl_add_u32 v48, v44, 3, v48")
a("v_add_u32 v48, s7, v48")
a("v_mul_u32_u24 v49, 896, v5")
a("v_lshl_add_u32 v49, v44, 3, v49")
a("s_lshl_b32 s7, s3, 8")
a(f"s_add_u32 s7, s7, {L_W2}")
a("v_add_u32 v49, s7, v49")
a("s_lshl_b32 s7, s3, 10")
a(f"s_add_u32 s7, s7, {YP}")
a("v_lshl_add_u32 v46, v1, 4, s7")
a("s_lshl_b32 s7, s3, 7")
a("v_lshl_add_u32 v50, v2, 1, s7")
a("v_lshl_add_u32 v51, v59, 4, s7")
a("s_lshl_b32 s7, s3, 2")
a("v_lshl_add_u32 v54, v60, 5, s7")
a("v_lshlrev_b32 v55, 5, v45")
a("s_mul_i32 s7, s57, 896")
a("s_lshl_b32 s51, s3, 8")
a("s_add_u32 s7, s7, s51")
a(f"s_add_u32 s7, s7, {ZP}")
a("v_lshl_add_u32 v62, v1, 1, s7")
a("s_mov_b32 s58, 0x55555555")
a("s_mov_b32 s59, 0x55555555")
a("s_lshl_b32 s7, s3, 3")
a("v_mov_b32 v63, s7")
a("v_mov_b32 v61, 0")
for r in range(4): a(f"v_mov_b32 v{96+r}, 0x3f803f80")
for i in range(4):
    a(f"s_waitcnt vmcnt({7-i})")
    a(f"ds_write_b128 v41, v[{24+4*i}:{27+4*i}] offset:{i*8*896}")
for i in range(4):
    a(f"s_waitcnt vmcnt({3-i})")
    a(f"ds_write_b128 v47, v[{8+4*i}:{11+4*i}] offset:{i*1024}")
for sg in range(2):
    for t in range(2):
        r = 64 + (sg*2 + t)*4
        a(f"ds_read_b64_tr_b16 v[{r}:{r+1}], v48 offset:{sg*2048 + t*32}")
        a(f"ds_read_b64_tr_b16 v[{r+2}:{r+3}], v48 offset:{sg*2048 + t*32 + 256}")
a("s_waitcnt lgkmcnt(0)")
for t in range(2): a(f"v_mfma_f32_16x16x32_bf16 v[{100+4*t}:{103+4*t}], v[96:99], v[{64+4*t}:{67+4*t}], 0")
for t in range(2): a(f"v_mfma_f32_16x16x32_bf16 v[{100+4*t}:{103+4*t}], v[96:99], v[{72+4*t}:{75+4*t}], v[{100+4*t}:{103+4*t}]")
a(f"ds_write_b32 v54, v100 offset:{L_C}")
a(f"ds_write_b32 v54, v104 offset:{L_C+512}")
a("s_waitcnt vmcnt(0) lgkmcnt(0)")
a("s_barrier")
ts(9)
a(f"ds_read_b128 v[100:103], v55 offset:{L_C}")
a(f"ds_read_b128 v[104:107], v55 offset:{L_C+16}")
a("s_cmp_gt_u32 s3, 3")
a("s_cbranch_scc1 L_ffn_now2")
for T in range(8):
    if T == 4:
        a("s_cmp_eq_u32 s3, 3")
        a("s_cbranch_scc1 L_ffn_now2")
    r = 128 + 4*T
    a(f"ds_read_b64_tr_b16 v[{r}:{r+1}], v49 offset:{T*32}")
    a(f"ds_read_b64_tr_b16 v[{r+2}:{r+3}], v49 offset:{T*32 + 4*896}")
a("L_ffn_now2:")
a("v_lshlrev_b32 v40, 16, v40")
a("v_lshlrev_b32 v42, 16, v42")
a("s_mov_b32 s36, 0")
a("s_mov_b32 s37, 0x80000000")
a(f"v_mov_b32 v56, {f32(1.0/3)}")
a("s_waitcnt lgkmcnt(0)")
a("v_add_f32 v100, v100, v101")
a("v_add_f32 v102, v102, v103")
a("v_add_f32 v104, v104, v105")
a("v_add_f32 v100, v100, v102")
a("v_add_f32 v104, v104, v106")
a("v_add_f32 v57, v100, v104")
if TGL:
    a("v_cmp_ne_u32 vcc, s6, v123")
    a("s_cmp_eq_u64 vcc, 0")
    a("s_cbranch_scc1 L_tg_ok")
    poll("tg", [f"global_load_dword v123, v122, {WS} sc1"], [chk_tag([123], None)])
    a("L_tg_ok:")
ts(10)
poll("yp", [f"global_load_dwordx4 v[96:99], v46, {WS} sc1"], [chk_sent4(96, "v52")])
ts(11)
for k in range(4):
    a(f"v_lshlrev_b32 v{104+2*k}, 16, v{96+k}")
    a(f"v_and_b32 v{105+2*k}, {MHI}, v{96+k}")
reduce8_hi(R(104, 8), 52)
bf16r("v52")
a("v_add_f32 v52, v52, v40")
a("v_cvt_pk_bf16_f32 v52, v52, v52")
a(f"ds_write_b16 v50, v52 offset:{L_H}")
a(f"ds_read_b128 v[96:99], v51 offset:{L_H}")
a(f"ds_read_b128 v[112:115], v51 offset:{L_H+64}")
a(f"v_and_b32 v52, {MHI}, v52")
a("v_mul_f32 v53, v52, v52")
wave_sum2("v52", "v53", None, None)
a("s_waitcnt lgkmcnt(0)")
for t in range(2): a(f"v_mfma_f32_16x16x32_bf16 v[{100+4*t}:{103+4*t}], v[96:99], v[{64+4*t}:{67+4*t}], 0")
for t in range(2): a(f"v_mfma_f32_16x16x32_bf16 v[{100+4*t}:{103+4*t}], v[112:115], v[{72+4*t}:{75+4*t}], v[{100+4*t}:{103+4*t}]")
a("s_mov_b64 exec, s[36:37]")
a(f"ds_write_b64 v63, v[52:53] offset:{L_ST}")
a("s_mov_b64 exec, -1")
a(f"ds_write_b32 v54, v100 offset:{L_Z}")
a(f"ds_write_b32 v54, v104 offset:{L_Z+512}")
a("s_waitcnt lgkmcnt(0)")
a("s_barrier")
ts(12)
a("s_cmp_gt_u32 s3, 3")
a("s_cbranch_scc1 L_wo_end")
a(f"ds_read_b128 v[108:111], v61 offset:{L_ST}")
a(f"ds_read_b128 v[112:115], v61 offset:{L_ST+16}")
a(f"ds_read_b128 v[116:119], v61 offset:{L_ST+32}")
a(f"ds_read_b64 v[120:121], v61 offset:{L_ST+48}")
a(f"ds_read_b128 v[100:103], v55 offset:{L_Z}")
a(f"ds_read_b128 v[104:107], v55 offset:{L_Z+16}")
a(f"s_mov_b32 s7, {f32(-LOG2E)}")
a("s_waitcnt lgkmcnt(0)" if DEBUG else "s_waitcnt lgkmcnt(2)")
for (x, y) in ((108, 110), (112, 114), (116, 118), (108, 112), (116, 120), (108, 116)):
    a(f"v_add_f32 v{x}, v{x}, v{y}")
    a(f"v_add_f32 v{x+1}, v{x+1}, v{y+1}")
ln_finish("v108", "v109", "v52", "v53", "v58")
a("s_waitcnt lgkmcnt(0)")
a("v_add_f32 v100, v100, v101")
a("v_add_f32 v102, v102, v103")
a("v_add_f32 v104, v104, v105")
a("v_add_f32 v100, v100, v102")
a("v_add_f32 v104, v104, v106")
a("v_add_f32 v100, v100, v104")
a("v_fma_f32 v100, -v52, v57, v100")
a("v_mul_f32 v100, v100, v53")
bf16r("v100")
a("v_add_f32 v100, v100, v42")
bf16r("v100")
a("v_mul_f32 v101, s7, abs(v100)")
a("v_exp_f32 v101, v101")
a("v_max_f32 v107, 0, v100")
bf16r("v101")
a("v_add_f32 v102, 1.0, v101")
a("v_log_f32 v102, v102")
a("v_fma_f32 v103, v101, v56, -0.5")
a("v_fma_f32 v103, v101, v103, 1.0")
a("v_mul_f32 v103, v101, v103")
a(f"v_cmp_gt_f32 vcc, {f32(2.0**-6)}, v101")
a(f"v_mul_f32 v102, {f32(math.log(2))}, v102")
a("v_cndmask_b32 v102, v102, v103, vcc")
bf16r("v102")
a("v_add_f32 v102, v102, v107")
bf16r("v102")
a(f"v_mul_f32 v103, {f32(-2*LOG2E)}, v102")
a("v_exp_f32 v103, v103")
a("v_mul_f32 v105, v102, v102")
a(f"v_cmp_gt_f32 vcc, {f32(2.0**-5)}, v102")
a("v_add_f32 v106, 1.0, v103")
a("v_sub_f32 v103, 1.0, v103")
a("v_rcp_f32 v106, v106")
a("v_mul_f32 v105, v105, v56")
a("v_fma_f32 v105, -v105, v102, v102")
a("v_mul_f32 v103, v103, v106")
a("v_cndmask_b32 v103, v103, v105, vcc")
bf16r("v103")
a("v_mul_f32 v100, v100, v103")
a(f"v_mov_b32_dpp v101, v100 quad_perm:[0,0,2,2] {DPPM}")
a(f"v_mov_b32_dpp v102, v100 quad_perm:[1,1,3,3] {DPPM}")
a("v_cvt_pk_bf16_f32 v101, v101, v102")
a(f"v_mov_b32_dpp v102, v101 row_half_mirror {DPPM}")
a("v_mov_b32_dpp v96, v101 quad_perm:[0,0,0,0] row_mask:0xf bank_mask:0x5")
a("v_mov_b32_dpp v97, v101 quad_perm:[2,2,2,2] row_mask:0xf bank_mask:0x5")
a("v_mov_b32_dpp v98, v101 quad_perm:[0,0,0,0] row_mask:0xf bank_mask:0xa")
a("v_mov_b32_dpp v99, v101 quad_perm:[2,2,2,2] row_mask:0xf bank_mask:0xa")
a("v_mov_b32_dpp v98, v102 quad_perm:[2,2,2,2] row_mask:0xf bank_mask:0x5")
a("v_mov_b32_dpp v99, v102 quad_perm:[0,0,0,0] row_mask:0xf bank_mask:0x5")
a("v_mov_b32_dpp v96, v102 quad_perm:[2,2,2,2] row_mask:0xf bank_mask:0xa")
a("v_mov_b32_dpp v97, v102 quad_perm:[0,0,0,0] row_mask:0xf bank_mask:0xa")
def ffn2(q):
    for T in range(4*q, 4*q+4):
        a(f"v_mfma_f32_16x16x32_bf16 v[{64+4*T}:{67+4*T}], v[96:99], v[{128+4*T}:{131+4*T}], 0")
def ffn2_out(q):
    for rho in range(4):
        a(f"v_mov_b32_dpp v{104+q}, v{64+4*(4*q+rho)} quad_perm:[0,1,2,3] row_mask:{hex(1<<rho)} bank_mask:0xf")
    a(f"v_mov_b32_dpp v{106+q}, v{104+q} quad_perm:[1,1,3,3] {DPPM}")
    a(f"v_cvt_pk_bf16_f32 v{104+q}, v{104+q}, v{106+q}")
    a(f"v_min_u32 v{104+q}, -2, v{104+q}")
    a("s_mov_b64 exec, s[58:59]")
    a(f"global_store_dword v62, v{104+q}, {WS} offset:{128*q} sc1")
    a("s_mov_b64 exec, -1")
ffn2(0)
a("s_cmp_eq_u32 s3, 3")
a("s_cbranch_scc1 L_ffn_last")
ffn2(1)
ffn2_out(0)
ffn2_out(1)
ts(13)
if int(opts.get("fdl", 4)):
    a("s_waitcnt vmcnt(0)")
    a("v_mov_b32 v5, 1")
    a(f"ds_write_b32 v63, v5 offset:{L_FL+0xD0}")
end_wave()
a("L_ffn_last:")
a("s_nop 7")
ffn2_out(0)
ts(13)
if int(opts.get("fdl", 4)):
    a("s_waitcnt vmcnt(0)")
    a("v_mov_b32 v5, 1")
    a(f"ds_write_b32 v63, v5 offset:{L_FL+0xD0}")
end_wave()

pad("fin")
a("L_final:")
a("v_min_u32 v5, 55, v1")
a("v_mul_u32_u24 v5, 896, v5")
a("s_lshl_b32 s7, s57, 4")
a(f"s_add_u32 s7, s7, {ZP}")
a("v_add_u32 v5, s7, v5")
a("v_and_b32 v6, 7, v2")
a("s_lshl_b32 s7, s57, 3")
a("v_add_u32 v6, s7, v6")
a("v_lshlrev_b32 v6, 1, v6")
a("s_mov_b32 s36, 0x01010101")
a("s_mov_b32 s37, 0x01010101")
a("v_min_u32 v7, 55, v1")
a("v_lshlrev_b32 v7, 7, v7")
a(f"v_add_u32 v7, {RDY + 7*1024}, v7")
poll("rd", [f"global_load_dword v8, v7, {WS} sc1"], [chk_tag([8], None)])
a("s_barrier")
a("s_barrier")
a(f"ds_read_u16 v50, v6 offset:{L_H}")
a("v_mov_b32 v10, 0")
a("v_mov_b32 v11, s6")
ts(12)
if int(opts.get("fdl", 4)):
    a("v_mov_b32 v9, 0")
    lds_flag_wait("fd", 0xD0, 8, [], int(opts.get("fdl", 4)), "v9", 56, ge=True)
poll("fin", [f"global_load_dwordx4 v[96:99], v5, {WS} sc1"], [chk_sent4(96, "v48")])
ts(13)
a("v_cmp_gt_u32 vcc, 56, v1")
a("s_waitcnt lgkmcnt(0)")
a("v_lshlrev_b32 v50, 16, v50")
for k in range(4): a(f"v_cndmask_b32 v{96+k}, 0, v{96+k}, vcc")
for k in range(4):
    a(f"v_lshlrev_b32 v{100+2*k}, 16, v{96+k}")
    a(f"v_and_b32 v{101+2*k}, {MHI}, v{96+k}")
reduce8_hi(R(100, 8), 52)
xlane("v_add_f32", "v52", None, ["q1", "q2", "hm"])
bf16r("v52")
a("v_add_f32 v52, v52, v50")
a("v_cvt_pk_bf16_f32 v52, v52, v52")
a("s_mov_b64 exec, s[36:37]")
a(f"global_store_short v6, v52, {OUT}")
a("s_cmp_lg_u32 s57, 0")
a("s_cbranch_scc1 L_fin_end")
a("s_mov_b64 exec, 1")
a(f"global_store_dword v10, v11, {WS}{' sc1' if int(opts.get('epsc', 0)) else ''}")
a("L_fin_end:")
a("s_mov_b64 exec, -1")
ts(14)
end_wave()

if DEBUG:
    a("L_dump:")
    a("s_waitcnt lgkmcnt(0)")
    a("s_mov_b64 exec, 1")
    if DIAG:
        a(f"s_cmp_eq_u32 s2, {DIAG[0]}")
        a("s_cbranch_scc0 L_end")
        a(f"s_cmp_eq_u32 s3, {DIAG[1]}")
        a("s_cbranch_scc0 L_end")
        a(f"s_sub_u32 s7, s{64+2*DIAG[2]}, s64")
        a(f"s_mul_i32 s7, s7, {DIAG[3]}")
        a("s_min_u32 s7, s7, 20000")
        a("s_add_u32 s7, s7, 3000")
        a("s_mov_b32 s38, 100000")
        a("L_diag:")
        a("s_memrealtime s[60:61]")
        a("s_waitcnt lgkmcnt(0)")
        a("s_sub_u32 s51, s60, s64")
        a("s_cmp_ge_u32 s51, s7")
        a("s_cbranch_scc1 L_end")
        a("s_sub_u32 s38, s38, 1")
        a("s_cmp_eq_u32 s38, 0")
        a("s_cbranch_scc0 L_diag")
    elif HDBG:
        a("s_cmp_lt_u32 s2, 8")
        a("s_cselect_b32 s7, 0, 1")
        a("s_or_b32 s7, s7, s3")
        a("s_cmp_eq_u32 s7, 0")
        a("s_cbranch_scc0 L_dump_k")
        a("s_lshl_b32 s7, s2, 2")
        a("v_mov_b32 v5, s7")
        a("v_mov_b32 v6, s64")
        a(f"global_store_dword v5, v6, {DBG}")
        a("s_endpgm")
        a("L_dump_k:")
        a(f"s_cmp_eq_u32 s5, {15 if IL else 23}")
        a("s_cbranch_scc0 L_end")
        a("s_cmp_eq_u32 s3, 7")
        a("s_cbranch_scc0 L_end")
        a("s_lshl_b32 s7, s4, 2")
        a("v_mov_b32 v5, s7")
        a(f"v_mov_b32 v6, s{64+30}")
        a(f"global_store_dword v5, v6, {DBG} offset:32")
    else:
        a("s_lshl_b32 s7, s2, 4")
        a("s_add_u32 s7, s7, s3")
        a("s_lshl_b32 s7, s7, 6")
        a(f"s_add_u32 s7, s7, {TS}")
        a("v_mov_b32 v5, s7")
        for k in ((0, GSTAT[0]) if GSTAT else range(16)):
            a(f"v_mov_b32 v6, s{64+2*k}")
            a(f"global_store_dword v5, v6, {WS} offset:{4*k}{' sc1' if GSTAT else ''}")
        if GSTAT:
            a("s_cmp_eq_u32 s2, 248")
            a("s_cbranch_scc0 L_end")
            a("s_cmp_eq_u32 s3, 5")
            a("s_cbranch_scc0 L_end")
            a("s_mov_b64 exec, -1")
            a("s_mov_b32 s38, 100000")
            a("L_g1:")
            a("s_memrealtime s[60:61]")
            a("s_waitcnt lgkmcnt(0)")
            a("s_sub_u32 s51, s60, s64")
            a("s_cmp_ge_u32 s51, 2000")
            a("s_cbranch_scc1 L_g2")
            a("s_sub_u32 s38, s38, 1")
            a("s_cmp_eq_u32 s38, 0")
            a("s_cbranch_scc0 L_g1")
            a("L_g2:")
            a("v_mov_b32 v20, 0x7fffffff")
            a("v_mov_b32 v21, 0x80000000")
            a("v_and_b32 v22, 15, v1")
            a(f"v_cmp_le_u32 vcc, {GSTAT[1]}, v22")
            a(f"v_cmp_gt_u32 s[46:47], {GSTAT[2]}, v22")
            a("s_and_b64 s[46:47], s[46:47], vcc")
            a("v_cmp_gt_u32 s[48:49], 12, v22")
            a("s_mov_b32 s52, 0")
            a("L_g3:")
            a("s_lshl_b32 s7, s52, 12")
            a(f"s_add_u32 s7, s7, {TS}")
            a("v_lshl_add_u32 v23, v1, 6, s7")
            a(f"global_load_dword v24, v23, {WS} sc1")
            a(f"global_load_dword v25, v23, {WS} offset:{4*GSTAT[0]} sc1")
            a("s_waitcnt vmcnt(0)")
            a("v_subrev_u32 v24, s64, v24")
            a("v_cmp_eq_u32 vcc, 0, v25")
            a("v_subrev_u32 v25, s64, v25")
            a("v_cndmask_b32 v25, v25, v21, vcc")
            a("v_cndmask_b32 v25, v21, v25, s[46:47]")
            a("v_cndmask_b32 v24, v20, v24, s[48:49]")
            if GSTAT[3] != 2:
                a("s_bitcmp1_b32 s52, 1")
                a(f"s_cbranch_scc{1 - GSTAT[3]} L_g4")
            a("v_max_i32 v21, v21, v25")
            a("L_g4:")
            a("v_min_i32 v20, v20, v24")
            a("s_add_u32 s52, s52, 1")
            a("s_cmp_lt_u32 s52, 64")
            a("s_cbranch_scc1 L_g3")
            xlane("v_max_i32", "v21", "v26", ["q1", "q2", "hm", "r8", "p16", "p32"])
            xlane("v_min_i32", "v20", "v26", ["q1", "q2", "hm", "r8", "p16", "p32"])
            a("v_sub_u32 v21, v21, v20")
            a("v_readfirstlane_b32 s7, v21")
            a("v_readfirstlane_b32 s53, v20")
            a("s_mul_i32 s7, s7, 4")
            a("s_min_u32 s7, s7, 20000")
            a("s_add_u32 s7, s7, 6000")
            a("s_add_u32 s7, s7, s53")
            a("s_mov_b32 s38, 100000")
            a("L_g5:")
            a("s_memrealtime s[60:61]")
            a("s_waitcnt lgkmcnt(0)")
            a("s_sub_u32 s51, s60, s64")
            a("s_cmp_ge_u32 s51, s7")
            a("s_cbranch_scc1 L_end")
            a("s_sub_u32 s38, s38, 1")
            a("s_cmp_eq_u32 s38, 0")
            a("s_cbranch_scc0 L_g5")
a("L_end:")
a("s_endpgm")
a("L_codeend:")
a.raw(f'''.section .rodata,"a"
.p2align 6
.amdhsa_kernel {NAME}_kernel
  .amdhsa_next_free_vgpr 168
  .amdhsa_next_free_sgpr 96
  .amdhsa_accum_offset 168
  .amdhsa_group_segment_fixed_size 0
  .amdhsa_kernarg_size 96
  .amdhsa_user_sgpr_count 2
  .amdhsa_user_sgpr_kernarg_segment_ptr 1
  .amdhsa_system_sgpr_workgroup_id_x 1
  .amdhsa_float_denorm_mode_32 3
.end_amdhsa_kernel''')
open(OUTP, "w").write(a.text())
print("nops inserted:", a.nops, "lines:", len(a.lines))
```

```python
import sys, struct, math
sys.path.insert(0, "gen")
from asmlib import Asm

NAME = "sequential_preLN__sliding_block_cached__dense_activation_mish__decode"
opts = dict(x.split("=") for x in sys.argv[2:])
OUTP = sys.argv[1]
DEBUG = int(opts.get("dbg", 0))
HDBG = int(opts.get("hdbg", 0))
if HDBG: DEBUG = 1
NT = " nt" if int(opts.get("nt", 0)) else ""
NTW = " nt" if int(opts.get("ntw", 0)) else ""
NTK = " nt" if int(opts.get("ntk", 0)) else ""
NTQ = " nt" if int(opts.get("ntq", 0)) else ""
NTO = " nt" if int(opts.get("nto", 0)) else ""
NTV = " nt" if int(opts.get("ntv", 0)) else ""
KD = int(opts.get("kd", 4))
NTHR = int(opts.get("nthr", 12))
SLEEP = int(opts.get("sleep", 0))
KD0 = int(opts.get("kd0", 2))
RGATE = int(opts.get("rgate", 1))
QWAIT = int(opts.get("qwait", 1))
SPIN = 100000

def f32(x): return "0x%08x" % struct.unpack("<I", struct.pack("<f", x))[0]
LOG2E = math.log2(math.e)

RDY = 0x50000; RDA = 0x58000; QG = 0x10000; LSE = 0x40000; OP = 0x80000; YP = 0xC0000; ZP = 0xD0000; TS = 0x400000; FO = 0x100000
L_S1 = 0x000; L_FL = 0x800; L_Q = 0x900; L_SC = 0xD00; L_RED = 0x1100; L_ST = 0x1900; L_H = 0x1A00; L_Z = 0x2100; L_O = 0x2500
L_P = 0x2D00; L_C = 0x2F00
L_W = 0x4000; L_W2 = 0xB000
LDS_BYTES = 0x14000
IL = int(opts.get("il", 1))
FGATE = int(opts.get("fgate", 100))
X, K, V, WQ, WO, W1, B1, W2, OUT, DBG, WS = "s[8:9]", "s[10:11]", "s[12:13]", "s[14:15]", "s[16:17]", "s[20:21]", "s[22:23]", "s[24:25]", "s[26:27]", "s[28:29]", "s[30:31]"
SEL_LO, SEL_HI, MHI = "s40", "s41", "s42"
R = lambda a_, n: list(range(a_, a_ + n))

a = Asm()
uid = [0]
def lab(p):
    uid[0] += 1
    return f"L_{p}_{uid[0]}"

DIAG = [int(x) for x in opts["diag"].split(",")] if "diag" in opts else None
if DIAG: DEBUG = 1
GSTAT = [int(x) for x in opts["gstat"].split(",")] if "gstat" in opts else None
if GSTAT: DEBUG = 1
def ts(k):
    if DIAG and k not in (0, DIAG[2]): return
    if GSTAT and k not in (0, GSTAT[0]): return
    if HDBG and k not in (0, 15): return
    if DEBUG: a(f"s_memrealtime s[{64+2*k}:{65+2*k}]")

def end_wave():
    if DEBUG:
        ts(15)
        a("s_branch L_dump")
    else:
        a("s_endpgm")
    a.flush_hist()

def sleep():
    if SLEEP: a(f"s_sleep {SLEEP}")

DPPM = "row_mask:0xf bank_mask:0xf"
def wave_sum2(x, y, sx, sy):
    for m in ("quad_perm:[1,0,3,2]", "quad_perm:[2,3,0,1]", "row_half_mirror", "row_mirror"):
        a(f"v_add_f32_dpp {x}, {x}, {x} {m} {DPPM}")
        a(f"v_add_f32_dpp {y}, {y}, {y} {m} {DPPM}")
    a(f"v_add_f32_dpp {x}, {x}, {x} row_bcast:15 row_mask:0xa bank_mask:0xf")
    a(f"v_add_f32_dpp {y}, {y}, {y} row_bcast:15 row_mask:0xa bank_mask:0xf")
    a(f"v_add_f32_dpp {x}, {x}, {x} row_bcast:31 row_mask:0xc bank_mask:0xf")
    a(f"v_add_f32_dpp {y}, {y}, {y} row_bcast:31 row_mask:0xc bank_mask:0xf")
    if sx:
        a(f"v_readlane_b32 {sx}, {x}, 63")
        a(f"v_readlane_b32 {sy}, {y}, 63")

def bf16r(x):
    a(f"v_cvt_pk_bf16_f32 {x}, {x}, {x}")
    a(f"v_and_b32 {x}, {MHI}, {x}")

def ln_finish(vsum, vsq, vm, vr, t):
    a(f"v_mov_b32 {t}, {f32(1.0/448)}")
    a(f"v_mul_f32 {vm}, {vsum}, {t}")
    a(f"v_mul_f32 {vr}, {vsq}, {t}")
    a(f"v_fma_f32 {vr}, -{vm}, {vm}, {vr}")
    a(f"v_max_f32 {vr}, 0, {vr}")
    a(f"v_cvt_pk_bf16_f32 {t}, {vm}, {vr}")
    a(f"v_lshlrev_b32 {vm}, 16, {t}")
    a(f"v_and_b32 {vr}, {MHI}, {t}")
    a(f"v_add_f32 {vr}, {f32(1e-5)}, {vr}")
    bf16r(vr)
    a(f"v_sqrt_f32 {vr}, {vr}")
    bf16r(vr)
    a(f"v_rcp_f32 {vr}, {vr}")

def ln_apply(lo, hi, vm, vr, dst):
    a(f"v_sub_f32 {lo}, {lo}, {vm}")
    a(f"v_sub_f32 {hi}, {hi}, {vm}")
    a(f"v_cvt_pk_bf16_f32 {dst}, {lo}, {hi}")
    a(f"v_lshlrev_b32 {lo}, 16, {dst}")
    a(f"v_and_b32 {hi}, {MHI}, {dst}")
    a(f"v_mul_f32 {lo}, {lo}, {vr}")
    a(f"v_mul_f32 {hi}, {hi}, {vr}")
    a(f"v_cvt_pk_bf16_f32 {dst}, {lo}, {hi}")

def perm_pair(A, B, outs):
    for k in range(4):
        a(f"v_perm_b32 v{outs[2*k]}, v{B+k}, v{A+k}, {SEL_LO}")
        a(f"v_perm_b32 v{outs[2*k+1]}, v{B+k}, v{A+k}, {SEL_HI}")

def reduce8_hi(acc, dst, full_row=False):
    for k in range(4):
        a(f"v_permlane32_swap_b32 v{acc[2*k]}, v{acc[2*k+1]}")
    for k in range(4):
        a(f"v_add_f32 v{acc[2*k]}, v{acc[2*k]}, v{acc[2*k+1]}")
    a(f"v_permlane16_swap_b32 v{acc[0]}, v{acc[2]}")
    a(f"v_permlane16_swap_b32 v{acc[4]}, v{acc[6]}")
    a(f"v_add_f32 v{acc[0]}, v{acc[0]}, v{acc[2]}")
    a(f"v_add_f32 v{acc[4]}, v{acc[4]}, v{acc[6]}")
    if full_row:
        for m in ("row_ror:4", "row_ror:8"):
            a(f"v_add_f32_dpp v{acc[0]}, v{acc[0]}, v{acc[0]} {m} {DPPM}")
            a(f"v_add_f32_dpp v{acc[4]}, v{acc[4]}, v{acc[4]} {m} {DPPM}")
    else:
        a(f"v_add_f32_dpp v{dst}, v{acc[0]}, v{acc[0]} row_ror:8 row_mask:0xf bank_mask:0x3")
        a(f"v_add_f32_dpp v{dst}, v{acc[4]}, v{acc[4]} row_ror:8 row_mask:0xf bank_mask:0xc")

def dots16(P0, P1, x0, x1, acc):
    for j in range(8):
        a(f"v_dot2_f32_bf16 v{acc[j]}, v{P0[j]}, {x0}, 0")
    for j in range(8):
        a(f"v_dot2_f32_bf16 v{acc[j]}, v{P1[j]}, {x1}, v{acc[j]}")

def spin_head(p):
    lp, dn = lab(p), lab(p + "d")
    a(f"s_mov_b32 s38, {SPIN}")
    a(f"{lp}:")
    return lp, dn

def spin_tail(h, slp=False):
    lp, dn = h
    a(f"s_cbranch_scc1 {dn}")
    if slp: sleep()
    a("s_sub_u32 s38, s38, 1")
    a("s_cmp_eq_u32 s38, 0")
    a(f"s_cbranch_scc0 {lp}")
    a(f"{dn}:")

def xlane(op, x, t, steps):
    for s in steps:
        if s in ("p16", "p32"):
            a(f"v_mov_b32 {t}, {x}")
            a(f"v_permlane{s[1:]}_swap_b32 {x}, {t}")
            a(f"{op} {x}, {x}, {t}")
        else:
            m = {"q3": "quad_perm:[3,2,1,0]", "q1": "quad_perm:[1,0,3,2]", "q2": "quad_perm:[2,3,0,1]", "hm": "row_half_mirror",
                 "r4": "row_ror:4", "r8": "row_ror:8", "rm": "row_mirror"}[s]
            a(f"{op}_dpp {x}, {x}, {x} {m} {DPPM}")

def poll(name, loads, checks, pre=None, post=None):
    n = len(loads)
    P = [f"s[{46+2*i}:{47+2*i}]" for i in range(n)]
    for p in P: a(f"s_mov_b64 {p}, -1")
    h = spin_head(name)
    if pre: a(pre)
    for i in range(n):
        sk = lab(name + "s")
        a(f"s_mov_b64 exec, {P[i]}")
        a(f"s_cbranch_execz {sk}")
        a(loads[i])
        a(f"{sk}:")
    a("s_mov_b64 exec, -1")
    if post: a(post)
    a("s_waitcnt vmcnt(0)")
    for i in range(n): checks[i](P[i])
    if n == 1: a(f"s_cmp_eq_u64 {P[0]}, 0")
    else:
        a(f"s_or_b64 s[34:35], {P[0]}, {P[1]}")
        for p in P[2:]: a(f"s_or_b64 s[34:35], s[34:35], {p}")
        a("s_cmp_eq_u64 s[34:35], 0")
    spin_tail(h, True)

def poll2(name, loads, checks, nhook, hook):
    n = len(loads)
    P = [f"s[{76+2*i}:{77+2*i}]" if not DEBUG else f"s[{46+2*i}:{47+2*i}]" for i in range(n)]
    P = [f"s[{46+2*i}:{47+2*i}]" for i in range(n)]
    lp, dn, chk, nh = lab(name), lab(name + "d"), lab(name + "c"), lab(name + "h")
    a(f"s_mov_b32 s38, {SPIN}")
    a("s_mov_b32 s60, 0")
    a(f"s_branch {chk}")
    a(f"{lp}:")
    for i in range(n):
        sk = lab(name + "s")
        a(f"s_mov_b64 exec, {P[i]}")
        a(f"s_cbranch_execz {sk}")
        a(loads[i])
        a(f"{sk}:")
    a("s_mov_b64 exec, -1")
    a(f"{chk}:")
    a("s_waitcnt vmcnt(0)")
    for i in range(nhook, n): checks[i](P[i])
    a("s_cmp_eq_u32 s60, 1")
    a(f"s_cbranch_scc1 {nh}")
    for i in range(nhook): checks[i](P[i])
    a(f"s_or_b64 s[34:35], {P[0]}, {P[1]}")
    for p in P[2:nhook]: a(f"s_or_b64 s[34:35], s[34:35], {p}")
    a("s_cmp_eq_u64 s[34:35], 0")
    a(f"s_cbranch_scc0 L_{name}_again")
    hook()
    a("s_mov_b32 s60, 1")
    a(f"{nh}:")
    a(f"s_or_b64 s[34:35], {P[nhook]}, {P[nhook+1]}")
    a("s_cmp_eq_u64 s[34:35], 0")
    a(f"s_cbranch_scc1 {dn}")
    a(f"L_{name}_again:")
    a("s_sub_u32 s38, s38, 1")
    a("s_cmp_eq_u32 s38, 0")
    a(f"s_cbranch_scc0 {lp}")
    a(f"{dn}:")

PAR = opts.get("par", "")
def blk(ch):
    if "par" not in opts: return
    a.raw(f".p2align {opts.get('pal', 3)}")
    if ch in PAR: a.raw("    s_nop 0")

def chk_sent4(r, t):
    def f(sp):
        a(f"v_max3_u32 {t}, v{r}, v{r+1}, v{r+2}")
        a(f"v_max_u32 {t}, {t}, v{r+3}")
        a(f"v_cmp_eq_u32 {sp}, -1, {t}")
    return f
def chk_tag(regs, t):
    def f(sp):
        if len(regs) == 1: a(f"v_cmp_ne_u32 {sp}, s6, v{regs[0]}")
        else:
            a(f"v_xor_b32 {t}, v{regs[0]}, v{regs[1]}")
            a(f"v_cmp_ne_u32 {sp}, s6, v{regs[0]}")
            a(f"v_cmp_ne_u32 vcc, 0, {t}")
            a(f"s_or_b64 {sp}, {sp}, vcc")
    return f

def lds_flag_wait(name, off, nwords, extra_reads, expect, zero, tmpbase, ge=False):
    h = spin_head(name)
    for q in range(nwords // 4):
        a(f"ds_read_b128 v[{tmpbase+4*q}:{tmpbase+4*q+3}], {zero} offset:{L_FL+off+16*q}")
    for x in extra_reads: a(x)
    a("s_waitcnt lgkmcnt(0)")
    t = tmpbase
    a(f"v_add3_u32 v{t}, v{t}, v{t+1}, v{t+2}")
    if nwords == 4: a(f"v_add_u32 v{t}, v{t}, v{t+3}")
    else:
        a(f"v_add3_u32 v{t+4}, v{t+4}, v{t+5}, v{t+6}")
        a(f"v_add3_u32 v{t}, v{t}, v{t+3}, v{t+7}")
        a(f"v_add_u32 v{t}, v{t}, v{t+4}")
    a(f"v_cmp_{'gt' if ge else 'ne'}_u32 vcc, {expect}, v{t}")
    a("s_cmp_eq_u64 vcc, 0")
    spin_tail(h)

hdr = open(f"cdna_kernels/{NAME}.s.ref").read().split("; Override launch")[0]
a.raw(hdr.rstrip())
a.raw(f"; @launch grid=(256,1,1) block=(768,1,1) lds={LDS_BYTES}")
a.raw("""; Design summary (generated by a hand-written Python emitter, one persistent kernel, 256 workgroups x 12 waves):
;   1. all WGs: LN1 + a 112x64 tile of x@wq -> tagged {value,tag} granules in d_ws (tag = next LCG value of d_ws[0], written back at the end)
;   2. attention WGs: QK (dot2), softmax with the true chunk max, PV (MFMA); publish normalised partial o (bf16) + log-sum-exp
;   a same-die copy of a hand-off is used only after comparing the producers' and the consumer's XCC ids. All spins are bounded.""")
a.raw('.amdgcn_target "amdgcn-amd-amdhsa--gfx950"')
a.raw(".text")
a.raw(f".globl {NAME}_kernel\n.p2align 8\n.type {NAME}_kernel,@function\n{NAME}_kernel:")


WARM = int(opts.get("warm", 0))
FAST = int(opts.get("fast", 1)); FASTQ = int(opts.get("fastq", 1))
pads = []
def pad(name, over=False):
    if not WARM: return
    if over: a(f"s_branch L_padskip_{name}")
    a(f"L_pad_{name}:")
    a("s_setpc_b64 s[62:63]")
    if over: a(f"L_padskip_{name}:")
    pads.append(name)
def touch(*names):
    if not WARM: return
    for n in names: a(f"s_call_b64 s[62:63], L_pad_{n}")

N0 = int(opts.get("n0", 7)); S1G = int(opts.get("s1g", 2)); AD = int(opts.get("ad", 16)); VD = int(opts.get("vd", 16)); VN = int(opts.get("vn", 0)); KVW = int(opts.get("kvw", 4))
a("s_cmp_ge_u32 s2, 256")
a("s_cbranch_scc1 L_end")
a("s_load_dwordx16 s[8:23], s[0:1], 0")
a("s_load_dwordx8 s[24:31], s[0:1], 64")
ts(0)
a("v_lshrrev_b32 v2, 6, v0")
a("v_and_b32 v1, 63, v0")
a("s_and_b32 s4, s2, 7")
a("s_lshr_b32 s5, s2, 3")
a("v_readfirstlane_b32 s3, v2")
a("v_lshrrev_b32 v3, 3, v1")
a("v_and_b32 v4, 7, v1")
a("v_mov_b32 v5, 0")
a("v_lshlrev_b32 v6, 2, v1")
a(f"ds_write_b32 v6, v5 offset:{L_FL}")
a("s_lshr_b32 s39, s5, 1")
a("s_and_b32 s33, s5, 1")
a("s_cmp_ge_u32 s3, 4")
a("s_cbranch_scc1 L_hi")
a("s_lshr_b32 s44, s5, 3")
a("s_and_b32 s45, s5, 7")
a("v_min_u32 v6, 55, v1")
a("v_lshlrev_b32 v6, 4, v6")
a("s_lshl_b32 s48, s3, 5")
a("v_lshl_add_u32 v15, v3, 2, s48")
a("v_min_u32 v14, 108, v15")
a("s_mul_i32 s47, s44, 112")
a("v_add_u32 v14, s47, v14")
a("v_lshlrev_b32 v12, 1, v14")
a("s_lshl_b32 s51, s4, 10")
a("s_lshl_b32 s52, s45, 7")
a("s_add_u32 s51, s51, s52")
a("v_lshl_add_u32 v32, v4, 4, s51")
a("v_lshl_add_u32 v32, v14, 13, v32")
a("v_add_u32 v33, 0x2000, v32")
a("v_add_u32 v34, 0x4000, v32")
a("v_add_u32 v35, 0x6000, v32")
a("s_waitcnt lgkmcnt(0)")
EPE = int(opts.get("epe", 0))
if EPE: a(f"s_load_dword s6, {WS}, 0")
a(f"global_load_dwordx4 v[36:39], v6, {X}")
a(f"global_load_dwordx2 v[12:13], v12, {X}")
for i in range(4):
    a(f"global_load_dwordx4 v[{16+4*i}:{19+4*i}], v{32+i}, {WQ}{NTQ}")
a("s_barrier")
a("s_branch L_s1")
a.flush_hist()
a("L_hi:")
N1 = int(opts.get("n1", 8)); HQ = int(opts.get("hq", 8));
a("s_lshl_b32 s43, s4, 22")
a("s_lshl_b32 s7, s39, 16")
a("s_add_u32 s43, s43, s7")
a(f"s_add_u32 s43, s43, {6144*512}")
a("s_and_b32 s44, s3, 3")
a("s_lshr_b32 s7, s3, 3")
a("s_cmp_eq_u32 s7, s33")
a("s_cbranch_scc0 L_B_hi")
a("s_lshl_b32 s47, s44, 11")
a("s_add_u32 s46, s43, s47")
a("v_lshlrev_b32 v6, 13, v3")
a("v_lshl_add_u32 v6, v4, 4, v6")
a("v_add_u32 v6, s46, v6")
KA = int(opts.get("ka", 12))
KB = 16 - KA
HI = int(opts.get("hi", 99))
a(f"s_mul_i32 s7, s33, {KA*128}")
a("v_add_u32 v7, s7, v6")
a("s_waitcnt lgkmcnt(0)")
for i in range(KA):
    if i == min(N0, KB): a("s_barrier")
    if i == KB:
        a("s_cmp_eq_u32 s33, 1")
        a("s_cbranch_scc1 L_A_k1")
    if i >= N0: a(f"s_waitcnt vmcnt({N0-1})")
    if i == HI:
        a("s_lshl_b32 s7, s44, 2")
        a("v_mov_b32 v45, s7")
        a("v_mov_b32 v46, 1")
        a(f"ds_write_b32 v45, v46 offset:{L_FL+0x80}")
    a(f"global_load_dwordx4 v[{64+4*i}:{67+4*i}], v7, {K} offset:{i*128}{NTK if i >= KB else NT}")
a("s_branch L_A_k1")
a.flush_hist()
a("L_B_hi:")
if int(opts.get("cpf", 1)):
    a("s_getpc_b64 s[36:37]")
    a("L_pc:")
    a("v_and_b32 v5, 255, v0")
    a("v_lshlrev_b32 v5, 7, v5")
    a("v_cmp_gt_u32 vcc, L_codeend-L_pc, v5")
    a("v_cndmask_b32 v5, 0, v5, vcc")
    a("global_load_dword v167, v5, s[36:37]")
if WARM:
    for u_, n_ in enumerate(("s1b", "s1c", "k1", "v2", "bh2", "h1", "wo1", "ffn1")):
        sk = lab("et")
        a(f"s_cmp_eq_u32 s3, {11-u_}")
        a(f"s_cbranch_scc0 {sk}")
        touch(n_)
        a(f"{sk}:")
a("s_waitcnt lgkmcnt(0)")
if int(opts.get("kick", 0)):
    a("s_load_dword s55, s[10:11], s43")
    a("s_load_dword s56, s[14:15], 0")
    a("s_mov_b32 s7, 3670012")
    a("s_load_dword s57, s[14:15], s7")
    a("s_mov_b32 s7, 1835008")
    a("s_load_dword s58, s[14:15], s7")
    a("s_load_dword s59, s[30:31], 128")
    a("s_load_dword s60, s[12:13], s43")
a("s_barrier")
if int(opts.get("tw", 1)):
    a("s_mul_i32 s7, s4, 458752")
    a("s_load_dword s46, s[16:17], s7")
    a("s_add_u32 s7, s7, 458748")
    a("s_load_dword s47, s[16:17], s7")
    a("s_load_dword s48, s[20:21], 0")
    a("s_mov_b32 s7, 1605628")
    a("s_load_dword s49, s[20:21], s7")
    a("s_mul_i32 s7, s4, 200704")
    a("s_load_dword s50, s[24:25], s7")
    a("s_add_u32 s7, s7, 200700")
    a("s_load_dword s51, s[24:25], s7")
    a("s_load_dword s52, s[22:23], 0")
    a("s_load_dword s53, s[26:27], 0")
    a("s_load_dword s54, s[12:13], s43")
    a("s_waitcnt lgkmcnt(0)")
a("s_cmp_eq_u32 s33, 1")
a("s_cbranch_scc0 L_A_v")
a("s_branch L_B_hi2")
a.flush_hist()
blk("S")
a("L_s1:")
if DEBUG:
    for k in range(1, 16): a(f"s_mov_b64 s[{64+2*k}:{65+2*k}], 0")
ts(1)
a(f"s_mov_b32 {SEL_LO}, 0x05040100")
a(f"s_mov_b32 {SEL_HI}, 0x07060302")
a(f"s_mov_b32 {MHI}, 0xffff0000")
a("v_lshlrev_b32 v2, 3, v4")
a("v_bfe_u32 v5, v1, 3, 1")
a("v_lshl_add_u32 v2, v5, 2, v2")
a("v_bfe_u32 v5, v1, 4, 1")
a("v_lshl_add_u32 v2, v5, 1, v2")
a("v_lshrrev_b32 v5, 5, v1")
a("v_add_u32 v2, v2, v5")
a("s_lshl_b32 s7, s3, 2")
a("v_mov_b32 v10, s7")
a("v_mov_b32 v11, 1")
a("v_cmp_gt_u32 vcc, 112, v15")
a("s_mov_b64 s[34:35], vcc")
if not EPE:
    a("s_cmp_lg_u32 s3, 3")
    a("s_cbranch_scc1 L_s1_noep")
    a(f"s_load_dword s6, {WS}, 0")
    a("L_s1_noep:")
a("v_cmp_gt_u32 vcc, 56, v1")
a("s_waitcnt vmcnt(5)")
for k in range(4):
    a(f"v_lshlrev_b32 v{40+2*k}, 16, v{36+k}")
    a(f"v_and_b32 v{41+2*k}, {MHI}, v{36+k}")
a("v_add_f32 v48, v40, v41")
a("v_mul_f32 v49, v40, v40")
a("v_add_f32 v50, v42, v43")
a("v_mul_f32 v51, v42, v42")
a("v_fmac_f32 v49, v41, v41")
a("v_fmac_f32 v51, v43, v43")
a("v_add_f32 v48, v48, v44")
a("v_add_f32 v50, v50, v46")
a("v_fmac_f32 v49, v44, v44")
a("v_fmac_f32 v51, v46, v46")
a("v_add_f32 v48, v48, v45")
a("v_add_f32 v50, v50, v47")
a("v_fmac_f32 v49, v45, v45")
a("v_fmac_f32 v51, v47, v47")
a("v_add_f32 v48, v48, v50")
a("v_add_f32 v49, v49, v51")
a("v_cndmask_b32 v48, 0, v48, vcc")
a("v_cndmask_b32 v49, 0, v49, vcc")
wave_sum2("v48", "v49", "s54", "s55")
ln_finish("s54", "s55", "v50", "v51", "v52")
pad("s1b", over=True)
a("s_waitcnt vmcnt(4)")
a("v_lshlrev_b32 v40, 16, v12")
a(f"v_and_b32 v41, {MHI}, v12")
a("v_lshlrev_b32 v42, 16, v13")
a(f"v_and_b32 v43, {MHI}, v13")
for k in range(4): a(f"v_sub_f32 v{40+k}, v{40+k}, v50")
a("v_cvt_pk_bf16_f32 v12, v40, v41")
a("v_cvt_pk_bf16_f32 v13, v42, v43")
a("v_lshlrev_b32 v40, 16, v12")
a(f"v_and_b32 v41, {MHI}, v12")
a("v_lshlrev_b32 v42, 16, v13")
a(f"v_and_b32 v43, {MHI}, v13")
for k in range(4): a(f"v_mul_f32 v{40+k}, v{40+k}, v51")
a("v_cvt_pk_bf16_f32 v12, v40, v41")
a("v_cvt_pk_bf16_f32 v13, v42, v43")
a("v_cndmask_b32 v12, 0, v12, s[34:35]")
a("v_cndmask_b32 v13, 0, v13, s[34:35]")
a("v_lshlrev_b32 v5, 2, v0")
a("v_mov_b32 v6, 0")
a("s_waitcnt vmcnt(2)")
perm_pair(16, 20, R(40, 8))
for j in range(8): a(f"v_dot2_f32_bf16 v{56+j}, v{40+j}, v12, 0")
a("s_waitcnt vmcnt(0)")
ts(2)
perm_pair(24, 28, R(48, 8))
for j in range(8): a(f"v_dot2_f32_bf16 v{56+j}, v{48+j}, v13, v{56+j}")
reduce8_hi(R(56, 8), 40)
a("s_cmp_eq_u32 s3, 3")
a("s_cbranch_scc1 L_s1_coll")
a(f"ds_write_b32 v5, v40 offset:{L_S1}")
a(f"ds_write_b32 v10, v11 offset:{L_FL}")
if not EPE: a(f"s_load_dword s6, {WS}, 0")
a("s_branch L_s1_done")
a.flush_hist()
pad("s1c")
a("L_s1_coll:")
a("v_lshlrev_b32 v5, 2, v1")
a("s_lshl_b32 s7, s4, 14")
a("s_lshl_b32 s51, s45, 11")
a("s_add_u32 s7, s7, s51")
a("s_lshl_b32 s51, s44, 9")
a("s_add_u32 s7, s7, s51")
a(f"s_add_u32 s7, s7, {QG}")
a("v_lshl_add_u32 v8, v2, 3, s7")
lds_flag_wait("s1", 0, 4, [f"ds_read_b32 v{41+w}, v5 offset:{L_S1+256*w}" for w in range(3)], 3, "v6", 56)
a("s_mul_i32 s7, s6, 0x9e3779b1\ns_add_u32 s7, s7, 0x7f4a7c15")
a("v_add_f32 v40, v40, v41")
a("v_add_f32 v42, v42, v43")
a("v_mov_b32 v41, s7")
a("v_add_f32 v40, v40, v42")
if FASTQ:
    a(f"v_add_u32 v9, {FO}, v8")
    a(f"global_store_dwordx2 v9, v[40:41], {WS}")
a(f"global_store_dwordx2 v8, v[40:41], {WS} sc1")
a(f"ds_write_b32 v6, v11 offset:{L_FL+0x60}")
if opts.get("ack"):
    ts(3)
    a("s_waitcnt vmcnt(1)")
    ts(10)
    a("s_waitcnt vmcnt(0)")
    ts(11)
    a("s_branch L_s1_done2")
a("L_s1_done:")
ts(3)
a("L_s1_done2:")
a("s_cmp_eq_u32 s33, 1")
a("s_cbranch_scc1 L_B_go")

a("s_setprio 3")
a("s_lshl_b32 s7, s4, 14")
a("s_lshl_b32 s51, s3, 12")
a("s_add_u32 s7, s7, s51")
a(f"s_add_u32 s7, s7, {QG}")
a("v_lshl_add_u32 v9, v1, 4, s7")
a("s_lshl_b32 s7, s3, 8")
a("v_lshl_add_u32 v8, v1, 2, s7")
a("s_cmp_lg_u32 s3, 0")
a("s_cbranch_scc1 L_A_h2")
a("s_lshl_b32 s7, s4, 14")
a("s_lshl_b32 s51, s39, 9")
a("s_add_u32 s7, s7, s51")
a(f"s_add_u32 s7, s7, {OP}")
a("v_lshrrev_b32 v5, 5, v1")
a("v_lshlrev_b32 v5, 13, v5")
a("v_and_b32 v7, 31, v1")
a("v_lshl_add_u32 v5, v7, 4, v5")
a("v_add_u32 v5, s7, v5")
a("v_mov_b32 v12, -1\nv_mov_b32 v13, -1\nv_mov_b32 v14, -1\nv_mov_b32 v15, -1")
a(f"global_store_dwordx4 v5, v[12:15], {WS} sc1")
if FAST:
    a("s_lshl_b32 s7, s4, 14")
    a("s_lshl_b32 s51, s39, 4")
    a("s_add_u32 s7, s7, s51")
    a(f"s_add_u32 s7, s7, {FO+OP}")
    a("v_lshl_add_u32 v5, v1, 8, s7")
    a(f"global_store_dwordx4 v5, v[12:15], {WS}")
a("s_getreg_b32 s52, hwreg(HW_REG_XCC_ID)")
a("s_lshl_b32 s7, s4, 11")
a("s_lshl_b32 s51, s39, 7")
a("s_add_u32 s7, s7, s51")
a(f"s_add_u32 s7, s7, {RDA}")
a("v_mov_b32 v5, s7")
a("s_waitcnt vmcnt(0) lgkmcnt(0)")
a("s_mul_i32 s7, s6, 0x9e3779b1\ns_add_u32 s7, s7, 0x7f4a7c15")
a("v_mov_b32 v12, s7")
a("v_mov_b32 v13, s52")
a("s_mov_b64 exec, 1")
a(f"global_store_dwordx2 v5, v[12:13], {WS} sc1")
a("s_mov_b64 exec, -1")
a("L_A_h2:")
if int(opts.get("hg", 1)): lds_flag_wait("hg", 0x80, 4, [], 4, "v6", 56)
a("s_waitcnt lgkmcnt(0)")
a("s_mul_i32 s6, s6, 0x9e3779b1\ns_add_u32 s6, s6, 0x7f4a7c15")
ts(8)
QALT = int(opts.get("qalt", 3))
if QALT: a("v_mov_b32 v7, v9")
poll("qp", [f"global_load_dwordx4 v[{48+4*i}:{51+4*i}], v9, {WS} offset:{i*1024} sc1" for i in range(4)],
     [chk_tag([49+4*i, 51+4*i], "v5") for i in range(4)], pre=((f"s_and_b32 s7, s38, {QALT}\ns_cmp_eq_u32 s7, 1\ns_cselect_b32 s7, 0, {FO}\nv_add_u32 v9, s7, v7" if QALT else f"v_xor_b32 v9, {FO}, v9") if FASTQ else None),
     post=(f"ds_write_b32 v10, v11 offset:{L_FL+0x30}" if opts.get("vg") == "48" else None))
ts(4)
a("v_add_f32 v48, v48, v52")
a("v_add_f32 v50, v50, v54")
a("v_add_f32 v56, v56, v60")
a("v_add_f32 v58, v58, v62")
a("v_permlane32_swap_b32 v48, v56")
a("v_permlane32_swap_b32 v50, v58")
a("v_add_f32 v48, v48, v56")
a("v_add_f32 v50, v50, v58")
a("v_cvt_pk_bf16_f32 v48, v48, v50")
a(f"ds_write_b32 v8, v48 offset:{L_Q}")
a(f"ds_write_b32 v10, v11 offset:{L_FL+0x20}")
ts(5)
a("s_cmp_eq_u32 s3, 0")
a("s_cbranch_scc1 L_A_soft")
APF = int(opts.get("apf", 0))
if APF:
    lds_flag_wait("aq", 0x20, 4, [], 4, "v6", 56)
    a("s_mul_i32 s7, s4, 458752")
    a("s_mul_i32 s51, s39, 28672")
    a("s_add_u32 s7, s7, s51")
    a("s_sub_u32 s51, s3, 1")
    a("s_mul_i32 s51, s51, 9216")
    a("s_add_u32 s7, s7, s51")
    a("v_lshl_add_u32 v5, v1, 4, s7")
    a("v_add_u32 v7, 0x1000, v5")
    a("v_add_u32 v8, 0x2000, v5")
    for i in range(10):
        r = (5, 7, 8)[i >> 2]
        a(f"global_load_dwordx4 v[{64+4*i}:{67+4*i}], v{r}, {WO} offset:{(i&3)*1024}{NTW}")
    a(f"ds_write_b32 v10, v11 offset:{L_FL+0x90}")
end_wave()
pad("h1")
blk("O")
a("L_A_soft:")
a("v_lshlrev_b32 v5, 4, v1")
a("v_lshlrev_b32 v7, 3, v1")
a("s_lshl_b32 s7, s4, 11")
a("s_lshl_b32 s51, s39, 7")
a("s_add_u32 s7, s7, s51")
a(f"s_add_u32 s7, s7, {LSE}")
a("v_lshrrev_b32 v12, 5, v1")
a("s_lshl_b32 s51, s4, 8")
a("s_lshl_b32 s52, s39, 3")
a("s_add_u32 s51, s51, s52")
a(f"s_add_u32 s51, s51, {FO+LSE}")
a("v_lshl_add_u32 v13, v12, 7, s51")
a("v_lshl_add_u32 v12, v12, 3, s7")
a("v_mov_b32 v33, s6")
a("s_mov_b32 s34, 1")
a("s_mov_b32 s35, 1")
if int(opts.get("hprio", 1)): a("s_setprio 1")
lds_flag_wait("sc", 0x40, 4, [f"ds_read_b128 v[16:19], v5 offset:{L_SC}"], 4, "v6", 56)
if int(opts.get("hprio", 1)): a("s_setprio 3")
ts(6)
a("v_max3_f32 v32, v16, v17, v18")
a("v_max_f32 v32, v32, v19")
xlane("v_max_f32", "v32", "v34", ["q1", "q2", "hm", "rm", "p16"])
for e in range(4): a(f"v_sub_f32 v{16+e}, v{16+e}, v32")
for e in range(4): a(f"v_exp_f32 v{16+e}, v{16+e}")
a("v_add_f32 v35, v16, v17")
a("v_add_f32 v36, v18, v19")
a("v_add_f32 v35, v35, v36")
xlane("v_add_f32", "v35", "v34", ["q1", "q2", "hm", "rm", "p16"])
a("v_rcp_f32 v36, v35")
a("v_log_f32 v35, v35")
for e in range(4): a(f"v_mul_f32 v{16+e}, v{16+e}, v36")
a("v_cvt_pk_bf16_f32 v16, v16, v17")
a("v_cvt_pk_bf16_f32 v17, v18, v19")
a(f"ds_write_b64 v7, v[16:17] offset:{L_P}")
a(f"ds_write_b32 v6, v11 offset:{L_FL+0x50}")
a("v_add_f32 v32, v32, v35")
a("s_mov_b64 exec, s[34:35]")
if FAST:
    a(f"global_store_dwordx2 v13, v[32:33], {WS}")
a(f"global_store_dwordx2 v12, v[32:33], {WS} sc1")
a("s_mov_b64 exec, -1")
ts(7)
if int(opts.get("fpf", 1)):
    a("s_setprio 0")
    a("s_mul_i32 s7, s39, 28*3584")
    a("s_mul_i32 s51, s4, 448")
    a("s_add_u32 s7, s7, s51")
    a("v_min_u32 v16, 6, v4")
    a("v_min_u32 v17, 6, v3")
    a("v_mul_u32_u24 v17, 3584, v17")
    a("v_lshl_add_u32 v17, v16, 6, v17")
    a("v_add_u32 v17, s7, v17")
    a("s_mul_i32 s7, s4, 200704")
    a("s_mul_i32 s51, s39, 12544")
    a("s_add_u32 s7, s7, s51")
    a("v_min_u32 v18, 48, v1")
    a("v_lshl_add_u32 v18, v18, 6, s7")
    lds_flag_wait("fp", 0xA0, 4, [], 4, "v6", 56)
    for u_ in range(4):
        a(f"global_load_dword v{40+u_}, v17, {W1}{NTW}")
        a(f"global_load_dword v{44+u_}, v18, {W2}{NTW}")
        if u_ < 3:
            a(f"v_add_u32 v17, {7*3584}, v17")
            a("v_add_u32 v18, 3136, v18")
end_wave()

pad("k1")
blk("K")
a("L_A_k1:")
a("s_lshl_b32 s7, s44, 2")
a("v_mov_b32 v45, s7")
a("v_mov_b32 v46, 1")
a("v_mov_b32 v47, 0")
if DEBUG:
    for k in range(1, 16): a(f"s_mov_b64 s[{64+2*k}:{65+2*k}], 0")
a("s_cmp_eq_u32 s33, 1")
a("s_cbranch_scc1 L_B_pf")
KG = int(opts.get("kg", 3))
a(f"s_waitcnt vmcnt({KG})")
ts(1)
a(f"ds_write_b32 v45, v46 offset:{L_FL+0x80}")
for i in range(KA, 16):
    a(f"global_load_dwordx4 v[{64+4*i}:{67+4*i}], v6, {K} offset:{i*128}{NT}")
a(f"ds_write_b32 v45, v46 offset:{L_FL+0x70}")
ts(2)
a("L_A_k2:")
a(f"s_mov_b32 {MHI}, 0xffff0000")
a("s_lshl_b32 s7, s44, 4")
a(f"s_add_u32 s7, s7, {L_SC}")
a("v_lshl_add_u32 v44, v3, 6, s7")
a("v_mov_b32 v47, 0")
a("v_lshlrev_b32 v5, 4, v4")
for i in range(8): a(f"v_mov_b32 v{48+i}, 0")
a(f"s_mov_b32 s7, {f32(0.0625*LOG2E)}")
QR = [f"ds_read_b128 v[{128+(hh*4+j)*4}:{131+(hh*4+j)*4}], v5 offset:{L_Q + hh*512 + j*128}" for j in range(4) for hh in range(2)]
if int(opts.get("qsep", 1)):
    lds_flag_wait("qx", 0x20, 4, [], 4, "v47", 56)
    for x in QR: a(x)
else:
    lds_flag_wait("qx", 0x20, 4, QR, 4, "v47", 56)
a("s_setprio 2")
ts(4)
for gp in range(2):
    a(f"s_waitcnt vmcnt({8-8*gp})")
    if gp == 1: ts(5)
    for j in range(4):
        if gp == 0 and int(opts.get("qsep", 1)): a(f"s_waitcnt lgkmcnt({0 if DEBUG else 6-2*j})")
        for k in range(4):
            for grp in (2*gp, 2*gp+1):
                for hh in range(2):
                    if not (int(opts.get("noqk", 0)) and k): a(f"v_dot2c_f32_bf16 v{48+hh*4+grp}, v{64+(grp*4+j)*4+k}, v{128+(hh*4+j)*4+k}")
pad("k3", over=True)
for m in ("quad_perm:[1,0,3,2]", "quad_perm:[2,3,0,1]", "row_half_mirror"):
    for i in range(8):
        a(f"v_add_f32_dpp v{48+i}, v{48+i}, v{48+i} {m} {DPPM}")
for q in range(4): a(f"v_cvt_pk_bf16_f32 v{56+q}, v{48+2*q}, v{49+2*q}")
for q in range(4):
    a(f"v_lshlrev_b32 v{48+2*q}, 16, v{56+q}")
    a(f"v_and_b32 v{49+2*q}, {MHI}, v{56+q}")
for i in range(8): a(f"v_mul_f32 v{48+i}, s7, v{48+i}")
a("ds_write_b128 v44, v[48:51]")
a("ds_write_b128 v44, v[52:55] offset:512")
a(f"ds_write_b32 v45, v46 offset:{L_FL+0x40}")
ts(6)
if int(opts.get("wpf", 0)):
    a("s_setprio 0")
    a("s_mul_i32 s7, s4, 458752")
    a("s_mul_i32 s51, s39, 28672")
    a("s_add_u32 s7, s7, s51")
    a("s_mul_i32 s51, s44, 7168")
    a("s_add_u32 s7, s7, s51")
    a("v_lshl_add_u32 v5, v1, 4, s7")
    a("v_add_u32 v6, 0x1000, v5")
    for i in range(7):
        a(f"global_load_dwordx4 v[{64+4*i}:{67+4*i}], v{5+(i>>2)}, {WO} offset:{(i&3)*1024}{NTW}")
end_wave()

pad("v2")
blk("V")
a("L_A_v:")
if DEBUG:
    for k in range(1, 16): a(f"s_mov_b64 s[{64+2*k}:{65+2*k}], 0")
a(f"s_mov_b32 {SEL_LO}, 0x05040100")
a(f"s_mov_b32 {SEL_HI}, 0x07060302")
a("s_lshl_b32 s52, s44, 7")
a("s_add_u32 s51, s43, s52")
a("v_bfe_u32 v5, v1, 3, 1")
a("v_lshlrev_b32 v6, 14, v5")
a("v_lshrrev_b32 v10, 4, v1")
a("v_lshl_add_u32 v6, v10, 12, v6")
a("v_lshl_add_u32 v6, v4, 4, v6")
a("v_add_u32 v6, s51, v6")
a("v_add_u32 v7, 0x8000, v6")
a("v_mov_b32 v11, 0")
a("s_lshl_b32 s7, s4, 14")
a("s_lshl_b32 s51, s39, 9")
a("s_add_u32 s7, s7, s51")
a("s_add_u32 s7, s7, s52")
a(f"s_add_u32 s7, s7, {OP}")
a("v_lshlrev_b32 v8, 13, v5")
a("v_lshl_add_u32 v8, v4, 4, v8")
a("v_add_u32 v8, s7, v8")
a("s_lshl_b32 s7, s4, 14")
a("s_lshl_b32 s51, s44, 11")
a("s_add_u32 s7, s7, s51")
a("s_lshl_b32 s51, s39, 4")
a("s_add_u32 s7, s7, s51")
a(f"s_add_u32 s7, s7, {FO+OP}")
a("v_lshlrev_b32 v12, 13, v5")
a("v_lshl_add_u32 v12, v4, 8, v12")
a("v_add_u32 v12, s7, v12")
a("s_lshl_b32 s7, s44, 2")
a("v_mov_b32 v13, s7")
a("v_mov_b32 v14, 1")
a("v_lshrrev_b32 v5, 1, v1")
a("v_xor_b32 v5, v5, v1")
a("v_and_b32 v5, 1, v5")
a("v_lshlrev_b32 v9, 8, v5")
a("v_and_b32 v5, 1, v1")
a("v_lshl_add_u32 v9, v5, 6, v9")
a("v_lshl_add_u32 v9, v10, 4, v9")
if WARM:
    for u_, names in enumerate((("h1",), ("k3",), ("v3",), ("v4",))):
        sk = lab("vt")
        a(f"s_cmp_eq_u32 s44, {u_}")
        a(f"s_cbranch_scc0 {sk}")
        touch(*names)
        a(f"{sk}:")
lds_flag_wait("vg", int(opts.get("vg", 0x20)), 4, [], 3 if opts.get("vg") == "144" else 4, "v11", 32)
ts(1)
def vperm(t):
    if t < 4: perm_pair(40+8*t, 44+8*t, [104+4*j+t for j in range(8)])
    else: perm_pair(40+8*t, 44+8*t, [40+4*j+(t-4) for j in range(8)])
done_t = 0
for i in range(16):
    sg, e = divmod(i, 8)
    known = -1
    VSPLIT = int(opts.get("vsplit", 99))
    if i == VSPLIT: lds_flag_wait("v2g", 0x20, 4, [], 4, "v11", 32)
    if VD <= i < VN:
        a(f"s_waitcnt vmcnt({VD-1})"); known = i - VD
    a(f"global_load_dwordx4 v[{40+4*i}:{43+4*i}], v{6+sg}, {V} offset:{e*512}{NTV}")
    while 2*done_t+1 <= known and done_t < 4:
        vperm(done_t); done_t += 1
    if i == 9: pad("v3", over=True)
ts(2)
while done_t < 4:
    a(f"s_waitcnt vmcnt({14-2*done_t})"); vperm(done_t); done_t += 1
PRE = int(opts.get("vpre", 2))
for t in range(4, 4+PRE):
    a(f"s_waitcnt vmcnt({14-2*t})"); vperm(t)
ts(3)
pad("v4", over=True)
lds_flag_wait("pw", 0x50, 4, [f"ds_read_b128 v[16:19], v9 offset:{L_P}", f"ds_read_b128 v[20:23], v9 offset:{L_P+128}"], 1, "v11", 32)
a("s_setprio 3")
ts(6)
for j in range(8):
    a(f"v_mfma_f32_16x16x32_bf16 v[{136+4*j}:{139+4*j}], v[16:19], v[{104+4*j}:{107+4*j}], 0")
for t in range(4+PRE, 8):
    a(f"s_waitcnt vmcnt({14-2*t})")
    if t == 7: ts(7)
    vperm(t)
for j in range(8):
    a(f"v_mfma_f32_16x16x32_bf16 v[{136+4*j}:{139+4*j}], v[20:23], v[{40+4*j}:{43+4*j}], v[{136+4*j}:{139+4*j}]")
for j in range(8):
    d = 136 + 4*j
    a(f"v_add_f32_dpp v{24+j}, v{d+3}, v{d} row_ror:8 row_mask:0xf bank_mask:0x3")
    a(f"v_add_f32_dpp v{24+j}, v{d+2}, v{d+1} row_ror:8 row_mask:0xf bank_mask:0xc")
for t in range(4): a(f"v_cvt_pk_bf16_f32 v{36+t}, v{24+2*t}, v{25+2*t}")
for t in range(4): a(f"v_min_u32 v{36+t}, -2, v{36+t}")
a("s_mov_b64 exec, 0xffff")
if FAST: a(f"global_store_dwordx4 v12, v[36:39], {WS}")
a(f"global_store_dwordx4 v8, v[36:39], {WS} sc1")
a("s_mov_b64 exec, -1")
ts(8)
if opts.get("ack"):
    a("s_waitcnt vmcnt(1)")
    ts(10)
    a("s_waitcnt vmcnt(0)")
    ts(11)
a(f"ds_write_b32 v13, v14 offset:{L_FL+0xA0}")
end_wave()

blk("P")
a("L_B_pf:")
PD = int(opts.get("pd", 7)); PN = int(opts.get("pn", 6)); PW = int(opts.get("pw", 12)); XS = int(opts.get("xs", 0)); WPF2 = int(opts.get("wpf2", 1))
a("s_lshl_b32 s52, s44, 7")
a("s_add_u32 s51, s43, s52")
a("v_bfe_u32 v5, v1, 3, 1")
a("v_lshlrev_b32 v8, 14, v5")
a("v_lshrrev_b32 v10, 4, v1")
a("v_lshl_add_u32 v8, v10, 12, v8")
a("v_lshl_add_u32 v8, v4, 4, v8")
a("v_add_u32 v8, s51, v8")
a("v_add_u32 v9, 0x8000, v8")
XSW = int(opts.get("xsw", 0))
for n, i in enumerate(range(XS, 16)):
    if XSW and i == 16 - 2*XSW:
        a("s_cmp_lt_u32 s39, 7")
        a("s_cbranch_scc1 L_B_pfx")
    if n < PN: a(f"s_waitcnt vmcnt({PD-1})")
    if n == PN and S1G == 2: lds_flag_wait("pg", 0x60, 4, [], 1, "v47", 56)
    a(f"global_load_dwordx4 v[{100+4*n}:{103+4*n}], v{8+(i>>3)}, {V} offset:{(i&7)*512}{NT}")
if XSW:
    a("s_cmp_lt_u32 s39, 14")
    a("s_cbranch_scc1 L_B_pfx")
    a("s_lshl_b32 s7, s39, 16")
    a("v_subrev_u32 v9, s7, v9")
    a("s_and_b32 s7, s39, 1")
    a(f"s_mul_i32 s7, s7, {XSW*512}")
    a("v_add_u32 v9, s7, v9")
    for aa in range(7):
        for x_ in range(XSW):
            a(f"global_load_dwordx4 v[{64+4*((aa*XSW+x_)%8)}:{67+4*((aa*XSW+x_)%8)}], v9, {V} offset:{(8-2*XSW+x_)*512}{NT}")
        if aa < 6: a("v_add_u32 v9, 0x10000, v9")
    a("L_B_pfx:")
ts(1)
if PW < 16: a(f"s_waitcnt vmcnt({PW})")
a(f"ds_write_b32 v45, v46 offset:{L_FL+0x70}")
if WPF2:
    a("s_cmp_lt_u32 s39, 7")
    a("s_cbranch_scc1 L_B_pf2")
    a("s_sub_u32 s7, s39, 7")
    a("s_lshl_b32 s7, s7, 2")
    a("s_add_u32 s7, s7, s44")
    a("s_mul_i32 s7, s7, 6400")
    a("s_min_u32 s7, s7, 222976")
    a("s_mul_i32 s51, s4, 458752")
    a("s_add_u32 s7, s7, s51")
    a("s_add_u32 s7, s7, 229376")
    a("v_min_u32 v5, 49, v1")
    a("v_lshl_add_u32 v5, v5, 7, s7")
    a(f"global_load_dword v40, v5, {WO}{NTW}")
    if int(opts.get("w1pf", 1)):
        a("s_sub_u32 s7, s39, 7")
        a("s_lshl_b32 s7, s7, 2")
        a("s_add_u32 s7, s7, s44")
        a("s_mul_i32 s7, s7, 13")
        a("v_mul_u32_u24 v5, 52, v1")
        a("v_lshrrev_b32 v5, 8, v5")
        a("v_mul_u32_u24 v6, 5, v5")
        a("v_sub_u32 v6, v1, v6")
        a("v_add_u32 v5, s7, v5")
        a("v_min_u32 v5, 447, v5")
        a("v_mul_u32_u24 v5, 3584, v5")
        a("s_mul_i32 s7, s4, 448")
        a("v_lshl_add_u32 v6, v6, 7, s7")
        a("s_add_u32 s7, s7, 444")
        a("v_min_u32 v6, s7, v6")
        a("v_add_u32 v5, v5, v6")
        a(f"global_load_dword v41, v5, {W1}{NTW}")
a(f"s_waitcnt vmcnt({int(opts.get('fw2', 6))})")
a(f"ds_write_b32 v45, v46 offset:{L_FL+0xF0}")
a(f"s_waitcnt vmcnt({int(opts.get('fw', 0))})")
a(f"ds_write_b32 v45, v46 offset:{L_FL+0xC0}")
a("s_branch L_B_pf3")
a("L_B_pf2:")
a("s_cmp_eq_u32 s3, 8")
a("s_cbranch_scc0 L_B_pf3")
a(f"s_load_dword s6, {WS}, 0")
a("s_lshl_b32 s7, s4, 11")
a(f"s_add_u32 s7, s7, {RDA}")
a("v_and_b32 v60, 15, v1")
a("v_lshl_add_u32 v61, v60, 7, s7")
a("s_getreg_b32 s54, hwreg(HW_REG_XCC_ID)")
a("s_setprio 3")
a("s_waitcnt lgkmcnt(0)")
a("s_mul_i32 s6, s6, 0x9e3779b1\ns_add_u32 s6, s6, 0x7f4a7c15")
poll("ra", [f"global_load_dwordx2 v[62:63], v61, {WS} sc1"], [chk_tag([62], None)])
a("v_cmp_ne_u32 vcc, s54, v63")
a("s_cmp_eq_u64 vcc, 0")
a(f"s_cselect_b32 s7, {2 if FAST else 1}, 1")
a("v_mov_b32 v5, s7")
a(f"ds_write_b32 v47, v5 offset:{L_FL+0xB0}")
a("L_B_pf3:")
ts(2)
end_wave()
pad("bh2")
a("L_B_hi2:")
if DEBUG:
    for k in range(1, 16): a(f"s_mov_b64 s[{64+2*k}:{65+2*k}], 0")
a("s_cmp_lt_u32 s3, 7")
a("s_cbranch_scc1 L_B_join")
a("L_w7:")
a(f"s_load_dword s6, {WS}, 0")
a("v_mov_b32 v12, -1\nv_mov_b32 v13, -1\nv_mov_b32 v14, -1\nv_mov_b32 v15, -1")
a("s_cmp_lt_u32 s39, 14")
a("s_cbranch_scc0 L_B_exit")
a("s_cmp_lt_u32 s39, 7")
a("s_cbranch_scc0 L_w7_a")
a("s_lshl_b32 s7, s39, 3")
a("s_add_u32 s7, s7, s4")
a("s_lshl_b32 s7, s7, 7")
a(f"s_add_u32 s7, s7, {YP}")
a("v_lshl_add_u32 v5, v4, 4, s7")
a("s_mov_b64 exec, 0xff")
a(f"global_store_dwordx4 v5, v[12:15], {WS} sc1")
a("s_mov_b64 exec, -1")
a("s_branch L_w7_b")
a("L_w7_a:")
a("s_mul_i32 s57, s4, 7")
a("s_add_u32 s57, s57, s39")
a("s_sub_u32 s57, s57, 7")
a("s_mul_i32 s7, s57, 896")
a(f"s_add_u32 s7, s7, {ZP}")
a("v_min_u32 v6, 55, v1")
a("v_lshl_add_u32 v5, v6, 4, s7")
a(f"global_store_dwordx4 v5, v[12:15], {WS} sc1")
a("v_mov_b32 v6, 0")
a(f"global_load_ushort v16, v6, {OUT}")
a("L_w7_b:")
a("s_lshl_b32 s7, s39, 3")
a("s_add_u32 s7, s7, s4")
a("s_lshl_b32 s7, s7, 7")
a(f"s_add_u32 s7, s7, {RDY}")
a("v_mov_b32 v5, s7")
a("s_waitcnt vmcnt(0) lgkmcnt(0)")
a("s_mul_i32 s7, s6, 0x9e3779b1\ns_add_u32 s7, s7, 0x7f4a7c15")
a("v_mov_b32 v6, s7")
a("s_mov_b64 exec, 1")
a(f"global_store_dword v5, v6, {WS} sc1")
a("s_mov_b64 exec, -1")
a("L_B_join:")
a(f"s_load_dword s6, {WS}, 0")
a(f"s_mov_b32 {SEL_LO}, 0x05040100")
a(f"s_mov_b32 {SEL_HI}, 0x07060302")
a(f"s_mov_b32 {MHI}, 0xffff0000")
a("v_lshlrev_b32 v2, 3, v4")
a("v_bfe_u32 v5, v1, 3, 1")
a("v_lshl_add_u32 v2, v5, 2, v2")
a("v_bfe_u32 v5, v1, 4, 1")
a("v_lshl_add_u32 v2, v5, 1, v2")
a("v_lshrrev_b32 v5, 5, v1")
a("v_add_u32 v2, v2, v5")
a("L_B_go:")
a("s_cmp_lt_u32 s39, 14")
a("s_cbranch_scc0 L_B_exit")
a("v_mov_b32 v6, 0")
WOG = int(opts.get("wog", 0x80))
a("s_cmp_lt_u32 s39, 7")
a("s_cbranch_scc0 L_B_go_f")
lds_flag_wait("pubw", 0x60, 8, [], 5, "v6", 56)
a("s_mul_i32 s6, s6, 0x9e3779b1\ns_add_u32 s6, s6, 0x7f4a7c15")
a("s_branch L_stage_wo")
a("L_B_go_f:")
lds_flag_wait("pub", 0x60, 8, [], 5, "v6", 56)
a("s_mul_i32 s6, s6, 0x9e3779b1\ns_add_u32 s6, s6, 0x7f4a7c15")
a("s_branch L_stage_ffn")
a("L_B_exit:")
end_wave()
pad("wo1")

blk("W")
a("L_stage_wo:")
ts(8)
a("s_lshl_b32 s7, s4, 9")
a("s_lshl_b32 s51, s3, 6")
a("s_add_u32 s7, s7, s51")
a("s_mul_i32 s7, s7, 896")
a("s_lshl_b32 s51, s39, 7")
a("s_add_u32 s7, s7, s51")
a("v_mul_u32_u24 v5, 896, v3")
a("v_lshl_add_u32 v5, v4, 4, v5")
a("v_add_u32 v5, s7, v5")
WD = int(opts.get("wd", 8))
for i in range(8):
    if i >= WD: a(f"s_waitcnt vmcnt({WD-1})")
    EXP_NOWO = int(opts.get("nowo", 0))
    a(f"global_load_dwordx4 v[{8+4*i}:{11+4*i}], v5, {WO}{NTO}")
    if i < 7 and not EXP_NOWO: a(f"v_add_u32 v5, {8*896}, v5")
a("v_and_b32 v60, 15, v1")
a("s_lshr_b32 s59, s3, 2")
a("s_and_b32 s58, s3, 3")
a("v_lshrrev_b32 v59, 4, v1")
a("s_lshl_b32 s7, s3, 13")
a(f"s_add_u32 s7, s7, {L_W}")
a("v_lshl_add_u32 v40, v1, 4, s7")
a("v_bfe_u32 v5, v1, 2, 2")
a("v_lshl_add_u32 v5, v59, 3, v5")
a("v_lshlrev_b32 v41, 7, v5")
a("v_and_b32 v5, 3, v1")
a("v_lshl_add_u32 v41, v5, 3, v41")
a("v_add_u32 v41, s7, v41")
a("v_bfe_u32 v5, v1, 4, 1")
a("v_lshlrev_b32 v45, 1, v5")
a("v_lshrrev_b32 v5, 5, v1")
a("v_add_u32 v45, v45, v5")
a("v_lshl_add_u32 v45, v45, 4, v60")
a("s_lshl_b32 s7, s3, 8")
a("v_lshl_add_u32 v45, v45, 2, s7")
a("v_and_b32 v5, 31, v1")
a("v_lshlrev_b32 v47, 3, v5")
a("s_lshl_b32 s7, s39, 3")
a("s_add_u32 s7, s7, s4")
a("s_lshl_b32 s7, s7, 7")
a(f"s_add_u32 s7, s7, {YP}")
a("v_lshl_add_u32 v46, v5, 2, s7")
a("s_lshl_b32 s55, s4, 1")
a("s_add_u32 s55, s55, s59")
a("v_mov_b32 v6, 0")
h = spin_head("dec")
a(f"ds_read_b32 v5, v6 offset:{L_FL+0xB0}")
a("s_waitcnt lgkmcnt(0)")
a("v_readfirstlane_b32 s52, v5")
a("s_cmp_lg_u32 s52, 0")
spin_tail(h)
a("s_cmp_eq_u32 s52, 2")
a("s_cbranch_scc1 L_wo_fast")
a("s_lshl_b32 s7, s4, 11")
a("s_lshl_b32 s51, s59, 3")
a("s_add_u32 s7, s7, s51")
a(f"s_add_u32 s7, s7, {LSE}")
a("v_lshl_add_u32 v48, v59, 9, s7")
a("s_movk_i32 s61, 128")
a("s_lshl_b32 s7, s55, 13")
a("s_lshl_b32 s51, s58, 7")
a("s_add_u32 s7, s7, s51")
a(f"s_add_u32 s7, s7, {OP}")
a("v_lshlrev_b32 v43, 9, v60")
a("v_lshl_add_u32 v43, v59, 4, v43")
a("v_add_u32 v43, s7, v43")
a("v_add_u32 v44, 64, v43")
a("s_branch L_wo_go")
a("L_wo_fast:")
a("s_lshl_b32 s7, s55, 7")
a(f"s_add_u32 s7, s7, {FO+LSE}")
a("v_lshl_add_u32 v48, v59, 5, s7")
a("s_movk_i32 s61, 8")
a("s_lshl_b32 s7, s55, 13")
a("s_lshl_b32 s51, s58, 11")
a("s_add_u32 s7, s7, s51")
a(f"s_add_u32 s7, s7, {FO+OP}")
a("v_lshl_add_u32 v43, v1, 4, s7")
a("v_add_u32 v44, 0x400, v43")
a("L_wo_go:")
a("v_add_u32 v49, s61, v48")
a("v_add_u32 v50, s61, v49")
a("v_add_u32 v51, s61, v50")
WL = [f"global_load_dwordx2 v[{96+2*i}:{97+2*i}], v{48+i}, {WS} sc1" for i in range(4)] + \
     [f"global_load_dwordx4 v[104:107], v43, {WS} sc1", f"global_load_dwordx4 v[108:111], v44, {WS} sc1"]
PQ = int(opts.get("pq", 6))
for i in range(8):
    if i == PQ:
        for x in WL: a(x)
    a(f"s_waitcnt vmcnt({7-i + (6 if i >= PQ else 0)})")
    a(f"ds_write_b128 v40, v[{8+4*i}:{11+4*i}] offset:{i*1024}")
if PQ >= 8:
    for x in WL: a(x)
for sg in range(2):
    for t in range(4):
        r = 64 + (sg*4 + t)*4
        a(f"ds_read_b64_tr_b16 v[{r}:{r+1}], v41 offset:{sg*4096 + t*32}")
        a(f"ds_read_b64_tr_b16 v[{r+2}:{r+3}], v41 offset:{sg*4096 + t*32 + 512}")
ts(9)
def alpha():
    a("v_max3_f32 v54, v96, v98, v100")
    a("v_max_f32 v54, v54, v102")
    xlane("v_max_f32", "v54", "v55", ["p16", "p32"])
    for i in range(4): a(f"v_sub_f32 v{96+2*i}, v{96+2*i}, v54")
    for i in range(4): a(f"v_exp_f32 v{96+2*i}, v{96+2*i}")
    a("v_add_f32 v54, v96, v98")
    a("v_add_f32 v56, v100, v102")
    a("v_add_f32 v54, v54, v56")
    xlane("v_add_f32", "v54", "v55", ["p16", "p32"])
    a("v_rcp_f32 v54, v54")
    for i in range(4): a(f"v_mul_f32 v{96+2*i}, v{96+2*i}, v54")
    ts(10)
poll2("op", WL, [chk_tag([97+2*i], None) for i in range(4)] + [chk_sent4(104, "v52"), chk_sent4(108, "v53")], 4, alpha)
a("s_waitcnt lgkmcnt(0)")
ts(11)
for t in range(4):
    a(f"v_mfma_f32_16x16x32_bf16 v[{112+4*t}:{115+4*t}], v[104:107], v[{64+4*t}:{67+4*t}], 0")
for t in range(4):
    a(f"v_mfma_f32_16x16x32_bf16 v[{112+4*t}:{115+4*t}], v[108:111], v[{80+4*t}:{83+4*t}], v[{112+4*t}:{115+4*t}]")
for t in range(4):
    a(f"v_mul_f32 v{52+t}, v96, v{112+4*t}")
    for r in range(1, 4): a(f"v_fmac_f32 v{52+t}, v{96+2*r}, v{112+4*t+r}")
a("v_permlane32_swap_b32 v52, v53")
a("v_permlane32_swap_b32 v54, v55")
a("v_add_f32 v52, v52, v53")
a("v_add_f32 v54, v54, v55")
a("v_permlane16_swap_b32 v52, v54")
a("v_add_f32 v52, v52, v54")
a(f"ds_write_b32 v45, v52 offset:{L_RED}")
a("s_waitcnt lgkmcnt(0)")
a("s_barrier")
ts(12)
a("s_cmp_lg_u32 s3, 0")
a("s_cbranch_scc1 L_wo_end")
for w in range(8): a(f"ds_read_b64 v[{80+2*w}:{81+2*w}], v47 offset:{L_RED + 256*w}")
a("s_mov_b32 s34, -1")
a("s_mov_b32 s35, 0")
a("s_waitcnt lgkmcnt(0)")
for (x, y) in ((80, 82), (84, 86), (88, 90), (92, 94), (80, 84), (88, 92), (80, 88)):
    a(f"v_add_f32 v{x}, v{x}, v{y}")
    a(f"v_add_f32 v{x+1}, v{x+1}, v{y+1}")
a("v_cvt_pk_bf16_f32 v80, v80, v81")
a("v_min_u32 v80, -2, v80")
a("s_mov_b64 exec, s[34:35]")
a(f"global_store_dword v46, v80, {WS} sc1")
a("s_mov_b64 exec, -1")
ts(13)
a("L_wo_end:")
end_wave()

blk("F")
a("L_stage_ffn:")
a("s_mul_i32 s57, s4, 7")
a("s_add_u32 s57, s57, s39")
a("s_sub_u32 s57, s57, 7")
a("s_cmp_eq_u32 s3, 7")
a("s_cbranch_scc1 L_final")
a("s_lshl_b32 s7, s3, 10")
a(f"s_add_u32 s7, s7, {RDY}")
a("v_lshl_add_u32 v6, v4, 7, s7")
a("s_lshl_b32 s51, s3, 7")
a("v_lshl_add_u32 v5, v2, 1, s51")
a(f"global_load_ushort v40, v5, {X}")
a("v_lshrrev_b32 v59, 4, v1")
a("v_and_b32 v60, 15, v1")
a("v_lshl_add_u32 v45, v59, 3, v4")
a("s_lshl_b32 s52, s57, 6")
a("v_lshl_add_u32 v5, v45, 1, s52")
a(f"global_load_ushort v42, v5, {B1}")
TGL = int(opts.get("tgl", 1))
if TGL:
    a("v_mov_b32 v122, v6")
    a(f"global_load_dword v123, v122, {WS} sc1")
else:
    poll("tg", [f"global_load_dword v5, v6, {WS} sc1"], [chk_tag([5], None)])
a("v_lshrrev_b32 v43, 2, v1")
a("v_and_b32 v44, 3, v1")
a("v_mov_b32 v61, 0")
W2G = int(opts.get("w2g", 0xF0))
if W2G: lds_flag_wait("f2", W2G, 4, [], 4, "v61", 112)
a(f"s_mul_i32 s7, s57, {32*896}")
a("s_lshl_b32 s51, s3, 7")
a("s_add_u32 s7, s7, s51")
a("v_mul_u32_u24 v6, 896, v3")
a("v_lshl_add_u32 v6, v4, 4, v6")
a("v_add_u32 v5, s7, v6")
for i in range(4):
    a(f"global_load_dwordx4 v[{24+4*i}:{27+4*i}], v5, {W2}{NTW}")
    if i < 3: a(f"v_add_u32 v5, {8*896}, v5")
ts(7)
lds_flag_wait("fg", 0xC0, 4, [], 4, "v61", 112)
ts(8)
a(f"s_mul_i32 s7, s3, {64*3584}")
a("s_lshl_b32 s52, s57, 6")
a("s_add_u32 s7, s7, s52")
a("v_mul_u32_u24 v5, 3584, v43")
a("v_lshl_add_u32 v5, v44, 4, v5")
a("v_add_u32 v5, s7, v5")
for i in range(4):
    a(f"global_load_dwordx4 v[{8+4*i}:{11+4*i}], v5, {W1}{NTW}")
    if i < 3: a(f"v_add_u32 v5, {16*3584}, v5")
a(f"s_add_u32 s51, s51, {L_W2}")
a("v_add_u32 v41, s51, v6")
a("s_lshl_b32 s7, s3, 12")
a(f"s_add_u32 s7, s7, {L_W}")
a("v_lshl_add_u32 v47, v1, 4, s7")
a("v_bfe_u32 v5, v1, 2, 2")
a("v_lshl_add_u32 v5, v59, 3, v5")
a("v_lshlrev_b32 v48, 6, v5")
a("v_lshl_add_u32 v48, v44, 3, v48")
a("v_add_u32 v48, s7, v48")
a("v_mul_u32_u24 v49, 896, v5")
a("v_lshl_add_u32 v49, v44, 3, v49")
a("s_lshl_b32 s7, s3, 8")
a(f"s_add_u32 s7, s7, {L_W2}")
a("v_add_u32 v49, s7, v49")
a("s_lshl_b32 s7, s3, 10")
a(f"s_add_u32 s7, s7, {YP}")
a("v_lshl_add_u32 v46, v1, 4, s7")
a("s_lshl_b32 s7, s3, 7")
a("v_lshl_add_u32 v50, v2, 1, s7")
a("v_lshl_add_u32 v51, v59, 4, s7")
a("s_lshl_b32 s7, s3, 2")
a("v_lshl_add_u32 v54, v60, 5, s7")
a("v_lshlrev_b32 v55, 5, v45")
a("s_mul_i32 s7, s57, 896")
a("s_lshl_b32 s51, s3, 8")
a("s_add_u32 s7, s7, s51")
a(f"s_add_u32 s7, s7, {ZP}")
a("v_lshl_add_u32 v62, v1, 1, s7")
a("s_mov_b32 s58, 0x55555555")
a("s_mov_b32 s59, 0x55555555")
a("s_lshl_b32 s7, s3, 3")
a("v_mov_b32 v63, s7")
a("v_mov_b32 v61, 0")
for r in range(4): a(f"v_mov_b32 v{96+r}, 0x3f803f80")
for i in range(4):
    a(f"s_waitcnt vmcnt({7-i})")
    a(f"ds_write_b128 v41, v[{24+4*i}:{27+4*i}] offset:{i*8*896}")
for i in range(4):
    a(f"s_waitcnt vmcnt({3-i})")
    a(f"ds_write_b128 v47, v[{8+4*i}:{11+4*i}] offset:{i*1024}")
for sg in range(2):
    for t in range(2):
        r = 64 + (sg*2 + t)*4
        a(f"ds_read_b64_tr_b16 v[{r}:{r+1}], v48 offset:{sg*2048 + t*32}")
        a(f"ds_read_b64_tr_b16 v[{r+2}:{r+3}], v48 offset:{sg*2048 + t*32 + 256}")
a("s_waitcnt lgkmcnt(0)")
for t in range(2): a(f"v_mfma_f32_16x16x32_bf16 v[{100+4*t}:{103+4*t}], v[96:99], v[{64+4*t}:{67+4*t}], 0")
for t in range(2): a(f"v_mfma_f32_16x16x32_bf16 v[{100+4*t}:{103+4*t}], v[96:99], v[{72+4*t}:{75+4*t}], v[{100+4*t}:{103+4*t}]")
a(f"ds_write_b32 v54, v100 offset:{L_C}")
a(f"ds_write_b32 v54, v104 offset:{L_C+512}")
a("s_waitcnt vmcnt(0) lgkmcnt(0)")
a("s_barrier")
ts(9)
a(f"ds_read_b128 v[100:103], v55 offset:{L_C}")
a(f"ds_read_b128 v[104:107], v55 offset:{L_C+16}")
a("s_cmp_gt_u32 s3, 3")
a("s_cbranch_scc1 L_ffn_now2")
for T in range(8):
    if T == 4:
        a("s_cmp_eq_u32 s3, 3")
        a("s_cbranch_scc1 L_ffn_now2")
    r = 128 + 4*T
    a(f"ds_read_b64_tr_b16 v[{r}:{r+1}], v49 offset:{T*32}")
    a(f"ds_read_b64_tr_b16 v[{r+2}:{r+3}], v49 offset:{T*32 + 4*896}")
a("L_ffn_now2:")
a("v_lshlrev_b32 v40, 16, v40")
a("v_lshlrev_b32 v42, 16, v42")
a("s_mov_b32 s36, 0")
a("s_mov_b32 s37, 0x80000000")
a(f"v_mov_b32 v56, {f32(1.0/3)}")
a("s_waitcnt lgkmcnt(0)")
a("v_add_f32 v100, v100, v101")
a("v_add_f32 v102, v102, v103")
a("v_add_f32 v104, v104, v105")
a("v_add_f32 v100, v100, v102")
a("v_add_f32 v104, v104, v106")
a("v_add_f32 v57, v100, v104")
if TGL:
    a("v_cmp_ne_u32 vcc, s6, v123")
    a("s_cmp_eq_u64 vcc, 0")
    a("s_cbranch_scc1 L_tg_ok")
    poll("tg", [f"global_load_dword v123, v122, {WS} sc1"], [chk_tag([123], None)])
    a("L_tg_ok:")
ts(10)
poll("yp", [f"global_load_dwordx4 v[96:99], v46, {WS} sc1"], [chk_sent4(96, "v52")])
ts(11)
for k in range(4):
    a(f"v_lshlrev_b32 v{104+2*k}, 16, v{96+k}")
    a(f"v_and_b32 v{105+2*k}, {MHI}, v{96+k}")
reduce8_hi(R(104, 8), 52)
bf16r("v52")
a("v_add_f32 v52, v52, v40")
a("v_cvt_pk_bf16_f32 v52, v52, v52")
a(f"ds_write_b16 v50, v52 offset:{L_H}")
a(f"ds_read_b128 v[96:99], v51 offset:{L_H}")
a(f"ds_read_b128 v[112:115], v51 offset:{L_H+64}")
a(f"v_and_b32 v52, {MHI}, v52")
a("v_mul_f32 v53, v52, v52")
wave_sum2("v52", "v53", None, None)
a("s_waitcnt lgkmcnt(0)")
for t in range(2): a(f"v_mfma_f32_16x16x32_bf16 v[{100+4*t}:{103+4*t}], v[96:99], v[{64+4*t}:{67+4*t}], 0")
for t in range(2): a(f"v_mfma_f32_16x16x32_bf16 v[{100+4*t}:{103+4*t}], v[112:115], v[{72+4*t}:{75+4*t}], v[{100+4*t}:{103+4*t}]")
a("s_mov_b64 exec, s[36:37]")
a(f"ds_write_b64 v63, v[52:53] offset:{L_ST}")
a("s_mov_b64 exec, -1")
a(f"ds_write_b32 v54, v100 offset:{L_Z}")
a(f"ds_write_b32 v54, v104 offset:{L_Z+512}")
a("s_waitcnt lgkmcnt(0)")
a("s_barrier")
ts(12)
a("s_cmp_gt_u32 s3, 3")
a("s_cbranch_scc1 L_wo_end")
a(f"ds_read_b128 v[108:111], v61 offset:{L_ST}")
a(f"ds_read_b128 v[112:115], v61 offset:{L_ST+16}")
a(f"ds_read_b128 v[116:119], v61 offset:{L_ST+32}")
a(f"ds_read_b64 v[120:121], v61 offset:{L_ST+48}")
a(f"ds_read_b128 v[100:103], v55 offset:{L_Z}")
a(f"ds_read_b128 v[104:107], v55 offset:{L_Z+16}")
a(f"s_mov_b32 s7, {f32(-LOG2E)}")
a("s_waitcnt lgkmcnt(0)" if DEBUG else "s_waitcnt lgkmcnt(2)")
for (x, y) in ((108, 110), (112, 114), (116, 118), (108, 112), (116, 120), (108, 116)):
    a(f"v_add_f32 v{x}, v{x}, v{y}")
    a(f"v_add_f32 v{x+1}, v{x+1}, v{y+1}")
ln_finish("v108", "v109", "v52", "v53", "v58")
a("s_waitcnt lgkmcnt(0)")
a("v_add_f32 v100, v100, v101")
a("v_add_f32 v102, v102, v103")
a("v_add_f32 v104, v104, v105")
a("v_add_f32 v100, v100, v102")
a("v_add_f32 v104, v104, v106")
a("v_add_f32 v100, v100, v104")
a("v_fma_f32 v100, -v52, v57, v100")
a("v_mul_f32 v100, v100, v53")
bf16r("v100")
a("v_add_f32 v100, v100, v42")
bf16r("v100")
a("v_mul_f32 v101, s7, abs(v100)")
a("v_exp_f32 v101, v101")
a("v_max_f32 v107, 0, v100")
bf16r("v101")
a("v_add_f32 v102, 1.0, v101")
a("v_log_f32 v102, v102")
a("v_fma_f32 v103, v101, v56, -0.5")
a("v_fma_f32 v103, v101, v103, 1.0")
a("v_mul_f32 v103, v101, v103")
a(f"v_cmp_gt_f32 vcc, {f32(2.0**-6)}, v101")
a(f"v_mul_f32 v102, {f32(math.log(2))}, v102")
a("v_cndmask_b32 v102, v102, v103, vcc")
bf16r("v102")
a("v_add_f32 v102, v102, v107")
bf16r("v102")
a(f"v_mul_f32 v103, {f32(-2*LOG2E)}, v102")
a("v_exp_f32 v103, v103")
a("v_mul_f32 v105, v102, v102")
a(f"v_cmp_gt_f32 vcc, {f32(2.0**-5)}, v102")
a("v_add_f32 v106, 1.0, v103")
a("v_sub_f32 v103, 1.0, v103")
a("v_rcp_f32 v106, v106")
a("v_mul_f32 v105, v105, v56")
a("v_fma_f32 v105, -v105, v102, v102")
a("v_mul_f32 v103, v103, v106")
a("v_cndmask_b32 v103, v103, v105, vcc")
bf16r("v103")
a("v_mul_f32 v100, v100, v103")
a(f"v_mov_b32_dpp v101, v100 quad_perm:[0,0,2,2] {DPPM}")
a(f"v_mov_b32_dpp v102, v100 quad_perm:[1,1,3,3] {DPPM}")
a("v_cvt_pk_bf16_f32 v101, v101, v102")
a(f"v_mov_b32_dpp v102, v101 row_half_mirror {DPPM}")
a("v_mov_b32_dpp v96, v101 quad_perm:[0,0,0,0] row_mask:0xf bank_mask:0x5")
a("v_mov_b32_dpp v97, v101 quad_perm:[2,2,2,2] row_mask:0xf bank_mask:0x5")
a("v_mov_b32_dpp v98, v101 quad_perm:[0,0,0,0] row_mask:0xf bank_mask:0xa")
a("v_mov_b32_dpp v99, v101 quad_perm:[2,2,2,2] row_mask:0xf bank_mask:0xa")
a("v_mov_b32_dpp v98, v102 quad_perm:[2,2,2,2] row_mask:0xf bank_mask:0x5")
a("v_mov_b32_dpp v99, v102 quad_perm:[0,0,0,0] row_mask:0xf bank_mask:0x5")
a("v_mov_b32_dpp v96, v102 quad_perm:[2,2,2,2] row_mask:0xf bank_mask:0xa")
a("v_mov_b32_dpp v97, v102 quad_perm:[0,0,0,0] row_mask:0xf bank_mask:0xa")
def ffn2(q):
    for T in range(4*q, 4*q+4):
        a(f"v_mfma_f32_16x16x32_bf16 v[{64+4*T}:{67+4*T}], v[96:99], v[{128+4*T}:{131+4*T}], 0")
def ffn2_out(q):
    for rho in range(4):
        a(f"v_mov_b32_dpp v{104+q}, v{64+4*(4*q+rho)} quad_perm:[0,1,2,3] row_mask:{hex(1<<rho)} bank_mask:0xf")
    a(f"v_mov_b32_dpp v{106+q}, v{104+q} quad_perm:[1,1,3,3] {DPPM}")
    a(f"v_cvt_pk_bf16_f32 v{104+q}, v{104+q}, v{106+q}")
    a(f"v_min_u32 v{104+q}, -2, v{104+q}")
    a("s_mov_b64 exec, s[58:59]")
    a(f"global_store_dword v62, v{104+q}, {WS} offset:{128*q} sc1")
    a("s_mov_b64 exec, -1")
ffn2(0)
a("s_cmp_eq_u32 s3, 3")
a("s_cbranch_scc1 L_ffn_last")
ffn2(1)
ffn2_out(0)
ffn2_out(1)
ts(13)
if int(opts.get("fdl", 4)):
    a("s_waitcnt vmcnt(0)")
    a("v_mov_b32 v5, 1")
    a(f"ds_write_b32 v63, v5 offset:{L_FL+0xD0}")
end_wave()
a("L_ffn_last:")
a("s_nop 7")
ffn2_out(0)
ts(13)
if int(opts.get("fdl", 4)):
    a("s_waitcnt vmcnt(0)")
    a("v_mov_b32 v5, 1")
    a(f"ds_write_b32 v63, v5 offset:{L_FL+0xD0}")
end_wave()

pad("fin")
blk("E")
a("L_final:")
a("v_min_u32 v5, 55, v1")
a("v_mul_u32_u24 v5, 896, v5")
a("s_lshl_b32 s7, s57, 4")
a(f"s_add_u32 s7, s7, {ZP}")
a("v_add_u32 v5, s7, v5")
a("v_and_b32 v6, 7, v2")
a("s_lshl_b32 s7, s57, 3")
a("v_add_u32 v6, s7, v6")
a("v_lshlrev_b32 v6, 1, v6")
a("s_mov_b32 s36, 0x01010101")
a("s_mov_b32 s37, 0x01010101")
a("v_min_u32 v7, 55, v1")
a("v_lshlrev_b32 v7, 7, v7")
a(f"v_add_u32 v7, {RDY + 7*1024}, v7")
poll("rd", [f"global_load_dword v8, v7, {WS} sc1"], [chk_tag([8], None)])
a("s_barrier")
a("s_barrier")
a(f"ds_read_u16 v50, v6 offset:{L_H}")
a("v_mov_b32 v10, 0")
a("v_mov_b32 v11, s6")
ts(12)
if int(opts.get("fdl", 4)):
    a("v_mov_b32 v9, 0")
    lds_flag_wait("fd", 0xD0, 8, [], int(opts.get("fdl", 4)), "v9", 56, ge=True)
poll("fin", [f"global_load_dwordx4 v[96:99], v5, {WS} sc1"], [chk_sent4(96, "v48")])
ts(13)
a("v_cmp_gt_u32 vcc, 56, v1")
a("s_waitcnt lgkmcnt(0)")
a("v_lshlrev_b32 v50, 16, v50")
for k in range(4): a(f"v_cndmask_b32 v{96+k}, 0, v{96+k}, vcc")
for k in range(4):
    a(f"v_lshlrev_b32 v{100+2*k}, 16, v{96+k}")
    a(f"v_and_b32 v{101+2*k}, {MHI}, v{96+k}")
reduce8_hi(R(100, 8), 52)
xlane("v_add_f32", "v52", None, ["q1", "q2", "hm"])
bf16r("v52")
a("v_add_f32 v52, v52, v50")
a("v_cvt_pk_bf16_f32 v52, v52, v52")
a("s_mov_b64 exec, s[36:37]")
a(f"global_store_short v6, v52, {OUT}")
a("s_cmp_lg_u32 s57, 0")
a("s_cbranch_scc1 L_fin_end")
a("s_mov_b64 exec, 1")
a(f"global_store_dword v10, v11, {WS}{' sc1' if int(opts.get('epsc', 0)) else ''}")
a("L_fin_end:")
a("s_mov_b64 exec, -1")
ts(14)
end_wave()

if DEBUG:
    a("L_dump:")
    a("s_waitcnt lgkmcnt(0)")
    a("s_mov_b64 exec, 1")
    if DIAG:
        a(f"s_cmp_eq_u32 s2, {DIAG[0]}")
        a("s_cbranch_scc0 L_end")
        a(f"s_cmp_eq_u32 s3, {DIAG[1]}")
        a("s_cbranch_scc0 L_end")
        a(f"s_sub_u32 s7, s{64+2*DIAG[2]}, s64")
        a(f"s_mul_i32 s7, s7, {DIAG[3]}")
        a("s_min_u32 s7, s7, 20000")
        a("s_add_u32 s7, s7, 3000")
        a("s_mov_b32 s38, 100000")
        a("L_diag:")
        a("s_memrealtime s[60:61]")
        a("s_waitcnt lgkmcnt(0)")
        a("s_sub_u32 s51, s60, s64")
        a("s_cmp_ge_u32 s51, s7")
        a("s_cbranch_scc1 L_end")
        a("s_sub_u32 s38, s38, 1")
        a("s_cmp_eq_u32 s38, 0")
        a("s_cbranch_scc0 L_diag")
    elif HDBG:
        a("s_cmp_lt_u32 s2, 8")
        a("s_cselect_b32 s7, 0, 1")
        a("s_or_b32 s7, s7, s3")
        a("s_cmp_eq_u32 s7, 0")
        a("s_cbranch_scc0 L_dump_k")
        a("s_lshl_b32 s7, s2, 2")
        a("v_mov_b32 v5, s7")
        a("v_mov_b32 v6, s64")
        a(f"global_store_dword v5, v6, {DBG}")
        a("s_endpgm")
        a("L_dump_k:")
        a(f"s_cmp_eq_u32 s5, {15 if IL else 23}")
        a("s_cbranch_scc0 L_end")
        a("s_cmp_eq_u32 s3, 7")
        a("s_cbranch_scc0 L_end")
        a("s_lshl_b32 s7, s4, 2")
        a("v_mov_b32 v5, s7")
        a(f"v_mov_b32 v6, s{64+30}")
        a(f"global_store_dword v5, v6, {DBG} offset:32")
    else:
        a("s_lshl_b32 s7, s2, 4")
        a("s_add_u32 s7, s7, s3")
        a("s_lshl_b32 s7, s7, 6")
        a(f"s_add_u32 s7, s7, {TS}")
        a("v_mov_b32 v5, s7")
        for k in ((0, GSTAT[0]) if GSTAT else range(16)):
            a(f"v_mov_b32 v6, s{64+2*k}")
            a(f"global_store_dword v5, v6, {WS} offset:{4*k}{' sc1' if GSTAT else ''}")
        if GSTAT:
            a("s_cmp_eq_u32 s2, 248")
            a("s_cbranch_scc0 L_end")
            a("s_cmp_eq_u32 s3, 5")
            a("s_cbranch_scc0 L_end")
            a("s_mov_b64 exec, -1")
            a("s_mov_b32 s38, 100000")
            a("L_g1:")
            a("s_memrealtime s[60:61]")
            a("s_waitcnt lgkmcnt(0)")
            a("s_sub_u32 s51, s60, s64")
            a("s_cmp_ge_u32 s51, 2000")
            a("s_cbranch_scc1 L_g2")
            a("s_sub_u32 s38, s38, 1")
            a("s_cmp_eq_u32 s38, 0")
            a("s_cbranch_scc0 L_g1")
            a("L_g2:")
            a("v_mov_b32 v20, 0x7fffffff")
            a("v_mov_b32 v21, 0x80000000")
            a("v_and_b32 v22, 15, v1")
            a(f"v_cmp_le_u32 vcc, {GSTAT[1]}, v22")
            a(f"v_cmp_gt_u32 s[46:47], {GSTAT[2]}, v22")
            a("s_and_b64 s[46:47], s[46:47], vcc")
            a("v_cmp_gt_u32 s[48:49], 12, v22")
            a("s_mov_b32 s52, 0")
            a("L_g3:")
            a("s_lshl_b32 s7, s52, 12")
            a(f"s_add_u32 s7, s7, {TS}")
            a("v_lshl_add_u32 v23, v1, 6, s7")
            a(f"global_load_dword v24, v23, {WS} sc1")
            a(f"global_load_dword v25, v23, {WS} offset:{4*GSTAT[0]} sc1")
            a("s_waitcnt vmcnt(0)")
            a("v_subrev_u32 v24, s64, v24")
            a("v_cmp_eq_u32 vcc, 0, v25")
            a("v_subrev_u32 v25, s64, v25")
            a("v_cndmask_b32 v25, v25, v21, vcc")
            a("v_cndmask_b32 v25, v21, v25, s[46:47]")
            a("v_cndmask_b32 v24, v20, v24, s[48:49]")
            if GSTAT[3] != 2:
                a("s_bitcmp1_b32 s52, 1")
                a(f"s_cbranch_scc{1 - GSTAT[3]} L_g4")
            a("v_max_i32 v21, v21, v25")
            a("L_g4:")
            a("v_min_i32 v20, v20, v24")
            a("s_add_u32 s52, s52, 1")
            a("s_cmp_lt_u32 s52, 64")
            a("s_cbranch_scc1 L_g3")
            xlane("v_max_i32", "v21", "v26", ["q1", "q2", "hm", "r8", "p16", "p32"])
            xlane("v_min_i32", "v20", "v26", ["q1", "q2", "hm", "r8", "p16", "p32"])
            a("v_sub_u32 v21, v21, v20")
            a("v_readfirstlane_b32 s7, v21")
            a("v_readfirstlane_b32 s53, v20")
            a("s_mul_i32 s7, s7, 4")
            a("s_min_u32 s7, s7, 20000")
            a("s_add_u32 s7, s7, 6000")
            a("s_add_u32 s7, s7, s53")
            a("s_mov_b32 s38, 100000")
            a("L_g5:")
            a("s_memrealtime s[60:61]")
            a("s_waitcnt lgkmcnt(0)")
            a("s_sub_u32 s51, s60, s64")
            a("s_cmp_ge_u32 s51, s7")
            a("s_cbranch_scc1 L_end")
            a("s_sub_u32 s38, s38, 1")
            a("s_cmp_eq_u32 s38, 0")
            a("s_cbranch_scc0 L_g5")
a("L_end:")
a("s_endpgm")
a("L_codeend:")
a.raw(f'''.section .rodata,"a"
.p2align 6
.amdhsa_kernel {NAME}_kernel
  .amdhsa_next_free_vgpr 168
  .amdhsa_next_free_sgpr 96
  .amdhsa_accum_offset 168
  .amdhsa_group_segment_fixed_size 0
  .amdhsa_kernarg_size 96
  .amdhsa_user_sgpr_count 2
  .amdhsa_user_sgpr_kernarg_segment_ptr 1
  .amdhsa_system_sgpr_workgroup_id_x 1
  .amdhsa_float_denorm_mode_32 3
.end_amdhsa_kernel''')
open(OUTP, "w").write(a.text())
print("nops inserted:", a.nops, "lines:", len(a.lines))
```
